```python
import torch

def _softmax(x, axis=-1):
    return torch.softmax(x, dim=axis)
def _gelu(x):
    return torch.nn.functional.gelu(x, approximate="tanh")
def _silu(x):
    return torch.nn.functional.silu(x)
def _sigmoid(x):
    return torch.sigmoid(x)
def _layernorm(x, axis=-1, eps=1e-5):
    m = x.mean(dim=axis, keepdim=True)
    v = x.var(dim=axis, keepdim=True, unbiased=False)
    return (x - m) / torch.sqrt(v + eps)
def _scatter_add(tgt, idx, src, axis=0):
    return tgt.clone().index_add_(axis, idx, src)
def _segment_sum(src, seg, n):
    out = torch.zeros((n,) + src.shape[1:], dtype=src.dtype)
    return out.index_add_(0, seg, src)
def _pad(x, pw):
    flat = tuple(v for pair in reversed(pw) for v in pair)
    return torch.nn.functional.pad(x, flat)

kernel_name = 'sequential_preLN__gqa_block_cached__dense_activation_relu__decode'

def setup_inputs():

    _w = (lambda a: (lambda t: t.to(torch.bfloat16) if t.is_floating_point() else t)(torch.as_tensor(a)))
    def _A_setup():
        B, Sq, D = 4, 1, 512
        Hq, Hkv, Sk, Dh = 32, 32, 8192, 128
        assert Hq % Hkv == 0, (Hq, Hkv)
        return {
            "x": _w((lambda *s: torch.randn(*s, dtype=torch.bfloat16) * 0.05)(B, Sq, D)),
            "k_cache": _w((lambda *s: torch.randn(*s, dtype=torch.bfloat16) * 3.2)(B, Hkv, Sk, Dh)),
            "v_cache": _w((lambda *s: torch.randn(*s, dtype=torch.bfloat16) * 0.4)(B, Hkv, Sk, Dh)),
            "wq": _w((lambda *s: torch.randn(*s, dtype=torch.bfloat16) * 3.2)(D, Hq * Dh) * (D ** -0.5)),
            "wo": _w((lambda *s: torch.randn(*s, dtype=torch.bfloat16) * 0.4)(Hq * Dh, D) * ((Hq * Dh) ** -0.5)),
        }
    _A_in = _A_setup()

    def _B_setup():
        B, S, D, Dff = 4, 1, 512, 1376
        return {
            "x": _w((lambda *s: torch.randn(*s, dtype=torch.bfloat16) * 0.05)(B, S, D)),
            "w1": _w((lambda *s: torch.randn(*s, dtype=torch.bfloat16) * 0.05)(D, Dff)),
            "w2": _w((lambda *s: torch.randn(*s, dtype=torch.bfloat16) * 0.05)(Dff, D)),
        }
    _B_in = _B_setup()

    return {
        "A_x": _A_in["x"],
        "A_k_cache": _A_in["k_cache"],
        "A_v_cache": _A_in["v_cache"],
        "A_wq": _A_in["wq"],
        "A_wo": _A_in["wo"],
        "B_x": _B_in["x"],
        "B_w1": _B_in["w1"],
        "B_w2": _B_in["w2"],
    }

def reference(A_x, A_k_cache, A_v_cache, A_wq, A_wo, B_x, B_w1, B_w2):
    def _A_ref(x, k_cache, v_cache, wq, wo):
        B, Sq, D = x.shape
        Hq, Dh = 32, 128
        Hkv = k_cache.shape[1]
        rep = Hq // Hkv
        q = (lambda x, *d: x.permute(*d))((x @ wq).reshape(B, Sq, Hq, Dh), 0, 2, 1, 3)
        k = (lambda x, n, axis: torch.repeat_interleave(x, n, dim=axis))(k_cache, rep, axis=1)
        v = (lambda x, n, axis: torch.repeat_interleave(x, n, dim=axis))(v_cache, rep, axis=1)
        scores = torch.einsum("bhqd,bhkd->bhqk", q, k) * (Dh ** -0.5)
        p = _softmax(scores, axis=-1)
        o = torch.einsum("bhqk,bhkd->bhqd", p, v)
        return (lambda x, *d: x.permute(*d))(o, 0, 2, 1, 3).reshape(B, Sq, Hq * Dh) @ wo

    def _B_ref(x, w1, w2):
        h = torch.einsum("bsd,df->bsf", x, w1)
        zero = torch.zeros_like(h)
        h = torch.maximum(h, zero)
        return torch.einsum("bsf,fd->bsd", h, w2)

    x = A_x
    h = x + _A_ref(_layernorm(x, axis=-1), A_k_cache, A_v_cache, A_wq, A_wo)
    h2 = h + _B_ref(_layernorm(h, axis=-1), B_w1, B_w2)
    return h2
```

```python
import re
TRANS = ("v_exp_f32","v_log_f32","v_rcp_f32","v_rsq_f32","v_sqrt_f32","v_sin_f32","v_cos_f32","v_rcp_iflag_f32")
VCC = [("s",106),("s",107)]
EXEC = [("x",0)]
def regs_of(tok):
    tok = tok.strip()
    neg = tok.lstrip("-")
    if neg.startswith("abs(") or neg.startswith("|"):
        neg = neg.replace("abs(","").replace(")","").replace("|","")
    tok = neg
    m = re.fullmatch(r"([vas])(\d+)", tok)
    if m: return [(m.group(1), int(m.group(2)))]
    m = re.fullmatch(r"([vas])\[(\d+):(\d+)\]", tok)
    if m: return [(m.group(1), i) for i in range(int(m.group(2)), int(m.group(3))+1)]
    if tok == "vcc": return list(VCC)
    if tok == "vcc_lo": return [VCC[0]]
    if tok == "vcc_hi": return [VCC[1]]
    if tok == "exec": return list(EXEC)
    if tok == "m0": return [("m",0)]
    return []
class Ins:
    def __init__(self, text):
        self.text = text
        t = text.split(";")[0].strip()
        self.op = t.split()[0] if t else ""
        rest = t[len(self.op):].strip()
        ops = []; depth = 0; cur = ""
        for ch in rest:
            if ch == "[": depth += 1
            if ch == "]": depth -= 1
            if ch == "," and depth == 0: ops.append(cur.strip()); cur = ""
            else: cur += ch
        if cur.strip(): ops.append(cur.strip())
        self.mods = ""
        if ops:
            parts = ops[-1].split(None, 1)
            if len(parts) == 2 and not parts[0].endswith("("):
                ops[-1] = parts[0]; self.mods = parts[1]
        self.ops = ops
        op = self.op
        self.base = re.sub(r"_(e32|e64|dpp|sdwa)$", "", op)
        self.valu = op.startswith("v_") and not op.startswith("v_mfma")
        self.mfma = op.startswith("v_mfma")
        self.salu = op.startswith("s_")
        self.vmem = op.startswith(("buffer_","global_","flat_"))
        self.ds = op.startswith("ds_")
        self.dl = op.startswith("v_dot")
        self.trans = self.base in TRANS
        self.dpp = op.endswith("_dpp") or "row_" in self.mods or "quad_perm" in self.mods or "wave_" in self.mods
        self.permlane = op.startswith("v_permlane")
        self.readlane = self.base in ("v_readlane_b32","v_readfirstlane_b32")
        self.nop = (int(ops[0],0)+1) if op == "s_nop" else 1
        d, s = self.defs_uses()
        self.defs = set(d); self.uses = set(s)
    def defs_uses(self):
        op, b, ops = self.op, self.base, self.ops
        R = [regs_of(o) for o in ops]
        flat = lambda L: [x for l in L for x in l]
        if self.mfma: return R[0], flat(R[1:4])
        if self.valu:
            if b.startswith("v_cmp"):  return R[0], flat(R[1:])
            if self.permlane and "swap" in b: return R[0]+R[1], R[0]+R[1]
            if b in ("v_fmac_f32","v_dot2c_f32_bf16","v_pk_fmac_f16","v_fmac_f64","v_writelane_b32"): return R[0], flat(R)
            if b in ("v_add_co_u32","v_sub_co_u32","v_subrev_co_u32"): return R[0]+R[1], flat(R[2:])
            if b in ("v_addc_co_u32","v_subb_co_u32"): return R[0]+R[1], flat(R[2:])
            if b == "v_cndmask_b32":
                u = flat(R[1:])
                if len(ops) == 3: u += VCC
                return R[0], u
            u = flat(R[1:])
            if self.dpp and ("bank_mask:0xf" not in self.mods or "row_mask:0xf" not in self.mods): pass
            return R[0], u
        if self.vmem:
            if "load" in op:
                if " lds" in " "+self.mods or op.startswith("global_load_lds"): return [], flat(R)
                return R[0], flat(R[1:])
            if "atomic" in op:
                if "sc0" in self.mods:
                    return R[0], flat(R)
                return [], flat(R)
            if "store" in op: return [], flat(R)
            return [], flat(R)
        if self.ds:
            if op.startswith(("ds_read","ds_bpermute","ds_permute","ds_swizzle")) or "_rtn" in op: return R[0], flat(R[1:])
            return [], flat(R)
        if self.salu:
            if op.startswith(("s_cmp","s_cbranch","s_branch","s_waitcnt","s_nop","s_barrier","s_endpgm","s_sleep","s_setprio","s_bitcmp")):
                return [], flat(R)
            d = list(R[0]) if R else []
            u = flat(R[1:])
            if "saveexec" in op: d += EXEC; u += EXEC
            return d, u
        return [], []
    def store_data(self):
        if self.vmem and "store" in self.op and ("x4" in self.op or "x3" in self.op):
            if self.op.startswith("buffer"): return set(regs_of(self.ops[0]))
            return set(regs_of(self.ops[1]))
        return set()
def mfma_passes(i):
    if "16x16x32" in i.op or "16x16x16" in i.op: return 4
    if "32x32x16" in i.op or "32x32x8" in i.op: return 8
    if "4x4x4" in i.op: return 2
    raise ValueError(i.op)
def required(p, c):
    w = 0
    isv = lambda r: r[0] in "va"
    pv = {r for r in p.defs if isv(r)}; ps = {r for r in p.defs if r[0] == "s"}
    cu = c.uses; cd = c.defs
    if p.valu:
        if c.dpp and pv & cu: w = max(w, 2)
        if c.permlane and pv & cu: w = max(w, 2)
        if c.readlane and pv & cu: w = max(w, 1)
        if c.mfma and pv & cu: w = max(w, 2)
        if p.trans and c.valu and not c.trans and pv & cu: w = max(w, 1)
        if p.trans and (c.vmem or c.ds) and pv & cu: w = max(w, 1)
        if ps:
            if c.valu and ps & cu:
                w = max(w, 4 if c.base in ("v_readlane_b32","v_writelane_b32") else 2)
            if c.vmem and ps & cu: w = max(w, 5)
            if c.salu and ps & cu: w = max(w, 1)
        if p.dl:
            if pv & (cu | cd):
                same = (p.base == c.base)
                if same and c.dl:
                    if c.base == "v_dot2c_f32_bf16": ab = set(regs_of(c.ops[1])) | set(regs_of(c.ops[2]))
                    else: ab = set(regs_of(c.ops[1])) | set(regs_of(c.ops[2]))
                    if pv & ab: w = max(w, 3)
                    if c.base != "v_dot2c_f32_bf16" and (pv & cd) and not (pv & set(regs_of(c.ops[3]))): w = max(w, 3)
                else: w = max(w, 3)
    if p.mfma:
        n = mfma_passes(p); tab = {2:(5,4,2,1),4:(8,6,0,3),8:(12,10,0,7)}[n]
        if c.mfma:
            ab = set(regs_of(c.ops[1])) | set(regs_of(c.ops[2])); cc = set(regs_of(c.ops[3]))
            if pv & ab: w = max(w, tab[0])
            if pv & cc and not (pv == cc and mfma_passes(c) == n): w = max(w, tab[1])
            if pv & cc and pv == cc: w = max(w, tab[2])
            if pv & c.defs and not (pv & cc): w = max(w, tab[0])
        elif c.valu or c.vmem or c.ds:
            if pv & (cu | cd): w = max(w, tab[0])
        pc = set(regs_of(p.ops[3]))
        if c.valu and pc & cd: w = max(w, tab[3])
    sd = p.store_data()
    if sd:
        if c.valu and sd & cd: w = max(w, 2)
        elif (c.vmem or c.ds or c.mfma) and sd & cd: w = max(w, 1)
    return w
class Asm:
    def __init__(self): self.items = []
    def __call__(self, *lines):
        for line in lines:
            for l in line.split("\n"):
                l = l.strip()
                if l: self.items.append(l)
    def label(self, name): self.items.append(name + ":")
    def finalize(self, maxw=12):
        items = list(self.items)
        ninserted = 0
        cache = {}
        def mk(it):
            if it not in cache: cache[it] = Ins(it)
            return cache[it]
        start = 0
        while True:
            kinds = []
            for it in items:
                if it.endswith(":") and not it.startswith(";"): kinds.append(("L", it[:-1]))
                elif it.startswith((".", ";")): kinds.append(("D", it))
                else: kinds.append(("I", mk(it)))
            labels = {k[1]: i for i, k in enumerate(kinds) if k[0] == "L"}
            srcs = {}
            for i, k in enumerate(kinds):
                if k[0] == "I" and k[1].op.startswith(("s_cbranch","s_branch")):
                    srcs.setdefault(labels[k[1].ops[0]], []).append(i)
            def preds(i):
                out = []; j = i - 1
                while j >= 0:
                    k = kinds[j]
                    if k[0] == "L": out += srcs.get(j, [])
                    elif k[0] == "I":
                        if k[1].op not in ("s_branch","s_endpgm","s_setpc_b64"): out.append(j)
                        break
                    j -= 1
                return out
            fix = None
            for i, k in enumerate(kinds):
                if k[0] != "I": continue
                c = k[1]
                if c.salu and not c.uses: continue
                need = 0
                stack = [(p, 0) for p in preds(i)]; seen = {}
                while stack:
                    p, dist = stack.pop()
                    if dist >= maxw: continue
                    if p in seen and seen[p] <= dist: continue
                    seen[p] = dist
                    pi = kinds[p][1]
                    r = required(pi, c)
                    if r > dist: need = max(need, r - dist)
                    for q in preds(p): stack.append((q, dist + pi.nop))
                if need:
                    fix = (i, need); break
            if fix is None: break
            i, need = fix
            items.insert(i, f"s_nop {need-1}")
            ninserted += 1
        self.ninserted = ninserted
        return "\n".join(items) + "\n"
```

```python
import sys, json
from asmlib import Asm
NAME = "sequential_preLN__gqa_block_cached__dense_activation_relu__decode_kernel"

WS_Y  = 0x00000
WS_H  = 0x80000
WS_H1 = 0x81000
WS_ST = 0x84000
WS_PROF = 0x100000
WS_SIZE = 0x500000
L_QP = 0; L_OW = 2048; L_STAT = 4096; L_FW = 4128
L_RED = 4608; L_RED2 = L_RED + 4096; L_RED3 = L_RED2 + 2048
L_SC = 16384; L_STG = 32768; STG_W = 11264
LDS_BYTES = L_STG + 4*STG_W
POISON = -1
SPIN_LIMIT = 1 << 18

def brev4(n): return int(f"{n:04b}"[::-1], 2)

def gen(D=6, PROF=False, PACE=4, DBG=0):
    A = Asm()
    R = 16
    A(f"; @launch grid=(256,1,1) block=(512,1,1) lds={LDS_BYTES}")
    A('.amdgcn_target "amdgcn-amd-amdhsa--gfx950"')
    A(".text"); A(f".globl {NAME}"); A(".p2align 8"); A(f".type {NAME},@function"); A.label(NAME)
    sK, sV, sC, sWS, sT = 4, 8, 12, 16, 20
    sM0, sM1 = 24, 26
    sH, sB, sHalf, sReg = 28, 29, 30, 31
    sOff, sTile, sU = 32, 33, 34
    st0, st1, st2, st3 = 58, 59, 60, 61
    sJ = 62
    sCnt = 63
    sP = 64
    pX, pK, pV, pWQ, pWO, pW1, pW2, pOUT, pDBG, pWS = 36, 38, 40, 42, 44, 48, 50, 52, 54, 56
    srd = lambda s: f"s[{s}:{s+3}]"
    nst = [0]
    def stamp(i):
        if PROF: A(f"s_memrealtime s[{sP+2*i}:{sP+2*i+1}]")
    def prof_store(slot_wave):
        if not PROF: return
        A("s_waitcnt lgkmcnt(0)")
        A(f"s_lshl_b32 s{st0}, s2, 3"); A(f"s_add_u32 s{st0}, s{st0}, s3"); A(f"s_lshl_b32 s{st0}, s{st0}, 6")
        A(f"s_add_u32 s{st0}, s{st0}, {WS_PROF}")
        for i in range(8):
            A(f"v_mov_b32 v{40+i}, s{sP+2*i}")
        A(f"v_mov_b32 v48, 0")
        A("s_mov_b64 s[60:61], exec"); A("s_mov_b64 exec, 1")
        A(f"buffer_store_dwordx4 v[40:43], v48, {srd(sWS)}, s{st0} offen")
        A(f"buffer_store_dwordx4 v[44:47], v48, {srd(sWS)}, s{st0} offen offset:16")
        A("s_mov_b64 exec, s[60:61]")
    def mk_srd(s, p, size, off_sgpr=None, off_imm=None):
        if off_sgpr is not None:
            A(f"s_add_u32 s{s}, s{p}, s{off_sgpr}"); A(f"s_addc_u32 s{s+1}, s{p+1}, 0")
        elif off_imm is not None:
            A(f"s_add_u32 s{s}, s{p}, {off_imm}"); A(f"s_addc_u32 s{s+1}, s{p+1}, 0")
        else:
            A(f"s_mov_b32 s{s}, s{p}"); A(f"s_mov_b32 s{s+1}, s{p+1}")
        A(f"s_mov_b32 s{s+2}, {size}")
        A(f"s_mov_b32 s{s+3}, 0x20000")
    def wave_allreduce(op, x, t):
        for k in (8, 4, 2, 1):
            A(f"{op}_dpp v{x}, v{x}, v{x} row_ror:{k} row_mask:0xf bank_mask:0xf")
        A(f"v_mov_b32 v{t}, v{x}"); A(f"v_permlane16_swap_b32 v{x}, v{t}"); A(f"{op} v{x}, v{x}, v{t}")
        A(f"v_mov_b32 v{t}, v{x}"); A(f"v_permlane32_swap_b32 v{x}, v{t}"); A(f"{op} v{x}, v{x}, v{t}")
    def round_bf16(x, t=None):
        A(f"v_cvt_pk_bf16_f32 v{x}, v{x}, v{x}")
        A(f"v_and_b32 v{x}, 0xffff0000, v{x}")
    def acc_reduce(a):
        for e in range(4):
            A(f"v_permlane32_swap_b32 v{a+e}, v{a+e+4}")
        for e in range(4):
            A(f"v_add_f32 v{a+e}, v{a+e}, v{a+e+4}")
        A(f"v_permlane16_swap_b32 v{a}, v{a+2}")
        A(f"v_permlane16_swap_b32 v{a+1}, v{a+3}")
        A(f"v_add_f32 v{a}, v{a}, v{a+2}")
        A(f"v_add_f32 v{a+1}, v{a+1}, v{a+3}")
    def sanitize(regs, repl_sgpr, tmpmask="vcc"):
        for r in regs:
            A(f"v_cmp_eq_u32 vcc, -1, v{r}")
            A(f"v_cndmask_b32 v{r}, v{r}, v{repl_sgpr}, vcc")
    def spin_check(regs, tmp, loop, done, fail=None):
        rs = list(regs)
        if len(rs) == 1:
            m = rs[0]
        else:
            A(f"v_max_u32 v{tmp}, v{rs[0]}, v{rs[1]}"); rs = rs[2:]
            while len(rs) >= 2:
                A(f"v_max3_u32 v{tmp}, v{tmp}, v{rs[0]}, v{rs[1]}"); rs = rs[2:]
            if rs: A(f"v_max_u32 v{tmp}, v{tmp}, v{rs[0]}")
            m = tmp
        A(f"v_cmp_eq_u32 vcc, -1, v{m}")
        A(f"s_cbranch_vccz {done}")
        A(f"s_sub_u32 s{sCnt}, s{sCnt}, 1")
        A(f"s_cbranch_scc0 {loop}")
        A.label(done)

    stamp(0)
    A("s_cmp_ge_u32 s2, 256")
    A("s_cbranch_scc1 L_end")
    A("s_load_dwordx16 s[36:51], s[0:1], 0")
    A("s_load_dwordx4 s[52:55], s[0:1], 64")
    A("s_load_dwordx2 s[56:57], s[0:1], 80")
    A("v_lshrrev_b32 v1, 6, v0")
    A("v_and_b32 v2, 63, v0")
    A(f"s_and_b32 s{st0}, s2, 7")
    A("v_readfirstlane_b32 s3, v1")
    A(f"s_lshr_b32 s{st1}, s2, 3")
    A(f"s_lshr_b32 s{sH}, s{st1}, 3"); A(f"s_lshl_b32 s{sH}, s{sH}, 3"); A(f"s_add_u32 s{sH}, s{sH}, s{st0}")
    A(f"s_and_b32 s{st1}, s{st1}, 7")
    A(f"s_lshr_b32 s{sB}, s{st1}, 1")
    A(f"s_and_b32 s{sHalf}, s{st1}, 1")
    A(f"s_lshl_b32 s{sReg}, s{sB}, 5"); A(f"s_add_u32 s{sReg}, s{sReg}, s{sH}")
    A(f"s_lshl_b32 s{sReg}, s{sReg}, 1"); A(f"s_add_u32 s{sReg}, s{sReg}, s{sHalf}")
    A(f"s_lshl_b32 s{sJ}, s{sH}, 1"); A(f"s_add_u32 s{sJ}, s{sJ}, s{sHalf}")
    A("s_cmp_ge_u32 s3, 4")
    A("s_cbranch_scc1 L_helper")

    vLane, vOff = 2, 3
    vQ = 4; vAcc = 8; vP = 16; vtA, vtB = 32, 33; vM, vL, vSC, vPn, vPlo, vPhi = 34, 35, 36, 37, 38, 39
    vRing = 64
    ring = lambda i: vRing + 4*(i % R)
    A(f"v_lshlrev_b32 v{vOff}, 4, v{vLane}")
    A(f"s_lshl_b32 s{st0}, s3, 10")
    A(f"v_add_u32 v{vOff}, s{st0}, v{vOff}")
    A(f"s_lshl_b32 s{st0}, s{sReg}, 20")
    A("s_waitcnt lgkmcnt(0)")
    mk_srd(sK, pK, 1 << 20, off_sgpr=st0)
    A(f"s_mov_b32 s{sOff}, 0")
    def sload(i, s):
        A(f"buffer_load_dwordx4 v[{ring(i)}:{ring(i)+3}], v{vOff}, {srd(s)}, s{sOff} offen nt")
        A(f"s_add_u32 s{sOff}, s{sOff}, 4096")
    for i in range(R): sload(i, sK)
    mk_srd(sV, pV, 1 << 20, off_sgpr=st0)
    for k in range(4): A(f"s_mov_b32 s{sC+k}, s{sK+k}")
    mk_srd(sWS, pWS, WS_SIZE)
    A("s_getpc_b64 s[58:59]")
    A.label("L_pc")
    A(f"s_sub_u32 s58, s58, L_pc-{NAME}"); A("s_subb_u32 s59, s59, 0")
    A(f"v_lshlrev_b32 v40, 7, v{vLane}")
    A(f"s_lshl_b32 s{st2}, s3, 13")
    A(f"v_add_u32 v40, s{st2}, v40")
    A(f"v_min_u32 v40, L_end-{NAME}, v40")
    A("global_load_dword v41, v40, s[58:59]")
    A(f"s_mov_b32 s{sM0}, 0xaaaaaaaa"); A(f"s_mov_b32 s{sM0+1}, 0xaaaaaaaa")
    A(f"s_mov_b32 s{sM1}, 0xcccccccc"); A(f"s_mov_b32 s{sM1+1}, 0xcccccccc")
    A(f"s_lshl_b32 s{st2}, s3, 12"); A(f"s_add_u32 s{st2}, s{st2}, {L_SC}")
    A(f"v_lshlrev_b32 v{vSC}, 2, v{vLane}"); A(f"v_add_u32 v{vSC}, s{st2}, v{vSC}")
    A(f"v_mov_b32 v{vM}, 0xff7fffff")
    A(f"v_and_b32 v42, 15, v{vLane}"); A("v_lshlrev_b32 v42, 5, v42")
    A("s_waitcnt vmcnt(0)")
    stamp(1)
    A("s_barrier")
    vqt = 128
    for u in range(4):
        A(f"ds_read_b128 v[{vqt+8*u}:{vqt+8*u+3}], v42 offset:{L_QP+u*512}")
        A(f"ds_read_b128 v[{vqt+8*u+4}:{vqt+8*u+7}], v42 offset:{L_QP+u*512+16}")
    A("s_waitcnt lgkmcnt(0)")
    for e in range(8):
        A(f"v_add_f32 v{vqt+e}, v{vqt+e}, v{vqt+8+e}")
        A(f"v_add_f32 v{vqt+16+e}, v{vqt+16+e}, v{vqt+24+e}")
    for e in range(8): A(f"v_add_f32 v{vqt+e}, v{vqt+e}, v{vqt+16+e}")
    for r in range(4): A(f"v_cvt_pk_bf16_f32 v{vQ+r}, v{vqt+2*r}, v{vqt+2*r+1}")
    if DBG & 1:
        A("s_cmp_lg_u32 s3, 0"); A("s_cbranch_scc1 L_dbgq")
        A(f"s_lshl_b32 s{st2}, s{sReg}, 8"); A(f"s_add_u32 s{st2}, s{st2}, {WS_PROF+0x80000}")
        A(f"v_lshlrev_b32 v40, 4, v{vLane}")
        A("s_mov_b64 exec, 0xffff")
        A(f"buffer_store_dwordx4 v[{vQ}:{vQ+3}], v40, {srd(sWS)}, s{st2} offen")
        A("s_mov_b64 exec, -1")
        A("s_waitcnt vmcnt(0)")
        A.label("L_dbgq")
    stamp(2)
    def k_tile(first):
        P = lambda n: vP + n
        def redA(k):
            A(f"v_add_f32_dpp v{P(2*k)}, v{P(2*k)}, v{P(2*k)} row_ror:8 row_mask:0xf bank_mask:0x3")
            A(f"v_add_f32_dpp v{P(2*k)}, v{P(2*k+1)}, v{P(2*k+1)} row_ror:8 row_mask:0xf bank_mask:0xc")
        def redB(m):
            A(f"v_add_f32_dpp v{P(4*m)}, v{P(4*m)}, v{P(4*m)} row_shl:4 row_mask:0xf bank_mask:0x5")
            A(f"v_add_f32_dpp v{P(4*m)}, v{P(4*m+2)}, v{P(4*m+2)} row_shr:4 row_mask:0xf bank_mask:0xa")
        def redC(x):
            A(f"v_add_f32_dpp v{vtA}, v{P(8*x)}, v{P(8*x)} quad_perm:[2,3,0,1] row_mask:0xf bank_mask:0xf")
            A(f"v_add_f32_dpp v{vtB}, v{P(8*x+4)}, v{P(8*x+4)} quad_perm:[2,3,0,1] row_mask:0xf bank_mask:0xf")
            A(f"v_cndmask_b32 v{P(8*x)}, v{vtA}, v{vtB}, s[{sM1}:{sM1+1}]")
        for n in range(16):
            if not first: A(f"s_waitcnt vmcnt({D-1})")
            r = ring(n)
            A(f"v_dot2_f32_bf16 v{P(n)}, v{r}, v{vQ}, 0")
            for k in range(1, 4): A(f"v_dot2_f32_bf16 v{P(n)}, v{r+k}, v{vQ+k}, v{P(n)}")
            if (not first) or n >= 16 - D:
                if n == 16 - D and not first:
                    A(f"s_cmp_eq_u32 s{sTile}, 15")
                    A(f"s_cselect_b32 s{sC}, s{sV}, s{sC}")
                    A(f"s_cselect_b32 s{sC+1}, s{sV+1}, s{sC+1}")
                    A(f"s_cselect_b32 s{sOff}, 0, s{sOff}")
                sload(n + D, sC)
            if n >= 2 and n % 2 == 0: redA((n-2)//2)
            if n in (5, 9, 13): redB((n-5)//4)
            if n == 11: redC(0)
        redA(7);
        redB(3)
        redC(1)
        A(f"v_add_f32_dpp v{vtA}, v{P(0)}, v{P(0)} quad_perm:[1,0,3,2] row_mask:0xf bank_mask:0xf")
        A(f"v_add_f32_dpp v{vtB}, v{P(8)}, v{P(8)} quad_perm:[1,0,3,2] row_mask:0xf bank_mask:0xf")
        A(f"v_cndmask_b32 v{vtA}, v{vtA}, v{vtB}, s[{sM0}:{sM0+1}]")
        round_bf16(vtA)
        A(f"v_mul_f32 v{vtA}, 0x3db504f3, v{vtA}")
        round_bf16(vtA)
        A(f"v_max_f32 v{vM}, v{vM}, v{vtA}")
        A(f"ds_write_b32 v{vSC}, v{vtA}")
        A(f"v_add_u32 v{vSC}, 256, v{vSC}")
    A(f"s_mov_b32 s{sTile}, 0")
    k_tile(True)
    A(f"s_mov_b32 s{sTile}, 1")
    A.label("L_kloop")
    k_tile(False)
    A(f"s_add_u32 s{sTile}, s{sTile}, 1")
    A(f"s_cmp_lt_u32 s{sTile}, 16")
    A("s_cbranch_scc1 L_kloop")
    stamp(3)
    A(f"v_subrev_u32 v{vSC}, 4096, v{vSC}")
    A("s_waitcnt lgkmcnt(0)")
    for t in range(16): A(f"ds_read_b32 v{vP+t}, v{vSC} offset:{t*256}")
    wave_allreduce("v_max_f32", vM, vtA)
    A(f"v_mul_f32 v{vtB}, 0xbfb8aa3b, v{vM}")
    A(f"s_mov_b32 s{st0}, 0x3fb8aa3b")
    A("s_waitcnt lgkmcnt(0)")
    for t in range(16): A(f"v_fma_f32 v{vP+t}, v{vP+t}, s{st0}, v{vtB}")
    for t in range(16): A(f"v_exp_f32 v{vP+t}, v{vP+t}")
    A(f"v_add_f32 v{vL}, v{vP}, v{vP+1}")
    for t in range(2, 16): A(f"v_add_f32 v{vL}, v{vL}, v{vP+t}")
    for t in range(16): A(f"v_cvt_pk_bf16_f32 v{vP+t}, v{vP+t}, v{vP+t}")
    for t in range(16): A(f"ds_write_b32 v{vSC}, v{vP+t} offset:{t*256}")
    wave_allreduce("v_add_f32", vL, vtA)
    A(f"v_mov_b32 v40, v{vM}"); A(f"v_mov_b32 v41, v{vL}")
    A("v_mov_b32 v43, 0x7fc00000")
    sanitize([40, 41], 43)
    A(f"s_lshl_b32 s{st0}, s3, 3"); A(f"s_add_u32 s{st0}, s{st0}, {L_STAT}"); A(f"v_mov_b32 v42, s{st0}")
    A("s_mov_b64 exec, 1"); A("ds_write_b64 v42, v[40:41]"); A("s_mov_b64 exec, -1")
    A(f"v_mov_b32 v{vPn}, v{vP}")
    for e in range(8): A(f"v_mov_b32 v{vAcc+e}, 0")
    A(f"s_mov_b32 s{sTile}, 0")
    A.label("L_vloop")
    A(f"v_and_b32 v{vPlo}, 0xffff, v{vPn}")
    A(f"v_and_b32 v{vPhi}, 0xffff0000, v{vPn}")
    A(f"v_add_u32 v{vSC}, 256, v{vSC}")
    A(f"ds_read_b32 v{vPn}, v{vSC}")
    for n in range(16):
        A(f"s_waitcnt vmcnt({D-1})")
        r = ring(n); bl = brev4(n)
        for k in range(4):
            A(f"v_dot2c_f32_bf16_dpp v{vAcc+2*k}, v{vPlo}, v{r+k} row_newbcast:{bl} row_mask:0xf bank_mask:0xf")
            A(f"v_dot2c_f32_bf16_dpp v{vAcc+2*k+1}, v{vPhi}, v{r+k} row_newbcast:{bl} row_mask:0xf bank_mask:0xf")
        sload(n + D, sC)
    A("s_waitcnt lgkmcnt(0)")
    A(f"s_add_u32 s{sTile}, s{sTile}, 1")
    A(f"s_cmp_lt_u32 s{sTile}, 16")
    A("s_cbranch_scc1 L_vloop")
    stamp(4)
    acc_reduce(vAcc)
    A(f"s_lshl_b32 s{st0}, s3, 2"); A(f"s_add_u32 s{st0}, s{st0}, {L_FW}"); A(f"v_mov_b32 v42, s{st0}")
    A(f"s_mov_b32 s{sCnt}, {SPIN_LIMIT}")
    A.label("L_fwspin")
    A("ds_read_b32 v43, v42"); A("s_waitcnt lgkmcnt(0)")
    spin_check([43], 44, "L_fwspin", "L_fwok")
    A(f"v_mul_f32 v{vAcc}, v{vAcc}, v43"); A(f"v_mul_f32 v{vAcc+1}, v{vAcc+1}, v43")
    A(f"v_and_b32 v40, 15, v{vLane}"); A("v_lshlrev_b32 v40, 7, v40")
    A(f"v_lshrrev_b32 v41, 4, v{vLane}"); A("v_lshlrev_b32 v41, 5, v41")
    A("v_add_u32 v40, v40, v41")
    A(f"s_lshl_b32 s{st0}, s3, 2"); A(f"s_add_u32 s{st0}, s{st0}, {L_OW}"); A(f"v_add_u32 v40, s{st0}, v40")
    A(f"ds_write_b32 v40, v{vAcc}"); A(f"ds_write_b32 v40, v{vAcc+1} offset:16")
    A("s_waitcnt vmcnt(0) lgkmcnt(0)")
    A("s_barrier")
    stamp(5)
    A("s_cmp_lt_u32 s2, 64"); A("s_cbranch_scc1 L_red")
    A("s_cmp_lt_u32 s2, 152"); A("s_cbranch_scc1 L_ffn1")
    A("s_cmp_lt_u32 s2, 184"); A("s_cbranch_scc1 L_ffn2")
    A.label("L_sdone")
    prof_store(0)
    A("s_endpgm")

    A.label("L_red")
    A("s_cmp_lg_u32 s3, 0"); A("s_cbranch_scc1 L_sdone")
    A(f"s_lshl_b32 s{st0}, s2, 13")
    A(f"v_lshlrev_b32 v3, 4, v{vLane}")
    A(f"s_lshr_b32 s{st1}, s2, 4"); A(f"s_lshl_b32 s{st1}, s{st1}, 10")
    A(f"s_and_b32 s{st2}, s2, 15"); A(f"s_lshl_b32 s{st2}, s{st2}, 6"); A(f"s_add_u32 s{st1}, s{st1}, s{st2}")
    A(f"v_and_b32 v4, 7, v{vLane}"); A("v_lshlrev_b32 v4, 3, v4")
    A(f"v_lshrrev_b32 v5, 5, v{vLane}"); A("v_lshlrev_b32 v5, 2, v5"); A("v_add_u32 v4, v4, v5")
    mk_srd(sT, pX, 4096)
    A(f"buffer_load_dword v6, v4, {srd(sT)}, s{st1} offen")
    A(f"s_add_u32 s{st1}, s{st1}, {WS_H}")
    A(f"s_mov_b32 s{sCnt}, {SPIN_LIMIT}")
    A.label("L_redspin")
    for n in range(8):
        A(f"buffer_load_dwordx4 v[{16+4*n}:{19+4*n}], v3, {srd(sWS)}, s{st0} offen offset:{(n%4)*1024} sc1" if n < 4 else "")
    A(f"s_add_u32 s{st2}, s{st0}, 4096")
    for n in range(4, 8):
        A(f"buffer_load_dwordx4 v[{16+4*n}:{19+4*n}], v3, {srd(sWS)}, s{st2} offen offset:{(n%4)*1024} sc1")
    A("s_waitcnt vmcnt(0)")
    spin_check(range(16, 48), 8, "L_redspin", "L_redok")
    for n in (0, 2, 4, 6):
        for k in range(4): A(f"v_add_f32 v{16+4*n+k}, v{16+4*n+k}, v{16+4*(n+1)+k}")
    for n in (0, 4):
        for k in range(4): A(f"v_add_f32 v{16+4*n+k}, v{16+4*n+k}, v{16+4*(n+2)+k}")
    for k in range(4): A(f"v_add_f32 v{16+k}, v{16+k}, v{32+k}")
    A("v_permlane32_swap_b32 v16, v18"); A("v_permlane32_swap_b32 v17, v19")
    A("v_add_f32 v16, v16, v18"); A("v_add_f32 v17, v17, v19")
    A("v_mov_b32 v18, v16"); A("v_mov_b32 v19, v17")
    A("v_permlane16_swap_b32 v16, v18"); A("v_permlane16_swap_b32 v17, v19")
    A("v_add_f32 v16, v16, v18"); A("v_add_f32 v17, v17, v19")
    A("v_add_f32_dpp v16, v16, v16 row_ror:8 row_mask:0xf bank_mask:0xf")
    A("v_add_f32_dpp v17, v17, v17 row_ror:8 row_mask:0xf bank_mask:0xf")
    A("v_cvt_pk_bf16_f32 v16, v16, v17")
    A("v_lshlrev_b32 v18, 16, v16"); A("v_and_b32 v19, 0xffff0000, v16")
    A("v_lshlrev_b32 v20, 16, v6"); A("v_and_b32 v21, 0xffff0000, v6")
    A("v_add_f32 v18, v18, v20"); A("v_add_f32 v19, v19, v21")
    A("v_cvt_pk_bf16_f32 v16, v18, v19")
    A("v_mov_b32 v17, 0x7fc07fc0")
    sanitize([16], 17)
    A("s_mov_b32 exec_lo, 0xff"); A("s_mov_b32 exec_hi, 0xff")
    A(f"buffer_store_dword v16, v4, {srd(sWS)}, s{st1} offen sc1")
    A("s_mov_b64 exec, -1")
    stamp(6)
    A("s_branch L_sdone")

    def ffn1_tile(dst):
        A(f"s_sub_u32 s{st0}, s2, 64")
        A(f"s_and_b32 s{st1}, s{st0}, 7")
        A(f"s_lshr_b32 s{st0}, s{st0}, 3")
        A(f"s_lshr_b32 s{st2}, s{st0}, 2"); A(f"s_lshl_b32 s{st2}, s{st2}, 3"); A(f"s_add_u32 s{st2}, s{st2}, s{st1}")
        A(f"s_lshl_b32 s{st2}, s{st2}, 2"); A(f"s_and_b32 s{st3}, s{st0}, 3"); A(f"s_add_u32 s{st2}, s{st2}, s{st3}")
        A(f"s_mul_i32 s{st1}, s{st1}, 3"); A(f"s_add_u32 s{st1}, s{st1}, s{st0}"); A(f"s_add_u32 s{st1}, s{st1}, 56")
        A(f"s_cmp_lt_u32 s{st0}, 8"); A(f"s_cselect_b32 s{dst}, s{st2}, s{st1}")
    def ffn2_tile(dst):
        A(f"s_sub_u32 s{st0}, s2, 152"); A(f"s_and_b32 s{st1}, s{st0}, 7"); A(f"s_lshr_b32 s{st0}, s{st0}, 3")
        A(f"s_lshl_b32 s{st1}, s{st1}, 2"); A(f"s_add_u32 s{dst}, s{st1}, s{st0}")
    sTl = 35
    def tr_addr(v):
        A(f"v_lshrrev_b32 v{v}, 4, v{vLane}"); A(f"v_lshlrev_b32 v{v}, 8, v{v}")
        A(f"v_bfe_u32 v40, v{vLane}, 2, 2"); A("v_lshlrev_b32 v40, 5, v40"); A(f"v_add_u32 v{v}, v{v}, v40")
        A(f"v_and_b32 v40, 3, v{vLane}"); A("v_lshlrev_b32 v40, 3, v40"); A(f"v_add_u32 v{v}, v{v}, v40")
        A(f"s_mul_i32 s{st0}, s3, {STG_W}"); A(f"s_add_u32 s{st0}, s{st0}, {L_STG}"); A(f"v_add_u32 v{v}, s{st0}, v{v}")
    A.label("L_ffn1")
    ffn1_tile(sTl)
    A(f"s_cmp_ge_u32 s{sTl}, 86"); A("s_cbranch_scc1 L_sdone")
    tr_addr(4)
    vA = 64
    for s in range(4):
        A(f"ds_read_b64_tr_b16 v[{vA+4*s}:{vA+4*s+1}], v4 offset:{s*1024}")
        A(f"ds_read_b64_tr_b16 v[{vA+4*s+2}:{vA+4*s+3}], v4 offset:{s*1024+128}")
    for k in range(4): A(f"v_mov_b32 v{80+k}, 0x3f803f80")
    for k in range(4): A(f"v_mov_b32 v{84+k}, 0")
    A("s_waitcnt lgkmcnt(0)")
    for s in range(4): A(f"v_mfma_f32_16x16x32_bf16 v[84:87], v[{vA+4*s}:{vA+4*s+3}], v[80:83], v[84:87]")
    A(f"v_lshlrev_b32 v5, 4, v{vLane}"); A(f"s_lshl_b32 s{st0}, s3, 10"); A(f"v_add_u32 v5, s{st0}, v5")
    A(f"v_lshlrev_b32 v6, 3, v{vLane}"); A(f"s_lshl_b32 s{st0}, s3, 9"); A(f"v_add_u32 v6, s{st0}, v6")
    A(f"ds_write_b128 v5, v[84:87] offset:{L_RED3}")
    A("s_waitcnt lgkmcnt(0)")
    A("s_barrier")
    A(f"v_lshlrev_b32 v7, 4, v{vLane}")
    for u in range(4): A(f"ds_read_b128 v[{16+4*u}:{19+4*u}], v7 offset:{L_RED3+u*1024}")
    A(f"v_and_b32 v8, 3, v{vLane}"); A("v_lshlrev_b32 v8, 10, v8")
    A(f"v_lshrrev_b32 v9, 4, v{vLane}"); A("v_lshlrev_b32 v9, 4, v9"); A("v_add_u32 v8, v8, v9")
    A(f"s_lshl_b32 s{st0}, s3, 8"); A(f"v_add_u32 v8, s{st0}, v8")
    A("s_waitcnt lgkmcnt(0)")
    for k in range(4):
        A(f"v_add_f32 v{16+k}, v{16+k}, v{20+k}"); A(f"v_add_f32 v{24+k}, v{24+k}, v{28+k}")
    for k in range(4): A(f"v_add_f32 v{84+k}, v{16+k}, v{24+k}")
    for k in range(12): A(f"v_mov_b32 v{88+k}, 0")
    A(f"s_mov_b32 s{st0}, {WS_H}")
    A(f"s_mov_b32 s{sCnt}, {SPIN_LIMIT}")
    A.label("L_f1spin")
    for s in range(4): A(f"buffer_load_dwordx4 v[{16+4*s}:{19+4*s}], v8, {srd(sWS)}, s{st0} offen offset:{s*64} sc1")
    A("s_waitcnt vmcnt(0)")
    spin_check(range(16, 32), 10, "L_f1spin", "L_f1ok")
    for s in range(4):
        A(f"v_mfma_f32_16x16x32_bf16 v[88:91], v[{vA+4*s}:{vA+4*s+3}], v[{16+4*s}:{19+4*s}], v[88:91]")
        A(f"v_mfma_f32_16x16x32_bf16 v[92:95], v[80:83], v[{16+4*s}:{19+4*s}], v[92:95]")
        A(f"v_mfma_f32_16x16x32_bf16 v[96:99], v[{16+4*s}:{19+4*s}], v[{16+4*s}:{19+4*s}], v[96:99]")
    A(f"ds_write_b128 v5, v[88:91] offset:{L_RED}")
    A(f"v_and_b32 v11, 3, v{vLane}")
    A("v_cmp_eq_u32 vcc, 1, v11"); A("v_cndmask_b32 v96, v96, v97, vcc")
    A("v_cmp_eq_u32 vcc, 2, v11"); A("v_cndmask_b32 v96, v96, v98, vcc")
    A("v_cmp_eq_u32 vcc, 3, v11"); A("v_cndmask_b32 v93, v96, v99, vcc")
    A(f"ds_write_b64 v6, v[92:93] offset:{L_RED2}")
    A("s_waitcnt lgkmcnt(0)")
    A("s_barrier")
    A("s_cmp_lg_u32 s3, 0"); A("s_cbranch_scc1 L_sdone")
    A(f"v_lshlrev_b32 v6, 3, v{vLane}")
    for u in range(4):
        A(f"ds_read_b128 v[{16+4*u}:{19+4*u}], v7 offset:{L_RED+u*1024}")
        A(f"ds_read_b64 v[{32+2*u}:{33+2*u}], v6 offset:{L_RED2+u*512}")
    A("s_waitcnt lgkmcnt(0)")
    A("v_add_f32 v32, v32, v34"); A("v_add_f32 v33, v33, v35"); A("v_add_f32 v36, v36, v38"); A("v_add_f32 v37, v37, v39")
    A("v_add_f32 v32, v32, v36"); A("v_add_f32 v33, v33, v37")
    for k in range(4):
        A(f"v_add_f32 v{16+k}, v{16+k}, v{20+k}"); A(f"v_add_f32 v{24+k}, v{24+k}, v{28+k}")
    A("v_mul_f32 v32, 0x3b000000, v32")
    A("v_mul_f32 v33, 0x3b000000, v33")
    for k in range(4): A(f"v_add_f32 v{16+k}, v{16+k}, v{24+k}")
    A("v_fma_f32 v33, -v32, v32, v33")
    A("v_max_f32 v33, 0, v33")
    round_bf16(32); round_bf16(33)
    A("v_add_f32 v33, 0x3727c5ac, v33"); round_bf16(33)
    A("v_sqrt_f32 v33, v33"); round_bf16(33)
    A("v_rcp_f32 v33, v33")
    for k in range(4): A(f"v_fma_f32 v{16+k}, -v32, v{84+k}, v{16+k}")
    for k in range(4): A(f"v_mul_f32 v{16+k}, v{16+k}, v33")
    A("v_mov_b32 v21, 0")
    for k in range(4):
        A(f"v_cmp_gt_f32 vcc, 0, v{16+k}")
        A(f"v_cndmask_b32 v{16+k}, v{16+k}, v21, vcc")
    A("v_cvt_pk_bf16_f32 v16, v16, v17"); A("v_cvt_pk_bf16_f32 v17, v18, v19")
    A("v_mov_b32 v20, 0x7fc07fc0")
    sanitize([16, 17], 20)
    A(f"v_and_b32 v8, 15, v{vLane}"); A("v_lshlrev_b32 v8, 5, v8")
    A(f"v_lshrrev_b32 v9, 4, v{vLane}"); A("v_lshlrev_b32 v9, 3, v9"); A("v_add_u32 v8, v8, v9")
    A(f"s_lshl_b32 s{st0}, s{sTl}, 7"); A(f"s_add_u32 s{st0}, s{st0}, {WS_H1}")
    A("s_mov_b32 exec_lo, 0x000f000f"); A("s_mov_b32 exec_hi, 0x000f000f")
    A(f"buffer_store_dwordx2 v[16:17], v8, {srd(sWS)}, s{st0} offen sc1")
    A("s_mov_b64 exec, -1")
    stamp(6)
    A("s_branch L_sdone")

    A.label("L_ffn2")
    ffn2_tile(sTl)
    tr_addr(4)
    vBw = 64
    for s in range(11):
        A(f"ds_read_b64_tr_b16 v[{vBw+4*s}:{vBw+4*s+1}], v4 offset:{s*1024}")
        A(f"ds_read_b64_tr_b16 v[{vBw+4*s+2}:{vBw+4*s+3}], v4 offset:{s*1024+128}")
        if s % 4 == 3: A("s_waitcnt lgkmcnt(0)")
    mk_srd(sT, pWS, 86*128, off_imm=WS_H1)
    A(f"v_and_b32 v8, 3, v{vLane}"); A("v_lshlrev_b32 v8, 5, v8")
    A(f"v_lshrrev_b32 v9, 5, v{vLane}"); A("v_lshlrev_b32 v9, 7, v9"); A("v_add_u32 v8, v8, v9")
    A(f"v_bfe_u32 v9, v{vLane}, 4, 1"); A("v_lshlrev_b32 v9, 4, v9"); A("v_add_u32 v8, v8, v9")
    A(f"s_mul_i32 s{st0}, s3, 2816"); A(f"v_add_u32 v8, s{st0}, v8")
    A(f"v_lshrrev_b32 v10, 4, v{vLane}"); A("v_lshlrev_b32 v10, 10, v10")
    A(f"v_and_b32 v11, 15, v{vLane}"); A(f"s_lshl_b32 s{st1}, s{sTl}, 4"); A(f"v_add_u32 v11, s{st1}, v11")
    A("v_lshlrev_b32 v12, 1, v11"); A("v_add_u32 v12, v10, v12")
    A("v_and_b32 v13, -4, v12")
    A(f"v_lshlrev_b32 v5, 4, v{vLane}"); A(f"s_lshl_b32 s{st0}, s3, 10"); A(f"v_add_u32 v5, s{st0}, v5")
    for k in range(4): A(f"v_mov_b32 v{112+k}, 0")
    A("s_waitcnt lgkmcnt(0)")
    A(f"s_mov_b32 s{st0}, {WS_H}")
    A(f"s_mov_b32 s{sCnt}, {SPIN_LIMIT}")
    A.label("L_f2hspin")
    A(f"buffer_load_dword v14, v13, {srd(sWS)}, s{st0} offen sc1")
    A("s_waitcnt vmcnt(0)")
    spin_check([14], 15, "L_f2hspin", "L_f2hok")
    A(f"s_mov_b32 s{sCnt}, {SPIN_LIMIT}")
    A.label("L_f2spin")
    for s in range(11): A(f"buffer_load_dwordx4 v[{16+4*s}:{19+4*s}], v8, {srd(sT)}, 0 offen offset:{s*256} sc1")
    A("s_waitcnt vmcnt(0)")
    spin_check(range(16, 60), 15, "L_f2spin", "L_f2ok")
    for s in range(11):
        A(f"v_mfma_f32_16x16x32_bf16 v[112:115], v[{16+4*s}:{19+4*s}], v[{vBw+4*s}:{vBw+4*s+3}], v[112:115]")
    A(f"ds_write_b128 v5, v[112:115] offset:{L_RED}")
    A("s_waitcnt lgkmcnt(0)")
    A("s_barrier")
    A("s_cmp_lg_u32 s3, 0"); A("s_cbranch_scc1 L_sdone")
    A(f"v_and_b32 v6, 15, v{vLane}"); A("v_lshlrev_b32 v6, 4, v6")
    A(f"v_lshrrev_b32 v7, 4, v{vLane}"); A("v_lshlrev_b32 v7, 2, v7"); A("v_add_u32 v6, v6, v7")
    for u in range(4): A(f"ds_read_b32 v{16+u}, v6 offset:{L_RED+u*1024}")
    A("v_and_b32 v11, 1, v11"); A("v_lshlrev_b32 v20, 16, v14"); A("v_and_b32 v21, 0xffff0000, v14")
    A("v_cmp_eq_u32 vcc, 1, v11"); A("v_cndmask_b32 v20, v20, v21, vcc")
    A("s_waitcnt lgkmcnt(0)")
    A("v_add_f32 v16, v16, v17"); A("v_add_f32 v18, v18, v19"); A("v_add_f32 v16, v16, v18")
    round_bf16(16)
    A("v_add_f32 v16, v16, v20")
    A("v_cvt_pk_bf16_f32 v16, v16, v16")
    mk_srd(sT, pOUT, 4096)
    A(f"buffer_store_short v16, v12, {srd(sT)}, 0 offen")
    stamp(6)
    A("s_branch L_sdone")

    A.label("L_helper")
    vW = 128; hAcc = 16; hPlo0, hPhi0, hPlo1, hPhi1 = 24, 25, 26, 27
    vG, vCc = 4, 5
    A(f"s_sub_u32 s{sU}, s3, 4")
    A(f"v_lshrrev_b32 v{vG}, 4, v{vLane}")
    A(f"v_and_b32 v{vCc}, 15, v{vLane}")
    A(f"s_lshl_b32 s{st0}, s{sB}, 10")
    A(f"v_lshlrev_b32 v6, 2, v{vCc}"); A(f"v_add_u32 v6, v6, v{vG}"); A(f"s_lshl_b32 s{st1}, s{sU}, 7")
    A(f"v_add_u32 v6, s{st1}, v6"); A("v_lshlrev_b32 v6, 1, v6")
    A(f"v_lshlrev_b32 v7, 4, v{vLane}")
    A(f"v_lshlrev_b32 v3, 13, v{vG}"); A(f"v_lshlrev_b32 v14, 4, v{vCc}"); A("v_add_u32 v3, v3, v14")
    A(f"s_lshl_b32 s{st1}, s{sU}, 20"); A(f"v_add_u32 v3, s{st1}, v3")
    A(f"s_lshl_b32 s{st1}, s{sH}, 8")
    A(f"s_sub_u32 s{st2}, {4<<20}, s{st1}")
    A("s_waitcnt lgkmcnt(0)")
    mk_srd(sT, pX, 1024, off_sgpr=st0)
    A(f"buffer_load_dwordx4 v[8:11], v7, {srd(sT)}, 0 offen")
    A(f"buffer_load_ushort v12, v6, {srd(sT)}, 0 offen")
    A(f"buffer_load_ushort v13, v6, {srd(sT)}, 0 offen offset:128")
    A(f"s_add_u32 s{sC}, s{pWQ}, s{st1}"); A(f"s_addc_u32 s{sC+1}, s{pWQ+1}, 0")
    A(f"s_mov_b32 s{sC+2}, s{st2}"); A(f"s_mov_b32 s{sC+3}, 0x20000")
    A(f"s_mov_b32 s{sOff}, 0")
    for n in range(32):
        A(f"buffer_load_dwordx4 v[{vW+4*n}:{vW+4*n+3}], v3, {srd(sC)}, s{sOff} offen")
        if n < 31: A(f"s_add_u32 s{sOff}, s{sOff}, 32768")
    mk_srd(sWS, pWS, WS_SIZE)
    A(f"v_lshlrev_b32 v14, 2, v{vLane}"); A("v_mov_b32 v15, -1")
    A("s_mov_b64 exec, 0xfff"); A(f"ds_write_b32 v14, v15 offset:{L_STAT}"); A("s_mov_b64 exec, -1")
    A("s_waitcnt vmcnt(32)")
    for r in range(4):
        A(f"v_lshlrev_b32 v{32+2*r}, 16, v{8+r}"); A(f"v_and_b32 v{33+2*r}, 0xffff0000, v{8+r}")
    A("v_add_f32 v40, v32, v33"); A("v_add_f32 v41, v34, v35"); A("v_add_f32 v42, v36, v37"); A("v_add_f32 v43, v38, v39")
    A("v_add_f32 v40, v40, v41"); A("v_add_f32 v42, v42, v43"); A("v_add_f32 v40, v40, v42")
    wave_allreduce("v_add_f32", 40, 41)
    A("v_mul_f32 v40, 0x3b000000, v40")
    for e in range(8): A(f"v_sub_f32 v{32+e}, v{32+e}, v40")
    A("v_mul_f32 v42, v32, v32")
    for e in range(1, 8): A(f"v_fmac_f32 v42, v{32+e}, v{32+e}")
    wave_allreduce("v_add_f32", 42, 41)
    A("v_mul_f32 v42, 0x3b000000, v42")
    round_bf16(40); round_bf16(42)
    A("v_add_f32 v42, 0x3727c5ac, v42"); round_bf16(42)
    A("v_sqrt_f32 v42, v42"); round_bf16(42)
    A("v_rcp_f32 v42, v42")
    for r in (12, 13):
        A(f"v_lshlrev_b32 v{r}, 16, v{r}"); A(f"v_sub_f32 v{r}, v{r}, v40"); round_bf16(r)
        A(f"v_mul_f32 v{r}, v{r}, v42")
    A("v_mov_b32 v15, 0")
    A(f"v_cvt_pk_bf16_f32 v{hPlo0}, v12, v15"); A(f"v_cvt_pk_bf16_f32 v{hPhi0}, v15, v12")
    A(f"v_cvt_pk_bf16_f32 v{hPlo1}, v13, v15"); A(f"v_cvt_pk_bf16_f32 v{hPhi1}, v15, v13")
    A(f"s_mov_b32 s{sTile}, 0")
    stamp(1)
    A.label("L_gemv")
    for e in range(8): A(f"v_mov_b32 v{hAcc+e}, 0")
    for n in range(32):
        A(f"s_waitcnt vmcnt({31-n})")
        lo, hi = (hPlo0, hPhi0) if n < 16 else (hPlo1, hPhi1)
        for k in range(4):
            A(f"v_dot2c_f32_bf16_dpp v{hAcc+2*k}, v{lo}, v{vW+4*n+k} row_newbcast:{n%16} row_mask:0xf bank_mask:0xf")
            A(f"v_dot2c_f32_bf16_dpp v{hAcc+2*k+1}, v{hi}, v{vW+4*n+k} row_newbcast:{n%16} row_mask:0xf bank_mask:0xf")
    acc_reduce(hAcc)
    A(f"s_cmp_lg_u32 s{sTile}, 0"); A("s_cbranch_scc1 L_yepi")
    A(f"v_lshlrev_b32 v14, 5, v{vCc}"); A(f"v_lshlrev_b32 v15, 3, v{vG}"); A("v_add_u32 v14, v14, v15")
    A(f"s_lshl_b32 s{st0}, s{sU}, 9"); A(f"v_add_u32 v14, s{st0}, v14")
    A(f"ds_write_b64 v14, v[{hAcc}:{hAcc+1}] offset:{L_QP}")
    A("s_waitcnt lgkmcnt(0)")
    stamp(2)
    A("s_barrier")
    A(f"s_cmp_lg_u32 s{sU}, 0"); A("s_cbranch_scc1 L_nopoison")
    for k in range(4): A(f"v_mov_b32 v{32+k}, -1")
    A(f"v_lshrrev_b32 v14, 3, v{vLane}"); A("v_lshlrev_b32 v14, 13, v14")
    A(f"v_and_b32 v15, 7, v{vLane}"); A("v_lshlrev_b32 v15, 4, v15"); A("v_add_u32 v14, v14, v15")
    A(f"s_lshl_b32 s{st0}, s{sB}, 17"); A(f"s_lshl_b32 s{st1}, s{sJ}, 7"); A(f"s_add_u32 s{st0}, s{st0}, s{st1}")
    A(f"buffer_store_dwordx4 v[32:35], v14, {srd(sWS)}, s{st0} offen sc1")
    A(f"s_add_u32 s{st0}, s{st0}, 65536")
    A(f"buffer_store_dwordx4 v[32:35], v14, {srd(sWS)}, s{st0} offen sc1")
    A(f"v_lshlrev_b32 v14, 2, v{vLane}")
    A(f"s_lshl_b32 s{st0}, s{sReg}, 7"); A(f"s_add_u32 s{st0}, s{st0}, {WS_ST}")
    A("s_mov_b64 exec, 3"); A(f"buffer_store_dword v32, v14, {srd(sWS)}, s{st0} offen sc1"); A("s_mov_b64 exec, -1")
    A("s_cmp_ge_u32 s2, 64"); A("s_cbranch_scc1 L_pnored")
    A(f"s_lshr_b32 s{st0}, s2, 4"); A(f"s_lshl_b32 s{st0}, s{st0}, 10")
    A(f"s_and_b32 s{st1}, s2, 15"); A(f"s_lshl_b32 s{st1}, s{st1}, 6"); A(f"s_add_u32 s{st0}, s{st0}, s{st1}")
    A(f"s_add_u32 s{st0}, s{st0}, {WS_H}")
    A("s_mov_b64 exec, 0xffff"); A(f"buffer_store_dword v32, v14, {srd(sWS)}, s{st0} offen sc1"); A("s_mov_b64 exec, -1")
    A("s_branch L_pdone")
    A.label("L_pnored")
    A("s_cmp_ge_u32 s2, 152"); A("s_cbranch_scc1 L_pdone")
    ffn1_tile(sTl)
    A(f"s_cmp_ge_u32 s{sTl}, 86"); A("s_cbranch_scc1 L_pdone")
    A(f"s_lshl_b32 s{st0}, s{sTl}, 7"); A(f"s_add_u32 s{st0}, s{st0}, {WS_H1}")
    A("s_mov_b32 exec_hi, 0"); A(f"buffer_store_dword v32, v14, {srd(sWS)}, s{st0} offen sc1"); A("s_mov_b64 exec, -1")
    A.label("L_pdone")
    A("s_waitcnt vmcnt(0)")
    A("v_mov_b32 v14, 0"); A("v_mov_b32 v15, 1")
    A("s_mov_b64 exec, 1"); A(f"global_atomic_add v14, v15, s[{pDBG}:{pDBG+1}]"); A("s_mov_b64 exec, -1")
    A.label("L_nopoison")
    A(f"v_lshlrev_b32 v3, 10, v{vG}"); A(f"v_lshlrev_b32 v14, 4, v{vCc}"); A("v_add_u32 v3, v3, v14")
    A(f"s_lshl_b32 s{st1}, s{sU}, 8"); A(f"v_add_u32 v3, s{st1}, v3")
    A(f"s_lshl_b32 s{st1}, s{sH}, 17")
    mk_srd(sC, pWO, 131072, off_sgpr=st1)
    A(f"s_mov_b32 s{sOff}, 0")
    for n in range(32):
        A(f"buffer_load_dwordx4 v[{vW+4*n}:{vW+4*n+3}], v3, {srd(sC)}, s{sOff} offen")
        if n < 31: A(f"s_add_u32 s{sOff}, s{sOff}, 4096")
        if n % PACE == PACE-1: A("s_waitcnt vmcnt(0)")
    A("s_waitcnt vmcnt(0)")
    A(f"v_lshlrev_b32 v15, 4, v{vLane}"); A(f"s_mul_i32 s{st0}, s{sU}, {STG_W}"); A(f"s_add_u32 s{st0}, s{st0}, {L_STG}")
    A(f"v_add_u32 v15, s{st0}, v15")
    A("s_cmp_lt_u32 s2, 64"); A("s_cbranch_scc1 L_stgdone")
    A("s_cmp_ge_u32 s2, 184"); A("s_cbranch_scc1 L_stgdone")
    A("s_cmp_ge_u32 s2, 152"); A("s_cbranch_scc1 L_stg2")
    ffn1_tile(sTl)
    A(f"s_cmp_ge_u32 s{sTl}, 86"); A("s_cbranch_scc1 L_stgdone")
    A(f"v_lshrrev_b32 v14, 1, v{vLane}"); A("v_mul_u32_u24 v14, 2752, v14")
    A(f"v_and_b32 v6, 1, v{vLane}"); A("v_lshlrev_b32 v6, 4, v6"); A("v_add_u32 v14, v14, v6")
    A(f"s_mul_i32 s{st0}, s{sU}, {128*2752}"); A(f"v_add_u32 v14, s{st0}, v14")
    A(f"s_lshl_b32 s{st1}, s{sTl}, 5")
    A(f"s_add_u32 s{sT}, s{pW1}, s{st1}"); A(f"s_addc_u32 s{sT+1}, s{pW1+1}, 0")
    A(f"s_sub_u32 s{sT+2}, {512*2752}, s{st1}"); A(f"s_mov_b32 s{sT+3}, 0x20000")
    A(f"s_mov_b32 s{sOff}, 0")
    for n in range(4):
        A(f"buffer_load_dwordx4 v[{32+4*n}:{35+4*n}], v14, {srd(sT)}, s{sOff} offen")
        A(f"s_add_u32 s{sOff}, s{sOff}, {32*2752}")
    A("s_waitcnt vmcnt(0)")
    for n in range(4): A(f"ds_write_b128 v15, v[{32+4*n}:{35+4*n}] offset:{n*1024}")
    A("s_branch L_stgdone")
    A.label("L_stg2")
    ffn2_tile(sTl)
    A(f"v_lshrrev_b32 v14, 1, v{vLane}"); A("v_lshlrev_b32 v14, 10, v14")
    A(f"v_and_b32 v6, 1, v{vLane}"); A("v_lshlrev_b32 v6, 4, v6"); A("v_add_u32 v14, v14, v6")
    A(f"s_mul_i32 s{st0}, s{sU}, {352*1024}"); A(f"v_add_u32 v14, s{st0}, v14")
    A(f"s_lshl_b32 s{st1}, s{sTl}, 5")
    A(f"s_add_u32 s{sT}, s{pW2}, s{st1}"); A(f"s_addc_u32 s{sT+1}, s{pW2+1}, 0")
    A(f"s_sub_u32 s{sT+2}, {1376*1024}, s{st1}"); A(f"s_mov_b32 s{sT+3}, 0x20000")
    A(f"s_mov_b32 s{sOff}, 0")
    for n in range(11):
        A(f"buffer_load_dwordx4 v[{32+4*n}:{35+4*n}], v14, {srd(sT)}, s{sOff} offen")
        A(f"s_add_u32 s{sOff}, s{sOff}, {32*1024}")
        if n % 4 == 3: A("s_waitcnt vmcnt(0)")
    A("s_waitcnt vmcnt(0)")
    for n in range(11): A(f"ds_write_b128 v15, v[{32+4*n}:{35+4*n}] offset:{n*1024}")
    A.label("L_stgdone")
    A("s_waitcnt lgkmcnt(0)")
    A(f"s_cmp_lg_u32 s{sU}, 0"); A("s_cbranch_scc1 L_nostat")
    A(f"v_and_b32 v14, 3, v{vLane}"); A("v_lshlrev_b32 v14, 3, v14")
    A(f"s_mov_b32 s{sCnt}, {SPIN_LIMIT}")
    A.label("L_stspin")
    A("s_sleep 8")
    A(f"ds_read_b64 v[32:33], v14 offset:{L_STAT}"); A("s_waitcnt lgkmcnt(0)")
    spin_check([32, 33], 34, "L_stspin", "L_stok")
    A("v_max_f32_dpp v34, v32, v32 quad_perm:[1,0,3,2] row_mask:0xf bank_mask:0xf")
    A("v_max_f32_dpp v34, v34, v34 quad_perm:[2,3,0,1] row_mask:0xf bank_mask:0xf")
    A("v_sub_f32 v35, v32, v34"); A("v_mul_f32 v35, 0x3fb8aa3b, v35"); A("v_exp_f32 v35, v35")
    A("v_mul_f32 v35, v35, v33")
    A("v_add_f32_dpp v35, v35, v35 quad_perm:[1,0,3,2] row_mask:0xf bank_mask:0xf")
    A("v_add_f32_dpp v35, v35, v35 quad_perm:[2,3,0,1] row_mask:0xf bank_mask:0xf")
    A("v_mov_b32 v36, 0x7fc00000")
    sanitize([34, 35], 36)
    A("v_mov_b32 v15, 0")
    A(f"s_lshl_b32 s{st0}, s{sReg}, 7"); A(f"s_add_u32 s{st0}, s{st0}, {WS_ST}")
    A("s_mov_b64 exec, 1"); A(f"buffer_store_dwordx2 v[34:35], v15, {srd(sWS)}, s{st0} offen sc1"); A("s_mov_b64 exec, -1")
    A(f"s_mov_b32 s{sCnt}, {SPIN_LIMIT}")
    A.label("L_inspin")
    A(f"global_load_dword v37, v15, s[{pDBG}:{pDBG+1}] sc1"); A("s_waitcnt vmcnt(0)")
    A("v_cmp_gt_u32 vcc, 0x100, v37")
    A("s_cbranch_vccz L_inok")
    A("s_sleep 4")
    A(f"s_sub_u32 s{sCnt}, s{sCnt}, 1"); A("s_cbranch_scc0 L_inspin")
    A.label("L_inok")
    A(f"s_xor_b32 s{st1}, s{sReg}, 1"); A(f"s_lshl_b32 s{st1}, s{st1}, 7"); A(f"s_add_u32 s{st1}, s{st1}, {WS_ST}")
    A(f"s_mov_b32 s{sCnt}, {SPIN_LIMIT}")
    A.label("L_prspin")
    A("s_sleep 4")
    A(f"buffer_load_dwordx2 v[38:39], v15, {srd(sWS)}, s{st1} offen sc1"); A("s_waitcnt vmcnt(0)")
    spin_check([38, 39], 37, "L_prspin", "L_prok")
    A("v_max_f32 v40, v34, v38")
    A("v_sub_f32 v41, v34, v40"); A("v_sub_f32 v42, v38, v40"); A("v_sub_f32 v43, v32, v40")
    for r in (41, 42, 43): A(f"v_mul_f32 v{r}, 0x3fb8aa3b, v{r}")
    for r in (41, 42, 43): A(f"v_exp_f32 v{r}, v{r}")
    A("v_mul_f32 v41, v41, v35"); A("v_fmac_f32 v41, v42, v39")
    A("v_rcp_f32 v41, v41"); A("v_mul_f32 v43, v43, v41")
    sanitize([43], 36)
    A(f"v_lshlrev_b32 v14, 2, v{vLane}")
    A("s_mov_b64 exec, 0xf"); A(f"ds_write_b32 v14, v43 offset:{L_FW}"); A("s_mov_b64 exec, -1")
    A("s_waitcnt lgkmcnt(0)")
    A.label("L_nostat")
    A(f"v_lshlrev_b32 v14, 6, v{vCc}"); A(f"v_lshlrev_b32 v15, 4, v{vG}"); A("v_add_u32 v14, v14, v15")
    A(f"v_lshrrev_b32 v6, 2, v{vCc}"); A("v_lshlrev_b32 v6, 13, v6")
    A(f"v_and_b32 v7, 3, v{vCc}"); A("v_lshlrev_b32 v7, 5, v7"); A("v_add_u32 v6, v6, v7")
    A(f"v_lshlrev_b32 v7, 3, v{vG}"); A("v_add_u32 v6, v6, v7")
    A(f"s_lshl_b32 s{st0}, s{sB}, 4"); A(f"s_lshl_b32 s{st1}, s{sU}, 2"); A(f"s_add_u32 s{st0}, s{st0}, s{st1}")
    A(f"s_lshl_b32 s{st0}, s{st0}, 13"); A(f"s_lshl_b32 s{st1}, s{sJ}, 7"); A(f"s_add_u32 s{sReg}, s{st0}, s{st1}")
    A("v_mov_b32 v7, 0x7fc00000")
    A("v_mov_b32 v15, 0")
    stamp(3)
    A("s_barrier")
    stamp(4)
    if DBG & 2:
        A(f"s_cmp_lg_u32 s{sU}, 1"); A("s_cbranch_scc1 L_dbgl")
        A(f"v_lshlrev_b32 v40, 4, v{vLane}")
        A(f"s_lshl_b32 s{st0}, s2, 13"); A(f"s_add_u32 s{st0}, s{st0}, {0x200000}")
        for k in range(8):
            A(f"ds_read_b128 v[44:47], v40 offset:{k*1024}"); A("s_waitcnt lgkmcnt(0)")
            A(f"buffer_store_dwordx4 v[44:47], v40, {srd(sWS)}, s{st0} offen"); A("s_waitcnt vmcnt(0)")
            A(f"s_add_u32 s{st0}, s{st0}, 1024")
        A.label("L_dbgl")
    A(f"ds_read_b128 v[32:35], v14 offset:{L_OW}")
    A(f"ds_read_b128 v[36:39], v14 offset:{L_OW+1024}")
    A("s_waitcnt lgkmcnt(0)")
    A("v_add_f32 v32, v32, v33"); A("v_add_f32 v34, v34, v35"); A("v_add_f32 v36, v36, v37"); A("v_add_f32 v38, v38, v39")
    A("v_add_f32 v32, v32, v34"); A("v_add_f32 v36, v36, v38")
    A(f"v_cvt_pk_bf16_f32 v{hPlo0}, v32, v15"); A(f"v_cvt_pk_bf16_f32 v{hPhi0}, v15, v32")
    A(f"v_cvt_pk_bf16_f32 v{hPlo1}, v36, v15"); A(f"v_cvt_pk_bf16_f32 v{hPhi1}, v15, v36")
    A(f"s_mov_b32 s{sTile}, 1")
    A("s_branch L_gemv")
    A.label("L_yepi")
    sanitize([hAcc, hAcc+1], 7)
    A(f"buffer_store_dwordx2 v[{hAcc}:{hAcc+1}], v6, {srd(sWS)}, s{sReg} offen sc1")
    stamp(5)
    prof_store(0)
    A.label("L_end")
    A("s_endpgm")
    A('.section .rodata,"a"'); A(".p2align 6"); A(f".amdhsa_kernel {NAME}")
    A("  .amdhsa_next_free_vgpr 256"); A("  .amdhsa_next_free_sgpr 96"); A("  .amdhsa_accum_offset 256")
    A("  .amdhsa_group_segment_fixed_size 0"); A("  .amdhsa_kernarg_size 88"); A("  .amdhsa_user_sgpr_count 2")
    A("  .amdhsa_user_sgpr_kernarg_segment_ptr 1"); A("  .amdhsa_system_sgpr_workgroup_id_x 1")
    A("  .amdhsa_float_denorm_mode_32 3"); A("  .amdhsa_float_denorm_mode_16_64 3")
    A(".end_amdhsa_kernel")
    return A.finalize()

if __name__ == "__main__":
    import build
    kw = json.loads(sys.argv[2]) if len(sys.argv) > 2 else {}
    s = gen(**kw)
    open(sys.argv[1], "w").write(s)
    build.build(sys.argv[1])
```

```python
import re
TRANS = ("v_exp_f32","v_log_f32","v_rcp_f32","v_rsq_f32","v_sqrt_f32","v_sin_f32","v_cos_f32","v_rcp_iflag_f32")
VCC = [("s",106),("s",107)]
EXEC = [("x",0)]
def regs_of(tok):
    tok = tok.strip()
    neg = tok.lstrip("-")
    if neg.startswith("abs(") or neg.startswith("|"):
        neg = neg.replace("abs(","").replace(")","").replace("|","")
    tok = neg
    m = re.fullmatch(r"([vas])(\d+)", tok)
    if m: return [(m.group(1), int(m.group(2)))]
    m = re.fullmatch(r"([vas])\[(\d+):(\d+)\]", tok)
    if m: return [(m.group(1), i) for i in range(int(m.group(2)), int(m.group(3))+1)]
    if tok == "vcc": return list(VCC)
    if tok == "vcc_lo": return [VCC[0]]
    if tok == "vcc_hi": return [VCC[1]]
    if tok == "exec": return list(EXEC)
    if tok == "m0": return [("m",0)]
    return []
class Ins:
    def __init__(self, text):
        self.text = text
        t = text.split(";")[0].strip()
        self.op = t.split()[0] if t else ""
        rest = t[len(self.op):].strip()
        ops = []; depth = 0; cur = ""
        for ch in rest:
            if ch == "[": depth += 1
            if ch == "]": depth -= 1
            if ch == "," and depth == 0: ops.append(cur.strip()); cur = ""
            else: cur += ch
        if cur.strip(): ops.append(cur.strip())
        self.mods = ""
        if ops:
            parts = ops[-1].split(None, 1)
            if len(parts) == 2 and not parts[0].endswith("("):
                ops[-1] = parts[0]; self.mods = parts[1]
        self.ops = ops
        op = self.op
        self.base = re.sub(r"_(e32|e64|dpp|sdwa)$", "", op)
        self.valu = op.startswith("v_") and not op.startswith("v_mfma")
        self.mfma = op.startswith("v_mfma")
        self.salu = op.startswith("s_")
        self.vmem = op.startswith(("buffer_","global_","flat_"))
        self.ds = op.startswith("ds_")
        self.dl = op.startswith("v_dot")
        self.trans = self.base in TRANS
        self.dpp = op.endswith("_dpp") or "row_" in self.mods or "quad_perm" in self.mods or "wave_" in self.mods
        self.permlane = op.startswith("v_permlane")
        self.readlane = self.base in ("v_readlane_b32","v_readfirstlane_b32")
        self.nop = (int(ops[0],0)+1) if op == "s_nop" else 1
        d, s = self.defs_uses()
        self.defs = set(d); self.uses = set(s)
    def defs_uses(self):
        op, b, ops = self.op, self.base, self.ops
        R = [regs_of(o) for o in ops]
        flat = lambda L: [x for l in L for x in l]
        if self.mfma: return R[0], flat(R[1:4])
        if self.valu:
            if b.startswith("v_cmp"):  return R[0], flat(R[1:])
            if self.permlane and "swap" in b: return R[0]+R[1], R[0]+R[1]
            if b in ("v_fmac_f32","v_dot2c_f32_bf16","v_pk_fmac_f16","v_fmac_f64","v_writelane_b32"): return R[0], flat(R)
            if b in ("v_add_co_u32","v_sub_co_u32","v_subrev_co_u32"): return R[0]+R[1], flat(R[2:])
            if b in ("v_addc_co_u32","v_subb_co_u32"): return R[0]+R[1], flat(R[2:])
            if b == "v_cndmask_b32":
                u = flat(R[1:])
                if len(ops) == 3: u += VCC
                return R[0], u
            u = flat(R[1:])
            if self.dpp and ("bank_mask:0xf" not in self.mods or "row_mask:0xf" not in self.mods): pass
            return R[0], u
        if self.vmem:
            if "load" in op:
                if " lds" in " "+self.mods or op.startswith("global_load_lds"): return [], flat(R)
                return R[0], flat(R[1:])
            if "atomic" in op:
                if "sc0" in self.mods:
                    return R[0], flat(R)
                return [], flat(R)
            if "store" in op: return [], flat(R)
            return [], flat(R)
        if self.ds:
            if op.startswith(("ds_read","ds_bpermute","ds_permute","ds_swizzle")) or "_rtn" in op: return R[0], flat(R[1:])
            return [], flat(R)
        if self.salu:
            if op.startswith(("s_cmp","s_cbranch","s_branch","s_waitcnt","s_nop","s_barrier","s_endpgm","s_sleep","s_setprio","s_bitcmp")):
                return [], flat(R)
            d = list(R[0]) if R else []
            u = flat(R[1:])
            if "saveexec" in op: d += EXEC; u += EXEC
            return d, u
        return [], []
    def store_data(self):
        if self.vmem and "store" in self.op and ("x4" in self.op or "x3" in self.op):
            if self.op.startswith("buffer"): return set(regs_of(self.ops[0]))
            return set(regs_of(self.ops[1]))
        return set()
def mfma_passes(i):
    if "16x16x32" in i.op or "16x16x16" in i.op: return 4
    if "32x32x16" in i.op or "32x32x8" in i.op: return 8
    if "4x4x4" in i.op: return 2
    raise ValueError(i.op)
def required(p, c):
    w = 0
    isv = lambda r: r[0] in "va"
    pv = {r for r in p.defs if isv(r)}; ps = {r for r in p.defs if r[0] == "s"}
    cu = c.uses; cd = c.defs
    if p.valu:
        if c.dpp and pv & cu: w = max(w, 2)
        if c.permlane and pv & cu: w = max(w, 2)
        if c.readlane and pv & cu: w = max(w, 1)
        if c.mfma and pv & cu: w = max(w, 2)
        if p.trans and c.valu and not c.trans and pv & cu: w = max(w, 1)
        if p.trans and (c.vmem or c.ds) and pv & cu: w = max(w, 1)
        if ps:
            if c.valu and ps & cu:
                w = max(w, 4 if c.base in ("v_readlane_b32","v_writelane_b32") else 2)
            if c.vmem and ps & cu: w = max(w, 5)
            if c.salu and ps & cu: w = max(w, 1)
        if p.dl:
            if pv & (cu | cd):
                same = (p.base == c.base)
                if same and c.dl:
                    if c.base == "v_dot2c_f32_bf16": ab = set(regs_of(c.ops[1])) | set(regs_of(c.ops[2]))
                    else: ab = set(regs_of(c.ops[1])) | set(regs_of(c.ops[2]))
                    if pv & ab: w = max(w, 3)
                    if c.base != "v_dot2c_f32_bf16" and (pv & cd) and not (pv & set(regs_of(c.ops[3]))): w = max(w, 3)
                else: w = max(w, 3)
    if p.mfma:
        n = mfma_passes(p); tab = {2:(5,4,2,1),4:(8,6,0,3),8:(12,10,0,7)}[n]
        if c.mfma:
            ab = set(regs_of(c.ops[1])) | set(regs_of(c.ops[2])); cc = set(regs_of(c.ops[3]))
            if pv & ab: w = max(w, tab[0])
            if pv & cc and not (pv == cc and mfma_passes(c) == n): w = max(w, tab[1])
            if pv & cc and pv == cc: w = max(w, tab[2])
            if pv & c.defs and not (pv & cc): w = max(w, tab[0])
        elif c.valu or c.vmem or c.ds:
            if pv & (cu | cd): w = max(w, tab[0])
        pc = set(regs_of(p.ops[3]))
        if c.valu and pc & cd: w = max(w, tab[3])
    sd = p.store_data()
    if sd:
        if c.valu and sd & cd: w = max(w, 2)
        elif (c.vmem or c.ds or c.mfma) and sd & cd: w = max(w, 1)
    return w
class Asm:
    def __init__(self): self.items = []
    def __call__(self, *lines):
        for line in lines:
            for l in line.split("\n"):
                l = l.strip()
                if l: self.items.append(l)
    def label(self, name): self.items.append(name + ":")
    def finalize(self, maxw=12):
        items = list(self.items)
        ninserted = 0
        cache = {}
        def mk(it):
            if it not in cache: cache[it] = Ins(it)
            return cache[it]
        start = 0
        while True:
            kinds = []
            for it in items:
                if it.endswith(":") and not it.startswith(";"): kinds.append(("L", it[:-1]))
                elif it.startswith((".", ";")): kinds.append(("D", it))
                else: kinds.append(("I", mk(it)))
            labels = {k[1]: i for i, k in enumerate(kinds) if k[0] == "L"}
            srcs = {}
            for i, k in enumerate(kinds):
                if k[0] == "I" and k[1].op.startswith(("s_cbranch","s_branch")):
                    srcs.setdefault(labels[k[1].ops[0]], []).append(i)
            def preds(i):
                out = []; j = i - 1
                while j >= 0:
                    k = kinds[j]
                    if k[0] == "L": out += srcs.get(j, [])
                    elif k[0] == "I":
                        if k[1].op not in ("s_branch","s_endpgm","s_setpc_b64"): out.append(j)
                        break
                    j -= 1
                return out
            fix = None
            for i, k in enumerate(kinds):
                if k[0] != "I": continue
                c = k[1]
                if c.salu and not c.uses: continue
                need = 0
                stack = [(p, 0) for p in preds(i)]; seen = {}
                while stack:
                    p, dist = stack.pop()
                    if dist >= maxw: continue
                    if p in seen and seen[p] <= dist: continue
                    seen[p] = dist
                    pi = kinds[p][1]
                    r = required(pi, c)
                    if r > dist: need = max(need, r - dist)
                    for q in preds(p): stack.append((q, dist + pi.nop))
                if need:
                    fix = (i, need); break
            if fix is None: break
            i, need = fix
            items.insert(i, f"s_nop {need-1}")
            ninserted += 1
        self.ninserted = ninserted
        return "\n".join(items) + "\n"

def check_async(text):
    vm = []; lg = []; warns = []
    for ln, it in enumerate(text.split("\n")):
        it = it.strip()
        if not it or it.startswith((".", ";")) or it.endswith(":"): continue
        i = Ins(it)
        if i.op in ("s_endpgm", "s_branch", "s_setpc_b64"):
            vm = []; lg = []; continue
        if i.op == "s_waitcnt":
            m = re.search(r"vmcnt\((\d+)\)", it)
            if m:
                n = int(m.group(1))
                while len(vm) > n: vm.pop(0)
            m = re.search(r"lgkmcnt\((\d+)\)", it)
            if m:
                n = int(m.group(1))
                if n == 0: lg = []
                else:
                    while len(lg) > n: lg.pop(0)
            continue
        pend = set()
        for e in vm: pend |= e
        for e in lg: pend |= e
        touched = {r for r in (i.defs | i.uses) if r[0] in "va"}
        bad = touched & pend
        if bad:
            warns.append((ln+1, it, sorted(bad)))
        if i.vmem:
            vm.append({r for r in i.defs if r[0] in "va"})
        elif i.ds:
            lg.append({r for r in i.defs if r[0] in "va"})
        elif i.op.startswith(("s_load", "s_memrealtime", "s_memtime")):
            lg.append(set())
    return warns
```

```python
import sys, json
from asmlib import Asm
NAME = "sequential_preLN__gqa_block_cached__dense_activation_relu__decode_kernel"

WS_Y  = 0x00000
WS_H  = 0x80000
WS_H1 = 0x81000
WS_ST = 0x84000
WS_PROF = 0x100000
WS_SIZE = 0x500000
L_QP = 0; L_OW = 2048; L_STAT = 4096; L_FW = 4128
L_RED = 4608; L_RED2 = L_RED + 4096; L_RED3 = L_RED2 + 2048
L_SC = 16384; L_STG = 32768; STG_W = 11264; RS = 288
LDS_BYTES = L_STG + 4*STG_W
POISON = -1
SPIN_LIMIT = 1 << 18

def brev4(n): return int(f"{n:04b}"[::-1], 2)

def gen(D=6, PROF=False, PACE=4, DBG=0, WQF='', WOF='', WFF='', NOWO=0, NOSTG=0, D0=5, SLP1=0, SLP2=0, SLPR=0):
    A = Asm()
    R = 16
    A(f"; @launch grid=(256,1,1) block=(512,1,1) lds={LDS_BYTES}")
    A('.amdgcn_target "amdgcn-amd-amdhsa--gfx950"')
    A(".text"); A(f".globl {NAME}"); A(".p2align 8"); A(f".type {NAME},@function"); A.label(NAME)
    sK, sV, sC, sWS, sT = 4, 8, 12, 16, 20
    sM0, sM1 = 24, 26
    sH, sB, sHalf, sReg = 28, 29, 30, 31
    sOff, sTile, sU = 32, 33, 34
    st0, st1, st2, st3 = 58, 59, 60, 61
    sJ = 62
    sCnt = 63
    sP = 64
    pX, pK, pV, pWQ, pWO, pW1, pW2, pOUT, pDBG, pWS = 36, 38, 40, 42, 44, 48, 50, 52, 54, 56
    srd = lambda s: f"s[{s}:{s+3}]"
    nst = [0]
    def stamp(i):
        if PROF: A(f"s_memrealtime s[{sP+2*i}:{sP+2*i+1}]")
    def prof_store(slot_wave):
        if not PROF: return
        A("s_waitcnt lgkmcnt(0)")
        A(f"s_lshl_b32 s{st0}, s2, 3"); A(f"s_add_u32 s{st0}, s{st0}, s3"); A(f"s_lshl_b32 s{st0}, s{st0}, 6")
        A(f"s_add_u32 s{st0}, s{st0}, {WS_PROF}")
        for i in range(8):
            A(f"v_mov_b32 v{40+i}, s{sP+2*i}")
        A(f"v_mov_b32 v48, 0")
        A("s_mov_b64 s[60:61], exec"); A("s_mov_b64 exec, 1")
        A(f"buffer_store_dwordx4 v[40:43], v48, {srd(sWS)}, s{st0} offen")
        A(f"buffer_store_dwordx4 v[44:47], v48, {srd(sWS)}, s{st0} offen offset:16")
        A("s_mov_b64 exec, s[60:61]")
    def mk_srd(s, p, size, off_sgpr=None, off_imm=None):
        if off_sgpr is not None:
            A(f"s_add_u32 s{s}, s{p}, s{off_sgpr}"); A(f"s_addc_u32 s{s+1}, s{p+1}, 0")
        elif off_imm is not None:
            A(f"s_add_u32 s{s}, s{p}, {off_imm}"); A(f"s_addc_u32 s{s+1}, s{p+1}, 0")
        else:
            A(f"s_mov_b32 s{s}, s{p}"); A(f"s_mov_b32 s{s+1}, s{p+1}")
        A(f"s_mov_b32 s{s+2}, {size}")
        A(f"s_mov_b32 s{s+3}, 0x20000")
    def wave_allreduce(op, x, t):
        for k in (8, 4, 2, 1):
            A(f"{op}_dpp v{x}, v{x}, v{x} row_ror:{k} row_mask:0xf bank_mask:0xf")
        A(f"v_mov_b32 v{t}, v{x}"); A(f"v_permlane16_swap_b32 v{x}, v{t}"); A(f"{op} v{x}, v{x}, v{t}")
        A(f"v_mov_b32 v{t}, v{x}"); A(f"v_permlane32_swap_b32 v{x}, v{t}"); A(f"{op} v{x}, v{x}, v{t}")
    def round_bf16(x, t=None):
        A(f"v_cvt_pk_bf16_f32 v{x}, v{x}, v{x}")
        A(f"v_and_b32 v{x}, 0xffff0000, v{x}")
    def acc_reduce(a):
        for e in range(4):
            A(f"v_permlane32_swap_b32 v{a+e}, v{a+e+4}")
        for e in range(4):
            A(f"v_add_f32 v{a+e}, v{a+e}, v{a+e+4}")
        A(f"v_permlane16_swap_b32 v{a}, v{a+2}")
        A(f"v_permlane16_swap_b32 v{a+1}, v{a+3}")
        A(f"v_add_f32 v{a}, v{a}, v{a+2}")
        A(f"v_add_f32 v{a+1}, v{a+1}, v{a+3}")
    def sanitize(regs, repl_sgpr, tmpmask="vcc"):
        for r in regs:
            A(f"v_cmp_eq_u32 vcc, -1, v{r}")
            A(f"v_cndmask_b32 v{r}, v{r}, v{repl_sgpr}, vcc")
    def spin_check(regs, tmp, loop, done, fail=None):
        rs = list(regs)
        if len(rs) == 1:
            m = rs[0]
        else:
            A(f"v_max_u32 v{tmp}, v{rs[0]}, v{rs[1]}"); rs = rs[2:]
            while len(rs) >= 2:
                A(f"v_max3_u32 v{tmp}, v{tmp}, v{rs[0]}, v{rs[1]}"); rs = rs[2:]
            if rs: A(f"v_max_u32 v{tmp}, v{tmp}, v{rs[0]}")
            m = tmp
        A(f"v_cmp_eq_u32 vcc, -1, v{m}")
        A(f"s_cbranch_vccz {done}")
        A(f"s_sub_u32 s{sCnt}, s{sCnt}, 1")
        A(f"s_cbranch_scc0 {loop}")
        A.label(done)

    stamp(0)
    A("s_cmp_ge_u32 s2, 256")
    A("s_cbranch_scc1 L_end")
    A("s_load_dwordx16 s[36:51], s[0:1], 0")
    A("s_load_dwordx4 s[52:55], s[0:1], 64")
    A("s_load_dwordx2 s[56:57], s[0:1], 80")
    A("v_lshrrev_b32 v1, 6, v0")
    A("v_and_b32 v2, 63, v0")
    A(f"s_and_b32 s{st0}, s2, 7")
    A("v_readfirstlane_b32 s3, v1")
    A(f"s_lshr_b32 s{st1}, s2, 3")
    A(f"s_lshr_b32 s{sH}, s{st1}, 3"); A(f"s_lshl_b32 s{sH}, s{sH}, 3"); A(f"s_add_u32 s{sH}, s{sH}, s{st0}")
    A(f"s_and_b32 s{st1}, s{st1}, 7")
    A(f"s_lshr_b32 s{sB}, s{st1}, 1")
    A(f"s_and_b32 s{sHalf}, s{st1}, 1")
    A(f"s_lshl_b32 s{sReg}, s{sB}, 5"); A(f"s_add_u32 s{sReg}, s{sReg}, s{sH}")
    A(f"s_lshl_b32 s{sReg}, s{sReg}, 1"); A(f"s_add_u32 s{sReg}, s{sReg}, s{sHalf}")
    A(f"s_lshl_b32 s{sJ}, s{sH}, 1"); A(f"s_add_u32 s{sJ}, s{sJ}, s{sHalf}")
    A("s_cmp_ge_u32 s3, 4")
    A("s_cbranch_scc1 L_helper")

    vLane, vOff = 2, 3
    vQ = 4; vAcc = 8; vP = 16; vtA, vtB = 32, 33; vM, vL, vSC, vPn, vPlo, vPhi = 34, 35, 36, 37, 38, 39
    vRing = 64
    ring = lambda i: vRing + 4*(i % R)
    A(f"v_lshlrev_b32 v{vOff}, 4, v{vLane}")
    A(f"s_lshl_b32 s{st0}, s3, 10")
    A(f"v_add_u32 v{vOff}, s{st0}, v{vOff}")
    A(f"s_lshl_b32 s{st0}, s{sReg}, 20")
    A("s_waitcnt lgkmcnt(0)")
    mk_srd(sK, pK, 1 << 20, off_sgpr=st0)
    A(f"s_mov_b32 s{sOff}, 0")
    def sload(i, s):
        A(f"buffer_load_dwordx4 v[{ring(i)}:{ring(i)+3}], v{vOff}, {srd(s)}, s{sOff} offen nt")
        A(f"s_add_u32 s{sOff}, s{sOff}, 4096")
    for i in range(D0): sload(i, sK)
    A("s_barrier")
    for i in range(D0, R): sload(i, sK)
    mk_srd(sV, pV, 1 << 20, off_sgpr=st0)
    for k in range(4): A(f"s_mov_b32 s{sC+k}, s{sK+k}")
    mk_srd(sWS, pWS, WS_SIZE)
    A("s_getpc_b64 s[58:59]")
    A.label("L_pc")
    A(f"s_sub_u32 s58, s58, L_pc-{NAME}"); A("s_subb_u32 s59, s59, 0")
    A(f"v_lshlrev_b32 v40, 7, v{vLane}")
    A(f"s_lshl_b32 s{st2}, s3, 13")
    A(f"v_add_u32 v40, s{st2}, v40")
    A(f"v_min_u32 v40, L_end-{NAME}, v40")
    A("global_load_dword v41, v40, s[58:59]")
    A(f"s_mov_b32 s{sM0}, 0xaaaaaaaa"); A(f"s_mov_b32 s{sM0+1}, 0xaaaaaaaa")
    A(f"s_mov_b32 s{sM1}, 0xcccccccc"); A(f"s_mov_b32 s{sM1+1}, 0xcccccccc")
    A(f"s_lshl_b32 s{st2}, s3, 12"); A(f"s_add_u32 s{st2}, s{st2}, {L_SC}")
    A(f"v_lshlrev_b32 v{vSC}, 2, v{vLane}"); A(f"v_add_u32 v{vSC}, s{st2}, v{vSC}")
    A(f"v_mov_b32 v{vM}, 0xff7fffff")
    A(f"v_and_b32 v42, 15, v{vLane}"); A("v_lshlrev_b32 v42, 5, v42")
    stamp(1)
    A("s_barrier")
    vqt = 128
    for u in range(4):
        A(f"ds_read_b128 v[{vqt+8*u}:{vqt+8*u+3}], v42 offset:{L_QP+u*512}")
        A(f"ds_read_b128 v[{vqt+8*u+4}:{vqt+8*u+7}], v42 offset:{L_QP+u*512+16}")
    A("s_waitcnt lgkmcnt(0)")
    for e in range(8):
        A(f"v_add_f32 v{vqt+e}, v{vqt+e}, v{vqt+8+e}")
        A(f"v_add_f32 v{vqt+16+e}, v{vqt+16+e}, v{vqt+24+e}")
    for e in range(8): A(f"v_add_f32 v{vqt+e}, v{vqt+e}, v{vqt+16+e}")
    for r in range(4): A(f"v_cvt_pk_bf16_f32 v{vQ+r}, v{vqt+2*r}, v{vqt+2*r+1}")
    if DBG & 1:
        A("s_cmp_lg_u32 s3, 0"); A("s_cbranch_scc1 L_dbgq")
        A(f"s_lshl_b32 s{st2}, s{sReg}, 8"); A(f"s_add_u32 s{st2}, s{st2}, {WS_PROF+0x80000}")
        A(f"v_lshlrev_b32 v40, 4, v{vLane}")
        A("s_mov_b64 exec, 0xffff")
        A(f"buffer_store_dwordx4 v[{vQ}:{vQ+3}], v40, {srd(sWS)}, s{st2} offen")
        A("s_mov_b64 exec, -1")
        A("s_waitcnt vmcnt(0)")
        A.label("L_dbgq")
    stamp(2)
    def k_tile(first):
        P = lambda n: vP + n
        def redA(k):
            A(f"v_add_f32_dpp v{P(2*k)}, v{P(2*k)}, v{P(2*k)} row_ror:8 row_mask:0xf bank_mask:0x3")
            A(f"v_add_f32_dpp v{P(2*k)}, v{P(2*k+1)}, v{P(2*k+1)} row_ror:8 row_mask:0xf bank_mask:0xc")
        def redB(m):
            A(f"v_add_f32_dpp v{P(4*m)}, v{P(4*m)}, v{P(4*m)} row_shl:4 row_mask:0xf bank_mask:0x5")
            A(f"v_add_f32_dpp v{P(4*m)}, v{P(4*m+2)}, v{P(4*m+2)} row_shr:4 row_mask:0xf bank_mask:0xa")
        def redC(x):
            A(f"v_add_f32_dpp v{vtA}, v{P(8*x)}, v{P(8*x)} quad_perm:[2,3,0,1] row_mask:0xf bank_mask:0xf")
            A(f"v_add_f32_dpp v{vtB}, v{P(8*x+4)}, v{P(8*x+4)} quad_perm:[2,3,0,1] row_mask:0xf bank_mask:0xf")
            A(f"v_cndmask_b32 v{P(8*x)}, v{vtA}, v{vtB}, s[{sM1}:{sM1+1}]")
        for n in range(16):
            if not first: A(f"s_waitcnt vmcnt({D-1})")
            else:
                younger = (15 - n) + 1 + max(0, n - (16 - D))
                A(f"s_waitcnt vmcnt({younger})")
            r = ring(n)
            A(f"v_dot2_f32_bf16 v{P(n)}, v{r}, v{vQ}, 0")
            for k in range(1, 4): A(f"v_dot2_f32_bf16 v{P(n)}, v{r+k}, v{vQ+k}, v{P(n)}")
            if (not first) or n >= 16 - D:
                if n == 16 - D and not first:
                    A(f"s_cmp_eq_u32 s{sTile}, 15")
                    A(f"s_cselect_b32 s{sC}, s{sV}, s{sC}")
                    A(f"s_cselect_b32 s{sC+1}, s{sV+1}, s{sC+1}")
                    A(f"s_cselect_b32 s{sOff}, 0, s{sOff}")
                sload(n + D, sC)
            if n >= 2 and n % 2 == 0: redA((n-2)//2)
            if n in (5, 9, 13): redB((n-5)//4)
            if n == 11: redC(0)
        redA(7);
        redB(3)
        redC(1)
        A(f"v_add_f32_dpp v{vtA}, v{P(0)}, v{P(0)} quad_perm:[1,0,3,2] row_mask:0xf bank_mask:0xf")
        A(f"v_add_f32_dpp v{vtB}, v{P(8)}, v{P(8)} quad_perm:[1,0,3,2] row_mask:0xf bank_mask:0xf")
        A(f"v_cndmask_b32 v{vtA}, v{vtA}, v{vtB}, s[{sM0}:{sM0+1}]")
        round_bf16(vtA)
        A(f"v_mul_f32 v{vtA}, 0x3db504f3, v{vtA}")
        round_bf16(vtA)
        A(f"v_max_f32 v{vM}, v{vM}, v{vtA}")
        A(f"ds_write_b32 v{vSC}, v{vtA}")
        A(f"v_add_u32 v{vSC}, 256, v{vSC}")
    A(f"s_mov_b32 s{sTile}, 0")
    k_tile(True)
    A(f"s_mov_b32 s{sTile}, 1")
    A.label("L_kloop")
    k_tile(False)
    A(f"s_add_u32 s{sTile}, s{sTile}, 1")
    A(f"s_cmp_lt_u32 s{sTile}, 16")
    A("s_cbranch_scc1 L_kloop")
    stamp(3)
    A(f"v_subrev_u32 v{vSC}, 4096, v{vSC}")
    A("s_waitcnt lgkmcnt(0)")
    for t in range(16): A(f"ds_read_b32 v{vP+t}, v{vSC} offset:{t*256}")
    wave_allreduce("v_max_f32", vM, vtA)
    A(f"v_mul_f32 v{vtB}, 0xbfb8aa3b, v{vM}")
    A(f"s_mov_b32 s{st0}, 0x3fb8aa3b")
    A("s_waitcnt lgkmcnt(0)")
    for t in range(16): A(f"v_fma_f32 v{vP+t}, v{vP+t}, s{st0}, v{vtB}")
    for t in range(16): A(f"v_exp_f32 v{vP+t}, v{vP+t}")
    A(f"v_add_f32 v{vL}, v{vP}, v{vP+1}")
    for t in range(2, 16): A(f"v_add_f32 v{vL}, v{vL}, v{vP+t}")
    for t in range(16): A(f"v_cvt_pk_bf16_f32 v{vP+t}, v{vP+t}, v{vP+t}")
    for t in range(16): A(f"ds_write_b32 v{vSC}, v{vP+t} offset:{t*256}")
    wave_allreduce("v_add_f32", vL, vtA)
    A(f"v_mov_b32 v40, v{vM}"); A(f"v_mov_b32 v41, v{vL}")
    A("v_mov_b32 v43, 0x7fc00000")
    sanitize([40, 41], 43)
    A(f"s_lshl_b32 s{st0}, s3, 3"); A(f"s_add_u32 s{st0}, s{st0}, {L_STAT}"); A(f"v_mov_b32 v42, s{st0}")
    A("s_mov_b64 exec, 1"); A("ds_write_b64 v42, v[40:41]"); A("s_mov_b64 exec, -1")
    A(f"v_mov_b32 v{vPn}, v{vP}")
    for e in range(8): A(f"v_mov_b32 v{vAcc+e}, 0")
    A(f"s_mov_b32 s{sTile}, 0")
    A.label("L_vloop")
    A(f"v_and_b32 v{vPlo}, 0xffff, v{vPn}")
    A(f"v_and_b32 v{vPhi}, 0xffff0000, v{vPn}")
    A(f"v_add_u32 v{vSC}, 256, v{vSC}")
    A(f"ds_read_b32 v{vPn}, v{vSC}")
    for n in range(16):
        A(f"s_waitcnt vmcnt({D-1})")
        r = ring(n); bl = brev4(n)
        for k in range(4):
            A(f"v_dot2c_f32_bf16_dpp v{vAcc+2*k}, v{vPlo}, v{r+k} row_newbcast:{bl} row_mask:0xf bank_mask:0xf")
            A(f"v_dot2c_f32_bf16_dpp v{vAcc+2*k+1}, v{vPhi}, v{r+k} row_newbcast:{bl} row_mask:0xf bank_mask:0xf")
        sload(n + D, sC)
    A("s_waitcnt lgkmcnt(0)")
    A(f"s_add_u32 s{sTile}, s{sTile}, 1")
    A(f"s_cmp_lt_u32 s{sTile}, 16")
    A("s_cbranch_scc1 L_vloop")
    stamp(4)
    acc_reduce(vAcc)
    A(f"v_and_b32 v40, 15, v{vLane}"); A("v_lshlrev_b32 v40, 4, v40")
    A(f"v_lshrrev_b32 v41, 4, v{vLane}"); A("v_lshlrev_b32 v41, 2, v41")
    A("v_add_u32 v40, v40, v41")
    A(f"s_lshl_b32 s{st0}, s3, 8"); A(f"s_add_u32 s{st0}, s{st0}, {L_OW}"); A(f"v_add_u32 v40, s{st0}, v40")
    A(f"s_lshl_b32 s{st0}, s3, 2"); A(f"s_add_u32 s{st0}, s{st0}, {L_FW}"); A(f"v_mov_b32 v42, s{st0}")
    A(f"s_mov_b32 s{sCnt}, {SPIN_LIMIT}")
    A.label("L_fwspin")
    A("ds_read_b32 v43, v42"); A("s_waitcnt lgkmcnt(0)")
    spin_check([43], 44, "L_fwspin", "L_fwok")
    A(f"v_mul_f32 v{vAcc}, v{vAcc}, v43"); A(f"v_mul_f32 v{vAcc+1}, v{vAcc+1}, v43")
    A(f"v_cvt_pk_bf16_f32 v{vAcc}, v{vAcc}, v{vAcc+1}")
    A(f"ds_write_b32 v40, v{vAcc}")
    A("s_waitcnt vmcnt(0) lgkmcnt(0)")
    A("s_barrier")
    stamp(5)
    A("s_cmp_lt_u32 s2, 64"); A("s_cbranch_scc1 L_red")
    A("s_cmp_lt_u32 s2, 152"); A("s_cbranch_scc1 L_ffn1")
    A("s_cmp_lt_u32 s2, 184"); A("s_cbranch_scc1 L_ffn2")
    A.label("L_sdone")
    prof_store(0)
    A("s_endpgm")

    A.label("L_red")
    A("s_cmp_lg_u32 s3, 0"); A("s_cbranch_scc1 L_sdone")
    A(f"s_lshl_b32 s{st0}, s2, 13")
    A(f"v_lshlrev_b32 v3, 4, v{vLane}")
    A(f"s_lshr_b32 s{st1}, s2, 4"); A(f"s_lshl_b32 s{st1}, s{st1}, 10")
    A(f"s_and_b32 s{st2}, s2, 15"); A(f"s_lshl_b32 s{st2}, s{st2}, 6"); A(f"s_add_u32 s{st1}, s{st1}, s{st2}")
    A(f"v_and_b32 v4, 7, v{vLane}"); A("v_lshlrev_b32 v4, 2, v4")
    A(f"v_lshrrev_b32 v5, 5, v{vLane}"); A("v_lshlrev_b32 v5, 5, v5"); A("v_add_u32 v4, v4, v5")
    mk_srd(sT, pX, 4096)
    A(f"buffer_load_dword v6, v4, {srd(sT)}, s{st1} offen")
    A(f"s_add_u32 s{st1}, s{st1}, {WS_H}")
    A(f"s_mov_b32 s{sCnt}, {SPIN_LIMIT}")
    A.label("L_redspin")
    if SLPR: A(f"s_sleep {SLPR}")
    for n in range(8):
        A(f"buffer_load_dwordx4 v[{16+4*n}:{19+4*n}], v3, {srd(sWS)}, s{st0} offen offset:{(n%4)*1024} sc1" if n < 4 else "")
    A(f"s_add_u32 s{st2}, s{st0}, 4096")
    for n in range(4, 8):
        A(f"buffer_load_dwordx4 v[{16+4*n}:{19+4*n}], v3, {srd(sWS)}, s{st2} offen offset:{(n%4)*1024} sc1")
    A("s_waitcnt vmcnt(0)")
    spin_check(range(16, 48), 8, "L_redspin", "L_redok")
    stamp(7)
    for n in (0, 2, 4, 6):
        for k in range(4): A(f"v_add_f32 v{16+4*n+k}, v{16+4*n+k}, v{16+4*(n+1)+k}")
    for n in (0, 4):
        for k in range(4): A(f"v_add_f32 v{16+4*n+k}, v{16+4*n+k}, v{16+4*(n+2)+k}")
    for k in range(4): A(f"v_add_f32 v{16+k}, v{16+k}, v{32+k}")
    A("v_permlane32_swap_b32 v16, v17"); A("v_permlane32_swap_b32 v18, v19")
    A("v_add_f32 v16, v16, v17"); A("v_add_f32 v17, v18, v19")
    A("v_mov_b32 v18, v16"); A("v_mov_b32 v19, v17")
    A("v_permlane16_swap_b32 v16, v18"); A("v_permlane16_swap_b32 v17, v19")
    A("v_add_f32 v16, v16, v18"); A("v_add_f32 v17, v17, v19")
    A("v_add_f32_dpp v16, v16, v16 row_ror:8 row_mask:0xf bank_mask:0xf")
    A("v_add_f32_dpp v17, v17, v17 row_ror:8 row_mask:0xf bank_mask:0xf")
    A("v_cvt_pk_bf16_f32 v16, v16, v17")
    A("v_lshlrev_b32 v18, 16, v16"); A("v_and_b32 v19, 0xffff0000, v16")
    A("v_lshlrev_b32 v20, 16, v6"); A("v_and_b32 v21, 0xffff0000, v6")
    A("v_add_f32 v18, v18, v20"); A("v_add_f32 v19, v19, v21")
    A("v_cvt_pk_bf16_f32 v16, v18, v19")
    A("v_mov_b32 v17, 0x7fc07fc0")
    sanitize([16], 17)
    A("s_mov_b32 exec_lo, 0xff"); A("s_mov_b32 exec_hi, 0xff")
    A(f"buffer_store_dword v16, v4, {srd(sWS)}, s{st1} offen sc1")
    A("s_mov_b64 exec, -1")
    stamp(6)
    A("s_branch L_sdone")

    def ffn1_tile(dst):
        A(f"s_sub_u32 s{st0}, s2, 64")
        A(f"s_and_b32 s{st1}, s{st0}, 7")
        A(f"s_lshr_b32 s{st0}, s{st0}, 3")
        A(f"s_lshr_b32 s{st2}, s{st0}, 2"); A(f"s_lshl_b32 s{st2}, s{st2}, 3"); A(f"s_add_u32 s{st2}, s{st2}, s{st1}")
        A(f"s_lshl_b32 s{st2}, s{st2}, 2"); A(f"s_and_b32 s{st3}, s{st0}, 3"); A(f"s_add_u32 s{st2}, s{st2}, s{st3}")
        A(f"s_mul_i32 s{st1}, s{st1}, 3"); A(f"s_add_u32 s{st1}, s{st1}, s{st0}"); A(f"s_add_u32 s{st1}, s{st1}, 56")
        A(f"s_cmp_lt_u32 s{st0}, 8"); A(f"s_cselect_b32 s{dst}, s{st2}, s{st1}")
    def ffn2_tile(dst):
        A(f"s_sub_u32 s{st0}, s2, 152"); A(f"s_and_b32 s{st1}, s{st0}, 7"); A(f"s_lshr_b32 s{st0}, s{st0}, 3")
        A(f"s_lshl_b32 s{st1}, s{st1}, 2"); A(f"s_add_u32 s{dst}, s{st1}, s{st0}")
    sTl = 35
    def tr_addr(v):
        A(f"v_lshrrev_b32 v{v}, 4, v{vLane}"); A(f"v_lshlrev_b32 v{v}, 8, v{v}")
        A(f"v_bfe_u32 v40, v{vLane}, 2, 2"); A("v_lshlrev_b32 v40, 5, v40"); A(f"v_add_u32 v{v}, v{v}, v40")
        A(f"v_and_b32 v40, 3, v{vLane}"); A("v_lshlrev_b32 v40, 3, v40"); A(f"v_add_u32 v{v}, v{v}, v40")
        A(f"s_mul_i32 s{st0}, s3, {STG_W}"); A(f"s_add_u32 s{st0}, s{st0}, {L_STG}"); A(f"v_add_u32 v{v}, s{st0}, v{v}")
    A.label("L_ffn1")
    ffn1_tile(sTl)
    A(f"s_cmp_ge_u32 s{sTl}, 86"); A("s_cbranch_scc1 L_sdone")
    A(f"v_lshrrev_b32 v14, 1, v{vLane}"); A("v_mul_u32_u24 v14, 2752, v14")
    A(f"v_and_b32 v6, 1, v{vLane}"); A("v_lshlrev_b32 v6, 4, v6"); A("v_add_u32 v14, v14, v6")
    A(f"s_mul_i32 s{st0}, s3, {128*2752}"); A(f"v_add_u32 v14, s{st0}, v14")
    A(f"s_lshl_b32 s{st1}, s{sTl}, 5")
    A(f"s_add_u32 s{sT}, s{pW1}, s{st1}"); A(f"s_addc_u32 s{sT+1}, s{pW1+1}, 0")
    A(f"s_sub_u32 s{sT+2}, {512*2752}, s{st1}"); A(f"s_mov_b32 s{sT+3}, 0x20000")
    A(f"s_mov_b32 s{sOff}, 0")
    for n in range(4):
        A(f"buffer_load_dwordx4 v[{16+4*n}:{19+4*n}], v14, {srd(sT)}, s{sOff} offen {WFF}")
        A(f"s_add_u32 s{sOff}, s{sOff}, {32*2752}")
    A(f"v_lshlrev_b32 v15, 4, v{vLane}"); A(f"s_mul_i32 s{st0}, s3, {STG_W}"); A(f"s_add_u32 s{st0}, s{st0}, {L_STG}")
    A(f"v_add_u32 v15, s{st0}, v15")
    tr_addr(4)
    A("s_waitcnt vmcnt(0)")
    for n in range(4): A(f"ds_write_b128 v15, v[{16+4*n}:{19+4*n}] offset:{n*1024}")
    vA = 64
    for s in range(4):
        A(f"ds_read_b64_tr_b16 v[{vA+4*s}:{vA+4*s+1}], v4 offset:{s*1024}")
        A(f"ds_read_b64_tr_b16 v[{vA+4*s+2}:{vA+4*s+3}], v4 offset:{s*1024+128}")
    for k in range(4): A(f"v_mov_b32 v{80+k}, 0x3f803f80")
    for k in range(4): A(f"v_mov_b32 v{84+k}, 0")
    A("s_waitcnt lgkmcnt(0)")
    for s in range(4): A(f"v_mfma_f32_16x16x32_bf16 v[84:87], v[{vA+4*s}:{vA+4*s+3}], v[80:83], v[84:87]")
    A(f"v_lshlrev_b32 v5, 4, v{vLane}"); A(f"s_lshl_b32 s{st0}, s3, 10"); A(f"v_add_u32 v5, s{st0}, v5")
    A(f"v_lshlrev_b32 v6, 3, v{vLane}"); A(f"s_lshl_b32 s{st0}, s3, 9"); A(f"v_add_u32 v6, s{st0}, v6")
    A(f"ds_write_b128 v5, v[84:87] offset:{L_RED3}")
    A("s_waitcnt lgkmcnt(0)")
    A("s_barrier")
    A(f"v_lshlrev_b32 v7, 4, v{vLane}")
    for u in range(4): A(f"ds_read_b128 v[{16+4*u}:{19+4*u}], v7 offset:{L_RED3+u*1024}")
    A(f"v_and_b32 v8, 3, v{vLane}"); A("v_lshlrev_b32 v8, 10, v8")
    A(f"v_lshrrev_b32 v9, 4, v{vLane}"); A("v_lshlrev_b32 v9, 4, v9"); A("v_add_u32 v8, v8, v9")
    A(f"s_lshl_b32 s{st0}, s3, 8"); A(f"v_add_u32 v8, s{st0}, v8")
    A("s_waitcnt lgkmcnt(0)")
    for k in range(4):
        A(f"v_add_f32 v{16+k}, v{16+k}, v{20+k}"); A(f"v_add_f32 v{24+k}, v{24+k}, v{28+k}")
    for k in range(4): A(f"v_add_f32 v{84+k}, v{16+k}, v{24+k}")
    for k in range(12): A(f"v_mov_b32 v{88+k}, 0")
    A(f"s_mov_b32 s{st0}, {WS_H}")
    A(f"s_mov_b32 s{sCnt}, {SPIN_LIMIT}")
    A.label("L_f1spin")
    if SLP1: A(f"s_sleep {SLP1}")
    for s in range(4): A(f"buffer_load_dwordx4 v[{16+4*s}:{19+4*s}], v8, {srd(sWS)}, s{st0} offen offset:{s*64} sc1")
    A("s_waitcnt vmcnt(0)")
    spin_check(range(16, 32), 10, "L_f1spin", "L_f1ok")
    stamp(7)
    for s in range(4):
        A(f"v_mfma_f32_16x16x32_bf16 v[88:91], v[{vA+4*s}:{vA+4*s+3}], v[{16+4*s}:{19+4*s}], v[88:91]")
        A(f"v_mfma_f32_16x16x32_bf16 v[92:95], v[80:83], v[{16+4*s}:{19+4*s}], v[92:95]")
        A(f"v_mfma_f32_16x16x32_bf16 v[96:99], v[{16+4*s}:{19+4*s}], v[{16+4*s}:{19+4*s}], v[96:99]")
    A(f"ds_write_b128 v5, v[88:91] offset:{L_RED}")
    A(f"v_and_b32 v11, 3, v{vLane}")
    A("v_cmp_eq_u32 vcc, 1, v11"); A("v_cndmask_b32 v96, v96, v97, vcc")
    A("v_cmp_eq_u32 vcc, 2, v11"); A("v_cndmask_b32 v96, v96, v98, vcc")
    A("v_cmp_eq_u32 vcc, 3, v11"); A("v_cndmask_b32 v93, v96, v99, vcc")
    A(f"ds_write_b64 v6, v[92:93] offset:{L_RED2}")
    A("s_waitcnt lgkmcnt(0)")
    A("s_barrier")
    A("s_cmp_lg_u32 s3, 0"); A("s_cbranch_scc1 L_sdone")
    A(f"v_lshlrev_b32 v6, 3, v{vLane}")
    for u in range(4):
        A(f"ds_read_b128 v[{16+4*u}:{19+4*u}], v7 offset:{L_RED+u*1024}")
        A(f"ds_read_b64 v[{32+2*u}:{33+2*u}], v6 offset:{L_RED2+u*512}")
    A("s_waitcnt lgkmcnt(0)")
    A("v_add_f32 v32, v32, v34"); A("v_add_f32 v33, v33, v35"); A("v_add_f32 v36, v36, v38"); A("v_add_f32 v37, v37, v39")
    A("v_add_f32 v32, v32, v36"); A("v_add_f32 v33, v33, v37")
    for k in range(4):
        A(f"v_add_f32 v{16+k}, v{16+k}, v{20+k}"); A(f"v_add_f32 v{24+k}, v{24+k}, v{28+k}")
    A("v_mul_f32 v32, 0x3b000000, v32")
    A("v_mul_f32 v33, 0x3b000000, v33")
    for k in range(4): A(f"v_add_f32 v{16+k}, v{16+k}, v{24+k}")
    A("v_fma_f32 v33, -v32, v32, v33")
    A("v_max_f32 v33, 0, v33")
    round_bf16(32); round_bf16(33)
    A("v_add_f32 v33, 0x3727c5ac, v33"); round_bf16(33)
    A("v_sqrt_f32 v33, v33"); round_bf16(33)
    A("v_rcp_f32 v33, v33")
    for k in range(4): A(f"v_fma_f32 v{16+k}, -v32, v{84+k}, v{16+k}")
    for k in range(4): A(f"v_mul_f32 v{16+k}, v{16+k}, v33")
    A("v_mov_b32 v21, 0")
    for k in range(4):
        A(f"v_cmp_gt_f32 vcc, 0, v{16+k}")
        A(f"v_cndmask_b32 v{16+k}, v{16+k}, v21, vcc")
    A("v_cvt_pk_bf16_f32 v16, v16, v17"); A("v_cvt_pk_bf16_f32 v17, v18, v19")
    A("v_mov_b32 v20, 0x7fc07fc0")
    sanitize([16, 17], 20)
    A(f"v_and_b32 v8, 15, v{vLane}"); A("v_lshlrev_b32 v8, 5, v8")
    A(f"v_lshrrev_b32 v9, 4, v{vLane}"); A("v_lshlrev_b32 v9, 3, v9"); A("v_add_u32 v8, v8, v9")
    A(f"s_lshl_b32 s{st0}, s{sTl}, 7"); A(f"s_add_u32 s{st0}, s{st0}, {WS_H1}")
    A("s_mov_b32 exec_lo, 0x000f000f"); A("s_mov_b32 exec_hi, 0x000f000f")
    A(f"buffer_store_dwordx2 v[16:17], v8, {srd(sWS)}, s{st0} offen sc1")
    A("s_mov_b64 exec, -1")
    stamp(6)
    A("s_branch L_sdone")

    A.label("L_ffn2")
    ffn2_tile(sTl)
    tr_addr(4)
    A(f"v_lshrrev_b32 v14, 1, v{vLane}"); A("v_lshlrev_b32 v14, 10, v14")
    A(f"v_and_b32 v6, 1, v{vLane}"); A("v_lshlrev_b32 v6, 4, v6"); A("v_add_u32 v14, v14, v6")
    A(f"s_mul_i32 s{st0}, s3, {352*1024}"); A(f"v_add_u32 v14, s{st0}, v14")
    A(f"s_lshl_b32 s{st1}, s{sTl}, 5")
    A(f"s_add_u32 s{sT}, s{pW2}, s{st1}"); A(f"s_addc_u32 s{sT+1}, s{pW2+1}, 0")
    A(f"s_sub_u32 s{sT+2}, {1376*1024}, s{st1}"); A(f"s_mov_b32 s{sT+3}, 0x20000")
    A(f"s_mov_b32 s{sOff}, 0")
    for n in range(11):
        A(f"buffer_load_dwordx4 v[{16+4*n}:{19+4*n}], v14, {srd(sT)}, s{sOff} offen {WFF}")
        A(f"s_add_u32 s{sOff}, s{sOff}, {32*1024}")
    A(f"v_lshlrev_b32 v15, 4, v{vLane}"); A(f"s_mul_i32 s{st0}, s3, {STG_W}"); A(f"s_add_u32 s{st0}, s{st0}, {L_STG}")
    A(f"v_add_u32 v15, s{st0}, v15")
    for n in range(11):
        A(f"s_waitcnt vmcnt({10-n})")
        A(f"ds_write_b128 v15, v[{16+4*n}:{19+4*n}] offset:{n*1024}")
    vBw = 64
    for s in range(11):
        A(f"ds_read_b64_tr_b16 v[{vBw+4*s}:{vBw+4*s+1}], v4 offset:{s*1024}")
        A(f"ds_read_b64_tr_b16 v[{vBw+4*s+2}:{vBw+4*s+3}], v4 offset:{s*1024+128}")
        if s % 4 == 3: A("s_waitcnt lgkmcnt(0)")
    mk_srd(sT, pWS, 86*128, off_imm=WS_H1)
    A(f"v_and_b32 v8, 3, v{vLane}"); A("v_lshlrev_b32 v8, 5, v8")
    A(f"v_lshrrev_b32 v9, 5, v{vLane}"); A("v_lshlrev_b32 v9, 7, v9"); A("v_add_u32 v8, v8, v9")
    A(f"v_bfe_u32 v9, v{vLane}, 4, 1"); A("v_lshlrev_b32 v9, 4, v9"); A("v_add_u32 v8, v8, v9")
    A(f"s_mul_i32 s{st0}, s3, 2816"); A(f"v_add_u32 v8, s{st0}, v8")
    A(f"v_lshrrev_b32 v10, 4, v{vLane}"); A("v_lshlrev_b32 v10, 10, v10")
    A(f"v_and_b32 v11, 15, v{vLane}"); A(f"s_lshl_b32 s{st1}, s{sTl}, 4"); A(f"v_add_u32 v11, s{st1}, v11")
    A("v_lshlrev_b32 v12, 1, v11"); A("v_add_u32 v12, v10, v12")
    A("v_and_b32 v13, -4, v12")
    A(f"v_lshlrev_b32 v5, 4, v{vLane}"); A(f"s_lshl_b32 s{st0}, s3, 10"); A(f"v_add_u32 v5, s{st0}, v5")
    for k in range(4): A(f"v_mov_b32 v{112+k}, 0")
    A("s_waitcnt lgkmcnt(0)")
    A(f"s_mov_b32 s{st0}, {WS_H}")
    A(f"s_mov_b32 s{sCnt}, {SPIN_LIMIT}")
    A.label("L_f2hspin")
    if SLP2: A(f"s_sleep {4*SLP2}")
    A(f"buffer_load_dword v14, v13, {srd(sWS)}, s{st0} offen sc1")
    A("s_waitcnt vmcnt(0)")
    spin_check([14], 15, "L_f2hspin", "L_f2hok")
    A(f"s_mov_b32 s{sCnt}, {SPIN_LIMIT}")
    A.label("L_f2spin")
    if SLP2: A(f"s_sleep {SLP2}")
    for s in range(11): A(f"buffer_load_dwordx4 v[{16+4*s}:{19+4*s}], v8, {srd(sT)}, 0 offen offset:{s*256} sc1")
    A("s_waitcnt vmcnt(0)")
    spin_check(range(16, 60), 15, "L_f2spin", "L_f2ok")
    stamp(7)
    for s in range(11):
        A(f"v_mfma_f32_16x16x32_bf16 v[112:115], v[{16+4*s}:{19+4*s}], v[{vBw+4*s}:{vBw+4*s+3}], v[112:115]")
    A(f"ds_write_b128 v5, v[112:115] offset:{L_RED}")
    A("s_waitcnt lgkmcnt(0)")
    A("s_barrier")
    A("s_cmp_lg_u32 s3, 0"); A("s_cbranch_scc1 L_sdone")
    A(f"v_and_b32 v6, 15, v{vLane}"); A("v_lshlrev_b32 v6, 4, v6")
    A(f"v_lshrrev_b32 v7, 4, v{vLane}"); A("v_lshlrev_b32 v7, 2, v7"); A("v_add_u32 v6, v6, v7")
    for u in range(4): A(f"ds_read_b32 v{16+u}, v6 offset:{L_RED+u*1024}")
    A("v_and_b32 v11, 1, v11"); A("v_lshlrev_b32 v20, 16, v14"); A("v_and_b32 v21, 0xffff0000, v14")
    A("v_cmp_eq_u32 vcc, 1, v11"); A("v_cndmask_b32 v20, v20, v21, vcc")
    A("s_waitcnt lgkmcnt(0)")
    A("v_add_f32 v16, v16, v17"); A("v_add_f32 v18, v18, v19"); A("v_add_f32 v16, v16, v18")
    round_bf16(16)
    A("v_add_f32 v16, v16, v20")
    A("v_cvt_pk_bf16_f32 v16, v16, v16")
    mk_srd(sT, pOUT, 4096)
    A(f"buffer_store_short v16, v12, {srd(sT)}, 0 offen")
    stamp(6)
    A("s_branch L_sdone")

    A.label("L_helper")
    vW = 128; hAcc = 16; hPlo0, hPhi0, hPlo1, hPhi1 = 24, 25, 26, 27
    vG, vCc = 4, 5
    A(f"s_sub_u32 s{sU}, s3, 4")
    A(f"v_lshrrev_b32 v{vG}, 4, v{vLane}")
    A(f"v_and_b32 v{vCc}, 15, v{vLane}")
    A(f"s_lshl_b32 s{st0}, s{sB}, 10")
    A(f"v_lshlrev_b32 v6, 2, v{vCc}"); A(f"v_add_u32 v6, v6, v{vG}"); A(f"s_lshl_b32 s{st1}, s{sU}, 7")
    A(f"v_add_u32 v6, s{st1}, v6"); A("v_lshlrev_b32 v6, 1, v6")
    A(f"v_lshlrev_b32 v7, 4, v{vLane}")
    A(f"v_lshlrev_b32 v3, 13, v{vG}"); A(f"v_lshlrev_b32 v14, 4, v{vCc}"); A("v_add_u32 v3, v3, v14")
    A(f"s_lshl_b32 s{st1}, s{sU}, 20"); A(f"v_add_u32 v3, s{st1}, v3")
    A(f"s_lshl_b32 s{st1}, s{sH}, 8")
    A(f"s_sub_u32 s{st2}, {4<<20}, s{st1}")
    A("s_waitcnt lgkmcnt(0)")
    stamp(7)
    mk_srd(sT, pX, 1024, off_sgpr=st0)
    A(f"buffer_load_dwordx4 v[8:11], v7, {srd(sT)}, 0 offen")
    A(f"buffer_load_ushort v12, v6, {srd(sT)}, 0 offen")
    A(f"buffer_load_ushort v13, v6, {srd(sT)}, 0 offen offset:128")
    A(f"s_add_u32 s{sC}, s{pWQ}, s{st1}"); A(f"s_addc_u32 s{sC+1}, s{pWQ+1}, 0")
    A(f"s_mov_b32 s{sC+2}, s{st2}"); A(f"s_mov_b32 s{sC+3}, 0x20000")
    A(f"s_mov_b32 s{sOff}, 0")
    for n in range(32):
        A(f"buffer_load_dwordx4 v[{vW+4*n}:{vW+4*n+3}], v3, {srd(sC)}, s{sOff} offen {WQF}")
        if n < 31: A(f"s_add_u32 s{sOff}, s{sOff}, 32768")
    A("s_barrier")
    mk_srd(sWS, pWS, WS_SIZE)
    A(f"v_lshlrev_b32 v14, 2, v{vLane}"); A("v_mov_b32 v15, -1")
    A("s_mov_b64 exec, 0xfff"); A(f"ds_write_b32 v14, v15 offset:{L_STAT}"); A("s_mov_b64 exec, -1")
    A("s_waitcnt vmcnt(32)")
    stamp(6)
    for r in range(4):
        A(f"v_lshlrev_b32 v{32+2*r}, 16, v{8+r}"); A(f"v_and_b32 v{33+2*r}, 0xffff0000, v{8+r}")
    A("v_add_f32 v40, v32, v33"); A("v_add_f32 v41, v34, v35"); A("v_add_f32 v42, v36, v37"); A("v_add_f32 v43, v38, v39")
    A("v_add_f32 v40, v40, v41"); A("v_add_f32 v42, v42, v43"); A("v_add_f32 v40, v40, v42")
    wave_allreduce("v_add_f32", 40, 41)
    A("v_mul_f32 v40, 0x3b000000, v40")
    for e in range(8): A(f"v_sub_f32 v{32+e}, v{32+e}, v40")
    A("v_mul_f32 v42, v32, v32")
    for e in range(1, 8): A(f"v_fmac_f32 v42, v{32+e}, v{32+e}")
    wave_allreduce("v_add_f32", 42, 41)
    A("v_mul_f32 v42, 0x3b000000, v42")
    round_bf16(40); round_bf16(42)
    A("v_add_f32 v42, 0x3727c5ac, v42"); round_bf16(42)
    A("v_sqrt_f32 v42, v42"); round_bf16(42)
    A("v_rcp_f32 v42, v42")
    for r in (12, 13):
        A(f"v_lshlrev_b32 v{r}, 16, v{r}"); A(f"v_sub_f32 v{r}, v{r}, v40"); round_bf16(r)
        A(f"v_mul_f32 v{r}, v{r}, v42")
    A("v_mov_b32 v15, 0")
    A(f"v_cvt_pk_bf16_f32 v{hPlo0}, v12, v15"); A(f"v_cvt_pk_bf16_f32 v{hPhi0}, v15, v12")
    A(f"v_cvt_pk_bf16_f32 v{hPlo1}, v13, v15"); A(f"v_cvt_pk_bf16_f32 v{hPhi1}, v15, v13")
    A(f"s_mov_b32 s{sTile}, 0")
    stamp(1)
    A.label("L_gemv")
    for e in range(8): A(f"v_mov_b32 v{hAcc+e}, 0")
    for n in range(32):
        A(f"s_waitcnt vmcnt({31-n})")
        lo, hi = (hPlo0, hPhi0) if n < 16 else (hPlo1, hPhi1)
        for k in range(4):
            A(f"v_dot2c_f32_bf16_dpp v{hAcc+2*k}, v{lo}, v{vW+4*n+k} row_newbcast:{n%16} row_mask:0xf bank_mask:0xf")
            A(f"v_dot2c_f32_bf16_dpp v{hAcc+2*k+1}, v{hi}, v{vW+4*n+k} row_newbcast:{n%16} row_mask:0xf bank_mask:0xf")
    acc_reduce(hAcc)
    A(f"v_lshlrev_b32 v14, 5, v{vCc}"); A(f"v_lshlrev_b32 v15, 3, v{vG}"); A("v_add_u32 v14, v14, v15")
    A(f"s_lshl_b32 s{st0}, s{sU}, 9"); A(f"v_add_u32 v14, s{st0}, v14")
    A(f"ds_write_b64 v14, v[{hAcc}:{hAcc+1}] offset:{L_QP}")
    A("s_waitcnt lgkmcnt(0)")
    stamp(2)
    A("s_barrier")
    A(f"s_cmp_lg_u32 s{sU}, 0"); A("s_cbranch_scc1 L_nopoison")
    for k in range(4): A(f"v_mov_b32 v{32+k}, -1")
    A(f"v_lshrrev_b32 v14, 3, v{vLane}"); A("v_lshlrev_b32 v14, 13, v14")
    A(f"v_and_b32 v15, 7, v{vLane}"); A("v_lshlrev_b32 v15, 4, v15"); A("v_add_u32 v14, v14, v15")
    A(f"s_lshl_b32 s{st0}, s{sB}, 17"); A(f"s_lshl_b32 s{st1}, s{sJ}, 7"); A(f"s_add_u32 s{st0}, s{st0}, s{st1}")
    A(f"buffer_store_dwordx4 v[32:35], v14, {srd(sWS)}, s{st0} offen sc1")
    A(f"s_add_u32 s{st0}, s{st0}, 65536")
    A(f"buffer_store_dwordx4 v[32:35], v14, {srd(sWS)}, s{st0} offen sc1")
    A(f"v_lshlrev_b32 v14, 2, v{vLane}")
    A(f"s_lshl_b32 s{st0}, s{sReg}, 7"); A(f"s_add_u32 s{st0}, s{st0}, {WS_ST}")
    A("s_mov_b64 exec, 3"); A(f"buffer_store_dword v32, v14, {srd(sWS)}, s{st0} offen sc1"); A("s_mov_b64 exec, -1")
    A("s_cmp_ge_u32 s2, 64"); A("s_cbranch_scc1 L_pnored")
    A(f"s_lshr_b32 s{st0}, s2, 4"); A(f"s_lshl_b32 s{st0}, s{st0}, 10")
    A(f"s_and_b32 s{st1}, s2, 15"); A(f"s_lshl_b32 s{st1}, s{st1}, 6"); A(f"s_add_u32 s{st0}, s{st0}, s{st1}")
    A(f"s_add_u32 s{st0}, s{st0}, {WS_H}")
    A("s_mov_b64 exec, 0xffff"); A(f"buffer_store_dword v32, v14, {srd(sWS)}, s{st0} offen sc1"); A("s_mov_b64 exec, -1")
    A("s_branch L_pdone")
    A.label("L_pnored")
    A("s_cmp_ge_u32 s2, 152"); A("s_cbranch_scc1 L_pdone")
    ffn1_tile(sTl)
    A(f"s_cmp_ge_u32 s{sTl}, 86"); A("s_cbranch_scc1 L_pdone")
    A(f"s_lshl_b32 s{st0}, s{sTl}, 7"); A(f"s_add_u32 s{st0}, s{st0}, {WS_H1}")
    A("s_mov_b32 exec_hi, 0"); A(f"buffer_store_dword v32, v14, {srd(sWS)}, s{st0} offen sc1"); A("s_mov_b64 exec, -1")
    A.label("L_pdone")
    A("s_waitcnt vmcnt(0)")
    A("v_mov_b32 v14, 0"); A("v_mov_b32 v15, 1")
    A("s_mov_b64 exec, 1"); A(f"global_atomic_add v14, v15, s[{pDBG}:{pDBG+1}]"); A("s_mov_b64 exec, -1")
    A.label("L_nopoison")
    A(f"v_lshlrev_b32 v3, 10, v{vG}"); A(f"v_lshlrev_b32 v14, 4, v{vCc}"); A("v_add_u32 v3, v3, v14")
    A(f"s_lshl_b32 s{st1}, s{sU}, 8"); A(f"v_add_u32 v3, s{st1}, v3")
    A(f"s_lshl_b32 s{st1}, s{sH}, 17")
    mk_srd(sC, pWO, 131072, off_sgpr=st1)
    A(f"s_mul_i32 s{st0}, s{sU}, {32*RS}"); A(f"s_add_u32 s{st0}, s{st0}, {L_STG}")
    A(f"v_mul_u32_u24 v6, {RS}, v{vG}"); A("v_add_u32 v6, v6, v14"); A(f"v_add_u32 v6, s{st0}, v6")
    A(f"v_lshlrev_b32 v7, 3, v{vG}"); A(f"v_lshrrev_b32 v15, 2, v{vCc}"); A("v_add_u32 v7, v7, v15")
    A(f"v_mul_u32_u24 v7, {RS}, v7"); A(f"v_and_b32 v15, 3, v{vCc}"); A("v_lshlrev_b32 v15, 3, v15")
    A("v_add_u32 v7, v7, v15"); A(f"v_add_u32 v7, s{st0}, v7")
    A(f"s_mov_b32 s{sOff}, 0")
    for q in range(0 if NOWO else 4):
        for n in range(8):
            A(f"buffer_load_dwordx4 v[{32+4*n}:{35+4*n}], v3, {srd(sC)}, s{sOff} offen {WOF}")
            A(f"s_add_u32 s{sOff}, s{sOff}, 4096")
            if n % PACE == PACE-1: A("s_waitcnt vmcnt(0)")
        A("s_waitcnt vmcnt(0)")
        for n in range(8): A(f"ds_write_b128 v6, v[{32+4*n}:{35+4*n}] offset:{4*n*RS}")
        A("s_waitcnt lgkmcnt(0)")
        for t in range(8):
            A(f"ds_read_b64_tr_b16 v[{vW+32*q+4*t}:{vW+32*q+4*t+1}], v7 offset:{t*32}")
            A(f"ds_read_b64_tr_b16 v[{vW+32*q+4*t+2}:{vW+32*q+4*t+3}], v7 offset:{t*32+4*RS}")
        A("s_waitcnt lgkmcnt(0)")
    A(f"s_cmp_lg_u32 s{sU}, 0"); A("s_cbranch_scc1 L_nostat")
    A(f"v_and_b32 v14, 3, v{vLane}"); A("v_lshlrev_b32 v14, 3, v14")
    A(f"s_mov_b32 s{sCnt}, {SPIN_LIMIT}")
    A.label("L_stspin")
    A("s_sleep 8")
    A(f"ds_read_b64 v[32:33], v14 offset:{L_STAT}"); A("s_waitcnt lgkmcnt(0)")
    spin_check([32, 33], 34, "L_stspin", "L_stok")
    A("v_max_f32_dpp v34, v32, v32 quad_perm:[1,0,3,2] row_mask:0xf bank_mask:0xf")
    A("v_max_f32_dpp v34, v34, v34 quad_perm:[2,3,0,1] row_mask:0xf bank_mask:0xf")
    A("v_sub_f32 v35, v32, v34"); A("v_mul_f32 v35, 0x3fb8aa3b, v35"); A("v_exp_f32 v35, v35")
    A("v_mul_f32 v35, v35, v33")
    A("v_add_f32_dpp v35, v35, v35 quad_perm:[1,0,3,2] row_mask:0xf bank_mask:0xf")
    A("v_add_f32_dpp v35, v35, v35 quad_perm:[2,3,0,1] row_mask:0xf bank_mask:0xf")
    A("v_mov_b32 v36, 0x7fc00000")
    sanitize([34, 35], 36)
    A("v_mov_b32 v15, 0")
    A(f"s_lshl_b32 s{st0}, s{sReg}, 7"); A(f"s_add_u32 s{st0}, s{st0}, {WS_ST}")
    A("s_mov_b64 exec, 1"); A(f"buffer_store_dwordx2 v[34:35], v15, {srd(sWS)}, s{st0} offen sc1"); A("s_mov_b64 exec, -1")
    A(f"s_mov_b32 s{sCnt}, {SPIN_LIMIT}")
    A.label("L_inspin")
    A(f"global_load_dword v37, v15, s[{pDBG}:{pDBG+1}] sc1"); A("s_waitcnt vmcnt(0)")
    A("v_cmp_gt_u32 vcc, 0x100, v37")
    A("s_cbranch_vccz L_inok")
    A("s_sleep 4")
    A(f"s_sub_u32 s{sCnt}, s{sCnt}, 1"); A("s_cbranch_scc0 L_inspin")
    A.label("L_inok")
    A(f"s_xor_b32 s{st1}, s{sReg}, 1"); A(f"s_lshl_b32 s{st1}, s{st1}, 7"); A(f"s_add_u32 s{st1}, s{st1}, {WS_ST}")
    A(f"s_mov_b32 s{sCnt}, {SPIN_LIMIT}")
    A.label("L_prspin")
    A("s_sleep 4")
    A(f"buffer_load_dwordx2 v[38:39], v15, {srd(sWS)}, s{st1} offen sc1"); A("s_waitcnt vmcnt(0)")
    spin_check([38, 39], 37, "L_prspin", "L_prok")
    A("v_max_f32 v40, v34, v38")
    A("v_sub_f32 v41, v34, v40"); A("v_sub_f32 v42, v38, v40"); A("v_sub_f32 v43, v32, v40")
    for r in (41, 42, 43): A(f"v_mul_f32 v{r}, 0x3fb8aa3b, v{r}")
    for r in (41, 42, 43): A(f"v_exp_f32 v{r}, v{r}")
    A("v_mul_f32 v41, v41, v35"); A("v_fmac_f32 v41, v42, v39")
    A("v_rcp_f32 v41, v41"); A("v_mul_f32 v43, v43, v41")
    sanitize([43], 36)
    A(f"v_lshlrev_b32 v14, 2, v{vLane}")
    A("s_mov_b64 exec, 0xf"); A(f"ds_write_b32 v14, v43 offset:{L_FW}"); A("s_mov_b64 exec, -1")
    A("s_waitcnt lgkmcnt(0)")
    A.label("L_nostat")
    A(f"v_and_b32 v14, 3, v{vLane}"); A("v_lshlrev_b32 v14, 8, v14")
    A(f"v_lshlrev_b32 v15, 4, v{vG}"); A("v_add_u32 v14, v14, v15")
    A(f"v_bfe_u32 v14, v{vLane}, 2, 2"); A("v_lshlrev_b32 v14, 8, v14"); A("v_add_u32 v14, v14, v15")
    A(f"v_lshlrev_b32 v6, 13, v{vG}"); A(f"v_lshlrev_b32 v7, 3, v{vCc}"); A("v_add_u32 v6, v6, v7")
    A(f"s_lshl_b32 s{st0}, s{sB}, 4"); A(f"s_lshl_b32 s{st1}, s{sU}, 2"); A(f"s_add_u32 s{st0}, s{st0}, s{st1}")
    A(f"s_lshl_b32 s{st0}, s{st0}, 13"); A(f"s_lshl_b32 s{st1}, s{sJ}, 7"); A(f"s_add_u32 s{sReg}, s{st0}, s{st1}")
    A("v_mov_b32 v7, 0x7fc00000")
    for k in range(32): A(f"v_mov_b32 v{64+k}, 0")
    stamp(3)
    A("s_barrier")
    stamp(4)
    for q in range(4): A(f"ds_read_b128 v[{32+4*q}:{35+4*q}], v14 offset:{L_OW+q*64}")
    for q in range(4):
        A(f"s_waitcnt lgkmcnt({3-q})")
        for t in range(8):
            A(f"v_mfma_f32_16x16x32_bf16 v[{64+4*t}:{67+4*t}], v[{32+4*q}:{35+4*q}], v[{vW+32*q+4*t}:{vW+32*q+4*t+3}], v[{64+4*t}:{67+4*t}]")
    Dt = [64+4*t for t in range(8)]
    for e in range(4): A(f"v_permlane32_swap_b32 v{Dt[e]}, v{Dt[e+4]}")
    for e in range(4): A(f"v_add_f32 v{Dt[e]}, v{Dt[e]}, v{Dt[e+4]}")
    A(f"v_permlane16_swap_b32 v{Dt[0]}, v{Dt[2]}"); A(f"v_permlane16_swap_b32 v{Dt[1]}, v{Dt[3]}")
    A(f"v_add_f32 v16, v{Dt[0]}, v{Dt[2]}"); A(f"v_add_f32 v17, v{Dt[1]}, v{Dt[3]}")
    sanitize([16, 17], 7)
    A(f"buffer_store_dwordx2 v[16:17], v6, {srd(sWS)}, s{sReg} offen sc1")
    stamp(5)
    prof_store(0)
    A.label("L_end")
    A("s_endpgm")
    A('.section .rodata,"a"'); A(".p2align 6"); A(f".amdhsa_kernel {NAME}")
    A("  .amdhsa_next_free_vgpr 256"); A("  .amdhsa_next_free_sgpr 96"); A("  .amdhsa_accum_offset 256")
    A("  .amdhsa_group_segment_fixed_size 0"); A("  .amdhsa_kernarg_size 88"); A("  .amdhsa_user_sgpr_count 2")
    A("  .amdhsa_user_sgpr_kernarg_segment_ptr 1"); A("  .amdhsa_system_sgpr_workgroup_id_x 1")
    A("  .amdhsa_float_denorm_mode_32 3"); A("  .amdhsa_float_denorm_mode_16_64 3")
    A(".end_amdhsa_kernel")
    return A.finalize()

if __name__ == "__main__":
    import build
    kw = json.loads(sys.argv[2]) if len(sys.argv) > 2 else {}
    s = gen(**kw)
    open(sys.argv[1], "w").write(s)
    build.build(sys.argv[1])
```

```python
import re
def parse_launches(asm_text, default_name):
    out = []
    for line in asm_text.splitlines():
        s = line.strip()
        if s and not s.startswith(";"): break
        m = re.match(r";\s*@launch\s+kernel=(\w+)\s+grid=\((\d+),(\d+),(\d+)\)\s+block=\((\d+),(\d+),(\d+)\)(?:\s+lds=(\d+))?", s)
        if m:
            out.append((m.group(1), tuple(int(x) for x in m.group(2,3,4)), tuple(int(x) for x in m.group(5,6,7)), int(m.group(8) or 0))); continue
        m = re.match(r";\s*@launch\s+grid=\((\d+),(\d+),(\d+)\)\s+block=\((\d+),(\d+),(\d+)\)(?:\s+lds=(\d+))?", s)
        if m:
            out.append((default_name, tuple(int(x) for x in m.group(1,2,3)), tuple(int(x) for x in m.group(4,5,6)), int(m.group(7) or 0)))
    return out
```

```python
import sys, json, build, hiprt_parse, importlib
genmod = importlib.import_module(sys.argv[2] if len(sys.argv) > 2 else "gen")
cfgs = json.loads(sys.argv[1]); out = []
for i, c in enumerate(cfgs):
    s = genmod.gen(**c); fn = f"k_{i}.s"; open(fn, "w").write(s); build.build(fn, quiet=True)
    out.append({"co": f"k_{i}.co", "launch": hiprt_parse.parse_launches(s, genmod.NAME), "prof": c.get("PROF", False), "dbg": c.get("DBG", 0), "cfg": c})
json.dump(out, open("k_cfgs.json", "w"))
print(json.dumps(["dev/hiprt.py","dev/hiprt_parse.py","dev/run_k.py","dev/run_ab.py","dev/run_edge.py","dev/run_stress.py","dev/k_cfgs.json","dev/scrub.co","sequential_preLN__gqa_block_cached__dense_activation_relu__decode_np.py"] + [f"dev/k_{i}.co" for i in range(len(cfgs))]))
```

```python
import sys, json
from asmlib import Asm
NAME = "sequential_preLN__gqa_block_cached__dense_activation_relu__decode_kernel"

WS_Y  = 0x00000
WS_H  = 0x80000
WS_H1 = 0x8A000
H1_STRIDE = 11264
WS_ST = 0x98000
WS_W1T = 0x100000
WS_W2T = 0x280000
W2T_STRIDE = 43*1024
WS_PROF = 0x400000
WS_EP = 0xA0000
WS_QX = 0x600000
WS_SIZE = 0x700000
L_QP = 0; L_OW = 2048; L_STAT = 4096; L_FW = 4128
L_CNT = 4160; L_CNT2 = 4164; L_RR = 4352; L_RED = 4608; L_RED2 = L_RED + 4096; L_RED3 = L_RED2 + 2048
L_SC = 16384; L_STG = 32768; STG_W = 11264; RS = 288
LDS_BYTES = L_STG + 4*STG_W
POISON = -1
SPIN_LIMIT = 1 << 18

def brev4(n): return int(f"{n:04b}"[::-1], 2)

def gen(D=6, PROF=False, PACE=4, DBG=0, WQF='', WOF='', WFF='', NOWO=0, NOSTG=0, D0=5, SLP1=4, SLP2=4, SLPR=0, REPACK=0, NR=0, D2=12, NT2=0, ROTK=0, ROTQ=0, HB=16, G=2, WQP=0, TLBV=0, PACED=0, I0=16, COOPQ=0, QXS='sc1', QXL='sc1', NOQ=0):
    A = Asm()
    R = 16
    A(f"; @launch grid=(256,1,1) block=(512,1,1) lds={LDS_BYTES}")
    A('.amdgcn_target "amdgcn-amd-amdhsa--gfx950"')
    A(".text"); A(f".globl {NAME}"); A(".p2align 8"); A(f".type {NAME},@function"); A.label(NAME)
    sK, sV, sC, sWS, sT = 4, 8, 12, 16, 20
    sM0, sM1 = 24, 26
    sH, sB, sHalf, sReg = 28, 29, 30, 31
    sOff, sTile, sU = 32, 33, 34
    st0, st1, st2, st3 = 58, 59, 60, 61
    sJ = 62
    sCnt = 63
    sP = 64
    pX, pK, pV, pWQ, pWO, pW1, pW2, pOUT, pDBG, pWS = 36, 38, 40, 42, 44, 48, 50, 52, 54, 56
    srd = lambda s: f"s[{s}:{s+3}]"
    nst = [0]
    def stamp(i):
        if PROF: A(f"s_memrealtime s[{sP+2*i}:{sP+2*i+1}]")
    def prof_store(slot_wave):
        if not PROF: return
        A("s_waitcnt lgkmcnt(0)")
        A(f"s_lshl_b32 s{st0}, s2, 3"); A(f"s_add_u32 s{st0}, s{st0}, s3"); A(f"s_lshl_b32 s{st0}, s{st0}, 6")
        A(f"s_add_u32 s{st0}, s{st0}, {WS_PROF}")
        for i in range(8):
            A(f"v_mov_b32 v{40+i}, s{sP+2*i}")
        A(f"s_getreg_b32 s{st1}, hwreg(HW_REG_XCC_ID)"); A(f"s_getreg_b32 s{st2}, hwreg(HW_REG_HW_ID)")
        A(f"v_mov_b32 v50, s{st1}"); A(f"v_mov_b32 v51, s{st2}")
        A(f"v_mov_b32 v48, 0")
        A("s_mov_b64 s[60:61], exec"); A("s_mov_b64 exec, 1")
        A(f"buffer_store_dwordx4 v[40:43], v48, {srd(sWS)}, s{st0} offen")
        A(f"buffer_store_dwordx4 v[44:47], v48, {srd(sWS)}, s{st0} offen offset:16")
        A(f"buffer_store_dwordx2 v[50:51], v48, {srd(sWS)}, s{st0} offen offset:32")
        A("s_mov_b64 exec, s[60:61]")
    def mk_srd(s, p, size, off_sgpr=None, off_imm=None):
        if off_sgpr is not None:
            A(f"s_add_u32 s{s}, s{p}, s{off_sgpr}"); A(f"s_addc_u32 s{s+1}, s{p+1}, 0")
        elif off_imm is not None:
            A(f"s_add_u32 s{s}, s{p}, {off_imm}"); A(f"s_addc_u32 s{s+1}, s{p+1}, 0")
        else:
            A(f"s_mov_b32 s{s}, s{p}"); A(f"s_mov_b32 s{s+1}, s{p+1}")
        A(f"s_mov_b32 s{s+2}, {size}")
        A(f"s_mov_b32 s{s+3}, 0x20000")
    def wave_allreduce(op, x, t):
        for k in (8, 4, 2, 1):
            A(f"{op}_dpp v{x}, v{x}, v{x} row_ror:{k} row_mask:0xf bank_mask:0xf")
        A(f"v_mov_b32 v{t}, v{x}"); A(f"v_permlane16_swap_b32 v{x}, v{t}"); A(f"{op} v{x}, v{x}, v{t}")
        A(f"v_mov_b32 v{t}, v{x}"); A(f"v_permlane32_swap_b32 v{x}, v{t}"); A(f"{op} v{x}, v{x}, v{t}")
    def round_bf16(x, t=None):
        A(f"v_cvt_pk_bf16_f32 v{x}, v{x}, v{x}")
        A(f"v_and_b32 v{x}, 0xffff0000, v{x}")
    def acc_reduce(a):
        for e in range(4):
            A(f"v_permlane32_swap_b32 v{a+e}, v{a+e+4}")
        for e in range(4):
            A(f"v_add_f32 v{a+e}, v{a+e}, v{a+e+4}")
        A(f"v_permlane16_swap_b32 v{a}, v{a+2}")
        A(f"v_permlane16_swap_b32 v{a+1}, v{a+3}")
        A(f"v_add_f32 v{a}, v{a}, v{a+2}")
        A(f"v_add_f32 v{a+1}, v{a+1}, v{a+3}")
    def sanitize(regs, repl_sgpr, tmpmask="vcc"):
        for r in regs:
            A(f"v_cmp_eq_u32 vcc, -1, v{r}")
            A(f"v_cndmask_b32 v{r}, v{r}, v{repl_sgpr}, vcc")
    def spin_check(regs, tmp, loop, done, fail=None):
        rs = list(regs)
        if len(rs) == 1:
            m = rs[0]
        else:
            A(f"v_max_u32 v{tmp}, v{rs[0]}, v{rs[1]}"); rs = rs[2:]
            while len(rs) >= 2:
                A(f"v_max3_u32 v{tmp}, v{tmp}, v{rs[0]}, v{rs[1]}"); rs = rs[2:]
            if rs: A(f"v_max_u32 v{tmp}, v{tmp}, v{rs[0]}")
            m = tmp
        A(f"v_cmp_eq_u32 vcc, -1, v{m}")
        A(f"s_cbranch_vccz {done}")
        A(f"s_sub_u32 s{sCnt}, s{sCnt}, 1")
        A(f"s_cbranch_scc0 {loop}")
        A.label(done)

    stamp(0)
    A("s_cmp_ge_u32 s2, 256")
    A("s_cbranch_scc1 L_end")
    A("s_load_dwordx16 s[36:51], s[0:1], 0")
    A("s_load_dwordx4 s[52:55], s[0:1], 64")
    A("s_load_dwordx2 s[56:57], s[0:1], 80")
    A("v_lshrrev_b32 v1, 6, v0")
    A("v_and_b32 v2, 63, v0")
    A(f"s_and_b32 s{st0}, s2, 7")
    A("v_readfirstlane_b32 s3, v1")
    A(f"s_lshr_b32 s{st1}, s2, 3")
    A(f"s_lshr_b32 s{sH}, s{st1}, 3"); A(f"s_lshl_b32 s{sH}, s{sH}, 3"); A(f"s_add_u32 s{sH}, s{sH}, s{st0}")
    A(f"s_and_b32 s{st1}, s{st1}, 7")
    A(f"s_lshr_b32 s{sB}, s{st1}, 1")
    A(f"s_and_b32 s{sHalf}, s{st1}, 1")
    A(f"s_lshl_b32 s{sReg}, s{sB}, 5"); A(f"s_add_u32 s{sReg}, s{sReg}, s{sH}")
    A(f"s_lshl_b32 s{sReg}, s{sReg}, 1"); A(f"s_add_u32 s{sReg}, s{sReg}, s{sHalf}")
    A(f"s_lshl_b32 s{sJ}, s{sH}, 1"); A(f"s_add_u32 s{sJ}, s{sJ}, s{sHalf}")
    A("s_cmp_ge_u32 s3, 4")
    A("s_cbranch_scc1 L_helper")

    vLane, vOff = 2, 3
    vQ = 4; vAcc = 8; vP = 16; vtA, vtB = 32, 33; vM, vL, vSC, vPn, vPlo, vPhi = 34, 35, 36, 37, 38, 39
    vRing = 64
    ring = lambda i: vRing + 4*(i % R)
    A("s_getpc_b64 s[58:59]")
    A.label("L_pc")
    A(f"s_sub_u32 s58, s58, L_pc-{NAME}"); A("s_subb_u32 s59, s59, 0")
    A(f"v_lshlrev_b32 v40, 7, v{vLane}")
    A(f"s_lshl_b32 s{st2}, s3, 13")
    A(f"v_add_u32 v40, s{st2}, v40")
    A(f"v_min_u32 v40, L_end-{NAME}, v40")
    A("global_load_dword v41, v40, s[58:59]")
    A(f"v_lshlrev_b32 v{vOff}, 4, v{vLane}")
    A(f"s_mul_i32 s{st0}, s3, {1024*G}")
    A(f"v_add_u32 v{vOff}, s{st0}, v{vOff}")
    A(f"s_lshr_b32 s{st0}, s{sReg}, 1"); A(f"s_lshl_b32 s{st0}, s{st0}, 21")
    A(f"s_lshl_b32 s{st3}, s{sHalf}, {HB}"); A(f"s_add_u32 s{st0}, s{st0}, s{st3}")
    A(f"s_sub_u32 s{st3}, {1<<21 if HB < 20 else 1<<20}, s{st3}") if HB < 20 else A(f"s_mov_b32 s{st3}, {1<<20}")
    A("s_waitcnt lgkmcnt(0)")
    if COOPQ: A(f"s_load_dwordx2 s[86:87], s[{pWS}:{pWS+1}], {WS_EP}")
    mk_srd(sK, pK, 1 << 20, off_sgpr=st0)
    A(f"s_mov_b32 s{sK+2}, s{st3}")
    sRot = 35
    if ROTK:
        A(f"s_mul_i32 s{sRot}, s2, {ROTK}"); A(f"s_and_b32 s{sRot}, s{sRot}, 255"); A(f"s_lshl_b32 s{sRot}, s{sRot}, 12")
    else:
        A(f"s_mov_b32 s{sRot}, 0")
    A(f"s_mov_b32 s{sOff}, s{sRot}")
    vX = 160
    def sload(i, s, extra=False):
        dst = vX + 4*(i-16) if extra else ring(i)
        A(f"buffer_load_dwordx4 v[{dst}:{dst+3}], v{vOff}, {srd(s)}, s{sOff} offen nt")
        p_ = i % 16
        def addr(p):
            o = (p//G)*4*G*1024 + (p%G)*1024
            return o if HB >= 20 else ((o >> HB) << (HB+1)) | (o & ((1 << HB)-1))
        assert HB >= 20 or (1 << HB) <= 65536
        inc = addr(p_+1) - addr(p_) if p_ < 15 else (addr(16) - addr(15))
        A(f"s_add_u32 s{sOff}, s{sOff}, {inc}")
        if ROTK: A(f"s_and_b32 s{sOff}, s{sOff}, 0xfffff")
    for i in range(D0): sload(i, sK)
    A("s_barrier")
    if COOPQ: assert PACED
    if PACED:
        for i in range(D0, I0):
            if i >= PACED: A(f"s_waitcnt vmcnt({PACED-1})")
            sload(i, sK, extra=(i >= 16))
    elif NR == 0:
        A("s_barrier")
        for i in range(D0, R): sload(i, sK)
    else:
        rest = list(range(D0, R))
        for r_ in range(NR):
            lo = len(rest)*r_//NR; hi = len(rest)*(r_+1)//NR
            for i in rest[lo:hi]: sload(i, sK)
            if r_ < NR-1: A("s_barrier")
    mk_srd(sV, pV, 1 << 20, off_sgpr=st0)
    A(f"s_mov_b32 s{sV+2}, s{st3}")
    for k in range(4): A(f"s_mov_b32 s{sC+k}, s{sK+k}")
    mk_srd(sWS, pWS, WS_SIZE)
    A(f"s_mov_b32 s{sM0}, 0xaaaaaaaa"); A(f"s_mov_b32 s{sM0+1}, 0xaaaaaaaa")
    A(f"s_mov_b32 s{sM1}, 0xcccccccc"); A(f"s_mov_b32 s{sM1+1}, 0xcccccccc")
    A(f"s_lshl_b32 s{st2}, s3, 12"); A(f"s_add_u32 s{st2}, s{st2}, {L_SC}")
    A(f"v_lshlrev_b32 v{vSC}, 2, v{vLane}"); A(f"v_add_u32 v{vSC}, s{st2}, v{vSC}")
    A(f"v_mov_b32 v{vM}, 0xff7fffff")
    A(f"v_and_b32 v42, 15, v{vLane}"); A("v_lshlrev_b32 v42, 5, v42")
    if DBG & 4:
        A(f"s_waitcnt vmcnt({16-D0})"); stamp(6); A("s_waitcnt vmcnt(0)"); stamp(7)
    stamp(1)
    A("s_barrier")
    vqt = 128
    for u in range(4):
        A(f"ds_read_b128 v[{vqt+8*u}:{vqt+8*u+3}], v42 offset:{L_QP+u*512}")
        A(f"ds_read_b128 v[{vqt+8*u+4}:{vqt+8*u+7}], v42 offset:{L_QP+u*512+16}")
    A("s_waitcnt lgkmcnt(0)")
    for e in range(8):
        A(f"v_add_f32 v{vqt+e}, v{vqt+e}, v{vqt+8+e}")
        A(f"v_add_f32 v{vqt+16+e}, v{vqt+16+e}, v{vqt+24+e}")
    for e in range(8): A(f"v_add_f32 v{vqt+e}, v{vqt+e}, v{vqt+16+e}")
    for r in range(4): A(f"v_cvt_pk_bf16_f32 v{vQ+r}, v{vqt+2*r}, v{vqt+2*r+1}")
    if DBG & 1:
        A("s_cmp_lg_u32 s3, 0"); A("s_cbranch_scc1 L_dbgq")
        A(f"s_lshl_b32 s{st2}, s{sReg}, 8"); A(f"s_add_u32 s{st2}, s{st2}, {WS_PROF+0x80000}")
        A(f"v_lshlrev_b32 v40, 4, v{vLane}")
        A("s_mov_b64 exec, 0xffff")
        A(f"buffer_store_dwordx4 v[{vQ}:{vQ+3}], v40, {srd(sWS)}, s{st2} offen")
        A("s_mov_b64 exec, -1")
        A("s_waitcnt vmcnt(0)")
        A.label("L_dbgq")
    stamp(2)
    vW0, vW1, vS = 44, 45, 46
    def k_tail_ops():
        P = lambda n: vP + n
        g = []
        g.append([f"v_add_f32_dpp v{P(14)}, v{P(14)}, v{P(14)} row_ror:8 row_mask:0xf bank_mask:0x3",
                  f"v_add_f32_dpp v{P(14)}, v{P(15)}, v{P(15)} row_ror:8 row_mask:0xf bank_mask:0xc"])
        g.append([f"v_add_f32_dpp v{P(12)}, v{P(12)}, v{P(12)} row_shl:4 row_mask:0xf bank_mask:0x5",
                  f"v_add_f32_dpp v{P(12)}, v{P(14)}, v{P(14)} row_shr:4 row_mask:0xf bank_mask:0xa"])
        g.append([f"v_add_f32_dpp v{vtA}, v{P(8)}, v{P(8)} quad_perm:[2,3,0,1] row_mask:0xf bank_mask:0xf",
                  f"v_add_f32_dpp v{vtB}, v{P(12)}, v{P(12)} quad_perm:[2,3,0,1] row_mask:0xf bank_mask:0xf",
                  f"v_cndmask_b32 v{vW1}, v{vtA}, v{vtB}, s[{sM1}:{sM1+1}]"])
        g.append([f"v_add_f32_dpp v{vtA}, v{vW0}, v{vW0} quad_perm:[1,0,3,2] row_mask:0xf bank_mask:0xf",
                  f"v_add_f32_dpp v{vtB}, v{vW1}, v{vW1} quad_perm:[1,0,3,2] row_mask:0xf bank_mask:0xf",
                  f"v_cndmask_b32 v{vS}, v{vtA}, v{vtB}, s[{sM0}:{sM0+1}]"])
        g.append([f"v_cvt_pk_bf16_f32 v{vS}, v{vS}, v{vS}", f"v_and_b32 v{vS}, 0xffff0000, v{vS}"])
        g.append([f"v_mul_f32 v{vS}, 0x3db504f3, v{vS}", f"v_cvt_pk_bf16_f32 v{vS}, v{vS}, v{vS}"])
        g.append([f"v_and_b32 v{vS}, 0xffff0000, v{vS}", f"v_max_f32 v{vM}, v{vM}, v{vS}",
                  f"ds_write_b32 v{vSC}, v{vS}", f"v_add_u32 v{vSC}, 256, v{vSC}"])
        return g
    def k_tile(first, pt=0):
        P = lambda n: vP + n
        def redA(k):
            A(f"v_add_f32_dpp v{P(2*k)}, v{P(2*k)}, v{P(2*k)} row_ror:8 row_mask:0xf bank_mask:0x3")
            A(f"v_add_f32_dpp v{P(2*k)}, v{P(2*k+1)}, v{P(2*k+1)} row_ror:8 row_mask:0xf bank_mask:0xc")
        def redB(m):
            A(f"v_add_f32_dpp v{P(4*m)}, v{P(4*m)}, v{P(4*m)} row_shl:4 row_mask:0xf bank_mask:0x5")
            A(f"v_add_f32_dpp v{P(4*m)}, v{P(4*m+2)}, v{P(4*m+2)} row_shr:4 row_mask:0xf bank_mask:0xa")
        def redC0():
            A(f"v_add_f32_dpp v{vtA}, v{P(0)}, v{P(0)} quad_perm:[2,3,0,1] row_mask:0xf bank_mask:0xf")
            A(f"v_add_f32_dpp v{vtB}, v{P(4)}, v{P(4)} quad_perm:[2,3,0,1] row_mask:0xf bank_mask:0xf")
            A(f"v_cndmask_b32 v{vW0}, v{vtA}, v{vtB}, s[{sM1}:{sM1+1}]")
        tail = [] if (first and pt == 0) else k_tail_ops()
        for n in range(16):
            pos = 16*pt + n
            if not first: A(f"s_waitcnt vmcnt({D-1})")
            else:
                younger = max(0, I0 - 1 - pos) + max(0, min(pos, 1 << 30) - (I0 - D)) if pos < I0 else D-1
                A(f"s_waitcnt vmcnt({younger})")
            if (not first) or pos + D >= I0:
                if n == 16 - D and not first:
                    A(f"s_cmp_eq_u32 s{sTile}, 15")
                    A(f"s_cselect_b32 s{sC}, s{sV}, s{sC}")
                    A(f"s_cselect_b32 s{sC+1}, s{sV+1}, s{sC+1}")
                    A(f"s_cselect_b32 s{sOff}, s{sRot}, s{sOff}")
                sload(n + D, sC)
            r = vX + 4*n if (first and pt == 1 and pos < I0) else ring(n)
            A(f"v_dot2_f32_bf16 v{P(n)}, v{r}, v{vQ}, 0")
            for k in range(1, 4): A(f"v_dot2_f32_bf16 v{P(n)}, v{r+k}, v{vQ+k}, v{P(n)}")
            if n < len(tail):
                for x in tail[n]: A(x)
            if n >= 2 and n % 2 == 0: redA((n-2)//2)
            if n in (5, 9, 13): redB((n-5)//4)
            if n == 11: redC0()
    A(f"s_mov_b32 s{sTile}, 0")
    k_tile(True, 0)
    if I0 > 16:
        k_tile(True, 1)
    A(f"s_mov_b32 s{sTile}, {2 if I0 > 16 else 1}")
    A.label("L_kloop")
    k_tile(False)
    A(f"s_add_u32 s{sTile}, s{sTile}, 1")
    if PROF and (DBG & 16):
        A(f"s_cmp_lg_u32 s{sTile}, 3"); A("s_cbranch_scc1 L_nk1"); stamp(1); A.label("L_nk1")
        A(f"s_cmp_lg_u32 s{sTile}, 6"); A("s_cbranch_scc1 L_nk2"); stamp(6); A.label("L_nk2")
        A(f"s_cmp_lg_u32 s{sTile}, 11"); A("s_cbranch_scc1 L_nk3"); stamp(7); A.label("L_nk3")
    A(f"s_cmp_lt_u32 s{sTile}, 16")
    A("s_cbranch_scc1 L_kloop")
    for grp in k_tail_ops():
        for x in grp: A(x)
    stamp(3)
    A(f"v_subrev_u32 v{vSC}, 4096, v{vSC}")
    A("s_waitcnt lgkmcnt(0)")
    for t in range(16): A(f"ds_read_b32 v{vP+t}, v{vSC} offset:{t*256}")
    wave_allreduce("v_max_f32", vM, vtA)
    A(f"v_mul_f32 v{vtB}, 0xbfb8aa3b, v{vM}")
    A(f"s_mov_b32 s{st0}, 0x3fb8aa3b")
    A("s_waitcnt lgkmcnt(0)")
    for t in range(16): A(f"v_fma_f32 v{vP+t}, v{vP+t}, s{st0}, v{vtB}")
    for t in range(16): A(f"v_exp_f32 v{vP+t}, v{vP+t}")
    A(f"v_add_f32 v{vL}, v{vP}, v{vP+1}")
    for t in range(2, 16): A(f"v_add_f32 v{vL}, v{vL}, v{vP+t}")
    for t in range(16): A(f"v_cvt_pk_bf16_f32 v{vP+t}, v{vP+t}, v{vP+t}")
    for t in range(16): A(f"ds_write_b32 v{vSC}, v{vP+t} offset:{t*256}")
    wave_allreduce("v_add_f32", vL, vtA)
    A(f"v_mov_b32 v40, v{vM}"); A(f"v_mov_b32 v41, v{vL}")
    A("v_mov_b32 v43, 0x7fc00000")
    sanitize([40, 41], 43)
    A(f"s_lshl_b32 s{st0}, s3, 3"); A(f"s_add_u32 s{st0}, s{st0}, {L_STAT}"); A(f"v_mov_b32 v42, s{st0}")
    A("s_mov_b64 exec, 1"); A("ds_write_b64 v42, v[40:41]"); A("s_mov_b64 exec, -1")
    A(f"v_mov_b32 v{vPn}, v{vP}")
    for e in range(8): A(f"v_mov_b32 v{vAcc+e}, 0")
    A(f"s_mov_b32 s{sTile}, 0")
    def v_loop(label, depth, tend):
        A.label(label)
        A(f"v_and_b32 v{vPlo}, 0xffff, v{vPn}")
        A(f"v_and_b32 v{vPhi}, 0xffff0000, v{vPn}")
        A(f"v_add_u32 v{vSC}, 256, v{vSC}")
        A(f"ds_read_b32 v{vPn}, v{vSC}")
        for n in range(16):
            A(f"s_waitcnt vmcnt({depth-1})")
            r = ring(n); bl = brev4(n)
            if ROTK and n == 16 - depth and tend == 16:
                A(f"s_cmp_eq_u32 s{sTile}, 15"); A(f"s_cselect_b32 s{sC+2}, 0, s{sC+2}")
            sload(n + depth, sC)
            for k in range(4):
                A(f"v_dot2c_f32_bf16_dpp v{vAcc+2*k}, v{vPlo}, v{r+k} row_newbcast:{bl} row_mask:0xf bank_mask:0xf")
                A(f"v_dot2c_f32_bf16_dpp v{vAcc+2*k+1}, v{vPhi}, v{r+k} row_newbcast:{bl} row_mask:0xf bank_mask:0xf")
        A("s_waitcnt lgkmcnt(0)")
        A(f"s_add_u32 s{sTile}, s{sTile}, 1")
        if PROF and (DBG & 8) and label == "L_vloop":
            A(f"s_cmp_lg_u32 s{sTile}, 1"); A("s_cbranch_scc1 L_nost"); stamp(1); A.label("L_nost")
        A(f"s_cmp_lt_u32 s{sTile}, {tend}")
        A(f"s_cbranch_scc1 {label}")
    if NT2 == 0:
        v_loop("L_vloop", D, 16)
    else:
        v_loop("L_vloop", D, 16 - NT2)
        for i_ in range(D, D2): sload(i_, sC)
        v_loop("L_vloop2", D2, 16)
    stamp(4)
    acc_reduce(vAcc)
    A(f"v_and_b32 v40, 15, v{vLane}"); A("v_lshlrev_b32 v40, 4, v40")
    A(f"v_lshrrev_b32 v41, 4, v{vLane}"); A("v_lshlrev_b32 v41, 2, v41")
    A("v_add_u32 v40, v40, v41")
    A(f"s_lshl_b32 s{st0}, s3, 8"); A(f"s_add_u32 s{st0}, s{st0}, {L_OW}"); A(f"v_add_u32 v40, s{st0}, v40")
    A(f"s_lshl_b32 s{st0}, s3, 2"); A(f"s_add_u32 s{st0}, s{st0}, {L_FW}"); A(f"v_mov_b32 v42, s{st0}")
    A(f"s_mov_b32 s{sCnt}, {SPIN_LIMIT}")
    A.label("L_fwspin")
    A("ds_read_b32 v43, v42"); A("s_waitcnt lgkmcnt(0)")
    spin_check([43], 44, "L_fwspin", "L_fwok")
    A(f"v_mul_f32 v{vAcc}, v{vAcc}, v43"); A(f"v_mul_f32 v{vAcc+1}, v{vAcc+1}, v43")
    A(f"v_cvt_pk_bf16_f32 v{vAcc}, v{vAcc}, v{vAcc+1}")
    A(f"ds_write_b32 v40, v{vAcc}")
    A("s_waitcnt vmcnt(0) lgkmcnt(0)")
    A("s_barrier")
    stamp(5)
    A("s_barrier")
    A("s_cmp_lt_u32 s2, 64"); A("s_cbranch_scc1 L_red")
    A("s_cmp_lt_u32 s2, 152"); A("s_cbranch_scc1 L_ffn1")
    A("s_cmp_lt_u32 s2, 184"); A("s_cbranch_scc1 L_ffn2")
    A.label("L_sdone")
    prof_store(0)
    A("s_endpgm")

    A.label("L_red")
    A(f"s_lshl_b32 s{st0}, s2, 13"); A(f"s_lshl_b32 s{st1}, s3, 11"); A(f"s_add_u32 s{st0}, s{st0}, s{st1}")
    A(f"v_lshlrev_b32 v3, 4, v{vLane}")
    A(f"s_lshr_b32 s{st3}, s2, 4"); A(f"s_lshl_b32 s{st1}, s{st3}, 10")
    A(f"s_and_b32 s{st2}, s2, 15"); A(f"s_lshl_b32 s{sTile}, s{st2}, 6"); A(f"s_add_u32 s{st1}, s{st1}, s{sTile}")
    A(f"v_and_b32 v4, 7, v{vLane}"); A("v_lshlrev_b32 v4, 2, v4")
    A(f"v_lshrrev_b32 v5, 5, v{vLane}"); A("v_lshlrev_b32 v5, 5, v5"); A("v_add_u32 v4, v4, v5")
    mk_srd(sT, pX, 4096)
    A(f"buffer_load_dword v6, v4, {srd(sT)}, s{st1} offen")
    A(f"v_bfe_u32 v5, v{vLane}, 3, 2"); A("v_lshlrev_b32 v5, 12, v5"); A("v_add_u32 v7, v4, v5")
    A(f"s_lshl_b32 s{st2}, s{st2}, 8"); A(f"s_lshl_b32 s{st3}, s{st3}, 6"); A(f"s_add_u32 s{st1}, s{st2}, s{st3}")
    A(f"s_add_u32 s{st1}, s{st1}, {WS_H}")
    A(f"v_lshlrev_b32 v9, 1, v4")
    A(f"s_lshl_b32 s{st2}, s3, 7"); A(f"v_add_u32 v10, s{st2}, v9")
    A("s_mov_b64 s[80:81], -1"); A("s_mov_b64 s[82:83], -1")
    A(f"s_mov_b32 s{sCnt}, {SPIN_LIMIT}")
    A.label("L_redspin")
    if SLPR: A(f"s_sleep {SLPR}")
    A("s_mov_b64 exec, s[80:81]"); A("s_cbranch_execz L_redsk0")
    A(f"buffer_load_dwordx4 v[16:19], v3, {srd(sWS)}, s{st0} offen sc1")
    A.label("L_redsk0")
    A("s_mov_b64 exec, s[82:83]"); A("s_cbranch_execz L_redsk1")
    A(f"buffer_load_dwordx4 v[20:23], v3, {srd(sWS)}, s{st0} offen offset:1024 sc1")
    A.label("L_redsk1")
    A("s_mov_b64 exec, -1")
    A("s_waitcnt vmcnt(0)")
    A("v_max3_u32 v8, v16, v17, v18"); A("v_max3_u32 v11, v20, v21, v22")
    A("v_max_u32 v8, v8, v19"); A("v_max_u32 v11, v11, v23")
    A("v_cmp_eq_u32 s[80:81], -1, v8"); A("v_cmp_eq_u32 s[82:83], -1, v11")
    A("s_or_b64 s[84:85], s[80:81], s[82:83]")
    A("s_cbranch_scc0 L_redok")
    A(f"s_sub_u32 s{sCnt}, s{sCnt}, 1"); A("s_cbranch_scc0 L_redspin")
    A.label("L_redok")
    stamp(7)
    if PROF: A(f"s_sub_u32 s{sP+2}, {SPIN_LIMIT}, s{sCnt}")
    for k in range(4): A(f"v_add_f32 v{16+k}, v{16+k}, v{20+k}")
    A("v_permlane32_swap_b32 v16, v17"); A("v_permlane32_swap_b32 v18, v19")
    A("v_add_f32 v16, v16, v17"); A("v_add_f32 v17, v18, v19")
    A("v_mov_b32 v18, v16"); A("v_mov_b32 v19, v17")
    A("v_permlane16_swap_b32 v16, v18"); A("v_permlane16_swap_b32 v17, v19")
    A("v_add_f32 v16, v16, v18"); A("v_add_f32 v17, v17, v19")
    A("v_add_f32_dpp v16, v16, v16 row_ror:8 row_mask:0xf bank_mask:0xf")
    A("v_add_f32_dpp v17, v17, v17 row_ror:8 row_mask:0xf bank_mask:0xf")
    A(f"ds_write_b64 v10, v[16:17] offset:{L_RR}")
    A("s_waitcnt lgkmcnt(0)")
    A("s_barrier")
    A("s_cmp_lg_u32 s3, 0"); A("s_cbranch_scc1 L_sdone")
    for u in range(4): A(f"ds_read_b64 v[{16+2*u}:{17+2*u}], v9 offset:{L_RR+u*128}")
    A("v_lshlrev_b32 v24, 16, v6"); A("v_and_b32 v25, 0xffff0000, v6")
    A("v_mov_b32 v26, 0x7fc07fc0")
    A("s_waitcnt lgkmcnt(0)")
    A("v_add_f32 v16, v16, v18"); A("v_add_f32 v17, v17, v19"); A("v_add_f32 v20, v20, v22"); A("v_add_f32 v21, v21, v23")
    A("v_add_f32 v16, v16, v20"); A("v_add_f32 v17, v17, v21")
    A("v_cvt_pk_bf16_f32 v16, v16, v17")
    A("v_lshlrev_b32 v18, 16, v16"); A("v_and_b32 v19, 0xffff0000, v16")
    A("v_add_f32 v18, v18, v24"); A("v_add_f32 v19, v19, v25")
    A("v_cvt_pk_bf16_f32 v16, v18, v19")
    sanitize([16], 26)
    A(f"buffer_store_dword v16, v7, {srd(sWS)}, s{st1} offen sc1")
    A(f"s_add_u32 s{st1}, s{st1}, 16384")
    A(f"buffer_store_dword v16, v7, {srd(sWS)}, s{st1} offen sc1")
    A(f"s_add_u32 s{st1}, s{st1}, 16384")
    A("s_mov_b32 exec_lo, 0xff"); A("s_mov_b32 exec_hi, 0xff")
    A(f"buffer_store_dword v16, v4, {srd(sWS)}, s{st1} offen sc1")
    A("s_mov_b64 exec, -1")
    stamp(6)
    A("s_branch L_sdone")

    def ffn1_tile(dst):
        A(f"s_sub_u32 s{st0}, s2, 64")
        A(f"s_and_b32 s{st1}, s{st0}, 7")
        A(f"s_lshr_b32 s{st0}, s{st0}, 3")
        A(f"s_lshr_b32 s{st2}, s{st0}, 2"); A(f"s_lshl_b32 s{st2}, s{st2}, 3"); A(f"s_add_u32 s{st2}, s{st2}, s{st1}")
        A(f"s_lshl_b32 s{st2}, s{st2}, 2"); A(f"s_and_b32 s{st3}, s{st0}, 3"); A(f"s_add_u32 s{st2}, s{st2}, s{st3}")
        A(f"s_mul_i32 s{st1}, s{st1}, 3"); A(f"s_add_u32 s{st1}, s{st1}, s{st0}"); A(f"s_add_u32 s{st1}, s{st1}, 56")
        A(f"s_cmp_lt_u32 s{st0}, 8"); A(f"s_cselect_b32 s{dst}, s{st2}, s{st1}")
    def ffn2_tile(dst):
        A(f"s_sub_u32 s{st0}, s2, 152"); A(f"s_and_b32 s{st1}, s{st0}, 7"); A(f"s_lshr_b32 s{st0}, s{st0}, 3")
        A(f"s_lshl_b32 s{st1}, s{st1}, 2"); A(f"s_add_u32 s{dst}, s{st1}, s{st0}")
    sTl = 35
    def tr_addr(v):
        A(f"v_lshrrev_b32 v{v}, 4, v{vLane}"); A(f"v_lshlrev_b32 v{v}, 8, v{v}")
        A(f"v_bfe_u32 v40, v{vLane}, 2, 2"); A("v_lshlrev_b32 v40, 5, v40"); A(f"v_add_u32 v{v}, v{v}, v40")
        A(f"v_and_b32 v40, 3, v{vLane}"); A("v_lshlrev_b32 v40, 3, v40"); A(f"v_add_u32 v{v}, v{v}, v40")
        A(f"s_mul_i32 s{st0}, s3, {STG_W}"); A(f"s_add_u32 s{st0}, s{st0}, {L_STG}"); A(f"v_add_u32 v{v}, s{st0}, v{v}")
    A.label("L_ffn1")
    ffn1_tile(sTl)
    A(f"s_cmp_ge_u32 s{sTl}, 86"); A("s_cbranch_scc1 L_sdone")
    vA = 64
    if REPACK:
        vA = 64
        A(f"s_lshl_b32 s{st0}, s{sTl}, 14"); A(f"s_lshl_b32 s{st1}, s3, 12"); A(f"s_add_u32 s{st0}, s{st0}, s{st1}")
        A(f"s_add_u32 s{st0}, s{st0}, {WS_W1T}")
        A(f"v_lshlrev_b32 v4, 4, v{vLane}")
        for s in range(4): A(f"buffer_load_dwordx4 v[{vA+4*s}:{vA+4*s+3}], v4, {srd(sWS)}, s{st0} offen offset:{s*1024} sc1")
    else:
        A(f"v_lshrrev_b32 v14, 1, v{vLane}"); A("v_mul_u32_u24 v14, 2752, v14")
        A(f"v_and_b32 v6, 1, v{vLane}"); A("v_lshlrev_b32 v6, 4, v6"); A("v_add_u32 v14, v14, v6")
        A(f"s_mul_i32 s{st0}, s3, {128*2752}"); A(f"v_add_u32 v14, s{st0}, v14")
        A(f"s_lshl_b32 s{st1}, s{sTl}, 5")
        A(f"s_add_u32 s{sT}, s{pW1}, s{st1}"); A(f"s_addc_u32 s{sT+1}, s{pW1+1}, 0")
        A(f"s_sub_u32 s{sT+2}, {512*2752}, s{st1}"); A(f"s_mov_b32 s{sT+3}, 0x20000")
        A(f"s_mov_b32 s{sOff}, 0")
        for n in range(4):
            A(f"buffer_load_dwordx4 v[{16+4*n}:{19+4*n}], v14, {srd(sT)}, s{sOff} offen {WFF}")
            A(f"s_add_u32 s{sOff}, s{sOff}, {32*2752}")
        A(f"v_lshlrev_b32 v15, 4, v{vLane}"); A(f"s_mul_i32 s{st0}, s3, {STG_W}"); A(f"s_add_u32 s{st0}, s{st0}, {L_STG}")
        A(f"v_add_u32 v15, s{st0}, v15")
        tr_addr(4)
        A("s_waitcnt vmcnt(0)")
        for n in range(4): A(f"ds_write_b128 v15, v[{16+4*n}:{19+4*n}] offset:{n*1024}")
        vA = 64
        for s in range(4):
            A(f"ds_read_b64_tr_b16 v[{vA+4*s}:{vA+4*s+1}], v4 offset:{s*1024}")
            A(f"ds_read_b64_tr_b16 v[{vA+4*s+2}:{vA+4*s+3}], v4 offset:{s*1024+128}")
    for k in range(4): A(f"v_mov_b32 v{80+k}, 0x3f803f80")
    for k in range(4): A(f"v_mov_b32 v{84+k}, 0")
    A("s_waitcnt vmcnt(0) lgkmcnt(0)")
    for s in range(4): A(f"v_mfma_f32_16x16x32_bf16 v[84:87], v[{vA+4*s}:{vA+4*s+3}], v[80:83], v[84:87]")
    A(f"v_lshlrev_b32 v5, 4, v{vLane}"); A(f"s_lshl_b32 s{st0}, s3, 10"); A(f"v_add_u32 v5, s{st0}, v5")
    A(f"v_lshlrev_b32 v6, 3, v{vLane}"); A(f"s_lshl_b32 s{st0}, s3, 9"); A(f"v_add_u32 v6, s{st0}, v6")
    A(f"ds_write_b128 v5, v[84:87] offset:{L_RED3}")
    A("s_waitcnt lgkmcnt(0)")
    A("s_barrier")
    A(f"v_lshlrev_b32 v7, 4, v{vLane}")
    for u in range(4): A(f"ds_read_b128 v[{16+4*u}:{19+4*u}], v7 offset:{L_RED3+u*1024}")
    A(f"v_and_b32 v8, 3, v{vLane}"); A("v_lshlrev_b32 v8, 6, v8")
    A(f"v_lshrrev_b32 v9, 4, v{vLane}"); A("v_lshlrev_b32 v9, 4, v9"); A("v_add_u32 v8, v8, v9")
    A(f"s_lshl_b32 s{st0}, s3, 10"); A(f"v_add_u32 v8, s{st0}, v8")
    A("s_waitcnt lgkmcnt(0)")
    for k in range(4):
        A(f"v_add_f32 v{16+k}, v{16+k}, v{20+k}"); A(f"v_add_f32 v{24+k}, v{24+k}, v{28+k}")
    for k in range(4): A(f"v_add_f32 v{84+k}, v{16+k}, v{24+k}")
    for k in range(12): A(f"v_mov_b32 v{88+k}, 0")
    A(f"s_and_b32 s{st0}, s2, 7"); A(f"s_lshl_b32 s{st0}, s{st0}, 12"); A(f"s_add_u32 s{st0}, s{st0}, {WS_H}")
    A(f"s_mov_b32 s{sCnt}, {SPIN_LIMIT}")
    A.label("L_f1pre")
    if SLP1: A(f"s_sleep {SLP1}")
    A(f"buffer_load_dwordx4 v[16:19], v8, {srd(sWS)}, s{st0} offen sc1")
    A("s_waitcnt vmcnt(0)")
    spin_check(range(16, 20), 10, "L_f1pre", "L_f1preok")
    A(f"s_mov_b32 s{sCnt}, {SPIN_LIMIT}")
    A.label("L_f1spin")
    for s in range(4): A(f"buffer_load_dwordx4 v[{16+4*s}:{19+4*s}], v8, {srd(sWS)}, s{st0} offen offset:{s*256} sc1")
    A("s_waitcnt vmcnt(0)")
    spin_check(range(16, 32), 10, "L_f1spin", "L_f1ok")
    stamp(7)
    for s in range(4):
        A(f"v_mfma_f32_16x16x32_bf16 v[88:91], v[{vA+4*s}:{vA+4*s+3}], v[{16+4*s}:{19+4*s}], v[88:91]")
        A(f"v_mfma_f32_16x16x32_bf16 v[92:95], v[80:83], v[{16+4*s}:{19+4*s}], v[92:95]")
        A(f"v_mfma_f32_16x16x32_bf16 v[96:99], v[{16+4*s}:{19+4*s}], v[{16+4*s}:{19+4*s}], v[96:99]")
    A(f"ds_write_b128 v5, v[88:91] offset:{L_RED}")
    A(f"v_and_b32 v11, 3, v{vLane}")
    A("v_cmp_eq_u32 vcc, 1, v11"); A("v_cndmask_b32 v96, v96, v97, vcc")
    A("v_cmp_eq_u32 vcc, 2, v11"); A("v_cndmask_b32 v96, v96, v98, vcc")
    A("v_cmp_eq_u32 vcc, 3, v11"); A("v_cndmask_b32 v93, v96, v99, vcc")
    A(f"ds_write_b64 v6, v[92:93] offset:{L_RED2}")
    A("s_waitcnt lgkmcnt(0)")
    A("s_barrier")
    A("s_cmp_lg_u32 s3, 0"); A("s_cbranch_scc1 L_sdone")
    A(f"v_lshlrev_b32 v6, 3, v{vLane}")
    A(f"v_and_b32 v8, 3, v{vLane}"); A("v_lshlrev_b32 v8, 5, v8")
    A(f"v_lshrrev_b32 v9, 4, v{vLane}"); A("v_lshlrev_b32 v9, 3, v9"); A("v_add_u32 v8, v8, v9")
    A(f"v_bfe_u32 v9, v{vLane}, 2, 2"); A(f"v_mul_u32_u24 v9, {H1_STRIDE}, v9"); A("v_add_u32 v8, v8, v9")
    A(f"s_lshl_b32 s{st1}, s{sTl}, 7"); A(f"s_add_u32 s{st1}, s{st1}, {WS_H1}")
    for u in range(4):
        A(f"ds_read_b128 v[{16+4*u}:{19+4*u}], v7 offset:{L_RED+u*1024}")
        A(f"ds_read_b64 v[{32+2*u}:{33+2*u}], v6 offset:{L_RED2+u*512}")
    A("s_waitcnt lgkmcnt(0)")
    A("v_add_f32 v32, v32, v34"); A("v_add_f32 v33, v33, v35"); A("v_add_f32 v36, v36, v38"); A("v_add_f32 v37, v37, v39")
    A("v_add_f32 v32, v32, v36"); A("v_add_f32 v33, v33, v37")
    for k in range(4):
        A(f"v_add_f32 v{16+k}, v{16+k}, v{20+k}"); A(f"v_add_f32 v{24+k}, v{24+k}, v{28+k}")
    A("v_mul_f32 v32, 0x3b000000, v32")
    A("v_mul_f32 v33, 0x3b000000, v33")
    for k in range(4): A(f"v_add_f32 v{16+k}, v{16+k}, v{24+k}")
    A("v_fma_f32 v33, -v32, v32, v33")
    A("v_max_f32 v33, 0, v33")
    round_bf16(32); round_bf16(33)
    A("v_add_f32 v33, 0x3727c5ac, v33"); round_bf16(33)
    A("v_sqrt_f32 v33, v33"); round_bf16(33)
    A("v_rcp_f32 v33, v33")
    for k in range(4): A(f"v_fma_f32 v{16+k}, -v32, v{84+k}, v{16+k}")
    for k in range(4): A(f"v_mul_f32 v{16+k}, v{16+k}, v33")
    A("v_mov_b32 v21, 0")
    for k in range(4):
        A(f"v_cmp_gt_f32 vcc, 0, v{16+k}")
        A(f"v_cndmask_b32 v{16+k}, v{16+k}, v21, vcc")
    A("v_cvt_pk_bf16_f32 v16, v16, v17"); A("v_cvt_pk_bf16_f32 v17, v18, v19")
    A("v_mov_b32 v20, 0x7fc07fc0")
    sanitize([16, 17], 20)
    A(f"buffer_store_dwordx2 v[16:17], v8, {srd(sWS)}, s{st1} offen sc1")
    stamp(6)
    A("s_branch L_sdone")

    A.label("L_ffn2")
    ffn2_tile(sTl)
    vBw = 64
    if REPACK:
        vBw = 64
        A(f"s_mul_i32 s{st0}, s{sTl}, {W2T_STRIDE}"); A(f"s_add_u32 s{st0}, s{st0}, {WS_W2T}")
        mk_srd(sT, pWS, W2T_STRIDE, off_sgpr=st0)
        A(f"v_lshlrev_b32 v4, 4, v{vLane}"); A(f"s_mul_i32 s{st0}, s3, {11*1024}")
        for s in range(11):
            if s == 4: A(f"s_add_u32 s{st0}, s{st0}, 4096")
            if s == 8: A(f"s_add_u32 s{st0}, s{st0}, 4096")
            A(f"buffer_load_dwordx4 v[{vBw+4*s}:{vBw+4*s+3}], v4, {srd(sT)}, s{st0} offen offset:{(s%4)*1024} sc1")
        A("s_waitcnt vmcnt(0)")
    else:
        tr_addr(4)
        A(f"v_lshrrev_b32 v14, 1, v{vLane}"); A("v_lshlrev_b32 v14, 10, v14")
        A(f"v_and_b32 v6, 1, v{vLane}"); A("v_lshlrev_b32 v6, 4, v6"); A("v_add_u32 v14, v14, v6")
        A(f"s_mul_i32 s{st0}, s3, {352*1024}"); A(f"v_add_u32 v14, s{st0}, v14")
        A(f"s_lshl_b32 s{st1}, s{sTl}, 5")
        A(f"s_add_u32 s{sT}, s{pW2}, s{st1}"); A(f"s_addc_u32 s{sT+1}, s{pW2+1}, 0")
        A(f"s_sub_u32 s{sT+2}, {1376*1024}, s{st1}"); A(f"s_mov_b32 s{sT+3}, 0x20000")
        A(f"s_mov_b32 s{sOff}, 0")
        for n in range(11):
            A(f"buffer_load_dwordx4 v[{16+4*n}:{19+4*n}], v14, {srd(sT)}, s{sOff} offen {WFF}")
            A(f"s_add_u32 s{sOff}, s{sOff}, {32*1024}")
        A(f"v_lshlrev_b32 v15, 4, v{vLane}"); A(f"s_mul_i32 s{st0}, s3, {STG_W}"); A(f"s_add_u32 s{st0}, s{st0}, {L_STG}")
        A(f"v_add_u32 v15, s{st0}, v15")
        for n in range(11):
            A(f"s_waitcnt vmcnt({10-n})")
            A(f"ds_write_b128 v15, v[{16+4*n}:{19+4*n}] offset:{n*1024}")
        vBw = 64
        for s in range(11):
            A(f"ds_read_b64_tr_b16 v[{vBw+4*s}:{vBw+4*s+1}], v4 offset:{s*1024}")
            A(f"ds_read_b64_tr_b16 v[{vBw+4*s+2}:{vBw+4*s+3}], v4 offset:{s*1024+128}")
            if s % 4 == 3: A("s_waitcnt lgkmcnt(0)")
    A(f"s_and_b32 s{st0}, s2, 3"); A(f"s_mul_i32 s{st0}, s{st0}, {H1_STRIDE}"); A(f"s_add_u32 s{st0}, s{st0}, {WS_H1}")
    mk_srd(sT, pWS, 86*128, off_sgpr=st0)
    A(f"v_and_b32 v8, 3, v{vLane}"); A("v_lshlrev_b32 v8, 5, v8")
    A(f"v_lshrrev_b32 v9, 5, v{vLane}"); A("v_lshlrev_b32 v9, 7, v9"); A("v_add_u32 v8, v8, v9")
    A(f"v_bfe_u32 v9, v{vLane}, 4, 1"); A("v_lshlrev_b32 v9, 4, v9"); A("v_add_u32 v8, v8, v9")
    A(f"s_mul_i32 s{st0}, s3, 2816"); A(f"v_add_u32 v8, s{st0}, v8")
    A(f"v_lshrrev_b32 v10, 4, v{vLane}")
    A(f"v_and_b32 v11, 15, v{vLane}"); A(f"s_lshl_b32 s{st1}, s{sTl}, 4"); A(f"v_add_u32 v11, s{st1}, v11")
    A("v_lshlrev_b32 v12, 1, v11"); A("v_lshlrev_b32 v13, 10, v10"); A("v_add_u32 v12, v12, v13")
    A("v_lshrrev_b32 v13, 5, v11"); A("v_lshlrev_b32 v13, 8, v13"); A("v_lshlrev_b32 v10, 6, v10"); A("v_add_u32 v13, v13, v10")
    A("v_and_b32 v10, 30, v11"); A("v_lshlrev_b32 v10, 1, v10"); A("v_add_u32 v13, v13, v10")
    A(f"v_lshlrev_b32 v5, 4, v{vLane}"); A(f"s_lshl_b32 s{st0}, s3, 10"); A(f"v_add_u32 v5, s{st0}, v5")
    for k in range(4): A(f"v_mov_b32 v{112+k}, 0")
    A("s_waitcnt lgkmcnt(0)")
    A(f"s_mov_b32 s{st0}, {WS_H + 8*4096}")
    A(f"s_mov_b32 s{sCnt}, {SPIN_LIMIT}")
    A("s_cmp_lg_u32 s3, 0"); A("s_cbranch_scc1 L_f2hok")
    A.label("L_f2hspin")
    if SLP2: A(f"s_sleep {SLP2}")
    A(f"buffer_load_dword v14, v13, {srd(sWS)}, s{st0} offen sc1")
    A("s_waitcnt vmcnt(0)")
    spin_check([14], 15, "L_f2hspin", "L_f2hok")
    A(f"s_mov_b32 s{sCnt}, {SPIN_LIMIT}")
    A.label("L_f2pre")
    if SLP2: A(f"s_sleep {SLP2}")
    A(f"buffer_load_dwordx4 v[16:19], v8, {srd(sT)}, 0 offen sc1")
    A("s_waitcnt vmcnt(0)")
    spin_check(range(16, 20), 15, "L_f2pre", "L_f2preok")
    A(f"s_mov_b32 s{sCnt}, {SPIN_LIMIT}")
    A.label("L_f2spin")
    for s in range(11): A(f"buffer_load_dwordx4 v[{16+4*s}:{19+4*s}], v8, {srd(sT)}, 0 offen offset:{s*256} sc1")
    A("s_waitcnt vmcnt(0)")
    spin_check(range(16, 60), 15, "L_f2spin", "L_f2ok")
    stamp(7)
    for s in range(11):
        A(f"v_mfma_f32_16x16x32_bf16 v[112:115], v[{16+4*s}:{19+4*s}], v[{vBw+4*s}:{vBw+4*s+3}], v[112:115]")
    A(f"ds_write_b128 v5, v[112:115] offset:{L_RED}")
    A("s_waitcnt lgkmcnt(0)")
    A("s_barrier")
    A("s_cmp_lg_u32 s3, 0"); A("s_cbranch_scc1 L_sdone")
    A(f"v_and_b32 v6, 15, v{vLane}"); A("v_lshlrev_b32 v6, 4, v6")
    A(f"v_lshrrev_b32 v7, 4, v{vLane}"); A("v_lshlrev_b32 v7, 2, v7"); A("v_add_u32 v6, v6, v7")
    for u in range(4): A(f"ds_read_b32 v{16+u}, v6 offset:{L_RED+u*1024}")
    A("v_and_b32 v11, 1, v11"); A("v_lshlrev_b32 v20, 16, v14"); A("v_and_b32 v21, 0xffff0000, v14")
    A("v_cmp_eq_u32 vcc, 1, v11"); A("v_cndmask_b32 v20, v20, v21, vcc")
    A("s_waitcnt lgkmcnt(0)")
    A("v_add_f32 v16, v16, v17"); A("v_add_f32 v18, v18, v19"); A("v_add_f32 v16, v16, v18")
    round_bf16(16)
    A("v_add_f32 v16, v16, v20")
    A("v_cvt_pk_bf16_f32 v16, v16, v16")
    mk_srd(sT, pOUT, 4096)
    A(f"buffer_store_short v16, v12, {srd(sT)}, 0 offen")
    if COOPQ:
        A("s_cmp_lg_u32 s2, 152"); A("s_cbranch_scc1 L_noep")
        A("s_add_u32 s86, s86, 1"); A("v_mov_b32 v20, s86"); A("v_mov_b32 v21, s87"); A("v_mov_b32 v22, 0")
        A(f"s_mov_b32 s{st0}, {WS_EP}")
        A("s_mov_b64 exec, 1"); A(f"buffer_store_dwordx2 v[20:21], v22, {srd(sWS)}, s{st0} offen sc1"); A("s_mov_b64 exec, -1")
        A.label("L_noep")
    stamp(6)
    A("s_branch L_sdone")

    A.label("L_helper")
    vW = 128; hAcc = 16; hPlo0, hPhi0, hPlo1, hPhi1 = 24, 25, 26, 27
    vG, vCc = 4, 5
    A(f"s_sub_u32 s{sU}, s3, 4")
    A(f"v_lshrrev_b32 v{vG}, 4, v{vLane}")
    A(f"v_and_b32 v{vCc}, 15, v{vLane}")
    sE0, sE1 = 86, 87
    def ln_stats_and_P(xc_regs):
        for r in range(4):
            A(f"v_lshlrev_b32 v{32+2*r}, 16, v{8+r}"); A(f"v_and_b32 v{33+2*r}, 0xffff0000, v{8+r}")
        A("v_add_f32 v40, v32, v33"); A("v_add_f32 v41, v34, v35"); A("v_add_f32 v42, v36, v37"); A("v_add_f32 v43, v38, v39")
        A("v_add_f32 v40, v40, v41"); A("v_add_f32 v42, v42, v43"); A("v_add_f32 v40, v40, v42")
        wave_allreduce("v_add_f32", 40, 41)
        A("v_mul_f32 v40, 0x3b000000, v40")
        for e in range(8): A(f"v_sub_f32 v{32+e}, v{32+e}, v40")
        A("v_mul_f32 v42, v32, v32")
        for e in range(1, 8): A(f"v_fmac_f32 v42, v{32+e}, v{32+e}")
        wave_allreduce("v_add_f32", 42, 41)
        A("v_mul_f32 v42, 0x3b000000, v42")
        round_bf16(40); round_bf16(42)
        A("v_add_f32 v42, 0x3727c5ac, v42"); round_bf16(42)
        A("v_sqrt_f32 v42, v42"); round_bf16(42)
        A("v_rcp_f32 v42, v42")
        for r in xc_regs:
            A(f"v_lshlrev_b32 v{r}, 16, v{r}"); A(f"v_sub_f32 v{r}, v{r}, v40"); round_bf16(r)
            A(f"v_mul_f32 v{r}, v{r}, v42")
    if COOPQ:
        sI = 35
        A(f"s_lshr_b32 s{sI}, s2, 3"); A(f"s_and_b32 s{sI}, s{sI}, 7")
        A(f"s_lshl_b32 s{st0}, s{sU}, 10")
        A(f"v_lshlrev_b32 v6, 2, v{vCc}"); A(f"v_add_u32 v6, v6, v{vG}"); A(f"s_lshl_b32 s{st1}, s{sI}, 6")
        A(f"v_add_u32 v6, s{st1}, v6"); A("v_lshlrev_b32 v6, 1, v6")
        A(f"v_lshlrev_b32 v7, 4, v{vLane}")
        A(f"v_lshlrev_b32 v3, 13, v{vG}"); A(f"v_lshlrev_b32 v14, 4, v{vCc}"); A("v_add_u32 v3, v3, v14")
        A(f"s_lshl_b32 s{st1}, s{sU}, 17"); A(f"v_add_u32 v3, s{st1}, v3")
        A(f"s_lshl_b32 s{sOff}, s{sI}, 19")
        A(f"s_lshl_b32 s{st1}, s{sH}, 8")
        A(f"s_sub_u32 s{st2}, {4<<20}, s{st1}")
        A("s_waitcnt lgkmcnt(0)")
        stamp(7)
        A(f"s_load_dwordx2 s[{sE0}:{sE1}], s[{pWS}:{pWS+1}], {WS_EP}")
        mk_srd(sT, pX, 1024, off_sgpr=st0)
        A(f"buffer_load_dwordx4 v[8:11], v7, {srd(sT)}, 0 offen")
        A(f"buffer_load_ushort v12, v6, {srd(sT)}, 0 offen")
        A(f"s_add_u32 s{sC}, s{pWQ}, s{st1}"); A(f"s_addc_u32 s{sC+1}, s{pWQ+1}, 0")
        A(f"s_mov_b32 s{sC+2}, s{st2}"); A(f"s_mov_b32 s{sC+3}, 0x20000")
        for k in range(4):
            A(f"buffer_load_dwordx4 v[{vW+4*k}:{vW+4*k+3}], v3, {srd(sC)}, s{sOff} offen {WQF}")
            if k < 3: A(f"s_add_u32 s{sOff}, s{sOff}, 32768")
        mk_srd(sWS, pWS, WS_SIZE)
        A(f"v_lshlrev_b32 v14, 2, v{vLane}"); A("v_mov_b32 v15, -1")
        A("s_mov_b64 exec, 0xfff"); A(f"ds_write_b32 v14, v15 offset:{L_STAT}")
        A("v_mov_b32 v15, 0"); A("s_mov_b64 exec, 3"); A(f"ds_write_b32 v14, v15 offset:{L_CNT}"); A("s_mov_b64 exec, -1")
        A("s_waitcnt lgkmcnt(0)")
        A("s_barrier")
        A(f"s_add_u32 s{sE0}, s{sE0}, 1")
        A(f"v_add_u32 v13, {L_STG}, v7")
        A(f"s_lshl_b32 s{st0}, s{sU}, 12"); A(f"v_add_u32 v14, s{st0}, v13")
        A(f"s_lshl_b32 s{st1}, s{sH}, 2"); A(f"s_add_u32 s{st2}, s{st1}, s{sU}"); A(f"s_lshl_b32 s{st2}, s{st2}, 3"); A(f"s_add_u32 s{st2}, s{st2}, s{sI}")
        A(f"s_lshl_b32 s{st2}, s{st2}, 10"); A(f"s_add_u32 s{st2}, s{st2}, {WS_QX}")
        A(f"s_add_u32 s{st1}, s{st1}, s{sB}"); A(f"s_lshl_b32 s{st1}, s{st1}, 3"); A(f"s_lshl_b32 s{st3}, s{sU}, 1"); A(f"s_add_u32 s{st1}, s{st1}, s{st3}")
        A(f"s_lshl_b32 s{st1}, s{st1}, 10"); A(f"s_add_u32 s{st1}, s{st1}, {WS_QX}")
        A("s_waitcnt vmcnt(4)")
        stamp(6)
        ln_stats_and_P([12])
        A("v_mov_b32 v15, 0")
        A(f"v_cvt_pk_bf16_f32 v{hPlo0}, v12, v15"); A(f"v_cvt_pk_bf16_f32 v{hPhi0}, v15, v12")
        A("s_waitcnt vmcnt(0)")
        for k in range(4): A(f"ds_write_b128 v14, v[{vW+4*k}:{vW+4*k+3}] offset:{k*1024}")
        A(f"v_mov_b32 v14, {L_CNT2}"); A("v_mov_b32 v15, 1")
        A("s_waitcnt lgkmcnt(0)")
        A("s_mov_b64 exec, 1"); A("ds_add_u32 v14, v15"); A("s_mov_b64 exec, -1")
        A(f"s_mov_b32 s{sCnt}, {SPIN_LIMIT}")
        A.label("L_wspin")
        A("ds_read_b32 v15, v14"); A("s_waitcnt lgkmcnt(0)")
        A("v_cmp_gt_u32 vcc, 4, v15")
        A("s_cbranch_vccz L_wok")
        A(f"s_sub_u32 s{sCnt}, s{sCnt}, 1"); A("s_cbranch_scc0 L_wspin")
        A.label("L_wok")
        for n in range(8): A(f"ds_read_b128 v[{vW+4*n}:{vW+4*n+3}], v13 offset:{n*1024}")
        for e in range(8): A(f"v_mov_b32 v{hAcc+e}, 0")
        for n in range(16):
            if n == 0: A("s_waitcnt lgkmcnt(4)")
            if n == 4:
                A("s_waitcnt lgkmcnt(0)")
                for m in range(8, 16): A(f"ds_read_b128 v[{vW+4*m}:{vW+4*m+3}], v13 offset:{m*1024}")
            if n == 8: A("s_waitcnt lgkmcnt(4)")
            if n == 12: A("s_waitcnt lgkmcnt(0)")
            for k in range(4):
                A(f"v_dot2c_f32_bf16_dpp v{hAcc+2*k}, v{hPlo0}, v{vW+4*n+k} row_newbcast:{n} row_mask:0xf bank_mask:0xf")
                A(f"v_dot2c_f32_bf16_dpp v{hAcc+2*k+1}, v{hPhi0}, v{vW+4*n+k} row_newbcast:{n} row_mask:0xf bank_mask:0xf")
        acc_reduce(hAcc)
        A(f"v_mov_b32 v{hAcc+2}, s{sE0}"); A(f"v_mov_b32 v{hAcc+3}, s{sE1}")
        A(f"buffer_store_dwordx4 v[{hAcc}:{hAcc+3}], v7, {srd(sWS)}, s{st2} offen {QXS}")
        stamp(1)
        A("s_waitcnt vmcnt(0)")
        if DBG & 32: stamp(6)
        A(f"s_mov_b32 s{sCnt}, {SPIN_LIMIT}")
        A.label("L_qxspin")
        A(f"buffer_load_dwordx4 v[32:35], v7, {srd(sWS)}, s{st1} offen {QXL}")
        A(f"buffer_load_dwordx4 v[36:39], v7, {srd(sWS)}, s{st1} offen offset:1024 {QXL}")
        A("s_waitcnt vmcnt(0)")
        A(f"v_xor_b32 v34, s{sE0}, v34"); A(f"v_xor_b32 v35, s{sE1}, v35"); A(f"v_xor_b32 v38, s{sE0}, v38"); A(f"v_xor_b32 v39, s{sE1}, v39")
        A("v_or_b32 v34, v34, v35"); A("v_or3_b32 v34, v34, v38, v39")
        A("v_cmp_ne_u32 vcc, 0, v34")
        A("s_cbranch_vccz L_qxok")
        A(f"s_sub_u32 s{sCnt}, s{sCnt}, 1"); A("s_cbranch_scc0 L_qxspin")
        A.label("L_qxok")
        if DBG & 32: A(f"s_sub_u32 s{sP+14}, {SPIN_LIMIT}, s{sCnt}")
        A(f"v_add_f32 v{hAcc}, v32, v36"); A(f"v_add_f32 v{hAcc+1}, v33, v37")
    else:
        A(f"s_lshl_b32 s{st0}, s{sB}, 10")
        sRq = 35
        if ROTQ:
            A(f"s_lshr_b32 s{sRq}, s2, 3"); A(f"s_and_b32 s{sRq}, s{sRq}, 7"); A(f"s_mul_i32 s{sRq}, s{sRq}, {ROTQ}"); A(f"s_and_b32 s{sRq}, s{sRq}, 31")
        else:
            A(f"s_mov_b32 s{sRq}, 0")
        A(f"s_lshl_b32 s{st1}, s{sU}, 7")
        for t_, reg in ((0, 6), (1, 9)):
            A(f"v_add_u32 v{reg}, s{sRq}, v{vCc}")
            if t_: A(f"v_add_u32 v{reg}, 16, v{reg}")
            A(f"v_and_b32 v{reg}, 31, v{reg}")
            if WQP == 0:
                A(f"v_lshlrev_b32 v{reg}, 2, v{reg}"); A(f"v_add_u32 v{reg}, v{reg}, v{vG}")
            else:
                A(f"v_lshlrev_b32 v14, 5, v{vG}"); A(f"v_add_u32 v{reg}, v{reg}, v14")
            A(f"v_add_u32 v{reg}, s{st1}, v{reg}"); A(f"v_lshlrev_b32 v{reg}, 1, v{reg}")
        A(f"v_mov_b32 v15, v9")
        A(f"v_lshlrev_b32 v7, 4, v{vLane}")
        A(f"v_lshlrev_b32 v3, {13 if WQP == 0 else 18}, v{vG}"); A(f"v_lshlrev_b32 v14, 4, v{vCc}"); A("v_add_u32 v3, v3, v14")
        A(f"s_lshl_b32 s{st1}, s{sU}, 20"); A(f"v_add_u32 v3, s{st1}, v3")
        A(f"s_lshl_b32 s{st1}, s{sH}, 8")
        A(f"s_sub_u32 s{st2}, {4<<20}, s{st1}")
        A("s_waitcnt lgkmcnt(0)")
        stamp(7)
        mk_srd(sT, pX, 1024, off_sgpr=st0)
        A(f"buffer_load_dwordx4 v[8:11], v7, {srd(sT)}, 0 offen")
        A(f"buffer_load_ushort v12, v6, {srd(sT)}, 0 offen")
        A(f"buffer_load_ushort v13, v15, {srd(sT)}, 0 offen")
        A("s_barrier")
        A(f"s_add_u32 s{sC}, s{pWQ}, s{st1}"); A(f"s_addc_u32 s{sC+1}, s{pWQ+1}, 0")
        A(f"s_mov_b32 s{sC+2}, s{st2}"); A(f"s_mov_b32 s{sC+3}, 0x20000")
        A(f"s_lshl_b32 s{sOff}, s{sRq}, {15 if WQP == 0 else 13}")
        for n in range(0 if NOQ else 32):
            A(f"buffer_load_dwordx4 v[{vW+4*n}:{vW+4*n+3}], v3, {srd(sC)}, s{sOff} offen {WQF}")
            if n < 31:
                A(f"s_add_u32 s{sOff}, s{sOff}, {32768 if WQP == 0 else 8192}")
                if ROTQ: A(f"s_and_b32 s{sOff}, s{sOff}, {0xfffff if WQP == 0 else 0x3ffff}")
            if NR and n < 31 and (n+1) % (32//NR) == 0: A("s_barrier")
        if NR == 0 and not PACED: A("s_barrier")
        mk_srd(sWS, pWS, WS_SIZE)
        A(f"v_lshlrev_b32 v14, 2, v{vLane}"); A("v_mov_b32 v15, -1")
        A("s_mov_b64 exec, 0xfff"); A(f"ds_write_b32 v14, v15 offset:{L_STAT}")
        A("v_mov_b32 v15, 0"); A("s_mov_b64 exec, 1"); A(f"ds_write_b32 v15, v15 offset:{L_CNT}"); A("s_mov_b64 exec, -1")
        A("s_waitcnt vmcnt(0)" if NOQ else "s_waitcnt vmcnt(32)")
        stamp(6)
        for r in range(4):
            A(f"v_lshlrev_b32 v{32+2*r}, 16, v{8+r}"); A(f"v_and_b32 v{33+2*r}, 0xffff0000, v{8+r}")
        A("v_add_f32 v40, v32, v33"); A("v_add_f32 v41, v34, v35"); A("v_add_f32 v42, v36, v37"); A("v_add_f32 v43, v38, v39")
        A("v_add_f32 v40, v40, v41"); A("v_add_f32 v42, v42, v43"); A("v_add_f32 v40, v40, v42")
        wave_allreduce("v_add_f32", 40, 41)
        A("v_mul_f32 v40, 0x3b000000, v40")
        for e in range(8): A(f"v_sub_f32 v{32+e}, v{32+e}, v40")
        A("v_mul_f32 v42, v32, v32")
        for e in range(1, 8): A(f"v_fmac_f32 v42, v{32+e}, v{32+e}")
        wave_allreduce("v_add_f32", 42, 41)
        A("v_mul_f32 v42, 0x3b000000, v42")
        round_bf16(40); round_bf16(42)
        A("v_add_f32 v42, 0x3727c5ac, v42"); round_bf16(42)
        A("v_sqrt_f32 v42, v42"); round_bf16(42)
        A("v_rcp_f32 v42, v42")
        for r in (12, 13):
            A(f"v_lshlrev_b32 v{r}, 16, v{r}"); A(f"v_sub_f32 v{r}, v{r}, v40"); round_bf16(r)
            A(f"v_mul_f32 v{r}, v{r}, v42")
        A("v_mov_b32 v15, 0")
        A(f"v_cvt_pk_bf16_f32 v{hPlo0}, v12, v15"); A(f"v_cvt_pk_bf16_f32 v{hPhi0}, v15, v12")
        A(f"v_cvt_pk_bf16_f32 v{hPlo1}, v13, v15"); A(f"v_cvt_pk_bf16_f32 v{hPhi1}, v15, v13")
        A(f"s_mov_b32 s{sTile}, 0")
        stamp(1)
        A.label("L_gemv")
        for e in range(8): A(f"v_mov_b32 v{hAcc+e}, 0")
        for n in range(32):
            A(f"s_waitcnt vmcnt({31-n})")
            lo, hi = (hPlo0, hPhi0) if n < 16 else (hPlo1, hPhi1)
            for k in range(4):
                A(f"v_dot2c_f32_bf16_dpp v{hAcc+2*k}, v{lo}, v{vW+4*n+k} row_newbcast:{n%16} row_mask:0xf bank_mask:0xf")
                A(f"v_dot2c_f32_bf16_dpp v{hAcc+2*k+1}, v{hi}, v{vW+4*n+k} row_newbcast:{n%16} row_mask:0xf bank_mask:0xf")
        acc_reduce(hAcc)
    A(f"v_lshlrev_b32 v14, 5, v{vCc}"); A(f"v_lshlrev_b32 v15, 3, v{vG}"); A("v_add_u32 v14, v14, v15")
    A(f"s_lshl_b32 s{st0}, s{sU}, 9"); A(f"v_add_u32 v14, s{st0}, v14")
    A(f"ds_write_b64 v14, v[{hAcc}:{hAcc+1}] offset:{L_QP}")
    A("s_waitcnt lgkmcnt(0)")
    stamp(2)
    A("s_barrier")
    A(f"s_cmp_lg_u32 s{sU}, 0"); A("s_cbranch_scc1 L_nopoison")
    for k in range(4): A(f"v_mov_b32 v{32+k}, -1")
    A(f"v_lshrrev_b32 v14, 3, v{vLane}"); A("v_lshlrev_b32 v14, 13, v14")
    A(f"v_and_b32 v15, 7, v{vLane}"); A("v_lshlrev_b32 v15, 4, v15"); A("v_add_u32 v14, v14, v15")
    A(f"s_lshl_b32 s{st0}, s{sB}, 17"); A(f"s_lshl_b32 s{st1}, s{sJ}, 7"); A(f"s_add_u32 s{st0}, s{st0}, s{st1}")
    A(f"buffer_store_dwordx4 v[32:35], v14, {srd(sWS)}, s{st0} offen sc1")
    A(f"s_add_u32 s{st0}, s{st0}, 65536")
    A(f"buffer_store_dwordx4 v[32:35], v14, {srd(sWS)}, s{st0} offen sc1")
    A(f"v_lshlrev_b32 v14, 2, v{vLane}")
    A(f"s_lshl_b32 s{st0}, s{sReg}, 7"); A(f"s_add_u32 s{st0}, s{st0}, {WS_ST}")
    A("s_mov_b64 exec, 3"); A(f"buffer_store_dword v32, v14, {srd(sWS)}, s{st0} offen sc1"); A("s_mov_b64 exec, -1")
    A("s_cmp_ge_u32 s2, 64"); A("s_cbranch_scc1 L_pnored")
    A(f"s_and_b32 s{st0}, s2, 15"); A(f"s_lshl_b32 s{st0}, s{st0}, 8")
    A(f"s_lshr_b32 s{st1}, s2, 4"); A(f"s_lshl_b32 s{st1}, s{st1}, 6"); A(f"s_add_u32 s{st0}, s{st0}, s{st1}")
    A(f"s_add_u32 s{st0}, s{st0}, {WS_H}")
    A(f"v_lshrrev_b32 v36, 4, v{vLane}"); A("v_lshlrev_b32 v36, 12, v36")
    A(f"v_and_b32 v37, 15, v{vLane}"); A("v_lshlrev_b32 v37, 2, v37"); A("v_add_u32 v36, v36, v37")
    A(f"buffer_store_dword v32, v36, {srd(sWS)}, s{st0} offen sc1")
    A(f"s_add_u32 s{st0}, s{st0}, 16384")
    A(f"buffer_store_dword v32, v36, {srd(sWS)}, s{st0} offen sc1")
    A(f"s_add_u32 s{st0}, s{st0}, 16384")
    A("s_mov_b64 exec, 0xffff"); A(f"buffer_store_dword v32, v37, {srd(sWS)}, s{st0} offen sc1"); A("s_mov_b64 exec, -1")
    A("s_branch L_pdone")
    A.label("L_pnored")
    A("s_cmp_ge_u32 s2, 152"); A("s_cbranch_scc1 L_pdone")
    ffn1_tile(sTl)
    A(f"s_cmp_ge_u32 s{sTl}, 86"); A("s_cbranch_scc1 L_pdone")
    A(f"s_lshl_b32 s{st0}, s{sTl}, 7"); A(f"s_add_u32 s{st0}, s{st0}, {WS_H1}")
    A(f"v_lshrrev_b32 v36, 4, v{vLane}"); A(f"v_mul_u32_u24 v36, {H1_STRIDE}, v36")
    A(f"v_and_b32 v37, 15, v{vLane}"); A("v_lshlrev_b32 v37, 3, v37"); A("v_add_u32 v36, v36, v37")
    A(f"buffer_store_dwordx2 v[32:33], v36, {srd(sWS)}, s{st0} offen sc1")
    A.label("L_pdone")
    A.label("L_nopoison")
    if TLBV:
        A(f"s_cmp_lg_u32 s{sU}, 1"); A("s_cbranch_scc1 L_notlb")
        A(f"s_lshr_b32 s{st0}, s{sReg}, 1"); A(f"s_lshl_b32 s{st0}, s{st0}, 21")
        mk_srd(sT, pV, 1 << 21, off_sgpr=st0)
        A(f"v_lshlrev_b32 v14, 15, v{vLane}")
        A(f"buffer_load_dword v15, v14, {srd(sT)}, 0 offen nt")
        A("s_waitcnt vmcnt(0)")
        A.label("L_notlb")
    A(f"s_lshl_b32 s{st0}, s2, 2"); A(f"s_add_u32 s{st0}, s{st0}, s{sU}")
    A(f"s_cmp_ge_u32 s{st0}, {696 if REPACK else 0}"); A("s_cbranch_scc1 L_rpdone")
    A(f"s_mul_i32 s{st1}, s{sU}, {32*RS}"); A(f"s_add_u32 s{st1}, s{st1}, {L_STG}")
    A(f"v_lshlrev_b32 v15, 4, v{vLane}"); A(f"v_add_u32 v7, s{st1}, v15")
    A(f"v_lshlrev_b32 v6, 3, v{vG}"); A(f"v_lshrrev_b32 v14, 2, v{vCc}"); A("v_add_u32 v6, v6, v14"); A("v_lshlrev_b32 v6, 7, v6")
    A(f"v_and_b32 v14, 3, v{vCc}"); A("v_lshlrev_b32 v14, 3, v14"); A("v_add_u32 v6, v6, v14"); A(f"v_add_u32 v6, s{st1}, v6")
    A(f"v_lshrrev_b32 v3, 3, v{vLane}"); A(f"v_and_b32 v14, 7, v{vLane}"); A("v_lshlrev_b32 v14, 4, v14")
    A(f"s_cmp_ge_u32 s{st0}, 344"); A("s_cbranch_scc1 L_rpw1")
    A(f"s_lshr_b32 s{st2}, s{st0}, 3"); A(f"s_and_b32 s{st3}, s{st0}, 7")
    A("v_lshlrev_b32 v3, 10, v3"); A("v_add_u32 v3, v3, v14")
    A(f"s_lshl_b32 s{sOff}, s{st2}, 15"); A(f"s_lshl_b32 s{st1}, s{st3}, 7"); A(f"s_add_u32 s{sOff}, s{sOff}, s{st1}")
    mk_srd(sT, pW2, 1376*1024)
    A(f"s_mov_b32 s{sTile}, {8*1024}")
    A(f"s_mul_i32 s{st3}, s{st3}, {4*W2T_STRIDE}"); A(f"s_lshl_b32 s{st2}, s{st2}, 10"); A(f"s_add_u32 s{st3}, s{st3}, s{st2}")
    A(f"s_add_u32 s{st3}, s{st3}, {WS_W2T}")
    A(f"s_mov_b32 s{sTl}, {W2T_STRIDE}")
    A("s_branch L_rpgo")
    A.label("L_rpw1")
    A(f"s_sub_u32 s{st0}, s{st0}, 344")
    A(f"s_mul_i32 s{st2}, s{st0}, 2979"); A(f"s_lshr_b32 s{st2}, s{st2}, 16")
    A(f"s_mul_i32 s{st3}, s{st2}, 22"); A(f"s_sub_u32 s{st3}, s{st0}, s{st3}")
    A("v_mul_u32_u24 v3, 2752, v3"); A("v_add_u32 v3, v3, v14")
    A(f"s_mul_i32 s{sOff}, s{st2}, {32*2752}"); A(f"s_lshl_b32 s{st1}, s{st3}, 7"); A(f"s_add_u32 s{sOff}, s{sOff}, s{st1}")
    mk_srd(sT, pW1, 512*2752)
    A(f"s_mov_b32 s{sTile}, {8*2752}")
    A(f"s_lshl_b32 s{st3}, s{st3}, 16"); A(f"s_lshl_b32 s{st2}, s{st2}, 10"); A(f"s_add_u32 s{st3}, s{st3}, s{st2}")
    A(f"s_add_u32 s{st3}, s{st3}, {WS_W1T}")
    A(f"s_mov_b32 s{sTl}, 16384")
    A.label("L_rpgo")
    for n in range(4):
        A(f"buffer_load_dwordx4 v[{32+4*n}:{35+4*n}], v3, {srd(sT)}, s{sOff} offen {WFF}")
        A(f"s_add_u32 s{sOff}, s{sOff}, s{sTile}")
    A("s_waitcnt vmcnt(0)")
    for n in range(4): A(f"ds_write_b128 v7, v[{32+4*n}:{35+4*n}] offset:{n*1024}")
    A("s_waitcnt lgkmcnt(0)")
    for t in range(4):
        A(f"ds_read_b64_tr_b16 v[{48+4*t}:{49+4*t}], v6 offset:{t*32}")
        A(f"ds_read_b64_tr_b16 v[{50+4*t}:{51+4*t}], v6 offset:{t*32+512}")
    A("s_waitcnt lgkmcnt(0)")
    for t in range(4):
        A(f"buffer_store_dwordx4 v[{48+4*t}:{51+4*t}], v15, {srd(sWS)}, s{st3} offen sc1")
        A(f"s_add_u32 s{st3}, s{st3}, s{sTl}")
    A.label("L_rpdone")
    A("s_waitcnt vmcnt(0)")
    A(f"v_mov_b32 v14, {L_CNT}"); A("v_mov_b32 v15, 1")
    A("s_mov_b64 exec, 1"); A("ds_add_rtn_u32 v32, v14, v15"); A("s_waitcnt lgkmcnt(0)"); A("s_mov_b64 exec, -1")
    A(f"v_readfirstlane_b32 s{st0}, v32")
    A(f"s_cmp_lg_u32 s{st0}, 3"); A("s_cbranch_scc1 L_nosig")
    A("v_mov_b32 v14, 0")
    A("s_mov_b64 exec, 1"); A(f"global_atomic_add v14, v15, s[{pDBG}:{pDBG+1}]"); A("s_mov_b64 exec, -1")
    A.label("L_nosig")
    A(f"v_lshlrev_b32 v3, 10, v{vG}"); A(f"v_lshlrev_b32 v14, 4, v{vCc}"); A("v_add_u32 v3, v3, v14")
    A(f"s_lshl_b32 s{st1}, s{sU}, 8"); A(f"v_add_u32 v3, s{st1}, v3")
    A(f"s_lshl_b32 s{st1}, s{sH}, 17")
    mk_srd(sC, pWO, 131072, off_sgpr=st1)
    A(f"s_mul_i32 s{st0}, s{sU}, {32*RS}"); A(f"s_add_u32 s{st0}, s{st0}, {L_STG}")
    A(f"v_mul_u32_u24 v6, {RS}, v{vG}"); A("v_add_u32 v6, v6, v14"); A(f"v_add_u32 v6, s{st0}, v6")
    A(f"v_lshlrev_b32 v7, 3, v{vG}"); A(f"v_lshrrev_b32 v15, 2, v{vCc}"); A("v_add_u32 v7, v7, v15")
    A(f"v_mul_u32_u24 v7, {RS}, v7"); A(f"v_and_b32 v15, 3, v{vCc}"); A("v_lshlrev_b32 v15, 3, v15")
    A("v_add_u32 v7, v7, v15"); A(f"v_add_u32 v7, s{st0}, v7")
    A(f"s_mov_b32 s{sOff}, 0")
    for q in range(0 if NOWO else 4):
        for n in range(8):
            A(f"buffer_load_dwordx4 v[{32+4*n}:{35+4*n}], v3, {srd(sC)}, s{sOff} offen {WOF}")
            A(f"s_add_u32 s{sOff}, s{sOff}, 4096")
            if n % PACE == PACE-1: A("s_waitcnt vmcnt(0)")
        A("s_waitcnt vmcnt(0)")
        for n in range(8): A(f"ds_write_b128 v6, v[{32+4*n}:{35+4*n}] offset:{4*n*RS}")
        A("s_waitcnt lgkmcnt(0)")
        for t in range(8):
            A(f"ds_read_b64_tr_b16 v[{vW+32*q+4*t}:{vW+32*q+4*t+1}], v7 offset:{t*32}")
            A(f"ds_read_b64_tr_b16 v[{vW+32*q+4*t+2}:{vW+32*q+4*t+3}], v7 offset:{t*32+4*RS}")
        A("s_waitcnt lgkmcnt(0)")
    A(f"s_cmp_lg_u32 s{sU}, 0"); A("s_cbranch_scc1 L_nostat")
    A(f"v_and_b32 v14, 3, v{vLane}"); A("v_lshlrev_b32 v14, 3, v14")
    A(f"s_mov_b32 s{sCnt}, {SPIN_LIMIT}")
    A.label("L_stspin")
    A("s_sleep 8")
    A(f"ds_read_b64 v[32:33], v14 offset:{L_STAT}"); A("s_waitcnt lgkmcnt(0)")
    spin_check([32, 33], 34, "L_stspin", "L_stok")
    A("v_max_f32_dpp v34, v32, v32 quad_perm:[1,0,3,2] row_mask:0xf bank_mask:0xf")
    A("v_max_f32_dpp v34, v34, v34 quad_perm:[2,3,0,1] row_mask:0xf bank_mask:0xf")
    A("v_sub_f32 v35, v32, v34"); A("v_mul_f32 v35, 0x3fb8aa3b, v35"); A("v_exp_f32 v35, v35")
    A("v_mul_f32 v35, v35, v33")
    A("v_add_f32_dpp v35, v35, v35 quad_perm:[1,0,3,2] row_mask:0xf bank_mask:0xf")
    A("v_add_f32_dpp v35, v35, v35 quad_perm:[2,3,0,1] row_mask:0xf bank_mask:0xf")
    A("v_mov_b32 v36, 0x7fc00000")
    sanitize([34, 35], 36)
    A("v_mov_b32 v15, 0")
    A(f"s_lshl_b32 s{st0}, s{sReg}, 7"); A(f"s_add_u32 s{st0}, s{st0}, {WS_ST}")
    A("s_mov_b64 exec, 1"); A(f"buffer_store_dwordx2 v[34:35], v15, {srd(sWS)}, s{st0} offen sc1"); A("s_mov_b64 exec, -1")
    A(f"s_mov_b32 s{sCnt}, {SPIN_LIMIT}")
    A.label("L_inspin")
    A(f"global_load_dword v37, v15, s[{pDBG}:{pDBG+1}] sc1"); A("s_waitcnt vmcnt(0)")
    A("v_cmp_gt_u32 vcc, 0x100, v37")
    A("s_cbranch_vccz L_inok")
    A("s_sleep 4")
    A(f"s_sub_u32 s{sCnt}, s{sCnt}, 1"); A("s_cbranch_scc0 L_inspin")
    A.label("L_inok")
    A(f"s_xor_b32 s{st1}, s{sReg}, 1"); A(f"s_lshl_b32 s{st1}, s{st1}, 7"); A(f"s_add_u32 s{st1}, s{st1}, {WS_ST}")
    A(f"s_mov_b32 s{sCnt}, {SPIN_LIMIT}")
    A.label("L_prspin")
    A("s_sleep 4")
    A(f"buffer_load_dwordx2 v[38:39], v15, {srd(sWS)}, s{st1} offen sc1"); A("s_waitcnt vmcnt(0)")
    spin_check([38, 39], 37, "L_prspin", "L_prok")
    A("v_max_f32 v40, v34, v38")
    A("v_sub_f32 v41, v34, v40"); A("v_sub_f32 v42, v38, v40"); A("v_sub_f32 v43, v32, v40")
    for r in (41, 42, 43): A(f"v_mul_f32 v{r}, 0x3fb8aa3b, v{r}")
    for r in (41, 42, 43): A(f"v_exp_f32 v{r}, v{r}")
    A("v_mul_f32 v41, v41, v35"); A("v_fmac_f32 v41, v42, v39")
    A("v_rcp_f32 v41, v41"); A("v_mul_f32 v43, v43, v41")
    sanitize([43], 36)
    A(f"v_lshlrev_b32 v14, 2, v{vLane}")
    A("s_mov_b64 exec, 0xf"); A(f"ds_write_b32 v14, v43 offset:{L_FW}"); A("s_mov_b64 exec, -1")
    A("s_waitcnt lgkmcnt(0)")
    A.label("L_nostat")
    A(f"v_and_b32 v14, 3, v{vLane}"); A("v_lshlrev_b32 v14, 8, v14")
    A(f"v_lshlrev_b32 v15, 4, v{vG}"); A("v_add_u32 v14, v14, v15")
    A(f"v_bfe_u32 v14, v{vLane}, 2, 2"); A("v_lshlrev_b32 v14, 8, v14"); A("v_add_u32 v14, v14, v15")
    A(f"v_lshlrev_b32 v6, 13, v{vG}"); A(f"v_lshlrev_b32 v7, 3, v{vCc}"); A("v_add_u32 v6, v6, v7")
    A(f"s_lshl_b32 s{st0}, s{sB}, 4"); A(f"s_lshl_b32 s{st1}, s{sU}, 2"); A(f"s_add_u32 s{st0}, s{st0}, s{st1}")
    A(f"s_lshl_b32 s{st0}, s{st0}, 13"); A(f"s_lshl_b32 s{st1}, s{sJ}, 7"); A(f"s_add_u32 s{sReg}, s{st0}, s{st1}")
    A("v_mov_b32 v7, 0x7fc00000")
    for k in range(32): A(f"v_mov_b32 v{64+k}, 0")
    stamp(3)
    A("s_barrier")
    stamp(4)
    for q in range(4): A(f"ds_read_b128 v[{32+4*q}:{35+4*q}], v14 offset:{L_OW+q*64}")
    for q in range(4):
        A(f"s_waitcnt lgkmcnt({3-q})")
        for t in range(8):
            A(f"v_mfma_f32_16x16x32_bf16 v[{64+4*t}:{67+4*t}], v[{32+4*q}:{35+4*q}], v[{vW+32*q+4*t}:{vW+32*q+4*t+3}], v[{64+4*t}:{67+4*t}]")
    Dt = [64+4*t for t in range(8)]
    for e in range(4): A(f"v_permlane32_swap_b32 v{Dt[e]}, v{Dt[e+4]}")
    for e in range(4): A(f"v_add_f32 v{Dt[e]}, v{Dt[e]}, v{Dt[e+4]}")
    A(f"v_permlane16_swap_b32 v{Dt[0]}, v{Dt[2]}"); A(f"v_permlane16_swap_b32 v{Dt[1]}, v{Dt[3]}")
    A(f"v_add_f32 v16, v{Dt[0]}, v{Dt[2]}"); A(f"v_add_f32 v17, v{Dt[1]}, v{Dt[3]}")
    sanitize([16, 17], 7)
    A(f"buffer_store_dwordx2 v[16:17], v6, {srd(sWS)}, s{sReg} offen sc1")
    A("s_barrier")
    stamp(5)
    if PROF and not COOPQ:
        A("s_waitcnt vmcnt(0)")
        stamp(1)
    prof_store(0)
    A.label("L_end")
    A("s_endpgm")
    A('.section .rodata,"a"'); A(".p2align 6"); A(f".amdhsa_kernel {NAME}")
    A("  .amdhsa_next_free_vgpr 256"); A("  .amdhsa_next_free_sgpr 96"); A("  .amdhsa_accum_offset 256")
    A("  .amdhsa_group_segment_fixed_size 0"); A("  .amdhsa_kernarg_size 88"); A("  .amdhsa_user_sgpr_count 2")
    A("  .amdhsa_user_sgpr_kernarg_segment_ptr 1"); A("  .amdhsa_system_sgpr_workgroup_id_x 1")
    A("  .amdhsa_float_denorm_mode_32 3"); A("  .amdhsa_float_denorm_mode_16_64 3")
    A(".end_amdhsa_kernel")
    return A.finalize()

if __name__ == "__main__":
    import build
    kw = json.loads(sys.argv[2]) if len(sys.argv) > 2 else {}
    s = gen(**kw)
    open(sys.argv[1], "w").write(s)
    build.build(sys.argv[1])
```

```python
import re
TRANS = ("v_exp_f32","v_log_f32","v_rcp_f32","v_rsq_f32","v_sqrt_f32","v_sin_f32","v_cos_f32","v_rcp_iflag_f32")
VCC = [("s",106),("s",107)]
EXEC = [("x",0)]
def regs_of(tok):
    tok = tok.strip()
    neg = tok.lstrip("-")
    if neg.startswith("abs(") or neg.startswith("|"):
        neg = neg.replace("abs(","").replace(")","").replace("|","")
    tok = neg
    m = re.fullmatch(r"([vas])(\d+)", tok)
    if m: return [(m.group(1), int(m.group(2)))]
    m = re.fullmatch(r"([vas])\[(\d+):(\d+)\]", tok)
    if m: return [(m.group(1), i) for i in range(int(m.group(2)), int(m.group(3))+1)]
    if tok == "vcc": return list(VCC)
    if tok == "vcc_lo": return [VCC[0]]
    if tok == "vcc_hi": return [VCC[1]]
    if tok == "exec": return list(EXEC)
    if tok == "m0": return [("m",0)]
    return []
class Ins:
    def __init__(self, text):
        self.text = text
        t = text.split(";")[0].strip()
        self.op = t.split()[0] if t else ""
        rest = t[len(self.op):].strip()
        ops = []; depth = 0; cur = ""
        for ch in rest:
            if ch == "[": depth += 1
            if ch == "]": depth -= 1
            if ch == "," and depth == 0: ops.append(cur.strip()); cur = ""
            else: cur += ch
        if cur.strip(): ops.append(cur.strip())
        self.mods = ""
        if ops:
            parts = ops[-1].split(None, 1)
            if len(parts) == 2 and not parts[0].endswith("("):
                ops[-1] = parts[0]; self.mods = parts[1]
        self.ops = ops
        op = self.op
        self.base = re.sub(r"_(e32|e64|dpp|sdwa)$", "", op)
        self.valu = op.startswith("v_") and not op.startswith("v_mfma")
        self.mfma = op.startswith("v_mfma")
        self.salu = op.startswith("s_")
        self.vmem = op.startswith(("buffer_","global_","flat_"))
        self.ds = op.startswith("ds_")
        self.dl = op.startswith("v_dot")
        self.trans = self.base in TRANS
        self.dpp = op.endswith("_dpp") or "row_" in self.mods or "quad_perm" in self.mods or "wave_" in self.mods
        self.permlane = op.startswith("v_permlane")
        self.readlane = self.base in ("v_readlane_b32","v_readfirstlane_b32")
        self.nop = (int(ops[0],0)+1) if op == "s_nop" else 1
        d, s = self.defs_uses()
        self.defs = set(d); self.uses = set(s)
    def defs_uses(self):
        op, b, ops = self.op, self.base, self.ops
        R = [regs_of(o) for o in ops]
        flat = lambda L: [x for l in L for x in l]
        if self.mfma: return R[0], flat(R[1:4])
        if self.valu:
            if b.startswith("v_cmp"):  return R[0], flat(R[1:])
            if self.permlane and "swap" in b: return R[0]+R[1], R[0]+R[1]
            if b in ("v_fmac_f32","v_dot2c_f32_bf16","v_pk_fmac_f16","v_fmac_f64","v_writelane_b32"): return R[0], flat(R)
            if b in ("v_add_co_u32","v_sub_co_u32","v_subrev_co_u32"): return R[0]+R[1], flat(R[2:])
            if b in ("v_addc_co_u32","v_subb_co_u32"): return R[0]+R[1], flat(R[2:])
            if b == "v_cndmask_b32":
                u = flat(R[1:])
                if len(ops) == 3: u += VCC
                return R[0], u
            u = flat(R[1:])
            if self.dpp and ("bank_mask:0xf" not in self.mods or "row_mask:0xf" not in self.mods): pass
            return R[0], u
        if self.vmem:
            if "load" in op:
                if " lds" in " "+self.mods or op.startswith("global_load_lds"): return [], flat(R)
                return R[0], flat(R[1:])
            if "atomic" in op:
                if "sc0" in self.mods:
                    return R[0], flat(R)
                return [], flat(R)
            if "store" in op: return [], flat(R)
            return [], flat(R)
        if self.ds:
            if op.startswith(("ds_read","ds_bpermute","ds_permute","ds_swizzle")) or "_rtn" in op: return R[0], flat(R[1:])
            return [], flat(R)
        if self.salu:
            if op.startswith(("s_cmp","s_cbranch","s_branch","s_waitcnt","s_nop","s_barrier","s_endpgm","s_sleep","s_setprio","s_bitcmp")):
                return [], flat(R)
            d = list(R[0]) if R else []
            u = flat(R[1:])
            if "saveexec" in op: d += EXEC; u += EXEC
            return d, u
        return [], []
    def store_data(self):
        if self.vmem and "store" in self.op and ("x4" in self.op or "x3" in self.op):
            if self.op.startswith("buffer"): return set(regs_of(self.ops[0]))
            return set(regs_of(self.ops[1]))
        return set()
def mfma_passes(i):
    if "16x16x32" in i.op or "16x16x16" in i.op: return 4
    if "32x32x16" in i.op or "32x32x8" in i.op: return 8
    if "4x4x4" in i.op: return 2
    raise ValueError(i.op)
def required(p, c):
    w = 0
    isv = lambda r: r[0] in "va"
    pv = {r for r in p.defs if isv(r)}; ps = {r for r in p.defs if r[0] == "s"}
    cu = c.uses; cd = c.defs
    if p.valu:
        if c.dpp and pv & cu: w = max(w, 2)
        if c.permlane and pv & cu: w = max(w, 2)
        if c.readlane and pv & cu: w = max(w, 1)
        if c.mfma and pv & cu: w = max(w, 2)
        if p.trans and c.valu and not c.trans and pv & cu: w = max(w, 1)
        if p.trans and (c.vmem or c.ds) and pv & cu: w = max(w, 1)
        if ps:
            if c.valu and ps & cu:
                w = max(w, 4 if c.base in ("v_readlane_b32","v_writelane_b32") else 2)
            if c.vmem and ps & cu: w = max(w, 5)
            if c.salu and ps & cu: w = max(w, 1)
        if p.dl:
            if pv & (cu | cd):
                same = (p.base == c.base)
                if same and c.dl:
                    if c.base == "v_dot2c_f32_bf16": ab = set(regs_of(c.ops[1])) | set(regs_of(c.ops[2]))
                    else: ab = set(regs_of(c.ops[1])) | set(regs_of(c.ops[2]))
                    if pv & ab: w = max(w, 3)
                    if c.base != "v_dot2c_f32_bf16" and (pv & cd) and not (pv & set(regs_of(c.ops[3]))): w = max(w, 3)
                else: w = max(w, 3)
    if p.mfma:
        n = mfma_passes(p); tab = {2:(5,4,2,1),4:(8,6,0,3),8:(12,10,0,7)}[n]
        if c.mfma:
            ab = set(regs_of(c.ops[1])) | set(regs_of(c.ops[2])); cc = set(regs_of(c.ops[3]))
            if pv & ab: w = max(w, tab[0])
            if pv & cc and not (pv == cc and mfma_passes(c) == n): w = max(w, tab[1])
            if pv & cc and pv == cc: w = max(w, tab[2])
            if pv & c.defs and not (pv & cc): w = max(w, tab[0])
        elif c.valu or c.vmem or c.ds:
            if pv & (cu | cd): w = max(w, tab[0])
        pc = set(regs_of(p.ops[3]))
        if c.valu and pc & cd: w = max(w, tab[3])
    sd = p.store_data()
    if sd:
        if c.valu and sd & cd: w = max(w, 2)
        elif (c.vmem or c.ds or c.mfma) and sd & cd: w = max(w, 1)
    return w
class Asm:
    def __init__(self): self.items = []
    def __call__(self, *lines):
        for line in lines:
            for l in line.split("\n"):
                l = l.strip()
                if l: self.items.append(l)
    def label(self, name): self.items.append(name + ":")
    def finalize(self, maxw=12):
        items = list(self.items)
        ninserted = 0
        cache = {}
        def mk(it):
            if it not in cache: cache[it] = Ins(it)
            return cache[it]
        start = 0
        while True:
            kinds = []
            for it in items:
                if it.endswith(":") and not it.startswith(";"): kinds.append(("L", it[:-1]))
                elif it.startswith((".", ";")): kinds.append(("D", it))
                else: kinds.append(("I", mk(it)))
            labels = {k[1]: i for i, k in enumerate(kinds) if k[0] == "L"}
            srcs = {}
            for i, k in enumerate(kinds):
                if k[0] == "I" and k[1].op.startswith(("s_cbranch","s_branch")):
                    srcs.setdefault(labels[k[1].ops[0]], []).append(i)
            def preds(i):
                out = []; j = i - 1
                while j >= 0:
                    k = kinds[j]
                    if k[0] == "L": out += srcs.get(j, [])
                    elif k[0] == "I":
                        if k[1].op not in ("s_branch","s_endpgm","s_setpc_b64"): out.append(j)
                        break
                    j -= 1
                return out
            fix = None
            for i, k in enumerate(kinds):
                if k[0] != "I": continue
                c = k[1]
                if c.salu and not c.uses: continue
                need = 0
                stack = [(p, 0) for p in preds(i)]; seen = {}
                while stack:
                    p, dist = stack.pop()
                    if dist >= maxw: continue
                    if p in seen and seen[p] <= dist: continue
                    seen[p] = dist
                    pi = kinds[p][1]
                    r = required(pi, c)
                    if r > dist: need = max(need, r - dist)
                    for q in preds(p): stack.append((q, dist + pi.nop))
                if need:
                    fix = (i, need); break
            if fix is None: break
            i, need = fix
            items.insert(i, f"s_nop {need-1}")
            ninserted += 1
        self.ninserted = ninserted
        return "\n".join(items) + "\n"

def check_async(text):
    vm = []; lg = []; warns = []
    for ln, it in enumerate(text.split("\n")):
        it = it.strip()
        if not it or it.startswith((".", ";")) or it.endswith(":"): continue
        i = Ins(it)
        if i.op in ("s_endpgm", "s_branch", "s_setpc_b64"):
            vm = []; lg = []; continue
        if i.op == "s_waitcnt":
            m = re.search(r"vmcnt\((\d+)\)", it)
            if m:
                n = int(m.group(1))
                while len(vm) > n: vm.pop(0)
            m = re.search(r"lgkmcnt\((\d+)\)", it)
            if m:
                n = int(m.group(1))
                if n == 0: lg = []
                else:
                    while len(lg) > n: lg.pop(0)
            continue
        pend = set(); pollp = set()
        for e, poll in vm:
            if poll: pollp |= e
            else: pend |= e
        for e in lg: pend |= e
        touched = {r for r in (i.defs | i.uses) if r[0] in "va"}
        bad = touched & pend
        if not (i.vmem and "load" in i.op): bad |= {r for r in i.defs if r[0] in "va"} & pollp
        if bad:
            warns.append((ln+1, it, sorted(bad)))
        if i.vmem:
            vm.append(({r for r in i.defs if r[0] in "va"}, "sc1" in i.mods))
        elif i.ds:
            lg.append({r for r in i.defs if r[0] in "va"})
        elif i.op.startswith(("s_load", "s_memrealtime", "s_memtime")):
            lg.append(set())
    return warns
```

```python
import sys, json
from asmlib import Asm
NAME = "sequential_preLN__gqa_block_cached__dense_activation_relu__decode_kernel"

WS_Y  = 0x00000
WS_H  = 0x80000
WS_H1 = 0x8A000
H1_STRIDE = 11264
WS_ST = 0x98000
WS_W1T = 0x100000
WS_W2T = 0x280000
W2T_STRIDE = 43*1024
WS_PROF = 0x400000
WS_EP = 0xA0000
WS_QX = 0x600000
WS_SIZE = 0x700000
L_QP = 0; L_OW = 2048; L_STAT = 4096; L_FW = 4128
L_CNT = 4160; L_CNT2 = 4164; L_ROLE = 4168; L_RR = 4352; L_RED = 4608; L_RED2 = L_RED + 4096; L_RED3 = L_RED2 + 2048
L_SC = 16384; L_STG = 32768; STG_W = 12288; RS = 288
LDS_BYTES = L_STG + 4*STG_W
POISON = -1
SPIN_LIMIT = 1 << 18

def brev4(n): return int(f"{n:04b}"[::-1], 2)

def gen(D=6, PROF=False, PACE=4, DBG=0, WQF='', WOF='', WFF='', NOWO=0, NOSTG=0, D0=5, SLP1=4, SLP2=4, SLPR=0, REPACK=0, NR=0, D2=12, NT2=0, ROTK=0, ROTQ=0, HB=16, G=2, WQP=0, TLBV=0, PACED=0, I0=16, COOPQ=0, QXS='sc1', QXL='sc1', NOQ=0, PD=1, STG=4, SLB=0, DYN=0, DV=0):
    A = Asm()
    R = 16
    A(f"; @launch grid=(256,1,1) block=(512,1,1) lds={LDS_BYTES}")
    A('.amdgcn_target "amdgcn-amd-amdhsa--gfx950"')
    A(".text"); A(f".globl {NAME}"); A(".p2align 8"); A(f".type {NAME},@function"); A.label(NAME)
    sK, sV, sC, sWS, sT = 4, 8, 12, 16, 20
    sM0, sM1 = 24, 26
    sH, sB, sHalf, sReg = 28, 29, 30, 31
    sOff, sTile, sU = 32, 33, 34
    st0, st1, st2, st3 = 58, 59, 60, 61
    sJ = 62
    sCnt = 63
    sP = 64
    pX, pK, pV, pWQ, pWO, pW1, pW2, pOUT, pDBG, pWS = 36, 38, 40, 42, 44, 48, 50, 52, 54, 56
    srd = lambda s: f"s[{s}:{s+3}]"
    nst = [0]
    def stamp(i):
        if PROF: A(f"s_memrealtime s[{sP+2*i}:{sP+2*i+1}]")
    def prof_store(slot_wave):
        if not PROF: return
        A("s_waitcnt vmcnt(0) lgkmcnt(0)")
        A(f"s_lshl_b32 s{st0}, s2, 3"); A(f"s_add_u32 s{st0}, s{st0}, s3"); A(f"s_lshl_b32 s{st0}, s{st0}, 6")
        A(f"s_add_u32 s{st0}, s{st0}, {WS_PROF}")
        for i in range(8):
            A(f"v_mov_b32 v{40+i}, s{sP+2*i}")
        A(f"s_getreg_b32 s{st1}, hwreg(HW_REG_XCC_ID)"); A(f"s_getreg_b32 s{st2}, hwreg(HW_REG_HW_ID)")
        A(f"v_mov_b32 v50, s{st1}"); A(f"v_mov_b32 v51, s88")
        A(f"v_mov_b32 v48, 0")
        A("s_mov_b64 s[60:61], exec"); A("s_mov_b64 exec, 1")
        A(f"buffer_store_dwordx4 v[40:43], v48, {srd(sWS)}, s{st0} offen")
        A(f"buffer_store_dwordx4 v[44:47], v48, {srd(sWS)}, s{st0} offen offset:16")
        A(f"buffer_store_dwordx2 v[50:51], v48, {srd(sWS)}, s{st0} offen offset:32")
        A("s_mov_b64 exec, s[60:61]")
    def mk_srd(s, p, size, off_sgpr=None, off_imm=None):
        if off_sgpr is not None:
            A(f"s_add_u32 s{s}, s{p}, s{off_sgpr}"); A(f"s_addc_u32 s{s+1}, s{p+1}, 0")
        elif off_imm is not None:
            A(f"s_add_u32 s{s}, s{p}, {off_imm}"); A(f"s_addc_u32 s{s+1}, s{p+1}, 0")
        else:
            A(f"s_mov_b32 s{s}, s{p}"); A(f"s_mov_b32 s{s+1}, s{p+1}")
        A(f"s_mov_b32 s{s+2}, {size}")
        A(f"s_mov_b32 s{s+3}, 0x20000")
    def wave_allreduce(op, x, t):
        for k in (8, 4, 2, 1):
            A(f"{op}_dpp v{x}, v{x}, v{x} row_ror:{k} row_mask:0xf bank_mask:0xf")
        A(f"v_mov_b32 v{t}, v{x}"); A(f"v_permlane16_swap_b32 v{x}, v{t}"); A(f"{op} v{x}, v{x}, v{t}")
        A(f"v_mov_b32 v{t}, v{x}"); A(f"v_permlane32_swap_b32 v{x}, v{t}"); A(f"{op} v{x}, v{x}, v{t}")
    def round_bf16(x, t=None):
        A(f"v_cvt_pk_bf16_f32 v{x}, v{x}, v{x}")
        A(f"v_and_b32 v{x}, 0xffff0000, v{x}")
    def acc_reduce(a):
        for e in range(4):
            A(f"v_permlane32_swap_b32 v{a+e}, v{a+e+4}")
        for e in range(4):
            A(f"v_add_f32 v{a+e}, v{a+e}, v{a+e+4}")
        A(f"v_permlane16_swap_b32 v{a}, v{a+2}")
        A(f"v_permlane16_swap_b32 v{a+1}, v{a+3}")
        A(f"v_add_f32 v{a}, v{a}, v{a+2}")
        A(f"v_add_f32 v{a+1}, v{a+1}, v{a+3}")
    def sanitize(regs, repl_sgpr, tmpmask="vcc"):
        for r in regs:
            A(f"v_cmp_eq_u32 vcc, -1, v{r}")
            A(f"v_cndmask_b32 v{r}, v{r}, v{repl_sgpr}, vcc")
    def spin_check(regs, tmp, loop, done, fail=None):
        rs = list(regs)
        if len(rs) == 1:
            m = rs[0]
        else:
            A(f"v_max_u32 v{tmp}, v{rs[0]}, v{rs[1]}"); rs = rs[2:]
            while len(rs) >= 2:
                A(f"v_max3_u32 v{tmp}, v{tmp}, v{rs[0]}, v{rs[1]}"); rs = rs[2:]
            if rs: A(f"v_max_u32 v{tmp}, v{tmp}, v{rs[0]}")
            m = tmp
        A(f"v_cmp_eq_u32 vcc, -1, v{m}")
        A(f"s_cbranch_vccz {done}")
        A(f"s_sub_u32 s{sCnt}, s{sCnt}, 1")
        A(f"s_cbranch_scc0 {loop}")
        A.label(done)

    stamp(0)
    A("s_cmp_ge_u32 s2, 256")
    A("s_cbranch_scc1 L_end")
    A("s_load_dwordx16 s[36:51], s[0:1], 0")
    A("s_load_dwordx4 s[52:55], s[0:1], 64")
    A("s_load_dwordx2 s[56:57], s[0:1], 80")
    A("v_lshrrev_b32 v1, 6, v0")
    A("v_and_b32 v2, 63, v0")
    A(f"s_and_b32 s{st0}, s2, 7")
    A("v_readfirstlane_b32 s3, v1")
    A(f"s_lshr_b32 s{st1}, s2, 3")
    A(f"s_lshr_b32 s{sH}, s{st1}, 3"); A(f"s_lshl_b32 s{sH}, s{sH}, 3"); A(f"s_add_u32 s{sH}, s{sH}, s{st0}")
    A(f"s_and_b32 s{st1}, s{st1}, 7")
    A(f"s_lshr_b32 s{sB}, s{st1}, 1")
    A(f"s_and_b32 s{sHalf}, s{st1}, 1")
    A(f"s_lshl_b32 s{sReg}, s{sB}, 5"); A(f"s_add_u32 s{sReg}, s{sReg}, s{sH}")
    A(f"s_lshl_b32 s{sReg}, s{sReg}, 1"); A(f"s_add_u32 s{sReg}, s{sReg}, s{sHalf}")
    A(f"s_lshl_b32 s{sJ}, s{sH}, 1"); A(f"s_add_u32 s{sJ}, s{sJ}, s{sHalf}")
    A("s_cmp_ge_u32 s3, 4")
    A("s_cbranch_scc1 L_helper")

    vLane, vOff = 2, 3
    vQ = 4; vAcc = 8; vP = 16; vtA, vtB = 32, 33; vM, vL, vSC, vPn, vPlo, vPhi = 34, 35, 36, 37, 38, 39
    vRing = 64
    ring = lambda i: vRing + 4*(i % R)
    A("s_getpc_b64 s[58:59]")
    A.label("L_pc")
    A(f"s_sub_u32 s58, s58, L_pc-{NAME}"); A("s_subb_u32 s59, s59, 0")
    A(f"v_lshlrev_b32 v40, 7, v{vLane}")
    A(f"s_lshl_b32 s{st2}, s3, 13")
    A(f"v_add_u32 v40, s{st2}, v40")
    A(f"v_min_u32 v40, L_end-{NAME}, v40")
    A("global_load_dword v41, v40, s[58:59]")
    A(f"v_lshlrev_b32 v{vOff}, 4, v{vLane}")
    A(f"s_mul_i32 s{st0}, s3, {1024*G}")
    A(f"v_add_u32 v{vOff}, s{st0}, v{vOff}")
    A(f"s_lshr_b32 s{st0}, s{sReg}, 1"); A(f"s_lshl_b32 s{st0}, s{st0}, 21")
    A(f"s_lshl_b32 s{st3}, s{sHalf}, {HB}"); A(f"s_add_u32 s{st0}, s{st0}, s{st3}")
    A(f"s_sub_u32 s{st3}, {1<<21 if HB < 20 else 1<<20}, s{st3}") if HB < 20 else A(f"s_mov_b32 s{st3}, {1<<20}")
    A("s_waitcnt lgkmcnt(0)")
    if COOPQ: A(f"s_load_dwordx2 s[86:87], s[{pWS}:{pWS+1}], {WS_EP}")
    mk_srd(sK, pK, 1 << 20, off_sgpr=st0)
    A(f"s_mov_b32 s{sK+2}, s{st3}")
    sRot = 35
    if ROTK:
        A(f"s_mul_i32 s{sRot}, s2, {ROTK}"); A(f"s_and_b32 s{sRot}, s{sRot}, 255"); A(f"s_lshl_b32 s{sRot}, s{sRot}, 12")
    else:
        A(f"s_mov_b32 s{sRot}, 0")
    A(f"s_mov_b32 s{sOff}, s{sRot}")
    vX = 160
    def sload(i, s, extra=False):
        dst = vX + 4*(i-16) if extra else ring(i)
        A(f"buffer_load_dwordx4 v[{dst}:{dst+3}], v{vOff}, {srd(s)}, s{sOff} offen nt")
        p_ = i % 16
        def addr(p):
            o = (p//G)*4*G*1024 + (p%G)*1024
            return o if HB >= 20 else ((o >> HB) << (HB+1)) | (o & ((1 << HB)-1))
        assert HB >= 20 or (1 << HB) <= 65536
        inc = addr(p_+1) - addr(p_) if p_ < 15 else (addr(16) - addr(15))
        A(f"s_add_u32 s{sOff}, s{sOff}, {inc}")
        if ROTK: A(f"s_and_b32 s{sOff}, s{sOff}, 0xfffff")
    for i in range(D0): sload(i, sK)
    A("s_barrier")
    if COOPQ: assert PACED
    if PACED:
        for i in range(D0, I0):
            if i >= PACED: A(f"s_waitcnt vmcnt({PACED-1})")
            sload(i, sK, extra=(i >= 16))
    elif NR == 0:
        A("s_barrier")
        for i in range(D0, R): sload(i, sK)
    else:
        rest = list(range(D0, R))
        for r_ in range(NR):
            lo = len(rest)*r_//NR; hi = len(rest)*(r_+1)//NR
            for i in rest[lo:hi]: sload(i, sK)
            if r_ < NR-1: A("s_barrier")
    mk_srd(sV, pV, 1 << 20, off_sgpr=st0)
    A(f"s_mov_b32 s{sV+2}, s{st3}")
    for k in range(4): A(f"s_mov_b32 s{sC+k}, s{sK+k}")
    mk_srd(sWS, pWS, WS_SIZE)
    A(f"s_mov_b32 s{sM0}, 0xaaaaaaaa"); A(f"s_mov_b32 s{sM0+1}, 0xaaaaaaaa")
    A(f"s_mov_b32 s{sM1}, 0xcccccccc"); A(f"s_mov_b32 s{sM1+1}, 0xcccccccc")
    A(f"s_lshl_b32 s{st2}, s3, 12"); A(f"s_add_u32 s{st2}, s{st2}, {L_SC}")
    A(f"v_lshlrev_b32 v{vSC}, 2, v{vLane}"); A(f"v_add_u32 v{vSC}, s{st2}, v{vSC}")
    A(f"v_mov_b32 v{vM}, 0xff7fffff")
    A(f"v_and_b32 v42, 15, v{vLane}"); A("v_lshlrev_b32 v42, 5, v42")
    if DBG & 4:
        A(f"s_waitcnt vmcnt({16-D0})"); stamp(6); A("s_waitcnt vmcnt(0)"); stamp(7)
    stamp(1)
    A("s_barrier")
    vqt = 128
    for u in range(4):
        A(f"ds_read_b128 v[{vqt+8*u}:{vqt+8*u+3}], v42 offset:{L_QP+u*512}")
        A(f"ds_read_b128 v[{vqt+8*u+4}:{vqt+8*u+7}], v42 offset:{L_QP+u*512+16}")
    A("s_waitcnt lgkmcnt(0)")
    for e in range(8):
        A(f"v_add_f32 v{vqt+e}, v{vqt+e}, v{vqt+8+e}")
        A(f"v_add_f32 v{vqt+16+e}, v{vqt+16+e}, v{vqt+24+e}")
    for e in range(8): A(f"v_add_f32 v{vqt+e}, v{vqt+e}, v{vqt+16+e}")
    for r in range(4): A(f"v_cvt_pk_bf16_f32 v{vQ+r}, v{vqt+2*r}, v{vqt+2*r+1}")
    if DBG & 1:
        A("s_cmp_lg_u32 s3, 0"); A("s_cbranch_scc1 L_dbgq")
        A(f"s_lshl_b32 s{st2}, s{sReg}, 8"); A(f"s_add_u32 s{st2}, s{st2}, {WS_PROF+0x80000}")
        A(f"v_lshlrev_b32 v40, 4, v{vLane}")
        A("s_mov_b64 exec, 0xffff")
        A(f"buffer_store_dwordx4 v[{vQ}:{vQ+3}], v40, {srd(sWS)}, s{st2} offen")
        A("s_mov_b64 exec, -1")
        A("s_waitcnt vmcnt(0)")
        A.label("L_dbgq")
    stamp(2)
    vW0, vW1, vS = 44, 45, 46
    def k_tail_ops():
        P = lambda n: vP + n
        g = []
        g.append([f"v_add_f32_dpp v{P(14)}, v{P(14)}, v{P(14)} row_ror:8 row_mask:0xf bank_mask:0x3",
                  f"v_add_f32_dpp v{P(14)}, v{P(15)}, v{P(15)} row_ror:8 row_mask:0xf bank_mask:0xc"])
        g.append([f"v_add_f32_dpp v{P(12)}, v{P(12)}, v{P(12)} row_shl:4 row_mask:0xf bank_mask:0x5",
                  f"v_add_f32_dpp v{P(12)}, v{P(14)}, v{P(14)} row_shr:4 row_mask:0xf bank_mask:0xa"])
        g.append([f"v_add_f32_dpp v{vtA}, v{P(8)}, v{P(8)} quad_perm:[2,3,0,1] row_mask:0xf bank_mask:0xf",
                  f"v_add_f32_dpp v{vtB}, v{P(12)}, v{P(12)} quad_perm:[2,3,0,1] row_mask:0xf bank_mask:0xf",
                  f"v_cndmask_b32 v{vW1}, v{vtA}, v{vtB}, s[{sM1}:{sM1+1}]"])
        g.append([f"v_add_f32_dpp v{vtA}, v{vW0}, v{vW0} quad_perm:[1,0,3,2] row_mask:0xf bank_mask:0xf",
                  f"v_add_f32_dpp v{vtB}, v{vW1}, v{vW1} quad_perm:[1,0,3,2] row_mask:0xf bank_mask:0xf",
                  f"v_cndmask_b32 v{vS}, v{vtA}, v{vtB}, s[{sM0}:{sM0+1}]"])
        g.append([f"v_cvt_pk_bf16_f32 v{vS}, v{vS}, v{vS}", f"v_and_b32 v{vS}, 0xffff0000, v{vS}"])
        g.append([f"v_mul_f32 v{vS}, 0x3db504f3, v{vS}", f"v_cvt_pk_bf16_f32 v{vS}, v{vS}, v{vS}"])
        g.append([f"v_and_b32 v{vS}, 0xffff0000, v{vS}", f"v_max_f32 v{vM}, v{vM}, v{vS}",
                  f"ds_write_b32 v{vSC}, v{vS}", f"v_add_u32 v{vSC}, 256, v{vSC}"])
        return g
    def k_tile(first, pt=0):
        P = lambda n: vP + n
        def redA(k):
            A(f"v_add_f32_dpp v{P(2*k)}, v{P(2*k)}, v{P(2*k)} row_ror:8 row_mask:0xf bank_mask:0x3")
            A(f"v_add_f32_dpp v{P(2*k)}, v{P(2*k+1)}, v{P(2*k+1)} row_ror:8 row_mask:0xf bank_mask:0xc")
        def redB(m):
            A(f"v_add_f32_dpp v{P(4*m)}, v{P(4*m)}, v{P(4*m)} row_shl:4 row_mask:0xf bank_mask:0x5")
            A(f"v_add_f32_dpp v{P(4*m)}, v{P(4*m+2)}, v{P(4*m+2)} row_shr:4 row_mask:0xf bank_mask:0xa")
        def redC0():
            A(f"v_add_f32_dpp v{vtA}, v{P(0)}, v{P(0)} quad_perm:[2,3,0,1] row_mask:0xf bank_mask:0xf")
            A(f"v_add_f32_dpp v{vtB}, v{P(4)}, v{P(4)} quad_perm:[2,3,0,1] row_mask:0xf bank_mask:0xf")
            A(f"v_cndmask_b32 v{vW0}, v{vtA}, v{vtB}, s[{sM1}:{sM1+1}]")
        tail = [] if (first and pt == 0) else k_tail_ops()
        for n in range(16):
            pos = 16*pt + n
            if not first: A(f"s_waitcnt vmcnt({D-1})")
            else:
                younger = max(0, I0 - 1 - pos) + max(0, min(pos, 1 << 30) - (I0 - D)) if pos < I0 else D-1
                A(f"s_waitcnt vmcnt({younger})")
            if (not first) or pos + D >= I0:
                if n == 16 - D and not first:
                    A(f"s_cmp_eq_u32 s{sTile}, 15")
                    A(f"s_cselect_b32 s{sC}, s{sV}, s{sC}")
                    A(f"s_cselect_b32 s{sC+1}, s{sV+1}, s{sC+1}")
                    A(f"s_cselect_b32 s{sOff}, s{sRot}, s{sOff}")
                sload(n + D, sC)
            r = vX + 4*n if (first and pt == 1 and pos < I0) else ring(n)
            A(f"v_dot2_f32_bf16 v{P(n)}, v{r}, v{vQ}, 0")
            for k in range(1, 4): A(f"v_dot2_f32_bf16 v{P(n)}, v{r+k}, v{vQ+k}, v{P(n)}")
            if n < len(tail):
                for x in tail[n]: A(x)
            if n >= 2 and n % 2 == 0: redA((n-2)//2)
            if n in (5, 9, 13): redB((n-5)//4)
            if n == 11: redC0()
    A(f"s_mov_b32 s{sTile}, 0")
    k_tile(True, 0)
    if I0 > 16:
        k_tile(True, 1)
    A(f"s_mov_b32 s{sTile}, {2 if I0 > 16 else 1}")
    A.label("L_kloop")
    k_tile(False)
    A(f"s_add_u32 s{sTile}, s{sTile}, 1")
    if PROF and (DBG & 16):
        A(f"s_cmp_lg_u32 s{sTile}, 3"); A("s_cbranch_scc1 L_nk1"); stamp(1); A.label("L_nk1")
        A(f"s_cmp_lg_u32 s{sTile}, 6"); A("s_cbranch_scc1 L_nk2"); stamp(6); A.label("L_nk2")
        A(f"s_cmp_lg_u32 s{sTile}, 11"); A("s_cbranch_scc1 L_nk3"); stamp(7); A.label("L_nk3")
    A(f"s_cmp_lt_u32 s{sTile}, 16")
    A("s_cbranch_scc1 L_kloop")
    for grp in k_tail_ops():
        for x in grp: A(x)
    stamp(3)
    A(f"v_subrev_u32 v{vSC}, 4096, v{vSC}")
    A("s_waitcnt lgkmcnt(0)")
    for t in range(16): A(f"ds_read_b32 v{vP+t}, v{vSC} offset:{t*256}")
    wave_allreduce("v_max_f32", vM, vtA)
    A(f"v_mul_f32 v{vtB}, 0xbfb8aa3b, v{vM}")
    A(f"s_mov_b32 s{st0}, 0x3fb8aa3b")
    A("s_waitcnt lgkmcnt(0)")
    for t in range(16): A(f"v_fma_f32 v{vP+t}, v{vP+t}, s{st0}, v{vtB}")
    for t in range(16): A(f"v_exp_f32 v{vP+t}, v{vP+t}")
    A(f"v_add_f32 v{vL}, v{vP}, v{vP+1}")
    for t in range(2, 16): A(f"v_add_f32 v{vL}, v{vL}, v{vP+t}")
    for t in range(16): A(f"v_cvt_pk_bf16_f32 v{vP+t}, v{vP+t}, v{vP+t}")
    for t in range(16): A(f"ds_write_b32 v{vSC}, v{vP+t} offset:{t*256}")
    wave_allreduce("v_add_f32", vL, vtA)
    A(f"v_mov_b32 v40, v{vM}"); A(f"v_mov_b32 v41, v{vL}")
    A("v_mov_b32 v43, 0x7fc00000")
    sanitize([40, 41], 43)
    A(f"s_lshl_b32 s{st0}, s3, 3"); A(f"s_add_u32 s{st0}, s{st0}, {L_STAT}"); A(f"v_mov_b32 v42, s{st0}")
    A("s_mov_b64 exec, 1"); A("ds_write_b64 v42, v[40:41]"); A("s_mov_b64 exec, -1")
    A(f"v_mov_b32 v{vPn}, v{vP}")
    for e in range(8): A(f"v_mov_b32 v{vAcc+e}, 0")
    A(f"s_mov_b32 s{sTile}, 0")
    def pre_end():
        A(f"v_and_b32 v40, 15, v{vLane}"); A("v_lshlrev_b32 v40, 4, v40")
        A(f"v_lshrrev_b32 v41, 4, v{vLane}"); A("v_lshlrev_b32 v41, 2, v41")
        A("v_add_u32 v40, v40, v41")
        A(f"s_lshl_b32 s{st0}, s3, 8"); A(f"s_add_u32 s{st0}, s{st0}, {L_OW}"); A(f"v_add_u32 v40, s{st0}, v40")
        A(f"s_lshl_b32 s{st0}, s3, 2"); A(f"s_add_u32 s{st0}, s{st0}, {L_FW}"); A(f"v_mov_b32 v42, s{st0}")
        A(f"s_and_b32 s{st0}, s2, 7"); A(f"s_lshl_b32 s{st0}, s{st0}, 2"); A(f"s_add_u32 s{st0}, s{st0}, 32"); A(f"v_mov_b32 v44, s{st0}")
        A("v_mov_b32 v46, 1")
        A(f"s_mov_b32 s{sCnt}, {SPIN_LIMIT}")
        A.label("L_fwspin")
        A("ds_read_b32 v43, v42"); A("s_waitcnt lgkmcnt(0)")
        spin_check([43], 47, "L_fwspin", "L_fwok")
    def v_loop(label, depth, tend):
        A.label(label)
        A(f"v_and_b32 v{vPlo}, 0xffff, v{vPn}")
        A(f"v_and_b32 v{vPhi}, 0xffff0000, v{vPn}")
        A(f"v_add_u32 v{vSC}, 256, v{vSC}")
        A(f"ds_read_b32 v{vPn}, v{vSC}")
        for n in range(16):
            A(f"s_waitcnt vmcnt({depth-1})")
            r = ring(n); bl = brev4(n)
            if ROTK and n == 16 - depth and tend == 16:
                A(f"s_cmp_eq_u32 s{sTile}, 15"); A(f"s_cselect_b32 s{sC+2}, 0, s{sC+2}")
            sload(n + depth, sC)
            for k in range(4):
                A(f"v_dot2c_f32_bf16_dpp v{vAcc+2*k}, v{vPlo}, v{r+k} row_newbcast:{bl} row_mask:0xf bank_mask:0xf")
                A(f"v_dot2c_f32_bf16_dpp v{vAcc+2*k+1}, v{vPhi}, v{r+k} row_newbcast:{bl} row_mask:0xf bank_mask:0xf")
        A("s_waitcnt lgkmcnt(0)")
        A(f"s_add_u32 s{sTile}, s{sTile}, 1")
        if PROF and (DBG & 8) and label == "L_vloop":
            A(f"s_cmp_lg_u32 s{sTile}, 1"); A("s_cbranch_scc1 L_nost"); stamp(1); A.label("L_nost")
        A(f"s_cmp_lt_u32 s{sTile}, {tend}")
        A(f"s_cbranch_scc1 {label}")
    DVV = DV if DV else D
    assert DVV >= D
    for i_ in range(D, DVV): sload(i_, sC)
    if NT2 == 0:
        v_loop("L_vloop", DVV, 16)
    else:
        v_loop("L_vloop", DVV, 16 - NT2)
        pre_end()
        for i_ in range(DVV, D2): sload(i_, sC)
        v_loop("L_vloop2", D2, 16)
    if NT2 == 0: pre_end()
    stamp(4)
    if DYN:
        A("s_cmp_lg_u32 s3, 0"); A("s_cbranch_scc1 L_notick")
        A("s_mov_b64 exec, 1"); A(f"global_atomic_add v45, v44, v46, s[{pDBG}:{pDBG+1}] sc0"); A("s_mov_b64 exec, -1")
        A.label("L_notick")
    acc_reduce(vAcc)
    A(f"v_mul_f32 v{vAcc}, v{vAcc}, v43"); A(f"v_mul_f32 v{vAcc+1}, v{vAcc+1}, v43")
    A(f"v_cvt_pk_bf16_f32 v{vAcc}, v{vAcc}, v{vAcc+1}")
    A(f"ds_write_b32 v40, v{vAcc}")
    A("s_waitcnt lgkmcnt(0)")
    A("s_barrier")
    stamp(5)
    A("s_waitcnt vmcnt(0)")
    sVid = 88
    if DYN:
        A("s_cmp_lg_u32 s3, 0"); A("s_cbranch_scc1 L_norole")
        A(f"v_readfirstlane_b32 s{st0}, v45")
        A(f"s_and_b32 s{st1}, s2, 7")
        A(f"s_lshl_b32 s{st2}, s{st0}, 3"); A(f"s_add_u32 s{st2}, s{st2}, s{st1}")
        A(f"s_mov_b32 s{sVid}, 255")
        A(f"s_sub_u32 s{st3}, s{st2}, {8*15}"); A(f"s_cmp_lt_u32 s{st0}, 23"); A(f"s_cselect_b32 s{sVid}, s{st3}, s{sVid}")
        A(f"s_add_u32 s{st3}, s{st2}, {64-8*4}"); A(f"s_cmp_lt_u32 s{st0}, 15"); A(f"s_cselect_b32 s{sVid}, s{st3}, s{sVid}")
        A(f"s_add_u32 s{st3}, s{st2}, 152"); A(f"s_cmp_lt_u32 s{st0}, 4"); A(f"s_cselect_b32 s{sVid}, s{st3}, s{sVid}")
        A(f"v_mov_b32 v44, {L_ROLE}"); A(f"v_mov_b32 v45, s{sVid}")
        A("s_mov_b64 exec, 1"); A("ds_write_b32 v44, v45"); A("s_mov_b64 exec, -1")
        A("s_waitcnt lgkmcnt(0)")
        A.label("L_norole")
    A("s_barrier")
    if DYN:
        A(f"v_mov_b32 v44, {L_ROLE}"); A("ds_read_b32 v45, v44"); A("s_waitcnt lgkmcnt(0)")
        A(f"v_readfirstlane_b32 s{sVid}, v45")
    else:
        A(f"s_mov_b32 s{sVid}, s2")
    A(f"s_cmp_lt_u32 s{sVid}, 64"); A("s_cbranch_scc1 L_red")
    A(f"s_cmp_lt_u32 s{sVid}, 152"); A("s_cbranch_scc1 L_ffn1")
    A(f"s_cmp_lt_u32 s{sVid}, 184"); A("s_cbranch_scc1 L_ffn2")
    A.label("L_sdone")
    prof_store(0)
    A("s_endpgm")

    A.label("L_red")
    A(f"s_lshl_b32 s{st0}, s88, 13"); A(f"s_lshl_b32 s{st1}, s3, 11"); A(f"s_add_u32 s{st0}, s{st0}, s{st1}")
    A(f"v_lshlrev_b32 v3, 4, v{vLane}")
    A(f"s_lshr_b32 s{st3}, s88, 4"); A(f"s_lshl_b32 s{st1}, s{st3}, 10")
    A(f"s_and_b32 s{st2}, s88, 15"); A(f"s_lshl_b32 s{sTile}, s{st2}, 6"); A(f"s_add_u32 s{st1}, s{st1}, s{sTile}")
    A(f"v_and_b32 v4, 7, v{vLane}"); A("v_lshlrev_b32 v4, 2, v4")
    A(f"v_lshrrev_b32 v5, 5, v{vLane}"); A("v_lshlrev_b32 v5, 5, v5"); A("v_add_u32 v4, v4, v5")
    mk_srd(sT, pX, 4096)
    A(f"buffer_load_dword v6, v4, {srd(sT)}, s{st1} offen")
    A(f"v_bfe_u32 v5, v{vLane}, 3, 2"); A("v_lshlrev_b32 v5, 12, v5"); A("v_add_u32 v7, v4, v5")
    A(f"s_lshl_b32 s{st2}, s{st2}, 8"); A(f"s_lshl_b32 s{st3}, s{st3}, 6"); A(f"s_add_u32 s{st1}, s{st2}, s{st3}")
    A(f"s_add_u32 s{st1}, s{st1}, {WS_H}")
    A(f"v_lshlrev_b32 v9, 1, v4")
    A(f"s_lshl_b32 s{st2}, s3, 7"); A(f"v_add_u32 v10, s{st2}, v9")
    A(f"s_mov_b32 s{sCnt}, {SPIN_LIMIT}")
    def red_issue():
        A(f"buffer_load_dwordx4 v[16:19], v3, {srd(sWS)}, s{st0} offen sc1")
    A(f"buffer_load_dwordx4 v[16:19], v3, {srd(sWS)}, s{st0} offen sc1")
    A(f"buffer_load_dwordx4 v[20:23], v3, {srd(sWS)}, s{st0} offen offset:1024 sc1")
    for d_ in range(PD-1):
        A(f"s_sleep {STG}")
        A(f"buffer_load_dwordx4 v[16:19], v3, {srd(sWS)}, s{st0} offen sc1")
        A(f"buffer_load_dwordx4 v[20:23], v3, {srd(sWS)}, s{st0} offen offset:1024 sc1")
    A.label("L_redspin")
    A(f"s_waitcnt vmcnt({2*(PD-1)})")
    A("v_max3_u32 v8, v16, v17, v18"); A("v_max3_u32 v11, v20, v21, v22")
    A("v_max_u32 v8, v8, v19"); A("v_max_u32 v11, v11, v23")
    A("v_cmp_eq_u32 s[80:81], -1, v8"); A("v_cmp_eq_u32 s[82:83], -1, v11")
    A("s_or_b64 s[84:85], s[80:81], s[82:83]")
    A("s_cbranch_scc0 L_redok")
    if SLPR: A(f"s_sleep {SLPR}")
    A("s_or_b32 s80, s80, 1"); A("s_or_b32 s82, s82, 1")
    A("s_mov_b64 exec, s[80:81]")
    A(f"buffer_load_dwordx4 v[16:19], v3, {srd(sWS)}, s{st0} offen sc1")
    A("s_mov_b64 exec, s[82:83]")
    A(f"buffer_load_dwordx4 v[20:23], v3, {srd(sWS)}, s{st0} offen offset:1024 sc1")
    A("s_mov_b64 exec, -1")
    A(f"s_sub_u32 s{sCnt}, s{sCnt}, 1"); A("s_cbranch_scc0 L_redspin")
    A.label("L_redok")
    stamp(7)
    if PROF: A(f"s_sub_u32 s{sP+2}, {SPIN_LIMIT}, s{sCnt}")
    for k in range(4): A(f"v_add_f32 v{24+k}, v{16+k}, v{20+k}")
    A("v_permlane32_swap_b32 v24, v25"); A("v_permlane32_swap_b32 v26, v27")
    A("v_add_f32 v24, v24, v25"); A("v_add_f32 v25, v26, v27")
    A("v_mov_b32 v26, v24"); A("v_mov_b32 v27, v25")
    A("v_permlane16_swap_b32 v24, v26"); A("v_permlane16_swap_b32 v25, v27")
    A("v_add_f32 v24, v24, v26"); A("v_add_f32 v25, v25, v27")
    A("v_add_f32_dpp v24, v24, v24 row_ror:8 row_mask:0xf bank_mask:0xf")
    A("v_add_f32_dpp v25, v25, v25 row_ror:8 row_mask:0xf bank_mask:0xf")
    A(f"ds_write_b64 v10, v[24:25] offset:{L_RR}")
    A("s_waitcnt lgkmcnt(0)")
    A("s_barrier")
    A("s_cmp_lg_u32 s3, 0"); A("s_cbranch_scc1 L_sdone")
    for u in range(4): A(f"ds_read_b64 v[{32+2*u}:{33+2*u}], v9 offset:{L_RR+u*128}")
    A("v_lshlrev_b32 v40, 16, v6"); A("v_and_b32 v41, 0xffff0000, v6")
    A("v_mov_b32 v42, 0x7fc07fc0")
    A("s_waitcnt lgkmcnt(0)")
    A("v_add_f32 v32, v32, v34"); A("v_add_f32 v33, v33, v35"); A("v_add_f32 v36, v36, v38"); A("v_add_f32 v37, v37, v39")
    A("v_add_f32 v32, v32, v36"); A("v_add_f32 v33, v33, v37")
    A("v_cvt_pk_bf16_f32 v32, v32, v33")
    A("v_lshlrev_b32 v34, 16, v32"); A("v_and_b32 v35, 0xffff0000, v32")
    A("v_add_f32 v34, v34, v40"); A("v_add_f32 v35, v35, v41")
    A("v_cvt_pk_bf16_f32 v32, v34, v35")
    sanitize([32], 42)
    A(f"buffer_store_dword v32, v7, {srd(sWS)}, s{st1} offen sc1")
    A(f"s_add_u32 s{st1}, s{st1}, 16384")
    A(f"buffer_store_dword v32, v7, {srd(sWS)}, s{st1} offen sc1")
    A(f"s_add_u32 s{st1}, s{st1}, 16384")
    A("s_mov_b32 exec_lo, 0xff"); A("s_mov_b32 exec_hi, 0xff")
    A(f"buffer_store_dword v32, v4, {srd(sWS)}, s{st1} offen sc1")
    A("s_mov_b64 exec, -1")
    stamp(6)
    A("s_branch L_sdone")

    def ffn1_tile(dst, src="s2"):
        A(f"s_sub_u32 s{st0}, {src}, 64")
        A(f"s_and_b32 s{st1}, s{st0}, 7")
        A(f"s_lshr_b32 s{st0}, s{st0}, 3")
        A(f"s_lshr_b32 s{st2}, s{st0}, 2"); A(f"s_lshl_b32 s{st2}, s{st2}, 3"); A(f"s_add_u32 s{st2}, s{st2}, s{st1}")
        A(f"s_lshl_b32 s{st2}, s{st2}, 2"); A(f"s_and_b32 s{st3}, s{st0}, 3"); A(f"s_add_u32 s{st2}, s{st2}, s{st3}")
        A(f"s_mul_i32 s{st1}, s{st1}, 3"); A(f"s_add_u32 s{st1}, s{st1}, s{st0}"); A(f"s_add_u32 s{st1}, s{st1}, 56")
        A(f"s_cmp_lt_u32 s{st0}, 8"); A(f"s_cselect_b32 s{dst}, s{st2}, s{st1}")
    def ffn2_tile(dst, src="s2"):
        A(f"s_sub_u32 s{st0}, {src}, 152"); A(f"s_and_b32 s{st1}, s{st0}, 7"); A(f"s_lshr_b32 s{st0}, s{st0}, 3")
        A(f"s_lshl_b32 s{st1}, s{st1}, 2"); A(f"s_add_u32 s{dst}, s{st1}, s{st0}")
    sTl = 35
    def tr_addr(v):
        A(f"v_lshrrev_b32 v{v}, 4, v{vLane}"); A(f"v_lshlrev_b32 v{v}, 8, v{v}")
        A(f"v_bfe_u32 v40, v{vLane}, 2, 2"); A("v_lshlrev_b32 v40, 5, v40"); A(f"v_add_u32 v{v}, v{v}, v40")
        A(f"v_and_b32 v40, 3, v{vLane}"); A("v_lshlrev_b32 v40, 3, v40"); A(f"v_add_u32 v{v}, v{v}, v40")
        A(f"s_mul_i32 s{st0}, s3, {STG_W}"); A(f"s_add_u32 s{st0}, s{st0}, {L_STG}"); A(f"v_add_u32 v{v}, s{st0}, v{v}")
    A.label("L_ffn1")
    ffn1_tile(sTl, "s88")
    A(f"s_cmp_ge_u32 s{sTl}, 86"); A("s_cbranch_scc1 L_sdone")
    vA = 64
    if REPACK:
        vA = 64
        A(f"s_lshl_b32 s{st0}, s{sTl}, 14"); A(f"s_lshl_b32 s{st1}, s3, 12"); A(f"s_add_u32 s{st0}, s{st0}, s{st1}")
        A(f"s_add_u32 s{st0}, s{st0}, {WS_W1T}")
        A(f"v_lshlrev_b32 v4, 4, v{vLane}")
        for s in range(4): A(f"buffer_load_dwordx4 v[{vA+4*s}:{vA+4*s+3}], v4, {srd(sWS)}, s{st0} offen offset:{s*1024} sc1")
    else:
        A(f"v_lshrrev_b32 v14, 1, v{vLane}"); A("v_mul_u32_u24 v14, 2752, v14")
        A(f"v_and_b32 v6, 1, v{vLane}"); A("v_lshlrev_b32 v6, 4, v6"); A("v_add_u32 v14, v14, v6")
        A(f"s_mul_i32 s{st0}, s3, {128*2752}"); A(f"v_add_u32 v14, s{st0}, v14")
        A(f"s_lshl_b32 s{st1}, s{sTl}, 5")
        A(f"s_add_u32 s{sT}, s{pW1}, s{st1}"); A(f"s_addc_u32 s{sT+1}, s{pW1+1}, 0")
        A(f"s_sub_u32 s{sT+2}, {512*2752}, s{st1}"); A(f"s_mov_b32 s{sT+3}, 0x20000")
        A(f"s_mov_b32 s{sOff}, 0")
        for n in range(4):
            A(f"buffer_load_dwordx4 v[{16+4*n}:{19+4*n}], v14, {srd(sT)}, s{sOff} offen {WFF}")
            A(f"s_add_u32 s{sOff}, s{sOff}, {32*2752}")
        A(f"v_lshlrev_b32 v15, 4, v{vLane}"); A(f"s_mul_i32 s{st0}, s3, {STG_W}"); A(f"s_add_u32 s{st0}, s{st0}, {L_STG}")
        A(f"v_add_u32 v15, s{st0}, v15")
        tr_addr(4)
        A("s_waitcnt vmcnt(0)")
        for n in range(4): A(f"ds_write_b128 v15, v[{16+4*n}:{19+4*n}] offset:{n*1024}")
        vA = 64
        for s in range(4):
            A(f"ds_read_b64_tr_b16 v[{vA+4*s}:{vA+4*s+1}], v4 offset:{s*1024}")
            A(f"ds_read_b64_tr_b16 v[{vA+4*s+2}:{vA+4*s+3}], v4 offset:{s*1024+128}")
    for k in range(4): A(f"v_mov_b32 v{80+k}, 0x3f803f80")
    for k in range(4): A(f"v_mov_b32 v{84+k}, 0")
    A("s_waitcnt vmcnt(0) lgkmcnt(0)")
    for s in range(4): A(f"v_mfma_f32_16x16x32_bf16 v[84:87], v[{vA+4*s}:{vA+4*s+3}], v[80:83], v[84:87]")
    A(f"v_lshlrev_b32 v5, 4, v{vLane}"); A(f"s_lshl_b32 s{st0}, s3, 10"); A(f"v_add_u32 v5, s{st0}, v5")
    A(f"v_lshlrev_b32 v6, 3, v{vLane}"); A(f"s_lshl_b32 s{st0}, s3, 9"); A(f"v_add_u32 v6, s{st0}, v6")
    A(f"ds_write_b128 v5, v[84:87] offset:{L_RED3}")
    A("s_waitcnt lgkmcnt(0)")
    A("s_barrier")
    A(f"v_lshlrev_b32 v7, 4, v{vLane}")
    for u in range(4): A(f"ds_read_b128 v[{16+4*u}:{19+4*u}], v7 offset:{L_RED3+u*1024}")
    A(f"v_and_b32 v8, 15, v{vLane}"); A("v_lshlrev_b32 v8, 6, v8")
    A(f"v_lshrrev_b32 v9, 4, v{vLane}"); A("v_lshlrev_b32 v9, 4, v9"); A("v_add_u32 v8, v8, v9")
    A(f"s_lshl_b32 s{st0}, s3, 10"); A(f"v_add_u32 v8, s{st0}, v8")
    A("s_waitcnt lgkmcnt(0)")
    for k in range(4):
        A(f"v_add_f32 v{16+k}, v{16+k}, v{20+k}"); A(f"v_add_f32 v{24+k}, v{24+k}, v{28+k}")
    for k in range(4): A(f"v_add_f32 v{84+k}, v{16+k}, v{24+k}")
    A(f"s_and_b32 s{st0}, s88, 7"); A(f"s_lshl_b32 s{st0}, s{st0}, 12"); A(f"s_add_u32 s{st0}, s{st0}, {WS_H}")
    for k_, pat in ((90, 0x00f000f0), (92, 0x0f000f00), (94, 0xf000f000)):
        A(f"s_mov_b32 s{k_}, {hex(pat)}"); A(f"s_mov_b32 s{k_+1}, {hex(pat)}")
    A(f"v_and_b32 v12, 3, v{vLane}"); A("v_lshlrev_b32 v12, 5, v12")
    A(f"v_lshrrev_b32 v9, 4, v{vLane}"); A("v_lshlrev_b32 v9, 3, v9"); A("v_add_u32 v12, v12, v9")
    A(f"v_bfe_u32 v9, v{vLane}, 2, 2"); A(f"v_mul_u32_u24 v9, {H1_STRIDE}, v9"); A("v_add_u32 v12, v12, v9")
    A(f"s_lshl_b32 s{st1}, s{sTl}, 7"); A(f"s_add_u32 s{st1}, s{st1}, {WS_H1}")
    A(f"v_lshlrev_b32 v6, 2, v{vLane}"); A(f"s_lshl_b32 s{st2}, s3, 8"); A(f"v_add_u32 v6, s{st2}, v6")
    A(f"v_and_b32 v13, 15, v{vLane}"); A("v_lshlrev_b32 v13, 2, v13")
    A(f"s_mov_b32 s{sCnt}, {SPIN_LIMIT}")
    A.label("L_f1spin")
    if SLP1: A(f"s_sleep {SLP1}")
    A(f"buffer_load_dwordx4 v[16:19], v8, {srd(sWS)}, s{st0} offen sc1")
    A("s_waitcnt vmcnt(0)")
    spin_check(range(16, 20), 10, "L_f1spin", "L_f1ok")
    stamp(7)
    for s in range(4):
        A(f"v_mfma_f32_16x16x32_bf16 v[{88+4*s}:{91+4*s}], v[{vA+4*s}:{vA+4*s+3}], v[16:19], 0")
    A("v_dot2_f32_bf16 v20, v16, v80, 0"); A("v_dot2_f32_bf16 v21, v16, v16, 0")
    for k in range(1, 4):
        A(f"v_dot2_f32_bf16 v20, v{16+k}, v80, v20"); A(f"v_dot2_f32_bf16 v21, v{16+k}, v{16+k}, v21")
    A("v_permlane32_swap_b32 v20, v21"); A("v_add_f32 v20, v20, v21")
    A("v_mov_b32 v21, v20"); A("v_permlane16_swap_b32 v20, v21"); A("v_add_f32 v20, v20, v21")
    A("v_add_f32_dpp v20, v20, v20 row_ror:4 row_mask:0xf bank_mask:0xf")
    A("v_add_f32_dpp v20, v20, v20 row_ror:8 row_mask:0xf bank_mask:0xf")
    A(f"ds_write_b32 v6, v20 offset:{L_RED2}")
    for k in range(4): A(f"v_cndmask_b32 v{88+k}, v{88+k}, v{92+k}, s[90:91]")
    for k in range(4): A(f"v_cndmask_b32 v{96+k}, v{96+k}, v{100+k}, s[94:95]")
    A("s_or_b64 s[92:93], s[92:93], s[94:95]")
    for k in range(4): A(f"v_cndmask_b32 v{88+k}, v{88+k}, v{96+k}, s[92:93]")
    for k in range(4): A(f"v_add_f32_dpp v{88+k}, v{88+k}, v{88+k} row_ror:4 row_mask:0xf bank_mask:0xf")
    for k in range(4): A(f"v_add_f32_dpp v{88+k}, v{88+k}, v{88+k} row_ror:8 row_mask:0xf bank_mask:0xf")
    A(f"ds_write_b128 v5, v[88:91] offset:{L_RED}")
    A("s_waitcnt lgkmcnt(0)")
    A("s_barrier")
    A("s_cmp_lg_u32 s3, 0"); A("s_cbranch_scc1 L_sdone")
    for u in range(4): A(f"ds_read2_b32 v[{32+2*u}:{33+2*u}], v13 offset0:{(L_RED2+u*256)//4 % 256} offset1:{((L_RED2+u*256)//4 + 32) % 256}" if False else "")
    A(f"v_add_u32 v13, {L_RED2}, v13")
    for u in range(4): A(f"ds_read2_b32 v[{32+2*u}:{33+2*u}], v13 offset0:{u*64} offset1:{u*64+32}")
    for u in range(4): A(f"ds_read_b128 v[{16+4*u}:{19+4*u}], v7 offset:{L_RED+u*1024}")
    A("s_waitcnt lgkmcnt(4)")
    A("v_add_f32 v32, v32, v34"); A("v_add_f32 v33, v33, v35"); A("v_add_f32 v36, v36, v38"); A("v_add_f32 v37, v37, v39")
    A("v_add_f32 v32, v32, v36"); A("v_add_f32 v33, v33, v37")
    A("v_mul_f32 v32, 0x3b000000, v32")
    A("v_mul_f32 v33, 0x3b000000, v33")
    A("v_fma_f32 v33, -v32, v32, v33")
    A("v_max_f32 v33, 0, v33")
    A("v_cvt_pk_bf16_f32 v32, v32, v33")
    A("v_and_b32 v33, 0xffff0000, v32"); A("v_lshlrev_b32 v32, 16, v32")
    A("v_add_f32 v33, 0x3727c5ac, v33"); round_bf16(33)
    A("v_sqrt_f32 v33, v33"); round_bf16(33)
    A("v_rcp_f32 v33, v33")
    A("s_waitcnt lgkmcnt(0)")
    for k in range(4):
        A(f"v_add_f32 v{16+k}, v{16+k}, v{20+k}"); A(f"v_add_f32 v{24+k}, v{24+k}, v{28+k}")
    for k in range(4): A(f"v_add_f32 v{16+k}, v{16+k}, v{24+k}")
    for k in range(4): A(f"v_fma_f32 v{16+k}, -v32, v{84+k}, v{16+k}")
    for k in range(4): A(f"v_mul_f32 v{16+k}, v{16+k}, v33")
    for k in range(4): A(f"v_maximum3_f32 v{16+k}, v{16+k}, 0, 0")
    A("v_cvt_pk_bf16_f32 v16, v16, v17"); A("v_cvt_pk_bf16_f32 v17, v18, v19")
    A("v_and_b32 v16, 0x7fff7fff, v16"); A("v_and_b32 v17, 0x7fff7fff, v17")
    A(f"buffer_store_dwordx2 v[16:17], v12, {srd(sWS)}, s{st1} offen sc1")
    stamp(6)
    A("s_branch L_sdone")

    A.label("L_ffn2")
    ffn2_tile(sTl, "s88")
    vBw = 64
    if REPACK:
        vBw = 64
        A(f"s_mul_i32 s{st0}, s{sTl}, {W2T_STRIDE}"); A(f"s_add_u32 s{st0}, s{st0}, {WS_W2T}")
        mk_srd(sT, pWS, W2T_STRIDE, off_sgpr=st0)
        A(f"v_lshlrev_b32 v4, 4, v{vLane}"); A(f"s_mul_i32 s{st0}, s3, {11*1024}")
        for s in range(11):
            if s == 4: A(f"s_add_u32 s{st0}, s{st0}, 4096")
            if s == 8: A(f"s_add_u32 s{st0}, s{st0}, 4096")
            A(f"buffer_load_dwordx4 v[{vBw+4*s}:{vBw+4*s+3}], v4, {srd(sT)}, s{st0} offen offset:{(s%4)*1024} sc1")
        A("s_waitcnt vmcnt(0)")
    else:
        tr_addr(4)
        A(f"v_lshrrev_b32 v14, 1, v{vLane}"); A("v_lshlrev_b32 v14, 10, v14")
        A(f"v_and_b32 v6, 1, v{vLane}"); A("v_lshlrev_b32 v6, 4, v6"); A("v_add_u32 v14, v14, v6")
        A(f"s_mul_i32 s{st0}, s3, {384*1024}"); A(f"v_add_u32 v14, s{st0}, v14")
        A(f"s_lshl_b32 s{st1}, s{sTl}, 5")
        A(f"s_add_u32 s{sT}, s{pW2}, s{st1}"); A(f"s_addc_u32 s{sT+1}, s{pW2+1}, 0")
        A(f"s_sub_u32 s{sT+2}, {1376*1024}, s{st1}"); A(f"s_mov_b32 s{sT+3}, 0x20000")
        A(f"s_mov_b32 s{sOff}, 0")
        for n in range(12):
            A(f"buffer_load_dwordx4 v[{16+4*n}:{19+4*n}], v14, {srd(sT)}, s{sOff} offen {WFF}")
            A(f"s_add_u32 s{sOff}, s{sOff}, {32*1024}")
        A(f"v_lshlrev_b32 v15, 4, v{vLane}"); A(f"s_mul_i32 s{st0}, s3, {STG_W}"); A(f"s_add_u32 s{st0}, s{st0}, {L_STG}")
        A(f"v_add_u32 v15, s{st0}, v15")
        for n in range(12):
            A(f"s_waitcnt vmcnt({11-n})")
            A(f"ds_write_b128 v15, v[{16+4*n}:{19+4*n}] offset:{n*1024}")
        vBw = 64
        A("s_waitcnt lgkmcnt(0)")
        for s in range(12):
            A(f"ds_read_b64_tr_b16 v[{vBw+4*s}:{vBw+4*s+1}], v4 offset:{s*1024}")
            A(f"ds_read_b64_tr_b16 v[{vBw+4*s+2}:{vBw+4*s+3}], v4 offset:{s*1024+128}")
            if s % 4 == 3: A("s_waitcnt lgkmcnt(0)")
    A(f"s_and_b32 s{st0}, s88, 3"); A(f"s_mul_i32 s{st0}, s{st0}, {H1_STRIDE}"); A(f"s_add_u32 s{st0}, s{st0}, {WS_H1}")
    mk_srd(sT, pWS, 86*128, off_sgpr=st0)
    A(f"v_bfe_u32 v8, v{vLane}, 2, 2"); A("v_lshlrev_b32 v8, 8, v8")
    A(f"v_lshrrev_b32 v9, 5, v{vLane}"); A("v_lshlrev_b32 v9, 7, v9"); A("v_add_u32 v8, v8, v9")
    A(f"v_and_b32 v9, 3, v{vLane}"); A("v_lshlrev_b32 v9, 5, v9"); A("v_add_u32 v8, v8, v9")
    A(f"v_bfe_u32 v9, v{vLane}, 4, 1"); A("v_lshlrev_b32 v9, 4, v9"); A("v_add_u32 v8, v8, v9")
    A(f"s_mul_i32 s{st0}, s3, {12*256}"); A(f"v_add_u32 v8, s{st0}, v8")
    A(f"v_lshrrev_b32 v10, 4, v{vLane}")
    A(f"v_and_b32 v11, 15, v{vLane}"); A(f"s_lshl_b32 s{st1}, s{sTl}, 4"); A(f"v_add_u32 v11, s{st1}, v11")
    A("v_lshlrev_b32 v12, 1, v11"); A("v_lshlrev_b32 v13, 10, v10"); A("v_add_u32 v12, v12, v13")
    A("v_lshrrev_b32 v13, 5, v11"); A("v_lshlrev_b32 v13, 8, v13"); A("v_lshlrev_b32 v10, 6, v10"); A("v_add_u32 v13, v13, v10")
    A("v_and_b32 v10, 30, v11"); A("v_lshlrev_b32 v10, 1, v10"); A("v_add_u32 v13, v13, v10")
    A(f"v_lshlrev_b32 v6, 2, v{vLane}"); A(f"s_lshl_b32 s{st0}, s3, 8"); A(f"v_add_u32 v5, s{st0}, v6")
    for k in range(16): A(f"v_mov_b32 v{112+k}, 0")
    A("s_mov_b32 s90, 0xffff0000"); A("s_mov_b32 s91, 0"); A("s_mov_b32 s92, 0"); A("s_mov_b32 s93, 0xffff0000"); A("s_mov_b32 s94, 0"); A("s_mov_b32 s95, -1")
    A("s_waitcnt lgkmcnt(0)")
    A(f"s_mov_b32 s{st0}, {WS_H + 8*4096}")
    mk_srd(sC, pOUT, 4096)
    A(f"s_mov_b32 s{sCnt}, {SPIN_LIMIT}")
    A.label("L_f2hspin")
    if SLP2: A(f"s_sleep {SLP2}")
    A(f"buffer_load_dword v14, v13, {srd(sWS)}, s{st0} offen sc1")
    A("s_waitcnt vmcnt(0)")
    spin_check([14], 15, "L_f2hspin", "L_f2hok")
    A("v_and_b32 v11, 1, v11"); A("v_lshlrev_b32 v60, 16, v14"); A("v_and_b32 v61, 0xffff0000, v14")
    A("v_cmp_eq_u32 vcc, 1, v11"); A("v_cndmask_b32 v60, v60, v61, vcc")
    A(f"s_mov_b32 s{sCnt}, {SPIN_LIMIT}")
    A.label("L_f2spin")
    if SLB: A(f"s_sleep {SLB}")
    for a in range(3): A(f"buffer_load_dwordx4 v[{16+4*a}:{19+4*a}], v8, {srd(sT)}, 0 offen offset:{a*1024} sc1")
    A("s_waitcnt vmcnt(0)")
    spin_check(range(16, 28), 15, "L_f2spin", "L_f2ok")
    stamp(7)
    for a in range(3):
        for q_ in range(4):
            A(f"v_mfma_f32_16x16x32_bf16 v[{112+4*q_}:{115+4*q_}], v[{16+4*a}:{19+4*a}], v[{vBw+16*a+4*q_}:{vBw+16*a+4*q_+3}], v[{112+4*q_}:{115+4*q_}]")
    for k in range(4): A(f"v_cndmask_b32 v{112+k}, v{112+k}, v{116+k}, s[90:91]")
    for k in range(4): A(f"v_cndmask_b32 v{120+k}, v{120+k}, v{124+k}, s[92:93]")
    for k in range(4): A(f"v_cndmask_b32 v{112+k}, v{112+k}, v{120+k}, s[94:95]")
    A("v_permlane32_swap_b32 v112, v114"); A("v_permlane32_swap_b32 v113, v115")
    A("v_add_f32 v112, v112, v114"); A("v_add_f32 v113, v113, v115")
    A("v_permlane16_swap_b32 v112, v113"); A("v_add_f32 v112, v112, v113")
    A(f"ds_write_b32 v5, v112 offset:{L_RED}")
    A("s_waitcnt lgkmcnt(0)")
    A("s_barrier")
    A("s_cmp_lg_u32 s3, 0"); A("s_cbranch_scc1 L_sdone")
    for u in range(4): A(f"ds_read_b32 v{120+u}, v6 offset:{L_RED+u*256}")
    A("s_waitcnt lgkmcnt(0)")
    A("v_add_f32 v120, v120, v121"); A("v_add_f32 v122, v122, v123"); A("v_add_f32 v120, v120, v122")
    round_bf16(120)
    A("v_add_f32 v120, v120, v60")
    A("v_cvt_pk_bf16_f32 v120, v120, v120")
    A(f"buffer_store_short v120, v12, {srd(sC)}, 0 offen")
    if COOPQ:
        A("s_cmp_lg_u32 s88, 152"); A("s_cbranch_scc1 L_noep")
        A("s_add_u32 s86, s86, 1"); A("v_mov_b32 v20, s86"); A("v_mov_b32 v21, s87"); A("v_mov_b32 v22, 0")
        A(f"s_mov_b32 s{st0}, {WS_EP}")
        A("s_mov_b64 exec, 1"); A(f"buffer_store_dwordx2 v[20:21], v22, {srd(sWS)}, s{st0} offen sc1"); A("s_mov_b64 exec, -1")
        A.label("L_noep")
    stamp(6)
    A("s_branch L_sdone")

    A.label("L_helper")
    vW = 128; hAcc = 16; hPlo0, hPhi0, hPlo1, hPhi1 = 24, 25, 26, 27
    vG, vCc = 4, 5
    A(f"s_sub_u32 s{sU}, s3, 4")
    A(f"v_lshrrev_b32 v{vG}, 4, v{vLane}")
    A(f"v_and_b32 v{vCc}, 15, v{vLane}")
    sE0, sE1 = 86, 87
    def ln_stats_and_P(xc_regs):
        for r in range(4):
            A(f"v_lshlrev_b32 v{32+2*r}, 16, v{8+r}"); A(f"v_and_b32 v{33+2*r}, 0xffff0000, v{8+r}")
        A("v_add_f32 v40, v32, v33"); A("v_add_f32 v41, v34, v35"); A("v_add_f32 v42, v36, v37"); A("v_add_f32 v43, v38, v39")
        A("v_add_f32 v40, v40, v41"); A("v_add_f32 v42, v42, v43"); A("v_add_f32 v40, v40, v42")
        wave_allreduce("v_add_f32", 40, 41)
        A("v_mul_f32 v40, 0x3b000000, v40")
        for e in range(8): A(f"v_sub_f32 v{32+e}, v{32+e}, v40")
        A("v_mul_f32 v42, v32, v32")
        for e in range(1, 8): A(f"v_fmac_f32 v42, v{32+e}, v{32+e}")
        wave_allreduce("v_add_f32", 42, 41)
        A("v_mul_f32 v42, 0x3b000000, v42")
        round_bf16(40); round_bf16(42)
        A("v_add_f32 v42, 0x3727c5ac, v42"); round_bf16(42)
        A("v_sqrt_f32 v42, v42"); round_bf16(42)
        A("v_rcp_f32 v42, v42")
        for r in xc_regs:
            A(f"v_lshlrev_b32 v{r}, 16, v{r}"); A(f"v_sub_f32 v{r}, v{r}, v40"); round_bf16(r)
            A(f"v_mul_f32 v{r}, v{r}, v42")
    if COOPQ:
        sI = 35
        A(f"s_lshr_b32 s{sI}, s2, 3"); A(f"s_and_b32 s{sI}, s{sI}, 7")
        A(f"s_lshl_b32 s{st0}, s{sU}, 10")
        A(f"v_lshlrev_b32 v6, 2, v{vCc}"); A(f"v_add_u32 v6, v6, v{vG}"); A(f"s_lshl_b32 s{st1}, s{sI}, 6")
        A(f"v_add_u32 v6, s{st1}, v6"); A("v_lshlrev_b32 v6, 1, v6")
        A(f"v_lshlrev_b32 v7, 4, v{vLane}")
        A(f"v_lshlrev_b32 v3, 13, v{vG}"); A(f"v_lshlrev_b32 v14, 4, v{vCc}"); A("v_add_u32 v3, v3, v14")
        A(f"s_lshl_b32 s{st1}, s{sU}, 17"); A(f"v_add_u32 v3, s{st1}, v3")
        A(f"s_lshl_b32 s{sOff}, s{sI}, 19")
        A(f"s_lshl_b32 s{st1}, s{sH}, 8")
        A(f"s_sub_u32 s{st2}, {4<<20}, s{st1}")
        A("s_waitcnt lgkmcnt(0)")
        stamp(7)
        A(f"s_load_dwordx2 s[{sE0}:{sE1}], s[{pWS}:{pWS+1}], {WS_EP}")
        mk_srd(sT, pX, 1024, off_sgpr=st0)
        A(f"buffer_load_dwordx4 v[8:11], v7, {srd(sT)}, 0 offen")
        A(f"buffer_load_ushort v12, v6, {srd(sT)}, 0 offen")
        A(f"s_add_u32 s{sC}, s{pWQ}, s{st1}"); A(f"s_addc_u32 s{sC+1}, s{pWQ+1}, 0")
        A(f"s_mov_b32 s{sC+2}, s{st2}"); A(f"s_mov_b32 s{sC+3}, 0x20000")
        for k in range(4):
            A(f"buffer_load_dwordx4 v[{vW+4*k}:{vW+4*k+3}], v3, {srd(sC)}, s{sOff} offen {WQF}")
            if k < 3: A(f"s_add_u32 s{sOff}, s{sOff}, 32768")
        mk_srd(sWS, pWS, WS_SIZE)
        A(f"v_lshlrev_b32 v14, 2, v{vLane}"); A("v_mov_b32 v15, -1")
        A("s_mov_b64 exec, 0xfff"); A(f"ds_write_b32 v14, v15 offset:{L_STAT}")
        A("v_mov_b32 v15, 0"); A("s_mov_b64 exec, 3"); A(f"ds_write_b32 v14, v15 offset:{L_CNT}"); A("s_mov_b64 exec, -1")
        A("s_waitcnt lgkmcnt(0)")
        A("s_barrier")
        A(f"s_add_u32 s{sE0}, s{sE0}, 1")
        A(f"v_add_u32 v13, {L_STG}, v7")
        A(f"s_lshl_b32 s{st0}, s{sU}, 12"); A(f"v_add_u32 v14, s{st0}, v13")
        A(f"s_lshl_b32 s{st1}, s{sH}, 2"); A(f"s_add_u32 s{st2}, s{st1}, s{sU}"); A(f"s_lshl_b32 s{st2}, s{st2}, 3"); A(f"s_add_u32 s{st2}, s{st2}, s{sI}")
        A(f"s_lshl_b32 s{st2}, s{st2}, 10"); A(f"s_add_u32 s{st2}, s{st2}, {WS_QX}")
        A(f"s_add_u32 s{st1}, s{st1}, s{sB}"); A(f"s_lshl_b32 s{st1}, s{st1}, 3"); A(f"s_lshl_b32 s{st3}, s{sU}, 1"); A(f"s_add_u32 s{st1}, s{st1}, s{st3}")
        A(f"s_lshl_b32 s{st1}, s{st1}, 10"); A(f"s_add_u32 s{st1}, s{st1}, {WS_QX}")
        A("s_waitcnt vmcnt(4)")
        stamp(6)
        ln_stats_and_P([12])
        A("v_mov_b32 v15, 0")
        A(f"v_cvt_pk_bf16_f32 v{hPlo0}, v12, v15"); A(f"v_cvt_pk_bf16_f32 v{hPhi0}, v15, v12")
        A("s_waitcnt vmcnt(0)")
        for k in range(4): A(f"ds_write_b128 v14, v[{vW+4*k}:{vW+4*k+3}] offset:{k*1024}")
        A(f"v_mov_b32 v14, {L_CNT2}"); A("v_mov_b32 v15, 1")
        A("s_waitcnt lgkmcnt(0)")
        A("s_mov_b64 exec, 1"); A("ds_add_u32 v14, v15"); A("s_mov_b64 exec, -1")
        A(f"s_mov_b32 s{sCnt}, {SPIN_LIMIT}")
        A.label("L_wspin")
        A("ds_read_b32 v15, v14"); A("s_waitcnt lgkmcnt(0)")
        A("v_cmp_gt_u32 vcc, 4, v15")
        A("s_cbranch_vccz L_wok")
        A(f"s_sub_u32 s{sCnt}, s{sCnt}, 1"); A("s_cbranch_scc0 L_wspin")
        A.label("L_wok")
        for n in range(8): A(f"ds_read_b128 v[{vW+4*n}:{vW+4*n+3}], v13 offset:{n*1024}")
        for e in range(8): A(f"v_mov_b32 v{hAcc+e}, 0")
        for n in range(16):
            if n == 0: A("s_waitcnt lgkmcnt(4)")
            if n == 4:
                A("s_waitcnt lgkmcnt(0)")
                for m in range(8, 16): A(f"ds_read_b128 v[{vW+4*m}:{vW+4*m+3}], v13 offset:{m*1024}")
            if n == 8: A("s_waitcnt lgkmcnt(4)")
            if n == 12: A("s_waitcnt lgkmcnt(0)")
            for k in range(4):
                A(f"v_dot2c_f32_bf16_dpp v{hAcc+2*k}, v{hPlo0}, v{vW+4*n+k} row_newbcast:{n} row_mask:0xf bank_mask:0xf")
                A(f"v_dot2c_f32_bf16_dpp v{hAcc+2*k+1}, v{hPhi0}, v{vW+4*n+k} row_newbcast:{n} row_mask:0xf bank_mask:0xf")
        acc_reduce(hAcc)
        A(f"v_mov_b32 v{hAcc+2}, s{sE0}"); A(f"v_mov_b32 v{hAcc+3}, s{sE1}")
        A(f"buffer_store_dwordx4 v[{hAcc}:{hAcc+3}], v7, {srd(sWS)}, s{st2} offen {QXS}")
        stamp(1)
        A("s_waitcnt vmcnt(0)")
        if DBG & 32: stamp(6)
        A(f"s_mov_b32 s{sCnt}, {SPIN_LIMIT}")
        A.label("L_qxspin")
        A(f"buffer_load_dwordx4 v[32:35], v7, {srd(sWS)}, s{st1} offen {QXL}")
        A(f"buffer_load_dwordx4 v[36:39], v7, {srd(sWS)}, s{st1} offen offset:1024 {QXL}")
        A("s_waitcnt vmcnt(0)")
        A(f"v_xor_b32 v34, s{sE0}, v34"); A(f"v_xor_b32 v35, s{sE1}, v35"); A(f"v_xor_b32 v38, s{sE0}, v38"); A(f"v_xor_b32 v39, s{sE1}, v39")
        A("v_or_b32 v34, v34, v35"); A("v_or3_b32 v34, v34, v38, v39")
        A("v_cmp_ne_u32 vcc, 0, v34")
        A("s_cbranch_vccz L_qxok")
        A(f"s_sub_u32 s{sCnt}, s{sCnt}, 1"); A("s_cbranch_scc0 L_qxspin")
        A.label("L_qxok")
        if DBG & 32: A(f"s_sub_u32 s{sP+14}, {SPIN_LIMIT}, s{sCnt}")
        A(f"v_add_f32 v{hAcc}, v32, v36"); A(f"v_add_f32 v{hAcc+1}, v33, v37")
    else:
        A(f"s_lshl_b32 s{st0}, s{sB}, 10")
        sRq = 35
        if ROTQ:
            A(f"s_lshr_b32 s{sRq}, s2, 3"); A(f"s_and_b32 s{sRq}, s{sRq}, 7"); A(f"s_mul_i32 s{sRq}, s{sRq}, {ROTQ}"); A(f"s_and_b32 s{sRq}, s{sRq}, 31")
        else:
            A(f"s_mov_b32 s{sRq}, 0")
        A(f"s_lshl_b32 s{st1}, s{sU}, 7")
        for t_, reg in ((0, 6), (1, 9)):
            A(f"v_add_u32 v{reg}, s{sRq}, v{vCc}")
            if t_: A(f"v_add_u32 v{reg}, 16, v{reg}")
            A(f"v_and_b32 v{reg}, 31, v{reg}")
            if WQP == 0:
                A(f"v_lshlrev_b32 v{reg}, 2, v{reg}"); A(f"v_add_u32 v{reg}, v{reg}, v{vG}")
            else:
                A(f"v_lshlrev_b32 v14, 5, v{vG}"); A(f"v_add_u32 v{reg}, v{reg}, v14")
            A(f"v_add_u32 v{reg}, s{st1}, v{reg}"); A(f"v_lshlrev_b32 v{reg}, 1, v{reg}")
        A(f"v_mov_b32 v15, v9")
        A(f"v_lshlrev_b32 v7, 4, v{vLane}")
        A(f"v_lshlrev_b32 v3, {13 if WQP == 0 else 18}, v{vG}"); A(f"v_lshlrev_b32 v14, 4, v{vCc}"); A("v_add_u32 v3, v3, v14")
        A(f"s_lshl_b32 s{st1}, s{sU}, 20"); A(f"v_add_u32 v3, s{st1}, v3")
        A(f"s_lshl_b32 s{st1}, s{sH}, 8")
        A(f"s_sub_u32 s{st2}, {4<<20}, s{st1}")
        A("s_waitcnt lgkmcnt(0)")
        stamp(7)
        mk_srd(sT, pX, 1024, off_sgpr=st0)
        A(f"buffer_load_dwordx4 v[8:11], v7, {srd(sT)}, 0 offen")
        A(f"buffer_load_ushort v12, v6, {srd(sT)}, 0 offen")
        A(f"buffer_load_ushort v13, v15, {srd(sT)}, 0 offen")
        A("s_barrier")
        A(f"s_add_u32 s{sC}, s{pWQ}, s{st1}"); A(f"s_addc_u32 s{sC+1}, s{pWQ+1}, 0")
        A(f"s_mov_b32 s{sC+2}, s{st2}"); A(f"s_mov_b32 s{sC+3}, 0x20000")
        A(f"s_lshl_b32 s{sOff}, s{sRq}, {15 if WQP == 0 else 13}")
        for n in range(0 if NOQ else 32):
            A(f"buffer_load_dwordx4 v[{vW+4*n}:{vW+4*n+3}], v3, {srd(sC)}, s{sOff} offen {WQF}")
            if n < 31:
                A(f"s_add_u32 s{sOff}, s{sOff}, {32768 if WQP == 0 else 8192}")
                if ROTQ: A(f"s_and_b32 s{sOff}, s{sOff}, {0xfffff if WQP == 0 else 0x3ffff}")
            if NR and n < 31 and (n+1) % (32//NR) == 0: A("s_barrier")
        if NR == 0 and not PACED: A("s_barrier")
        mk_srd(sWS, pWS, WS_SIZE)
        A(f"v_lshlrev_b32 v14, 2, v{vLane}"); A("v_mov_b32 v15, -1")
        A("s_mov_b64 exec, 0xfff"); A(f"ds_write_b32 v14, v15 offset:{L_STAT}")
        A("v_mov_b32 v15, 0"); A("s_mov_b64 exec, 1"); A(f"ds_write_b32 v15, v15 offset:{L_CNT}"); A("s_mov_b64 exec, -1")
        A("s_waitcnt vmcnt(0)" if NOQ else "s_waitcnt vmcnt(32)")
        stamp(6)
        for r in range(4):
            A(f"v_lshlrev_b32 v{32+2*r}, 16, v{8+r}"); A(f"v_and_b32 v{33+2*r}, 0xffff0000, v{8+r}")
        A("v_add_f32 v40, v32, v33"); A("v_add_f32 v41, v34, v35"); A("v_add_f32 v42, v36, v37"); A("v_add_f32 v43, v38, v39")
        A("v_add_f32 v40, v40, v41"); A("v_add_f32 v42, v42, v43"); A("v_add_f32 v40, v40, v42")
        wave_allreduce("v_add_f32", 40, 41)
        A("v_mul_f32 v40, 0x3b000000, v40")
        for e in range(8): A(f"v_sub_f32 v{32+e}, v{32+e}, v40")
        A("v_mul_f32 v42, v32, v32")
        for e in range(1, 8): A(f"v_fmac_f32 v42, v{32+e}, v{32+e}")
        wave_allreduce("v_add_f32", 42, 41)
        A("v_mul_f32 v42, 0x3b000000, v42")
        round_bf16(40); round_bf16(42)
        A("v_add_f32 v42, 0x3727c5ac, v42"); round_bf16(42)
        A("v_sqrt_f32 v42, v42"); round_bf16(42)
        A("v_rcp_f32 v42, v42")
        for r in (12, 13):
            A(f"v_lshlrev_b32 v{r}, 16, v{r}"); A(f"v_sub_f32 v{r}, v{r}, v40"); round_bf16(r)
            A(f"v_mul_f32 v{r}, v{r}, v42")
        A("v_mov_b32 v15, 0")
        A(f"v_cvt_pk_bf16_f32 v{hPlo0}, v12, v15"); A(f"v_cvt_pk_bf16_f32 v{hPhi0}, v15, v12")
        A(f"v_cvt_pk_bf16_f32 v{hPlo1}, v13, v15"); A(f"v_cvt_pk_bf16_f32 v{hPhi1}, v15, v13")
        A(f"s_mov_b32 s{sTile}, 0")
        stamp(1)
        A.label("L_gemv")
        for e in range(8): A(f"v_mov_b32 v{hAcc+e}, 0")
        for n in range(32):
            A(f"s_waitcnt vmcnt({31-n})")
            lo, hi = (hPlo0, hPhi0) if n < 16 else (hPlo1, hPhi1)
            for k in range(4):
                A(f"v_dot2c_f32_bf16_dpp v{hAcc+2*k}, v{lo}, v{vW+4*n+k} row_newbcast:{n%16} row_mask:0xf bank_mask:0xf")
                A(f"v_dot2c_f32_bf16_dpp v{hAcc+2*k+1}, v{hi}, v{vW+4*n+k} row_newbcast:{n%16} row_mask:0xf bank_mask:0xf")
        acc_reduce(hAcc)
    A(f"v_lshlrev_b32 v14, 5, v{vCc}"); A(f"v_lshlrev_b32 v15, 3, v{vG}"); A("v_add_u32 v14, v14, v15")
    A(f"s_lshl_b32 s{st0}, s{sU}, 9"); A(f"v_add_u32 v14, s{st0}, v14")
    A(f"ds_write_b64 v14, v[{hAcc}:{hAcc+1}] offset:{L_QP}")
    A("s_waitcnt lgkmcnt(0)")
    stamp(2)
    A("s_barrier")
    A(f"s_cmp_lg_u32 s{sU}, 0"); A("s_cbranch_scc1 L_nopoison")
    for k in range(4): A(f"v_mov_b32 v{32+k}, -1")
    A(f"v_lshrrev_b32 v14, 3, v{vLane}"); A("v_lshlrev_b32 v14, 13, v14")
    A(f"v_and_b32 v15, 7, v{vLane}"); A("v_lshlrev_b32 v15, 4, v15"); A("v_add_u32 v14, v14, v15")
    A(f"s_lshl_b32 s{st0}, s{sB}, 17"); A(f"s_lshl_b32 s{st1}, s{sJ}, 7"); A(f"s_add_u32 s{st0}, s{st0}, s{st1}")
    A(f"buffer_store_dwordx4 v[32:35], v14, {srd(sWS)}, s{st0} offen sc1")
    A(f"s_add_u32 s{st0}, s{st0}, 65536")
    A(f"buffer_store_dwordx4 v[32:35], v14, {srd(sWS)}, s{st0} offen sc1")
    A(f"v_lshlrev_b32 v14, 2, v{vLane}")
    A(f"s_lshl_b32 s{st0}, s{sReg}, 7"); A(f"s_add_u32 s{st0}, s{st0}, {WS_ST}")
    A("s_mov_b64 exec, 3"); A(f"buffer_store_dword v32, v14, {srd(sWS)}, s{st0} offen sc1"); A("s_mov_b64 exec, -1")
    A("s_cmp_ge_u32 s2, 64"); A("s_cbranch_scc1 L_pnored")
    A(f"s_and_b32 s{st0}, s2, 15"); A(f"s_lshl_b32 s{st0}, s{st0}, 8")
    A(f"s_lshr_b32 s{st1}, s2, 4"); A(f"s_lshl_b32 s{st1}, s{st1}, 6"); A(f"s_add_u32 s{st0}, s{st0}, s{st1}")
    A(f"s_add_u32 s{st0}, s{st0}, {WS_H}")
    A(f"v_lshrrev_b32 v36, 4, v{vLane}"); A("v_lshlrev_b32 v36, 12, v36")
    A(f"v_and_b32 v37, 15, v{vLane}"); A("v_lshlrev_b32 v37, 2, v37"); A("v_add_u32 v36, v36, v37")
    A(f"buffer_store_dword v32, v36, {srd(sWS)}, s{st0} offen sc1")
    A(f"s_add_u32 s{st0}, s{st0}, 16384")
    A(f"buffer_store_dword v32, v36, {srd(sWS)}, s{st0} offen sc1")
    A(f"s_add_u32 s{st0}, s{st0}, 16384")
    A("s_mov_b64 exec, 0xffff"); A(f"buffer_store_dword v32, v37, {srd(sWS)}, s{st0} offen sc1"); A("s_mov_b64 exec, -1")
    A("s_branch L_pdone")
    A.label("L_pnored")
    A("s_cmp_ge_u32 s2, 152"); A("s_cbranch_scc1 L_pdone")
    ffn1_tile(sTl)
    A(f"s_cmp_ge_u32 s{sTl}, 86"); A("s_cbranch_scc1 L_pdone")
    A(f"s_lshl_b32 s{st0}, s{sTl}, 7"); A(f"s_add_u32 s{st0}, s{st0}, {WS_H1}")
    A(f"v_lshrrev_b32 v36, 4, v{vLane}"); A(f"v_mul_u32_u24 v36, {H1_STRIDE}, v36")
    A(f"v_and_b32 v37, 15, v{vLane}"); A("v_lshlrev_b32 v37, 3, v37"); A("v_add_u32 v36, v36, v37")
    A(f"buffer_store_dwordx2 v[32:33], v36, {srd(sWS)}, s{st0} offen sc1")
    A.label("L_pdone")
    A.label("L_nopoison")
    if TLBV:
        A(f"s_cmp_lg_u32 s{sU}, 1"); A("s_cbranch_scc1 L_notlb")
        A(f"s_lshr_b32 s{st0}, s{sReg}, 1"); A(f"s_lshl_b32 s{st0}, s{st0}, 21")
        mk_srd(sT, pV, 1 << 21, off_sgpr=st0)
        A(f"v_lshlrev_b32 v14, 15, v{vLane}")
        A(f"buffer_load_dword v15, v14, {srd(sT)}, 0 offen nt")
        A("s_waitcnt vmcnt(0)")
        A.label("L_notlb")
    A(f"s_lshl_b32 s{st0}, s2, 2"); A(f"s_add_u32 s{st0}, s{st0}, s{sU}")
    A(f"s_cmp_ge_u32 s{st0}, {696 if REPACK else 0}"); A("s_cbranch_scc1 L_rpdone")
    A(f"s_mul_i32 s{st1}, s{sU}, {32*RS}"); A(f"s_add_u32 s{st1}, s{st1}, {L_STG}")
    A(f"v_lshlrev_b32 v15, 4, v{vLane}"); A(f"v_add_u32 v7, s{st1}, v15")
    A(f"v_lshlrev_b32 v6, 3, v{vG}"); A(f"v_lshrrev_b32 v14, 2, v{vCc}"); A("v_add_u32 v6, v6, v14"); A("v_lshlrev_b32 v6, 7, v6")
    A(f"v_and_b32 v14, 3, v{vCc}"); A("v_lshlrev_b32 v14, 3, v14"); A("v_add_u32 v6, v6, v14"); A(f"v_add_u32 v6, s{st1}, v6")
    A(f"v_lshrrev_b32 v3, 3, v{vLane}"); A(f"v_and_b32 v14, 7, v{vLane}"); A("v_lshlrev_b32 v14, 4, v14")
    A(f"s_cmp_ge_u32 s{st0}, 344"); A("s_cbranch_scc1 L_rpw1")
    A(f"s_lshr_b32 s{st2}, s{st0}, 3"); A(f"s_and_b32 s{st3}, s{st0}, 7")
    A("v_lshlrev_b32 v3, 10, v3"); A("v_add_u32 v3, v3, v14")
    A(f"s_lshl_b32 s{sOff}, s{st2}, 15"); A(f"s_lshl_b32 s{st1}, s{st3}, 7"); A(f"s_add_u32 s{sOff}, s{sOff}, s{st1}")
    mk_srd(sT, pW2, 1376*1024)
    A(f"s_mov_b32 s{sTile}, {8*1024}")
    A(f"s_mul_i32 s{st3}, s{st3}, {4*W2T_STRIDE}"); A(f"s_lshl_b32 s{st2}, s{st2}, 10"); A(f"s_add_u32 s{st3}, s{st3}, s{st2}")
    A(f"s_add_u32 s{st3}, s{st3}, {WS_W2T}")
    A(f"s_mov_b32 s{sTl}, {W2T_STRIDE}")
    A("s_branch L_rpgo")
    A.label("L_rpw1")
    A(f"s_sub_u32 s{st0}, s{st0}, 344")
    A(f"s_mul_i32 s{st2}, s{st0}, 2979"); A(f"s_lshr_b32 s{st2}, s{st2}, 16")
    A(f"s_mul_i32 s{st3}, s{st2}, 22"); A(f"s_sub_u32 s{st3}, s{st0}, s{st3}")
    A("v_mul_u32_u24 v3, 2752, v3"); A("v_add_u32 v3, v3, v14")
    A(f"s_mul_i32 s{sOff}, s{st2}, {32*2752}"); A(f"s_lshl_b32 s{st1}, s{st3}, 7"); A(f"s_add_u32 s{sOff}, s{sOff}, s{st1}")
    mk_srd(sT, pW1, 512*2752)
    A(f"s_mov_b32 s{sTile}, {8*2752}")
    A(f"s_lshl_b32 s{st3}, s{st3}, 16"); A(f"s_lshl_b32 s{st2}, s{st2}, 10"); A(f"s_add_u32 s{st3}, s{st3}, s{st2}")
    A(f"s_add_u32 s{st3}, s{st3}, {WS_W1T}")
    A(f"s_mov_b32 s{sTl}, 16384")
    A.label("L_rpgo")
    for n in range(4):
        A(f"buffer_load_dwordx4 v[{32+4*n}:{35+4*n}], v3, {srd(sT)}, s{sOff} offen {WFF}")
        A(f"s_add_u32 s{sOff}, s{sOff}, s{sTile}")
    A("s_waitcnt vmcnt(0)")
    for n in range(4): A(f"ds_write_b128 v7, v[{32+4*n}:{35+4*n}] offset:{n*1024}")
    A("s_waitcnt lgkmcnt(0)")
    for t in range(4):
        A(f"ds_read_b64_tr_b16 v[{48+4*t}:{49+4*t}], v6 offset:{t*32}")
        A(f"ds_read_b64_tr_b16 v[{50+4*t}:{51+4*t}], v6 offset:{t*32+512}")
    A("s_waitcnt lgkmcnt(0)")
    for t in range(4):
        A(f"buffer_store_dwordx4 v[{48+4*t}:{51+4*t}], v15, {srd(sWS)}, s{st3} offen sc1")
        A(f"s_add_u32 s{st3}, s{st3}, s{sTl}")
    A.label("L_rpdone")
    A("s_waitcnt vmcnt(0)")
    A(f"v_mov_b32 v14, {L_CNT}"); A("v_mov_b32 v15, 1")
    A("s_mov_b64 exec, 1"); A("ds_add_rtn_u32 v32, v14, v15"); A("s_waitcnt lgkmcnt(0)"); A("s_mov_b64 exec, -1")
    A(f"v_readfirstlane_b32 s{st0}, v32")
    A(f"s_cmp_lg_u32 s{st0}, 3"); A("s_cbranch_scc1 L_nosig")
    A("v_mov_b32 v14, 0")
    A("s_mov_b64 exec, 1"); A(f"global_atomic_add v14, v15, s[{pDBG}:{pDBG+1}]"); A("s_mov_b64 exec, -1")
    A.label("L_nosig")
    A(f"v_lshlrev_b32 v3, 10, v{vG}"); A(f"v_lshlrev_b32 v14, 4, v{vCc}"); A("v_add_u32 v3, v3, v14")
    A(f"s_lshl_b32 s{st1}, s{sU}, 8"); A(f"v_add_u32 v3, s{st1}, v3")
    A(f"s_lshl_b32 s{st1}, s{sH}, 17")
    mk_srd(sC, pWO, 131072, off_sgpr=st1)
    A(f"s_mul_i32 s{st0}, s{sU}, {32*RS}"); A(f"s_add_u32 s{st0}, s{st0}, {L_STG}")
    A(f"v_mul_u32_u24 v6, {RS}, v{vG}"); A("v_add_u32 v6, v6, v14"); A(f"v_add_u32 v6, s{st0}, v6")
    A(f"v_lshlrev_b32 v7, 3, v{vG}"); A(f"v_lshrrev_b32 v15, 2, v{vCc}"); A("v_add_u32 v7, v7, v15")
    A(f"v_mul_u32_u24 v7, {RS}, v7"); A(f"v_and_b32 v15, 3, v{vCc}"); A("v_lshlrev_b32 v15, 3, v15")
    A("v_add_u32 v7, v7, v15"); A(f"v_add_u32 v7, s{st0}, v7")
    A(f"s_mov_b32 s{sOff}, 0")
    for q in range(0 if NOWO else 4):
        for n in range(8):
            A(f"buffer_load_dwordx4 v[{32+4*n}:{35+4*n}], v3, {srd(sC)}, s{sOff} offen {WOF}")
            A(f"s_add_u32 s{sOff}, s{sOff}, 4096")
            if n % PACE == PACE-1: A("s_waitcnt vmcnt(0)")
        A("s_waitcnt vmcnt(0)")
        for n in range(8): A(f"ds_write_b128 v6, v[{32+4*n}:{35+4*n}] offset:{4*n*RS}")
        A("s_waitcnt lgkmcnt(0)")
        for t in range(8):
            A(f"ds_read_b64_tr_b16 v[{vW+32*q+4*t}:{vW+32*q+4*t+1}], v7 offset:{t*32}")
            A(f"ds_read_b64_tr_b16 v[{vW+32*q+4*t+2}:{vW+32*q+4*t+3}], v7 offset:{t*32+4*RS}")
        A("s_waitcnt lgkmcnt(0)")
    A(f"s_cmp_lg_u32 s{sU}, 0"); A("s_cbranch_scc1 L_nostat")
    A(f"v_and_b32 v14, 3, v{vLane}"); A("v_lshlrev_b32 v14, 3, v14")
    A(f"s_mov_b32 s{sCnt}, {SPIN_LIMIT}")
    A.label("L_stspin")
    A("s_sleep 8")
    A(f"ds_read_b64 v[32:33], v14 offset:{L_STAT}"); A("s_waitcnt lgkmcnt(0)")
    spin_check([32, 33], 34, "L_stspin", "L_stok")
    A("v_max_f32_dpp v34, v32, v32 quad_perm:[1,0,3,2] row_mask:0xf bank_mask:0xf")
    A("v_max_f32_dpp v34, v34, v34 quad_perm:[2,3,0,1] row_mask:0xf bank_mask:0xf")
    A("v_sub_f32 v35, v32, v34"); A("v_mul_f32 v35, 0x3fb8aa3b, v35"); A("v_exp_f32 v35, v35")
    A("v_mul_f32 v35, v35, v33")
    A("v_add_f32_dpp v35, v35, v35 quad_perm:[1,0,3,2] row_mask:0xf bank_mask:0xf")
    A("v_add_f32_dpp v35, v35, v35 quad_perm:[2,3,0,1] row_mask:0xf bank_mask:0xf")
    A("v_mov_b32 v36, 0x7fc00000")
    sanitize([34, 35], 36)
    A("v_mov_b32 v15, 0")
    A(f"s_lshl_b32 s{st0}, s{sReg}, 7"); A(f"s_add_u32 s{st0}, s{st0}, {WS_ST}")
    A("s_mov_b64 exec, 1"); A(f"buffer_store_dwordx2 v[34:35], v15, {srd(sWS)}, s{st0} offen sc1"); A("s_mov_b64 exec, -1")
    A(f"s_mov_b32 s{sCnt}, {SPIN_LIMIT}")
    A.label("L_inspin")
    A(f"global_load_dword v37, v15, s[{pDBG}:{pDBG+1}] sc1"); A("s_waitcnt vmcnt(0)")
    A("v_cmp_gt_u32 vcc, 0x100, v37")
    A("s_cbranch_vccz L_inok")
    A("s_sleep 4")
    A(f"s_sub_u32 s{sCnt}, s{sCnt}, 1"); A("s_cbranch_scc0 L_inspin")
    A.label("L_inok")
    A(f"s_xor_b32 s{st1}, s{sReg}, 1"); A(f"s_lshl_b32 s{st1}, s{st1}, 7"); A(f"s_add_u32 s{st1}, s{st1}, {WS_ST}")
    A(f"s_mov_b32 s{sCnt}, {SPIN_LIMIT}")
    A.label("L_prspin")
    A("s_sleep 4")
    A(f"buffer_load_dwordx2 v[38:39], v15, {srd(sWS)}, s{st1} offen sc1"); A("s_waitcnt vmcnt(0)")
    spin_check([38, 39], 37, "L_prspin", "L_prok")
    A("v_max_f32 v40, v34, v38")
    A("v_sub_f32 v41, v34, v40"); A("v_sub_f32 v42, v38, v40"); A("v_sub_f32 v43, v32, v40")
    for r in (41, 42, 43): A(f"v_mul_f32 v{r}, 0x3fb8aa3b, v{r}")
    for r in (41, 42, 43): A(f"v_exp_f32 v{r}, v{r}")
    A("v_mul_f32 v41, v41, v35"); A("v_fmac_f32 v41, v42, v39")
    A("v_rcp_f32 v41, v41"); A("v_mul_f32 v43, v43, v41")
    sanitize([43], 36)
    A(f"v_lshlrev_b32 v14, 2, v{vLane}")
    A("s_mov_b64 exec, 0xf"); A(f"ds_write_b32 v14, v43 offset:{L_FW}"); A("s_mov_b64 exec, -1")
    A("s_waitcnt lgkmcnt(0)")
    A.label("L_nostat")
    A(f"v_and_b32 v14, 3, v{vLane}"); A("v_lshlrev_b32 v14, 8, v14")
    A(f"v_lshlrev_b32 v15, 4, v{vG}"); A("v_add_u32 v14, v14, v15")
    A(f"v_bfe_u32 v14, v{vLane}, 2, 2"); A("v_lshlrev_b32 v14, 8, v14"); A("v_add_u32 v14, v14, v15")
    A(f"v_lshlrev_b32 v6, 13, v{vG}"); A(f"v_lshlrev_b32 v7, 3, v{vCc}"); A("v_add_u32 v6, v6, v7")
    A(f"s_lshl_b32 s{st0}, s{sB}, 4"); A(f"s_lshl_b32 s{st1}, s{sU}, 2"); A(f"s_add_u32 s{st0}, s{st0}, s{st1}")
    A(f"s_lshl_b32 s{st0}, s{st0}, 13"); A(f"s_lshl_b32 s{st1}, s{sJ}, 7"); A(f"s_add_u32 s{sReg}, s{st0}, s{st1}")
    A("v_mov_b32 v7, 0x7fc00000")
    for k in range(32): A(f"v_mov_b32 v{64+k}, 0")
    stamp(3)
    A("s_barrier")
    stamp(4)
    for q in range(4): A(f"ds_read_b128 v[{32+4*q}:{35+4*q}], v14 offset:{L_OW+q*64}")
    for q in range(4):
        A(f"s_waitcnt lgkmcnt({3-q})")
        for t in range(8):
            A(f"v_mfma_f32_16x16x32_bf16 v[{64+4*t}:{67+4*t}], v[{32+4*q}:{35+4*q}], v[{vW+32*q+4*t}:{vW+32*q+4*t+3}], v[{64+4*t}:{67+4*t}]")
    Dt = [64+4*t for t in range(8)]
    for e in range(4): A(f"v_permlane32_swap_b32 v{Dt[e]}, v{Dt[e+4]}")
    for e in range(4): A(f"v_add_f32 v{Dt[e]}, v{Dt[e]}, v{Dt[e+4]}")
    A(f"v_permlane16_swap_b32 v{Dt[0]}, v{Dt[2]}"); A(f"v_permlane16_swap_b32 v{Dt[1]}, v{Dt[3]}")
    A(f"v_add_f32 v16, v{Dt[0]}, v{Dt[2]}"); A(f"v_add_f32 v17, v{Dt[1]}, v{Dt[3]}")
    sanitize([16, 17], 7)
    A(f"buffer_store_dwordx2 v[16:17], v6, {srd(sWS)}, s{sReg} offen sc1")
    A("s_barrier")
    stamp(5)
    if PROF and not COOPQ:
        A("s_waitcnt vmcnt(0)")
        stamp(1)
    prof_store(0)
    A.label("L_end")
    A("s_endpgm")
    A('.section .rodata,"a"'); A(".p2align 6"); A(f".amdhsa_kernel {NAME}")
    A("  .amdhsa_next_free_vgpr 256"); A("  .amdhsa_next_free_sgpr 96"); A("  .amdhsa_accum_offset 256")
    A("  .amdhsa_group_segment_fixed_size 0"); A("  .amdhsa_kernarg_size 88"); A("  .amdhsa_user_sgpr_count 2")
    A("  .amdhsa_user_sgpr_kernarg_segment_ptr 1"); A("  .amdhsa_system_sgpr_workgroup_id_x 1")
    A("  .amdhsa_float_denorm_mode_32 3"); A("  .amdhsa_float_denorm_mode_16_64 3")
    A(".end_amdhsa_kernel")
    return A.finalize()

if __name__ == "__main__":
    import build
    kw = json.loads(sys.argv[2]) if len(sys.argv) > 2 else {}
    s = gen(**kw)
    open(sys.argv[1], "w").write(s)
    build.build(sys.argv[1])
```

```python
import sys, json
from asmlib import Asm
NAME = "sequential_preLN__gqa_block_cached__dense_activation_relu__decode_kernel"

WS_Y  = 0x00000
WS_H  = 0x80000
WS_H1 = 0x8A000
H1_STRIDE = 11264
WS_ST = 0x98000
WS_W1T = 0x100000
WS_W2T = 0x280000
W2T_STRIDE = 43*1024
WS_PROF = 0x400000
WS_EP = 0xA0000
WS_QX = 0x600000
WS_SIZE = 0x700000
L_QP = 0; L_OW = 2048; L_STAT = 4096; L_FW = 4128
L_CNT = 4160; L_CNT2 = 4164; L_ROLE = 4168; L_BOOST = 4172; L_RR = 4352; L_RED = 4608; L_RED2 = L_RED + 4096; L_RED3 = L_RED2 + 2048
L_SC = 16384; L_STG = 32768; STG_W = 12288; RS = 288
LDS_BYTES = L_STG + 4*STG_W
POISON = -1
SPIN_LIMIT = 1 << 18

def brev4(n): return int(f"{n:04b}"[::-1], 2)

def gen(D=6, PROF=False, PACE=4, DBG=0, WQF='', WOF='', WFF='', NOWO=0, NOSTG=0, D0=5, SLP1=4, SLP2=4, SLPR=0, REPACK=0, NR=0, D2=12, NT2=0, ROTK=0, ROTQ=0, HB=16, G=2, WQP=0, TLBV=0, PACED=0, I0=16, COOPQ=0, QXS='sc1', QXL='sc1', NOQ=0, PD=1, STG=4, SLB=0, DYN=0, DV=0, OUTF='', BOOST=0, BMED=127, BD=6, BX=0, BST=0, QXW=-1):
    A = Asm()
    R = 16
    A(f"; @launch grid=(256,1,1) block=(512,1,1) lds={LDS_BYTES}")
    A('.amdgcn_target "amdgcn-amd-amdhsa--gfx950"')
    A(".text"); A(f".globl {NAME}"); A(".p2align 8"); A(f".type {NAME},@function"); A.label(NAME)
    sK, sV, sC, sWS, sT = 4, 8, 12, 16, 20
    sM0, sM1 = 24, 26
    sH, sB, sHalf, sReg = 28, 29, 30, 31
    sOff, sTile, sU = 32, 33, 34
    st0, st1, st2, st3 = 58, 59, 60, 61
    sJ = 62
    sCnt = 63
    sP = 64
    pX, pK, pV, pWQ, pWO, pW1, pW2, pOUT, pDBG, pWS = 36, 38, 40, 42, 44, 48, 50, 52, 54, 56
    srd = lambda s: f"s[{s}:{s+3}]"
    nst = [0]
    def stamp(i):
        if PROF: A(f"s_memrealtime s[{sP+2*i}:{sP+2*i+1}]")
    def prof_store(slot_wave):
        if not PROF: return
        A("s_waitcnt vmcnt(0) lgkmcnt(0)")
        A(f"s_lshl_b32 s{st0}, s2, 3"); A(f"s_add_u32 s{st0}, s{st0}, s3"); A(f"s_lshl_b32 s{st0}, s{st0}, 6")
        A(f"s_add_u32 s{st0}, s{st0}, {WS_PROF}")
        for i in range(8):
            A(f"v_mov_b32 v{40+i}, s{sP+2*i}")
        A(f"s_getreg_b32 s{st1}, hwreg(HW_REG_XCC_ID)"); A(f"s_getreg_b32 s{st2}, hwreg(HW_REG_HW_ID)")
        A(f"v_mov_b32 v50, s{st1}"); A(f"v_mov_b32 v51, s88")
        A(f"v_mov_b32 v48, 0")
        A("s_mov_b64 s[60:61], exec"); A("s_mov_b64 exec, 1")
        A(f"buffer_store_dwordx4 v[40:43], v48, {srd(sWS)}, s{st0} offen")
        A(f"buffer_store_dwordx4 v[44:47], v48, {srd(sWS)}, s{st0} offen offset:16")
        A(f"buffer_store_dwordx2 v[50:51], v48, {srd(sWS)}, s{st0} offen offset:32")
        A("s_mov_b64 exec, s[60:61]")
    def mk_srd(s, p, size, off_sgpr=None, off_imm=None):
        if off_sgpr is not None:
            A(f"s_add_u32 s{s}, s{p}, s{off_sgpr}"); A(f"s_addc_u32 s{s+1}, s{p+1}, 0")
        elif off_imm is not None:
            A(f"s_add_u32 s{s}, s{p}, {off_imm}"); A(f"s_addc_u32 s{s+1}, s{p+1}, 0")
        else:
            A(f"s_mov_b32 s{s}, s{p}"); A(f"s_mov_b32 s{s+1}, s{p+1}")
        A(f"s_mov_b32 s{s+2}, {size}")
        A(f"s_mov_b32 s{s+3}, 0x20000")
    def wave_allreduce(op, x, t):
        for k in (8, 4, 2, 1):
            A(f"{op}_dpp v{x}, v{x}, v{x} row_ror:{k} row_mask:0xf bank_mask:0xf")
        A(f"v_mov_b32 v{t}, v{x}"); A(f"v_permlane16_swap_b32 v{x}, v{t}"); A(f"{op} v{x}, v{x}, v{t}")
        A(f"v_mov_b32 v{t}, v{x}"); A(f"v_permlane32_swap_b32 v{x}, v{t}"); A(f"{op} v{x}, v{x}, v{t}")
    def round_bf16(x, t=None):
        A(f"v_cvt_pk_bf16_f32 v{x}, v{x}, v{x}")
        A(f"v_and_b32 v{x}, 0xffff0000, v{x}")
    def acc_reduce(a):
        for e in range(4):
            A(f"v_permlane32_swap_b32 v{a+e}, v{a+e+4}")
        for e in range(4):
            A(f"v_add_f32 v{a+e}, v{a+e}, v{a+e+4}")
        A(f"v_permlane16_swap_b32 v{a}, v{a+2}")
        A(f"v_permlane16_swap_b32 v{a+1}, v{a+3}")
        A(f"v_add_f32 v{a}, v{a}, v{a+2}")
        A(f"v_add_f32 v{a+1}, v{a+1}, v{a+3}")
    def sanitize(regs, repl_sgpr, tmpmask="vcc"):
        for r in regs:
            A(f"v_cmp_eq_u32 vcc, -1, v{r}")
            A(f"v_cndmask_b32 v{r}, v{r}, v{repl_sgpr}, vcc")
    def spin_check(regs, tmp, loop, done, fail=None):
        rs = list(regs)
        if len(rs) == 1:
            m = rs[0]
        else:
            A(f"v_max_u32 v{tmp}, v{rs[0]}, v{rs[1]}"); rs = rs[2:]
            while len(rs) >= 2:
                A(f"v_max3_u32 v{tmp}, v{tmp}, v{rs[0]}, v{rs[1]}"); rs = rs[2:]
            if rs: A(f"v_max_u32 v{tmp}, v{tmp}, v{rs[0]}")
            m = tmp
        A(f"v_cmp_eq_u32 vcc, -1, v{m}")
        A(f"s_cbranch_vccz {done}")
        A(f"s_sub_u32 s{sCnt}, s{sCnt}, 1")
        A(f"s_cbranch_scc0 {loop}")
        A.label(done)

    stamp(0)
    A("s_cmp_ge_u32 s2, 256")
    A("s_cbranch_scc1 L_end")
    A("s_load_dwordx16 s[36:51], s[0:1], 0")
    A("s_load_dwordx4 s[52:55], s[0:1], 64")
    A("s_load_dwordx2 s[56:57], s[0:1], 80")
    A("v_lshrrev_b32 v1, 6, v0")
    A("v_and_b32 v2, 63, v0")
    A(f"s_and_b32 s{st0}, s2, 7")
    A("v_readfirstlane_b32 s3, v1")
    A(f"s_lshr_b32 s{st1}, s2, 3")
    A(f"s_lshr_b32 s{sH}, s{st1}, 3"); A(f"s_lshl_b32 s{sH}, s{sH}, 3"); A(f"s_add_u32 s{sH}, s{sH}, s{st0}")
    A(f"s_and_b32 s{st1}, s{st1}, 7")
    A(f"s_lshr_b32 s{sB}, s{st1}, 1")
    A(f"s_and_b32 s{sHalf}, s{st1}, 1")
    A(f"s_lshl_b32 s{sReg}, s{sB}, 5"); A(f"s_add_u32 s{sReg}, s{sReg}, s{sH}")
    A(f"s_lshl_b32 s{sReg}, s{sReg}, 1"); A(f"s_add_u32 s{sReg}, s{sReg}, s{sHalf}")
    A(f"s_lshl_b32 s{sJ}, s{sH}, 1"); A(f"s_add_u32 s{sJ}, s{sJ}, s{sHalf}")
    A("s_cmp_ge_u32 s3, 4")
    A("s_cbranch_scc1 L_helper")

    vLane, vOff = 2, 3
    vQ = 4; vAcc = 8; vP = 16; vtA, vtB = 32, 33; vM, vL, vSC, vPn, vPlo, vPhi = 34, 35, 36, 37, 38, 39
    vRing = 64
    ring = lambda i: vRing + 4*(i % R)
    A("s_getpc_b64 s[58:59]")
    A.label("L_pc")
    A(f"s_sub_u32 s58, s58, L_pc-{NAME}"); A("s_subb_u32 s59, s59, 0")
    A(f"v_lshlrev_b32 v40, 7, v{vLane}")
    A(f"s_lshl_b32 s{st2}, s3, 13")
    A(f"v_add_u32 v40, s{st2}, v40")
    A(f"v_min_u32 v40, L_end-{NAME}, v40")
    A("global_load_dword v41, v40, s[58:59]")
    A(f"v_lshlrev_b32 v{vOff}, 4, v{vLane}")
    A(f"s_mul_i32 s{st0}, s3, {1024*G}")
    A(f"v_add_u32 v{vOff}, s{st0}, v{vOff}")
    A(f"s_lshr_b32 s{st0}, s{sReg}, 1"); A(f"s_lshl_b32 s{st0}, s{st0}, 21")
    A(f"s_lshl_b32 s{st3}, s{sHalf}, {HB}"); A(f"s_add_u32 s{st0}, s{st0}, s{st3}")
    A(f"s_sub_u32 s{st3}, {1<<21 if HB < 20 else 1<<20}, s{st3}") if HB < 20 else A(f"s_mov_b32 s{st3}, {1<<20}")
    A("s_waitcnt lgkmcnt(0)")
    mk_srd(sK, pK, 1 << 20, off_sgpr=st0)
    A(f"s_mov_b32 s{sK+2}, s{st3}")
    sRot = 35
    if ROTK:
        A(f"s_mul_i32 s{sRot}, s2, {ROTK}"); A(f"s_and_b32 s{sRot}, s{sRot}, 255"); A(f"s_lshl_b32 s{sRot}, s{sRot}, 12")
    else:
        A(f"s_mov_b32 s{sRot}, 0")
    A(f"s_mov_b32 s{sOff}, s{sRot}")
    vX = 160
    def sload(i, s, extra=False):
        dst = vX + 4*(i-16) if extra else ring(i)
        A(f"buffer_load_dwordx4 v[{dst}:{dst+3}], v{vOff}, {srd(s)}, s{sOff} offen nt")
        p_ = i % 16
        def addr(p):
            o = (p//G)*4*G*1024 + (p%G)*1024
            return o if HB >= 20 else ((o >> HB) << (HB+1)) | (o & ((1 << HB)-1))
        assert HB >= 20 or (1 << HB) <= 65536
        inc = addr(p_+1) - addr(p_) if p_ < 15 else (addr(16) - addr(15))
        A(f"s_add_u32 s{sOff}, s{sOff}, {inc}")
        if ROTK: A(f"s_and_b32 s{sOff}, s{sOff}, 0xfffff")
    for i in range(D0): sload(i, sK)
    A("s_barrier")
    if COOPQ: assert PACED
    if PACED:
        for i in range(D0, I0):
            if i >= PACED: A(f"s_waitcnt vmcnt({PACED-1})")
            sload(i, sK, extra=(i >= 16))
    elif NR == 0:
        A("s_barrier")
        for i in range(D0, R): sload(i, sK)
    else:
        rest = list(range(D0, R))
        for r_ in range(NR):
            lo = len(rest)*r_//NR; hi = len(rest)*(r_+1)//NR
            for i in rest[lo:hi]: sload(i, sK)
            if r_ < NR-1: A("s_barrier")
    mk_srd(sV, pV, 1 << 20, off_sgpr=st0)
    A(f"s_mov_b32 s{sV+2}, s{st3}")
    for k in range(4): A(f"s_mov_b32 s{sC+k}, s{sK+k}")
    mk_srd(sWS, pWS, WS_SIZE)
    A(f"s_mov_b32 s{sM0}, 0xaaaaaaaa"); A(f"s_mov_b32 s{sM0+1}, 0xaaaaaaaa")
    A(f"s_mov_b32 s{sM1}, 0xcccccccc"); A(f"s_mov_b32 s{sM1+1}, 0xcccccccc")
    A(f"s_lshl_b32 s{st2}, s3, 12"); A(f"s_add_u32 s{st2}, s{st2}, {L_SC}")
    A(f"v_lshlrev_b32 v{vSC}, 2, v{vLane}"); A(f"v_add_u32 v{vSC}, s{st2}, v{vSC}")
    A(f"v_mov_b32 v{vM}, 0xff7fffff")
    A(f"v_and_b32 v42, 15, v{vLane}"); A("v_lshlrev_b32 v42, 5, v42")
    if DBG & 4:
        A(f"s_waitcnt vmcnt({16-D0})"); stamp(6); A("s_waitcnt vmcnt(0)"); stamp(7)
    stamp(1)
    A("s_barrier")
    vqt = 128
    for u in range(4):
        A(f"ds_read_b128 v[{vqt+8*u}:{vqt+8*u+3}], v42 offset:{L_QP+u*512}")
        A(f"ds_read_b128 v[{vqt+8*u+4}:{vqt+8*u+7}], v42 offset:{L_QP+u*512+16}")
    A("s_waitcnt lgkmcnt(0)")
    for e in range(8):
        A(f"v_add_f32 v{vqt+e}, v{vqt+e}, v{vqt+8+e}")
        A(f"v_add_f32 v{vqt+16+e}, v{vqt+16+e}, v{vqt+24+e}")
    for e in range(8): A(f"v_add_f32 v{vqt+e}, v{vqt+e}, v{vqt+16+e}")
    for r in range(4): A(f"v_cvt_pk_bf16_f32 v{vQ+r}, v{vqt+2*r}, v{vqt+2*r+1}")
    if DBG & 1:
        A("s_cmp_lg_u32 s3, 0"); A("s_cbranch_scc1 L_dbgq")
        A(f"s_lshl_b32 s{st2}, s{sReg}, 8"); A(f"s_add_u32 s{st2}, s{st2}, {WS_PROF+0x80000}")
        A(f"v_lshlrev_b32 v40, 4, v{vLane}")
        A("s_mov_b64 exec, 0xffff")
        A(f"buffer_store_dwordx4 v[{vQ}:{vQ+3}], v40, {srd(sWS)}, s{st2} offen")
        A("s_mov_b64 exec, -1")
        A("s_waitcnt vmcnt(0)")
        A.label("L_dbgq")
    stamp(2)
    vW0, vW1, vS = 44, 45, 46
    def k_tail_ops():
        P = lambda n: vP + n
        g = []
        g.append([f"v_add_f32_dpp v{P(14)}, v{P(14)}, v{P(14)} row_ror:8 row_mask:0xf bank_mask:0x3",
                  f"v_add_f32_dpp v{P(14)}, v{P(15)}, v{P(15)} row_ror:8 row_mask:0xf bank_mask:0xc"])
        g.append([f"v_add_f32_dpp v{P(12)}, v{P(12)}, v{P(12)} row_shl:4 row_mask:0xf bank_mask:0x5",
                  f"v_add_f32_dpp v{P(12)}, v{P(14)}, v{P(14)} row_shr:4 row_mask:0xf bank_mask:0xa"])
        g.append([f"v_add_f32_dpp v{vtA}, v{P(8)}, v{P(8)} quad_perm:[2,3,0,1] row_mask:0xf bank_mask:0xf",
                  f"v_add_f32_dpp v{vtB}, v{P(12)}, v{P(12)} quad_perm:[2,3,0,1] row_mask:0xf bank_mask:0xf",
                  f"v_cndmask_b32 v{vW1}, v{vtA}, v{vtB}, s[{sM1}:{sM1+1}]"])
        g.append([f"v_add_f32_dpp v{vtA}, v{vW0}, v{vW0} quad_perm:[1,0,3,2] row_mask:0xf bank_mask:0xf",
                  f"v_add_f32_dpp v{vtB}, v{vW1}, v{vW1} quad_perm:[1,0,3,2] row_mask:0xf bank_mask:0xf",
                  f"v_cndmask_b32 v{vS}, v{vtA}, v{vtB}, s[{sM0}:{sM0+1}]"])
        g.append([f"v_cvt_pk_bf16_f32 v{vS}, v{vS}, v{vS}", f"v_and_b32 v{vS}, 0xffff0000, v{vS}"])
        g.append([f"v_mul_f32 v{vS}, 0x3db504f3, v{vS}", f"v_cvt_pk_bf16_f32 v{vS}, v{vS}, v{vS}"])
        g.append([f"v_and_b32 v{vS}, 0xffff0000, v{vS}", f"v_max_f32 v{vM}, v{vM}, v{vS}",
                  f"ds_write_b32 v{vSC}, v{vS}", f"v_add_u32 v{vSC}, 256, v{vSC}"])
        return g
    def k_tile(first, pt=0):
        P = lambda n: vP + n
        def redA(k):
            A(f"v_add_f32_dpp v{P(2*k)}, v{P(2*k)}, v{P(2*k)} row_ror:8 row_mask:0xf bank_mask:0x3")
            A(f"v_add_f32_dpp v{P(2*k)}, v{P(2*k+1)}, v{P(2*k+1)} row_ror:8 row_mask:0xf bank_mask:0xc")
        def redB(m):
            A(f"v_add_f32_dpp v{P(4*m)}, v{P(4*m)}, v{P(4*m)} row_shl:4 row_mask:0xf bank_mask:0x5")
            A(f"v_add_f32_dpp v{P(4*m)}, v{P(4*m+2)}, v{P(4*m+2)} row_shr:4 row_mask:0xf bank_mask:0xa")
        def redC0():
            A(f"v_add_f32_dpp v{vtA}, v{P(0)}, v{P(0)} quad_perm:[2,3,0,1] row_mask:0xf bank_mask:0xf")
            A(f"v_add_f32_dpp v{vtB}, v{P(4)}, v{P(4)} quad_perm:[2,3,0,1] row_mask:0xf bank_mask:0xf")
            A(f"v_cndmask_b32 v{vW0}, v{vtA}, v{vtB}, s[{sM1}:{sM1+1}]")
        tail = [] if (first and pt == 0) else k_tail_ops()
        for n in range(16):
            pos = 16*pt + n
            if not first: A(f"s_waitcnt vmcnt({D-1})")
            else:
                younger = max(0, I0 - 1 - pos) + max(0, min(pos, 1 << 30) - (I0 - D)) if pos < I0 else D-1
                A(f"s_waitcnt vmcnt({younger})")
            if (not first) or pos + D >= I0:
                if n == 16 - D and not first:
                    A(f"s_cmp_eq_u32 s{sTile}, 15")
                    A(f"s_cselect_b32 s{sC}, s{sV}, s{sC}")
                    A(f"s_cselect_b32 s{sC+1}, s{sV+1}, s{sC+1}")
                    A(f"s_cselect_b32 s{sOff}, s{sRot}, s{sOff}")
                sload(n + D, sC)
            r = vX + 4*n if (first and pt == 1 and pos < I0) else ring(n)
            A(f"v_dot2_f32_bf16 v{P(n)}, v{r}, v{vQ}, 0")
            for k in range(1, 4): A(f"v_dot2_f32_bf16 v{P(n)}, v{r+k}, v{vQ+k}, v{P(n)}")
            if n < len(tail):
                for x in tail[n]: A(x)
            if n >= 2 and n % 2 == 0: redA((n-2)//2)
            if n in (5, 9, 13): redB((n-5)//4)
            if n == 11: redC0()
    A(f"s_mov_b32 s{sTile}, 0")
    k_tile(True, 0)
    if I0 > 16:
        k_tile(True, 1)
    A(f"s_mov_b32 s{sTile}, {2 if I0 > 16 else 1}")
    A.label("L_kloop")
    k_tile(False)
    A(f"s_add_u32 s{sTile}, s{sTile}, 1")
    if PROF and (DBG & 16):
        A(f"s_cmp_lg_u32 s{sTile}, 3"); A("s_cbranch_scc1 L_nk1"); stamp(1); A.label("L_nk1")
        A(f"s_cmp_lg_u32 s{sTile}, 6"); A("s_cbranch_scc1 L_nk2"); stamp(6); A.label("L_nk2")
        A(f"s_cmp_lg_u32 s{sTile}, 11"); A("s_cbranch_scc1 L_nk3"); stamp(7); A.label("L_nk3")
    A(f"s_cmp_lt_u32 s{sTile}, 16")
    A("s_cbranch_scc1 L_kloop")
    for grp in k_tail_ops():
        for x in grp: A(x)
    stamp(3)
    A(f"v_subrev_u32 v{vSC}, 4096, v{vSC}")
    A("s_waitcnt lgkmcnt(0)")
    for t in range(16): A(f"ds_read_b32 v{vP+t}, v{vSC} offset:{t*256}")
    wave_allreduce("v_max_f32", vM, vtA)
    A(f"v_mul_f32 v{vtB}, 0xbfb8aa3b, v{vM}")
    A(f"s_mov_b32 s{st0}, 0x3fb8aa3b")
    A("s_waitcnt lgkmcnt(0)")
    for t in range(16): A(f"v_fma_f32 v{vP+t}, v{vP+t}, s{st0}, v{vtB}")
    for t in range(16): A(f"v_exp_f32 v{vP+t}, v{vP+t}")
    A(f"v_add_f32 v{vL}, v{vP}, v{vP+1}")
    for t in range(2, 16): A(f"v_add_f32 v{vL}, v{vL}, v{vP+t}")
    for t in range(16): A(f"v_cvt_pk_bf16_f32 v{vP+t}, v{vP+t}, v{vP+t}")
    for t in range(16): A(f"ds_write_b32 v{vSC}, v{vP+t} offset:{t*256}")
    wave_allreduce("v_add_f32", vL, vtA)
    A(f"v_mov_b32 v40, v{vM}"); A(f"v_mov_b32 v41, v{vL}")
    A("v_mov_b32 v43, 0x7fc00000")
    sanitize([40, 41], 43)
    A(f"s_lshl_b32 s{st0}, s3, 3"); A(f"s_add_u32 s{st0}, s{st0}, {L_STAT}"); A(f"v_mov_b32 v42, s{st0}")
    A("s_mov_b64 exec, 1"); A("ds_write_b64 v42, v[40:41]"); A("s_mov_b64 exec, -1")
    A(f"v_mov_b32 v{vPn}, v{vP}")
    for e in range(8): A(f"v_mov_b32 v{vAcc+e}, 0")
    A(f"s_mov_b32 s{sTile}, 0")
    def pre_end():
        A(f"v_and_b32 v40, 15, v{vLane}"); A("v_lshlrev_b32 v40, 4, v40")
        A(f"v_lshrrev_b32 v41, 4, v{vLane}"); A("v_lshlrev_b32 v41, 2, v41")
        A("v_add_u32 v40, v40, v41")
        A(f"s_lshl_b32 s{st0}, s3, 8"); A(f"s_add_u32 s{st0}, s{st0}, {L_OW}"); A(f"v_add_u32 v40, s{st0}, v40")
        A(f"s_lshl_b32 s{st0}, s3, 2"); A(f"s_add_u32 s{st0}, s{st0}, {L_FW}"); A(f"v_mov_b32 v42, s{st0}")
        A(f"s_and_b32 s{st0}, s2, 7"); A(f"s_lshl_b32 s{st0}, s{st0}, 2"); A(f"s_add_u32 s{st0}, s{st0}, 32"); A(f"v_mov_b32 v44, s{st0}")
        A("v_mov_b32 v46, 1")
        A(f"s_mov_b32 s{sCnt}, {SPIN_LIMIT}")
        A.label("L_fwspin")
        A("ds_read_b32 v43, v42"); A("s_waitcnt lgkmcnt(0)")
        spin_check([43], 47, "L_fwspin", "L_fwok")
    def v_loop(label, depth, tend):
        A.label(label)
        A(f"v_and_b32 v{vPlo}, 0xffff, v{vPn}")
        A(f"v_and_b32 v{vPhi}, 0xffff0000, v{vPn}")
        A(f"v_add_u32 v{vSC}, 256, v{vSC}")
        A(f"ds_read_b32 v{vPn}, v{vSC}")
        for n in range(16):
            A(f"s_waitcnt vmcnt({depth-1})")
            r = ring(n); bl = brev4(n)
            if ROTK and n == 16 - depth and tend == 16:
                A(f"s_cmp_eq_u32 s{sTile}, 15"); A(f"s_cselect_b32 s{sC+2}, 0, s{sC+2}")
            sload(n + depth, sC)
            for k in range(4):
                A(f"v_dot2c_f32_bf16_dpp v{vAcc+2*k}, v{vPlo}, v{r+k} row_newbcast:{bl} row_mask:0xf bank_mask:0xf")
                A(f"v_dot2c_f32_bf16_dpp v{vAcc+2*k+1}, v{vPhi}, v{r+k} row_newbcast:{bl} row_mask:0xf bank_mask:0xf")
        A("s_waitcnt lgkmcnt(0)")
        A(f"s_add_u32 s{sTile}, s{sTile}, 1")
        if PROF and (DBG & 8) and label == "L_vloop":
            A(f"s_cmp_lg_u32 s{sTile}, 1"); A("s_cbranch_scc1 L_nost"); stamp(1); A.label("L_nost")
        A(f"s_cmp_lt_u32 s{sTile}, {tend}")
        A(f"s_cbranch_scc1 {label}")
    DVV = DV if DV else D
    assert DVV >= D
    for i_ in range(D, DVV): sload(i_, sC)
    def v_body(depth, skippable=False, tag=""):
        A(f"v_and_b32 v{vPlo}, 0xffff, v{vPn}")
        A(f"v_and_b32 v{vPhi}, 0xffff0000, v{vPn}")
        A(f"v_add_u32 v{vSC}, 256, v{vSC}")
        A(f"ds_read_b32 v{vPn}, v{vSC}")
        if skippable and not (BX & 1): A(f"ds_read_b32 v45, v47")
        for n in range(16):
            A(f"s_waitcnt vmcnt({depth-1})")
            r = ring(n); bl = brev4(n)
            if skippable and n < BD - DVV and not (BX & 2):
                A(f"s_cmp_gt_u32 s89, {n}"); A(f"s_cbranch_scc1 L_vskip{n}")
                sload(n + depth, sC)
                A.label(f"L_vskip{n}")
            else:
                sload(n + depth, sC)
            for k in range(4):
                A(f"v_dot2c_f32_bf16_dpp v{vAcc+2*k}, v{vPlo}, v{r+k} row_newbcast:{bl} row_mask:0xf bank_mask:0xf")
                A(f"v_dot2c_f32_bf16_dpp v{vAcc+2*k+1}, v{vPhi}, v{r+k} row_newbcast:{bl} row_mask:0xf bank_mask:0xf")
        A("s_waitcnt lgkmcnt(0)")
        A(f"s_add_u32 s{sTile}, s{sTile}, 1")
    if BOOST:
        assert NT2 >= 1 and not ROTK
        TE = 16 - NT2
        A("s_mov_b32 s89, 0"); A(f"s_mov_b32 s90, {1 if BX & 8 else 0}"); A(f"v_mov_b32 v47, {L_BOOST}"); A("v_mov_b32 v45, -1")
        A.label("L_vloop")
        v_body(DVV, skippable=True)
        A("s_mov_b32 s89, 0")
        A(f"s_cmp_ge_u32 s{sTile}, {TE}"); A("s_cbranch_scc1 L_vexit")
        A("s_cmp_lg_u32 s90, 0"); A("s_cbranch_scc1 L_vloop")
        A("v_readfirstlane_b32 s91, v45")
        A("s_cmp_eq_u32 s91, -1"); A("s_cbranch_scc1 L_vloop")
        A("s_mov_b32 s90, 1")
        A(f"s_sub_u32 s{st0}, {TE-1}, s{sTile}"); A(f"s_min_u32 s91, s91, s{st0}")
        if PROF: A(f"s_mov_b32 s{sP+2}, s91")
        A("s_cmp_eq_u32 s91, 0"); A("s_cbranch_scc1 L_vloop")
        for i_ in range(DVV, BD): sload(i_, sC)
        A.label("L_vboost")
        v_body(BD)
        A("s_sub_u32 s91, s91, 1"); A("s_cmp_lg_u32 s91, 0"); A("s_cbranch_scc1 L_vboost")
        A(f"s_mov_b32 s89, {BD-DVV}")
        A("s_branch L_vloop")
        A.label("L_vexit")
        pre_end()
        for i_ in range(DVV, D2): sload(i_, sC)
        v_loop("L_vloop2", D2, 16)
    elif NT2 == 0:
        v_loop("L_vloop", DVV, 16)
    else:
        v_loop("L_vloop", DVV, 16 - NT2)
        pre_end()
        for i_ in range(DVV, D2): sload(i_, sC)
        v_loop("L_vloop2", D2, 16)
    if NT2 == 0: pre_end()
    stamp(4)
    if DYN:
        A("s_cmp_lg_u32 s3, 0"); A("s_cbranch_scc1 L_notick")
        A("s_mov_b64 exec, 1"); A(f"global_atomic_add v45, v44, v46, s[{pDBG}:{pDBG+1}] sc0"); A("s_mov_b64 exec, -1")
        A.label("L_notick")
    acc_reduce(vAcc)
    A(f"v_mul_f32 v{vAcc}, v{vAcc}, v43"); A(f"v_mul_f32 v{vAcc+1}, v{vAcc+1}, v43")
    A(f"v_cvt_pk_bf16_f32 v{vAcc}, v{vAcc}, v{vAcc+1}")
    A(f"ds_write_b32 v40, v{vAcc}")
    A("s_waitcnt lgkmcnt(0)")
    A("s_barrier")
    stamp(5)
    A("s_waitcnt vmcnt(0)")
    sVid = 88
    if DYN:
        A("s_cmp_lg_u32 s3, 0"); A("s_cbranch_scc1 L_norole")
        A(f"v_readfirstlane_b32 s{st0}, v45")
        A(f"s_and_b32 s{st1}, s2, 7")
        A(f"s_lshl_b32 s{st2}, s{st0}, 3"); A(f"s_add_u32 s{st2}, s{st2}, s{st1}")
        A(f"s_mov_b32 s{sVid}, 255")
        A(f"s_sub_u32 s{st3}, s{st2}, {8*15}"); A(f"s_cmp_lt_u32 s{st0}, 23"); A(f"s_cselect_b32 s{sVid}, s{st3}, s{sVid}")
        A(f"s_add_u32 s{st3}, s{st2}, {64-8*4}"); A(f"s_cmp_lt_u32 s{st0}, 15"); A(f"s_cselect_b32 s{sVid}, s{st3}, s{sVid}")
        A(f"s_add_u32 s{st3}, s{st2}, 152"); A(f"s_cmp_lt_u32 s{st0}, 4"); A(f"s_cselect_b32 s{sVid}, s{st3}, s{sVid}")
        A(f"v_mov_b32 v44, {L_ROLE}"); A(f"v_mov_b32 v45, s{sVid}")
        A("s_mov_b64 exec, 1"); A("ds_write_b32 v44, v45"); A("s_mov_b64 exec, -1")
        A("s_waitcnt lgkmcnt(0)")
        A.label("L_norole")
    A("s_barrier")
    if DYN:
        A(f"v_mov_b32 v44, {L_ROLE}"); A("ds_read_b32 v45, v44"); A("s_waitcnt lgkmcnt(0)")
        A(f"v_readfirstlane_b32 s{sVid}, v45")
    else:
        A(f"s_mov_b32 s{sVid}, s2")
    A(f"s_cmp_lt_u32 s{sVid}, 64"); A("s_cbranch_scc1 L_red")
    A(f"s_cmp_lt_u32 s{sVid}, 152"); A("s_cbranch_scc1 L_ffn1")
    A(f"s_cmp_lt_u32 s{sVid}, 184"); A("s_cbranch_scc1 L_ffn2")
    A.label("L_sdone")
    prof_store(0)
    A("s_endpgm")

    A.label("L_red")
    A(f"s_lshl_b32 s{st0}, s88, 13"); A(f"s_lshl_b32 s{st1}, s3, 11"); A(f"s_add_u32 s{st0}, s{st0}, s{st1}")
    A(f"v_lshlrev_b32 v3, 4, v{vLane}")
    A(f"s_lshr_b32 s{st3}, s88, 4"); A(f"s_lshl_b32 s{st1}, s{st3}, 10")
    A(f"s_and_b32 s{st2}, s88, 15"); A(f"s_lshl_b32 s{sTile}, s{st2}, 6"); A(f"s_add_u32 s{st1}, s{st1}, s{sTile}")
    A(f"v_and_b32 v4, 7, v{vLane}"); A("v_lshlrev_b32 v4, 2, v4")
    A(f"v_lshrrev_b32 v5, 5, v{vLane}"); A("v_lshlrev_b32 v5, 5, v5"); A("v_add_u32 v4, v4, v5")
    mk_srd(sT, pX, 4096)
    A(f"buffer_load_dword v6, v4, {srd(sT)}, s{st1} offen")
    A(f"v_bfe_u32 v5, v{vLane}, 3, 2"); A("v_lshlrev_b32 v5, 12, v5"); A("v_add_u32 v7, v4, v5")
    A(f"s_lshl_b32 s{st2}, s{st2}, 8"); A(f"s_lshl_b32 s{st3}, s{st3}, 6"); A(f"s_add_u32 s{st1}, s{st2}, s{st3}")
    A(f"s_add_u32 s{st1}, s{st1}, {WS_H}")
    A(f"v_lshlrev_b32 v9, 1, v4")
    A(f"s_lshl_b32 s{st2}, s3, 7"); A(f"v_add_u32 v10, s{st2}, v9")
    A(f"s_mov_b32 s{sCnt}, {SPIN_LIMIT}")
    def red_issue():
        A(f"buffer_load_dwordx4 v[16:19], v3, {srd(sWS)}, s{st0} offen sc1")
    A(f"buffer_load_dwordx4 v[16:19], v3, {srd(sWS)}, s{st0} offen sc1")
    A(f"buffer_load_dwordx4 v[20:23], v3, {srd(sWS)}, s{st0} offen offset:1024 sc1")
    for d_ in range(PD-1):
        A(f"s_sleep {STG}")
        A(f"buffer_load_dwordx4 v[16:19], v3, {srd(sWS)}, s{st0} offen sc1")
        A(f"buffer_load_dwordx4 v[20:23], v3, {srd(sWS)}, s{st0} offen offset:1024 sc1")
    A.label("L_redspin")
    A(f"s_waitcnt vmcnt({2*(PD-1)})")
    A("v_max3_u32 v8, v16, v17, v18"); A("v_max3_u32 v11, v20, v21, v22")
    A("v_max_u32 v8, v8, v19"); A("v_max_u32 v11, v11, v23")
    A("v_cmp_eq_u32 s[80:81], -1, v8"); A("v_cmp_eq_u32 s[82:83], -1, v11")
    A("s_or_b64 s[84:85], s[80:81], s[82:83]")
    A("s_cbranch_scc0 L_redok")
    if SLPR: A(f"s_sleep {SLPR}")
    A("s_or_b32 s80, s80, 1"); A("s_or_b32 s82, s82, 1")
    A("s_mov_b64 exec, s[80:81]")
    A(f"buffer_load_dwordx4 v[16:19], v3, {srd(sWS)}, s{st0} offen sc1")
    A("s_mov_b64 exec, s[82:83]")
    A(f"buffer_load_dwordx4 v[20:23], v3, {srd(sWS)}, s{st0} offen offset:1024 sc1")
    A("s_mov_b64 exec, -1")
    A(f"s_sub_u32 s{sCnt}, s{sCnt}, 1"); A("s_cbranch_scc0 L_redspin")
    A.label("L_redok")
    stamp(7)
    if PROF: A(f"s_sub_u32 s{sP+2}, {SPIN_LIMIT}, s{sCnt}")
    for k in range(4): A(f"v_add_f32 v{24+k}, v{16+k}, v{20+k}")
    A("v_permlane32_swap_b32 v24, v25"); A("v_permlane32_swap_b32 v26, v27")
    A("v_add_f32 v24, v24, v25"); A("v_add_f32 v25, v26, v27")
    A("v_mov_b32 v26, v24"); A("v_mov_b32 v27, v25")
    A("v_permlane16_swap_b32 v24, v26"); A("v_permlane16_swap_b32 v25, v27")
    A("v_add_f32 v24, v24, v26"); A("v_add_f32 v25, v25, v27")
    A("v_add_f32_dpp v24, v24, v24 row_ror:8 row_mask:0xf bank_mask:0xf")
    A("v_add_f32_dpp v25, v25, v25 row_ror:8 row_mask:0xf bank_mask:0xf")
    A(f"ds_write_b64 v10, v[24:25] offset:{L_RR}")
    A("s_waitcnt lgkmcnt(0)")
    A("s_barrier")
    A("s_cmp_lg_u32 s3, 0"); A("s_cbranch_scc1 L_sdone")
    for u in range(4): A(f"ds_read_b64 v[{32+2*u}:{33+2*u}], v9 offset:{L_RR+u*128}")
    A("v_lshlrev_b32 v40, 16, v6"); A("v_and_b32 v41, 0xffff0000, v6")
    A("v_mov_b32 v42, 0x7fc07fc0")
    A("s_waitcnt lgkmcnt(0)")
    A("v_add_f32 v32, v32, v34"); A("v_add_f32 v33, v33, v35"); A("v_add_f32 v36, v36, v38"); A("v_add_f32 v37, v37, v39")
    A("v_add_f32 v32, v32, v36"); A("v_add_f32 v33, v33, v37")
    A("v_cvt_pk_bf16_f32 v32, v32, v33")
    A("v_lshlrev_b32 v34, 16, v32"); A("v_and_b32 v35, 0xffff0000, v32")
    A("v_add_f32 v34, v34, v40"); A("v_add_f32 v35, v35, v41")
    A("v_cvt_pk_bf16_f32 v32, v34, v35")
    sanitize([32], 42)
    A(f"buffer_store_dword v32, v7, {srd(sWS)}, s{st1} offen sc1")
    A(f"s_add_u32 s{st1}, s{st1}, 16384")
    A(f"buffer_store_dword v32, v7, {srd(sWS)}, s{st1} offen sc1")
    A(f"s_add_u32 s{st1}, s{st1}, 16384")
    A("s_mov_b32 exec_lo, 0xff"); A("s_mov_b32 exec_hi, 0xff")
    A(f"buffer_store_dword v32, v4, {srd(sWS)}, s{st1} offen sc1")
    A("s_mov_b64 exec, -1")
    stamp(6)
    A("s_branch L_sdone")

    def ffn1_tile(dst, src="s2"):
        A(f"s_sub_u32 s{st0}, {src}, 64")
        A(f"s_and_b32 s{st1}, s{st0}, 7")
        A(f"s_lshr_b32 s{st0}, s{st0}, 3")
        A(f"s_lshr_b32 s{st2}, s{st0}, 2"); A(f"s_lshl_b32 s{st2}, s{st2}, 3"); A(f"s_add_u32 s{st2}, s{st2}, s{st1}")
        A(f"s_lshl_b32 s{st2}, s{st2}, 2"); A(f"s_and_b32 s{st3}, s{st0}, 3"); A(f"s_add_u32 s{st2}, s{st2}, s{st3}")
        A(f"s_mul_i32 s{st1}, s{st1}, 3"); A(f"s_add_u32 s{st1}, s{st1}, s{st0}"); A(f"s_add_u32 s{st1}, s{st1}, 56")
        A(f"s_cmp_lt_u32 s{st0}, 8"); A(f"s_cselect_b32 s{dst}, s{st2}, s{st1}")
    def ffn2_tile(dst, src="s2"):
        A(f"s_sub_u32 s{st0}, {src}, 152"); A(f"s_and_b32 s{st1}, s{st0}, 7"); A(f"s_lshr_b32 s{st0}, s{st0}, 3")
        A(f"s_lshl_b32 s{st1}, s{st1}, 2"); A(f"s_add_u32 s{dst}, s{st1}, s{st0}")
    sTl = 35
    def tr_addr(v):
        A(f"v_lshrrev_b32 v{v}, 4, v{vLane}"); A(f"v_lshlrev_b32 v{v}, 8, v{v}")
        A(f"v_bfe_u32 v40, v{vLane}, 2, 2"); A("v_lshlrev_b32 v40, 5, v40"); A(f"v_add_u32 v{v}, v{v}, v40")
        A(f"v_and_b32 v40, 3, v{vLane}"); A("v_lshlrev_b32 v40, 3, v40"); A(f"v_add_u32 v{v}, v{v}, v40")
        A(f"s_mul_i32 s{st0}, s3, {STG_W}"); A(f"s_add_u32 s{st0}, s{st0}, {L_STG}"); A(f"v_add_u32 v{v}, s{st0}, v{v}")
    A.label("L_ffn1")
    ffn1_tile(sTl, "s88")
    A(f"s_cmp_ge_u32 s{sTl}, 86"); A("s_cbranch_scc1 L_sdone")
    vA = 64
    if REPACK:
        vA = 64
        A(f"s_lshl_b32 s{st0}, s{sTl}, 14"); A(f"s_lshl_b32 s{st1}, s3, 12"); A(f"s_add_u32 s{st0}, s{st0}, s{st1}")
        A(f"s_add_u32 s{st0}, s{st0}, {WS_W1T}")
        A(f"v_lshlrev_b32 v4, 4, v{vLane}")
        for s in range(4): A(f"buffer_load_dwordx4 v[{vA+4*s}:{vA+4*s+3}], v4, {srd(sWS)}, s{st0} offen offset:{s*1024} sc1")
    else:
        A(f"v_lshrrev_b32 v14, 1, v{vLane}"); A("v_mul_u32_u24 v14, 2752, v14")
        A(f"v_and_b32 v6, 1, v{vLane}"); A("v_lshlrev_b32 v6, 4, v6"); A("v_add_u32 v14, v14, v6")
        A(f"s_mul_i32 s{st0}, s3, {128*2752}"); A(f"v_add_u32 v14, s{st0}, v14")
        A(f"s_lshl_b32 s{st1}, s{sTl}, 5")
        A(f"s_add_u32 s{sT}, s{pW1}, s{st1}"); A(f"s_addc_u32 s{sT+1}, s{pW1+1}, 0")
        A(f"s_sub_u32 s{sT+2}, {512*2752}, s{st1}"); A(f"s_mov_b32 s{sT+3}, 0x20000")
        A(f"s_mov_b32 s{sOff}, 0")
        for n in range(4):
            A(f"buffer_load_dwordx4 v[{16+4*n}:{19+4*n}], v14, {srd(sT)}, s{sOff} offen {WFF}")
            A(f"s_add_u32 s{sOff}, s{sOff}, {32*2752}")
        A(f"v_lshlrev_b32 v15, 4, v{vLane}"); A(f"s_mul_i32 s{st0}, s3, {STG_W}"); A(f"s_add_u32 s{st0}, s{st0}, {L_STG}")
        A(f"v_add_u32 v15, s{st0}, v15")
        tr_addr(4)
        A("s_waitcnt vmcnt(0)")
        for n in range(4): A(f"ds_write_b128 v15, v[{16+4*n}:{19+4*n}] offset:{n*1024}")
        vA = 64
        for s in range(4):
            A(f"ds_read_b64_tr_b16 v[{vA+4*s}:{vA+4*s+1}], v4 offset:{s*1024}")
            A(f"ds_read_b64_tr_b16 v[{vA+4*s+2}:{vA+4*s+3}], v4 offset:{s*1024+128}")
    for k in range(4): A(f"v_mov_b32 v{80+k}, 0x3f803f80")
    for k in range(4): A(f"v_mov_b32 v{84+k}, 0")
    A("s_waitcnt vmcnt(0) lgkmcnt(0)")
    for s in range(4): A(f"v_mfma_f32_16x16x32_bf16 v[84:87], v[{vA+4*s}:{vA+4*s+3}], v[80:83], v[84:87]")
    A(f"v_lshlrev_b32 v5, 4, v{vLane}"); A(f"s_lshl_b32 s{st0}, s3, 10"); A(f"v_add_u32 v5, s{st0}, v5")
    A(f"v_lshlrev_b32 v6, 3, v{vLane}"); A(f"s_lshl_b32 s{st0}, s3, 9"); A(f"v_add_u32 v6, s{st0}, v6")
    A(f"ds_write_b128 v5, v[84:87] offset:{L_RED3}")
    A("s_waitcnt lgkmcnt(0)")
    A("s_barrier")
    A(f"v_lshlrev_b32 v7, 4, v{vLane}")
    for u in range(4): A(f"ds_read_b128 v[{16+4*u}:{19+4*u}], v7 offset:{L_RED3+u*1024}")
    A(f"v_and_b32 v8, 15, v{vLane}"); A("v_lshlrev_b32 v8, 6, v8")
    A(f"v_lshrrev_b32 v9, 4, v{vLane}"); A("v_lshlrev_b32 v9, 4, v9"); A("v_add_u32 v8, v8, v9")
    A(f"s_lshl_b32 s{st0}, s3, 10"); A(f"v_add_u32 v8, s{st0}, v8")
    A("s_waitcnt lgkmcnt(0)")
    for k in range(4):
        A(f"v_add_f32 v{16+k}, v{16+k}, v{20+k}"); A(f"v_add_f32 v{24+k}, v{24+k}, v{28+k}")
    for k in range(4): A(f"v_add_f32 v{84+k}, v{16+k}, v{24+k}")
    A(f"s_and_b32 s{st0}, s88, 7"); A(f"s_lshl_b32 s{st0}, s{st0}, 12"); A(f"s_add_u32 s{st0}, s{st0}, {WS_H}")
    for k_, pat in ((90, 0x00f000f0), (92, 0x0f000f00), (94, 0xf000f000)):
        A(f"s_mov_b32 s{k_}, {hex(pat)}"); A(f"s_mov_b32 s{k_+1}, {hex(pat)}")
    A(f"v_and_b32 v12, 3, v{vLane}"); A("v_lshlrev_b32 v12, 5, v12")
    A(f"v_lshrrev_b32 v9, 4, v{vLane}"); A("v_lshlrev_b32 v9, 3, v9"); A("v_add_u32 v12, v12, v9")
    A(f"v_bfe_u32 v9, v{vLane}, 2, 2"); A(f"v_mul_u32_u24 v9, {H1_STRIDE}, v9"); A("v_add_u32 v12, v12, v9")
    A(f"s_lshl_b32 s{st1}, s{sTl}, 7"); A(f"s_add_u32 s{st1}, s{st1}, {WS_H1}")
    A(f"v_lshlrev_b32 v6, 2, v{vLane}"); A(f"s_lshl_b32 s{st2}, s3, 8"); A(f"v_add_u32 v6, s{st2}, v6")
    A(f"v_and_b32 v13, 15, v{vLane}"); A("v_lshlrev_b32 v13, 2, v13")
    A(f"s_mov_b32 s{sCnt}, {SPIN_LIMIT}")
    A.label("L_f1spin")
    if SLP1: A(f"s_sleep {SLP1}")
    A(f"buffer_load_dwordx4 v[16:19], v8, {srd(sWS)}, s{st0} offen sc1")
    A("s_waitcnt vmcnt(0)")
    spin_check(range(16, 20), 10, "L_f1spin", "L_f1ok")
    stamp(7)
    for s in range(4):
        A(f"v_mfma_f32_16x16x32_bf16 v[{88+4*s}:{91+4*s}], v[{vA+4*s}:{vA+4*s+3}], v[16:19], 0")
    A("v_dot2_f32_bf16 v20, v16, v80, 0"); A("v_dot2_f32_bf16 v21, v16, v16, 0")
    for k in range(1, 4):
        A(f"v_dot2_f32_bf16 v20, v{16+k}, v80, v20"); A(f"v_dot2_f32_bf16 v21, v{16+k}, v{16+k}, v21")
    A("v_permlane32_swap_b32 v20, v21"); A("v_add_f32 v20, v20, v21")
    A("v_mov_b32 v21, v20"); A("v_permlane16_swap_b32 v20, v21"); A("v_add_f32 v20, v20, v21")
    A("v_add_f32_dpp v20, v20, v20 row_ror:4 row_mask:0xf bank_mask:0xf")
    A("v_add_f32_dpp v20, v20, v20 row_ror:8 row_mask:0xf bank_mask:0xf")
    A(f"ds_write_b32 v6, v20 offset:{L_RED2}")
    for k in range(4): A(f"v_cndmask_b32 v{88+k}, v{88+k}, v{92+k}, s[90:91]")
    for k in range(4): A(f"v_cndmask_b32 v{96+k}, v{96+k}, v{100+k}, s[94:95]")
    A("s_or_b64 s[92:93], s[92:93], s[94:95]")
    for k in range(4): A(f"v_cndmask_b32 v{88+k}, v{88+k}, v{96+k}, s[92:93]")
    for k in range(4): A(f"v_add_f32_dpp v{88+k}, v{88+k}, v{88+k} row_ror:4 row_mask:0xf bank_mask:0xf")
    for k in range(4): A(f"v_add_f32_dpp v{88+k}, v{88+k}, v{88+k} row_ror:8 row_mask:0xf bank_mask:0xf")
    A(f"ds_write_b128 v5, v[88:91] offset:{L_RED}")
    A("s_waitcnt lgkmcnt(0)")
    A("s_barrier")
    A("s_cmp_lg_u32 s3, 0"); A("s_cbranch_scc1 L_sdone")
    for u in range(4): A(f"ds_read2_b32 v[{32+2*u}:{33+2*u}], v13 offset0:{(L_RED2+u*256)//4 % 256} offset1:{((L_RED2+u*256)//4 + 32) % 256}" if False else "")
    A(f"v_add_u32 v13, {L_RED2}, v13")
    for u in range(4): A(f"ds_read2_b32 v[{32+2*u}:{33+2*u}], v13 offset0:{u*64} offset1:{u*64+32}")
    for u in range(4): A(f"ds_read_b128 v[{16+4*u}:{19+4*u}], v7 offset:{L_RED+u*1024}")
    A("s_waitcnt lgkmcnt(4)")
    A("v_add_f32 v32, v32, v34"); A("v_add_f32 v33, v33, v35"); A("v_add_f32 v36, v36, v38"); A("v_add_f32 v37, v37, v39")
    A("v_add_f32 v32, v32, v36"); A("v_add_f32 v33, v33, v37")
    A("v_mul_f32 v32, 0x3b000000, v32")
    A("v_mul_f32 v33, 0x3b000000, v33")
    A("v_fma_f32 v33, -v32, v32, v33")
    A("v_max_f32 v33, 0, v33")
    A("v_cvt_pk_bf16_f32 v32, v32, v33")
    A("v_and_b32 v33, 0xffff0000, v32"); A("v_lshlrev_b32 v32, 16, v32")
    A("v_add_f32 v33, 0x3727c5ac, v33"); round_bf16(33)
    A("v_sqrt_f32 v33, v33"); round_bf16(33)
    A("v_rcp_f32 v33, v33")
    A("s_waitcnt lgkmcnt(0)")
    for k in range(4):
        A(f"v_add_f32 v{16+k}, v{16+k}, v{20+k}"); A(f"v_add_f32 v{24+k}, v{24+k}, v{28+k}")
    for k in range(4): A(f"v_add_f32 v{16+k}, v{16+k}, v{24+k}")
    for k in range(4): A(f"v_fma_f32 v{16+k}, -v32, v{84+k}, v{16+k}")
    for k in range(4): A(f"v_mul_f32 v{16+k}, v{16+k}, v33")
    for k in range(4): A(f"v_maximum3_f32 v{16+k}, v{16+k}, 0, 0")
    A("v_cvt_pk_bf16_f32 v16, v16, v17"); A("v_cvt_pk_bf16_f32 v17, v18, v19")
    A("v_and_b32 v16, 0x7fff7fff, v16"); A("v_and_b32 v17, 0x7fff7fff, v17")
    A(f"buffer_store_dwordx2 v[16:17], v12, {srd(sWS)}, s{st1} offen sc1")
    stamp(6)
    A("s_branch L_sdone")

    A.label("L_ffn2")
    ffn2_tile(sTl, "s88")
    if COOPQ:
        A("v_mov_b32 v128, 0"); A(f"s_mov_b32 s{st0}, {WS_EP}")
        A(f"buffer_load_dwordx2 v[130:131], v128, {srd(sWS)}, s{st0} offen sc1")
    vBw = 64
    if REPACK:
        vBw = 64
        A(f"s_mul_i32 s{st0}, s{sTl}, {W2T_STRIDE}"); A(f"s_add_u32 s{st0}, s{st0}, {WS_W2T}")
        mk_srd(sT, pWS, W2T_STRIDE, off_sgpr=st0)
        A(f"v_lshlrev_b32 v4, 4, v{vLane}"); A(f"s_mul_i32 s{st0}, s3, {11*1024}")
        for s in range(11):
            if s == 4: A(f"s_add_u32 s{st0}, s{st0}, 4096")
            if s == 8: A(f"s_add_u32 s{st0}, s{st0}, 4096")
            A(f"buffer_load_dwordx4 v[{vBw+4*s}:{vBw+4*s+3}], v4, {srd(sT)}, s{st0} offen offset:{(s%4)*1024} sc1")
        A("s_waitcnt vmcnt(0)")
    else:
        tr_addr(4)
        A(f"v_lshrrev_b32 v14, 1, v{vLane}"); A("v_lshlrev_b32 v14, 10, v14")
        A(f"v_and_b32 v6, 1, v{vLane}"); A("v_lshlrev_b32 v6, 4, v6"); A("v_add_u32 v14, v14, v6")
        A(f"s_mul_i32 s{st0}, s3, {384*1024}"); A(f"v_add_u32 v14, s{st0}, v14")
        A(f"s_lshl_b32 s{st1}, s{sTl}, 5")
        A(f"s_add_u32 s{sT}, s{pW2}, s{st1}"); A(f"s_addc_u32 s{sT+1}, s{pW2+1}, 0")
        A(f"s_sub_u32 s{sT+2}, {1376*1024}, s{st1}"); A(f"s_mov_b32 s{sT+3}, 0x20000")
        A(f"s_mov_b32 s{sOff}, 0")
        for n in range(12):
            A(f"buffer_load_dwordx4 v[{16+4*n}:{19+4*n}], v14, {srd(sT)}, s{sOff} offen {WFF}")
            A(f"s_add_u32 s{sOff}, s{sOff}, {32*1024}")
        A(f"v_lshlrev_b32 v15, 4, v{vLane}"); A(f"s_mul_i32 s{st0}, s3, {STG_W}"); A(f"s_add_u32 s{st0}, s{st0}, {L_STG}")
        A(f"v_add_u32 v15, s{st0}, v15")
        for n in range(12):
            A(f"s_waitcnt vmcnt({11-n})")
            A(f"ds_write_b128 v15, v[{16+4*n}:{19+4*n}] offset:{n*1024}")
        vBw = 64
        A("s_waitcnt lgkmcnt(0)")
        for s in range(12):
            A(f"ds_read_b64_tr_b16 v[{vBw+4*s}:{vBw+4*s+1}], v4 offset:{s*1024}")
            A(f"ds_read_b64_tr_b16 v[{vBw+4*s+2}:{vBw+4*s+3}], v4 offset:{s*1024+128}")
            if s % 4 == 3: A("s_waitcnt lgkmcnt(0)")
    A(f"s_and_b32 s{st0}, s88, 3"); A(f"s_mul_i32 s{st0}, s{st0}, {H1_STRIDE}"); A(f"s_add_u32 s{st0}, s{st0}, {WS_H1}")
    mk_srd(sT, pWS, 86*128, off_sgpr=st0)
    A(f"v_bfe_u32 v8, v{vLane}, 2, 2"); A("v_lshlrev_b32 v8, 8, v8")
    A(f"v_lshrrev_b32 v9, 5, v{vLane}"); A("v_lshlrev_b32 v9, 7, v9"); A("v_add_u32 v8, v8, v9")
    A(f"v_and_b32 v9, 3, v{vLane}"); A("v_lshlrev_b32 v9, 5, v9"); A("v_add_u32 v8, v8, v9")
    A(f"v_bfe_u32 v9, v{vLane}, 4, 1"); A("v_lshlrev_b32 v9, 4, v9"); A("v_add_u32 v8, v8, v9")
    A(f"s_mul_i32 s{st0}, s3, {12*256}"); A(f"v_add_u32 v8, s{st0}, v8")
    A(f"v_lshrrev_b32 v10, 4, v{vLane}")
    A(f"v_and_b32 v11, 15, v{vLane}"); A(f"s_lshl_b32 s{st1}, s{sTl}, 4"); A(f"v_add_u32 v11, s{st1}, v11")
    A("v_lshlrev_b32 v12, 1, v11"); A("v_lshlrev_b32 v13, 10, v10"); A("v_add_u32 v12, v12, v13")
    A("v_lshrrev_b32 v13, 5, v11"); A("v_lshlrev_b32 v13, 8, v13"); A("v_lshlrev_b32 v10, 6, v10"); A("v_add_u32 v13, v13, v10")
    A("v_and_b32 v10, 30, v11"); A("v_lshlrev_b32 v10, 1, v10"); A("v_add_u32 v13, v13, v10")
    A(f"v_lshlrev_b32 v6, 2, v{vLane}"); A(f"s_lshl_b32 s{st0}, s3, 8"); A(f"v_add_u32 v5, s{st0}, v6")
    for k in range(16): A(f"v_mov_b32 v{112+k}, 0")
    A("s_mov_b32 s90, 0xffff0000"); A("s_mov_b32 s91, 0"); A("s_mov_b32 s92, 0"); A("s_mov_b32 s93, 0xffff0000"); A("s_mov_b32 s94, 0"); A("s_mov_b32 s95, -1")
    A("s_waitcnt lgkmcnt(0)")
    A(f"s_mov_b32 s{st0}, {WS_H + 8*4096}")
    mk_srd(sC, pOUT, 4096)
    A(f"s_mov_b32 s{sCnt}, {SPIN_LIMIT}")
    A.label("L_f2hspin")
    if SLP2: A(f"s_sleep {SLP2}")
    A(f"buffer_load_dword v14, v13, {srd(sWS)}, s{st0} offen sc1")
    A("s_waitcnt vmcnt(0)")
    spin_check([14], 15, "L_f2hspin", "L_f2hok")
    A("v_and_b32 v11, 1, v11"); A("v_lshlrev_b32 v60, 16, v14"); A("v_and_b32 v61, 0xffff0000, v14")
    A("v_cmp_eq_u32 vcc, 1, v11"); A("v_cndmask_b32 v60, v60, v61, vcc")
    A(f"s_mov_b32 s{sCnt}, {SPIN_LIMIT}")
    A.label("L_f2spin")
    if SLB: A(f"s_sleep {SLB}")
    for a in range(3): A(f"buffer_load_dwordx4 v[{16+4*a}:{19+4*a}], v8, {srd(sT)}, 0 offen offset:{a*1024} sc1")
    A("s_waitcnt vmcnt(0)")
    spin_check(range(16, 28), 15, "L_f2spin", "L_f2ok")
    stamp(7)
    for a in range(3):
        for q_ in range(4):
            A(f"v_mfma_f32_16x16x32_bf16 v[{112+4*q_}:{115+4*q_}], v[{16+4*a}:{19+4*a}], v[{vBw+16*a+4*q_}:{vBw+16*a+4*q_+3}], v[{112+4*q_}:{115+4*q_}]")
    for k in range(4): A(f"v_cndmask_b32 v{112+k}, v{112+k}, v{116+k}, s[90:91]")
    for k in range(4): A(f"v_cndmask_b32 v{120+k}, v{120+k}, v{124+k}, s[92:93]")
    for k in range(4): A(f"v_cndmask_b32 v{112+k}, v{112+k}, v{120+k}, s[94:95]")
    A("v_permlane32_swap_b32 v112, v114"); A("v_permlane32_swap_b32 v113, v115")
    A("v_add_f32 v112, v112, v114"); A("v_add_f32 v113, v113, v115")
    A("v_permlane16_swap_b32 v112, v113"); A("v_add_f32 v112, v112, v113")
    A(f"ds_write_b32 v5, v112 offset:{L_RED}")
    A("s_waitcnt lgkmcnt(0)")
    A("s_barrier")
    A("s_cmp_lg_u32 s3, 0"); A("s_cbranch_scc1 L_sdone")
    for u in range(4): A(f"ds_read_b32 v{120+u}, v6 offset:{L_RED+u*256}")
    A("s_waitcnt lgkmcnt(0)")
    A("v_add_f32 v120, v120, v121"); A("v_add_f32 v122, v122, v123"); A("v_add_f32 v120, v120, v122")
    round_bf16(120)
    A("v_add_f32 v120, v120, v60")
    A("v_cvt_pk_bf16_f32 v120, v120, v120")
    A(f"buffer_store_short v120, v12, {srd(sC)}, 0 offen {OUTF}")
    if COOPQ:
        A("s_cmp_lg_u32 s88, 152"); A("s_cbranch_scc1 L_noep")
        A("v_add_u32 v130, 1, v130")
        A(f"s_mov_b32 s{st0}, {WS_EP}")
        A("s_mov_b64 exec, 1"); A(f"buffer_store_dwordx2 v[130:131], v128, {srd(sWS)}, s{st0} offen sc1"); A("s_mov_b64 exec, -1")
        A.label("L_noep")
    stamp(6)
    A("s_branch L_sdone")

    A.label("L_helper")
    vW = 128; hAcc = 16; hPlo0, hPhi0, hPlo1, hPhi1 = 24, 25, 26, 27
    vG, vCc = 4, 5
    A(f"s_sub_u32 s{sU}, s3, 4")
    A(f"v_lshrrev_b32 v{vG}, 4, v{vLane}")
    A(f"v_and_b32 v{vCc}, 15, v{vLane}")
    sE0, sE1 = 86, 87
    def ln_stats_and_P(xc_regs):
        for r in range(4):
            A(f"v_lshlrev_b32 v{32+2*r}, 16, v{8+r}"); A(f"v_and_b32 v{33+2*r}, 0xffff0000, v{8+r}")
        A("v_add_f32 v40, v32, v33"); A("v_add_f32 v41, v34, v35"); A("v_add_f32 v42, v36, v37"); A("v_add_f32 v43, v38, v39")
        A("v_add_f32 v40, v40, v41"); A("v_add_f32 v42, v42, v43"); A("v_add_f32 v40, v40, v42")
        wave_allreduce("v_add_f32", 40, 41)
        A("v_mul_f32 v40, 0x3b000000, v40")
        for e in range(8): A(f"v_sub_f32 v{32+e}, v{32+e}, v40")
        A("v_mul_f32 v42, v32, v32")
        for e in range(1, 8): A(f"v_fmac_f32 v42, v{32+e}, v{32+e}")
        wave_allreduce("v_add_f32", 42, 41)
        A("v_mul_f32 v42, 0x3b000000, v42")
        round_bf16(40); round_bf16(42)
        A("v_add_f32 v42, 0x3727c5ac, v42"); round_bf16(42)
        A("v_sqrt_f32 v42, v42"); round_bf16(42)
        A("v_rcp_f32 v42, v42")
        for r in xc_regs:
            A(f"v_lshlrev_b32 v{r}, 16, v{r}"); A(f"v_sub_f32 v{r}, v{r}, v40"); round_bf16(r)
            A(f"v_mul_f32 v{r}, v{r}, v42")
    if COOPQ:
        sI = 35
        A(f"s_lshr_b32 s{sI}, s2, 3"); A(f"s_and_b32 s{sI}, s{sI}, 7")
        A(f"s_lshl_b32 s{st0}, s{sU}, 10")
        A(f"v_lshlrev_b32 v6, 2, v{vCc}"); A(f"v_add_u32 v6, v6, v{vG}"); A(f"s_lshl_b32 s{st1}, s{sI}, 6")
        A(f"v_add_u32 v6, s{st1}, v6"); A("v_lshlrev_b32 v6, 1, v6")
        A(f"v_lshlrev_b32 v7, 4, v{vLane}")
        A(f"v_lshlrev_b32 v3, 13, v{vG}"); A(f"v_lshlrev_b32 v14, 4, v{vCc}"); A("v_add_u32 v3, v3, v14")
        A(f"s_lshl_b32 s{st1}, s{sU}, 17"); A(f"v_add_u32 v3, s{st1}, v3")
        A(f"s_lshl_b32 s{sOff}, s{sI}, 19")
        A(f"s_lshl_b32 s{st1}, s{sH}, 8")
        A(f"s_sub_u32 s{st2}, {4<<20}, s{st1}")
        A("s_waitcnt lgkmcnt(0)")
        stamp(7)
        mk_srd(sWS, pWS, WS_SIZE)
        A("v_mov_b32 v46, 0"); A(f"s_mov_b32 s{st3}, {WS_EP}")
        A(f"buffer_load_dwordx2 v[44:45], v46, {srd(sWS)}, s{st3} offen sc1")
        mk_srd(sT, pX, 1024, off_sgpr=st0)
        A(f"buffer_load_dwordx4 v[8:11], v7, {srd(sT)}, 0 offen")
        A(f"buffer_load_ushort v12, v6, {srd(sT)}, 0 offen")
        A(f"s_add_u32 s{sC}, s{pWQ}, s{st1}"); A(f"s_addc_u32 s{sC+1}, s{pWQ+1}, 0")
        A(f"s_mov_b32 s{sC+2}, s{st2}"); A(f"s_mov_b32 s{sC+3}, 0x20000")
        for k in range(4):
            A(f"buffer_load_dwordx4 v[{vW+4*k}:{vW+4*k+3}], v3, {srd(sC)}, s{sOff} offen {WQF}")
            if k < 3: A(f"s_add_u32 s{sOff}, s{sOff}, 32768")
        A(f"v_lshlrev_b32 v14, 2, v{vLane}"); A("v_mov_b32 v15, -1")
        A("s_mov_b64 exec, 0xfff"); A(f"ds_write_b32 v14, v15 offset:{L_STAT}")
        A("s_mov_b64 exec, 1"); A(f"ds_write_b32 v14, v15 offset:{L_BOOST}")
        A("s_mov_b64 exec, 3"); A("v_mov_b32 v15, 0"); A(f"ds_write_b32 v14, v15 offset:{L_CNT}"); A("s_mov_b64 exec, -1")
        A("s_waitcnt lgkmcnt(0)")
        A("s_barrier")
        A(f"v_add_u32 v13, {L_STG}, v7")
        A(f"s_lshl_b32 s{st0}, s{sU}, 12"); A(f"v_add_u32 v14, s{st0}, v13")
        A(f"s_lshl_b32 s{st1}, s{sH}, 2"); A(f"s_add_u32 s{st2}, s{st1}, s{sU}"); A(f"s_lshl_b32 s{st2}, s{st2}, 3"); A(f"s_add_u32 s{st2}, s{st2}, s{sI}")
        A(f"s_lshl_b32 s{st2}, s{st2}, 10"); A(f"s_add_u32 s{st2}, s{st2}, {WS_QX}")
        A(f"s_add_u32 s{st1}, s{st1}, s{sB}"); A(f"s_lshl_b32 s{st1}, s{st1}, 3"); A(f"s_lshl_b32 s{st3}, s{sU}, 1"); A(f"s_add_u32 s{st1}, s{st1}, s{st3}")
        A(f"s_lshl_b32 s{st1}, s{st1}, 10"); A(f"s_add_u32 s{st1}, s{st1}, {WS_QX}")
        A("s_waitcnt vmcnt(4)")
        stamp(6)
        A(f"v_readfirstlane_b32 s{sE0}, v44"); A(f"v_readfirstlane_b32 s{sE1}, v45")
        A(f"s_add_u32 s{sE0}, s{sE0}, 1")
        ln_stats_and_P([12])
        A("v_mov_b32 v15, 0")
        A(f"v_cvt_pk_bf16_f32 v{hPlo0}, v12, v15"); A(f"v_cvt_pk_bf16_f32 v{hPhi0}, v15, v12")
        A("s_waitcnt vmcnt(0)")
        for k in range(4): A(f"ds_write_b128 v14, v[{vW+4*k}:{vW+4*k+3}] offset:{k*1024}")
        A(f"v_mov_b32 v14, {L_CNT2}"); A("v_mov_b32 v15, 1")
        A("s_waitcnt lgkmcnt(0)")
        A("s_mov_b64 exec, 1"); A("ds_add_u32 v14, v15"); A("s_mov_b64 exec, -1")
        A(f"s_mov_b32 s{sCnt}, {SPIN_LIMIT}")
        A.label("L_wspin")
        A("ds_read_b32 v15, v14"); A("s_waitcnt lgkmcnt(0)")
        A("v_cmp_gt_u32 vcc, 4, v15")
        A("s_cbranch_vccz L_wok")
        A(f"s_sub_u32 s{sCnt}, s{sCnt}, 1"); A("s_cbranch_scc0 L_wspin")
        A.label("L_wok")
        for n in range(8): A(f"ds_read_b128 v[{vW+4*n}:{vW+4*n+3}], v13 offset:{n*1024}")
        for e in range(8): A(f"v_mov_b32 v{hAcc+e}, 0")
        for n in range(16):
            if n == 0: A("s_waitcnt lgkmcnt(4)")
            if n == 4:
                A("s_waitcnt lgkmcnt(0)")
                for m in range(8, 16): A(f"ds_read_b128 v[{vW+4*m}:{vW+4*m+3}], v13 offset:{m*1024}")
            if n == 8: A("s_waitcnt lgkmcnt(4)")
            if n == 12: A("s_waitcnt lgkmcnt(0)")
            for k in range(4):
                A(f"v_dot2c_f32_bf16_dpp v{hAcc+2*k}, v{hPlo0}, v{vW+4*n+k} row_newbcast:{n} row_mask:0xf bank_mask:0xf")
                A(f"v_dot2c_f32_bf16_dpp v{hAcc+2*k+1}, v{hPhi0}, v{vW+4*n+k} row_newbcast:{n} row_mask:0xf bank_mask:0xf")
        acc_reduce(hAcc)
        A(f"v_mov_b32 v{hAcc+2}, s{sE0}"); A(f"v_mov_b32 v{hAcc+3}, s{sE1}")
        A(f"buffer_store_dwordx4 v[{hAcc}:{hAcc+3}], v7, {srd(sWS)}, s{st2} offen {QXS}")
        stamp(1)
        if QXW < 0: A("s_waitcnt vmcnt(0)")
        elif QXW > 0: A(f"s_sleep {QXW}")
        if DBG & 32: stamp(6)
        A(f"s_mov_b32 s{sCnt}, {SPIN_LIMIT}")
        A.label("L_qxspin")
        A(f"buffer_load_dwordx4 v[32:35], v7, {srd(sWS)}, s{st1} offen {QXL}")
        A(f"buffer_load_dwordx4 v[36:39], v7, {srd(sWS)}, s{st1} offen offset:1024 {QXL}")
        A("s_waitcnt vmcnt(0)")
        A(f"v_xor_b32 v34, s{sE0}, v34"); A(f"v_xor_b32 v35, s{sE1}, v35"); A(f"v_xor_b32 v38, s{sE0}, v38"); A(f"v_xor_b32 v39, s{sE1}, v39")
        A("v_or_b32 v34, v34, v35"); A("v_or3_b32 v34, v34, v38, v39")
        A("v_cmp_ne_u32 vcc, 0, v34")
        A("s_cbranch_vccz L_qxok")
        A(f"s_sub_u32 s{sCnt}, s{sCnt}, 1"); A("s_cbranch_scc0 L_qxspin")
        A.label("L_qxok")
        if DBG & 32: A(f"s_sub_u32 s{sP+14}, {SPIN_LIMIT}, s{sCnt}")
        A(f"v_add_f32 v{hAcc}, v32, v36"); A(f"v_add_f32 v{hAcc+1}, v33, v37")
    else:
        A(f"s_lshl_b32 s{st0}, s{sB}, 10")
        sRq = 35
        if ROTQ:
            A(f"s_lshr_b32 s{sRq}, s2, 3"); A(f"s_and_b32 s{sRq}, s{sRq}, 7"); A(f"s_mul_i32 s{sRq}, s{sRq}, {ROTQ}"); A(f"s_and_b32 s{sRq}, s{sRq}, 31")
        else:
            A(f"s_mov_b32 s{sRq}, 0")
        A(f"s_lshl_b32 s{st1}, s{sU}, 7")
        for t_, reg in ((0, 6), (1, 9)):
            A(f"v_add_u32 v{reg}, s{sRq}, v{vCc}")
            if t_: A(f"v_add_u32 v{reg}, 16, v{reg}")
            A(f"v_and_b32 v{reg}, 31, v{reg}")
            if WQP == 0:
                A(f"v_lshlrev_b32 v{reg}, 2, v{reg}"); A(f"v_add_u32 v{reg}, v{reg}, v{vG}")
            else:
                A(f"v_lshlrev_b32 v14, 5, v{vG}"); A(f"v_add_u32 v{reg}, v{reg}, v14")
            A(f"v_add_u32 v{reg}, s{st1}, v{reg}"); A(f"v_lshlrev_b32 v{reg}, 1, v{reg}")
        A(f"v_mov_b32 v15, v9")
        A(f"v_lshlrev_b32 v7, 4, v{vLane}")
        A(f"v_lshlrev_b32 v3, {13 if WQP == 0 else 18}, v{vG}"); A(f"v_lshlrev_b32 v14, 4, v{vCc}"); A("v_add_u32 v3, v3, v14")
        A(f"s_lshl_b32 s{st1}, s{sU}, 20"); A(f"v_add_u32 v3, s{st1}, v3")
        A(f"s_lshl_b32 s{st1}, s{sH}, 8")
        A(f"s_sub_u32 s{st2}, {4<<20}, s{st1}")
        A("s_waitcnt lgkmcnt(0)")
        stamp(7)
        mk_srd(sT, pX, 1024, off_sgpr=st0)
        A(f"buffer_load_dwordx4 v[8:11], v7, {srd(sT)}, 0 offen")
        A(f"buffer_load_ushort v12, v6, {srd(sT)}, 0 offen")
        A(f"buffer_load_ushort v13, v15, {srd(sT)}, 0 offen")
        A("s_barrier")
        A(f"s_add_u32 s{sC}, s{pWQ}, s{st1}"); A(f"s_addc_u32 s{sC+1}, s{pWQ+1}, 0")
        A(f"s_mov_b32 s{sC+2}, s{st2}"); A(f"s_mov_b32 s{sC+3}, 0x20000")
        A(f"s_lshl_b32 s{sOff}, s{sRq}, {15 if WQP == 0 else 13}")
        for n in range(0 if NOQ else 32):
            A(f"buffer_load_dwordx4 v[{vW+4*n}:{vW+4*n+3}], v3, {srd(sC)}, s{sOff} offen {WQF}")
            if n < 31:
                A(f"s_add_u32 s{sOff}, s{sOff}, {32768 if WQP == 0 else 8192}")
                if ROTQ: A(f"s_and_b32 s{sOff}, s{sOff}, {0xfffff if WQP == 0 else 0x3ffff}")
            if NR and n < 31 and (n+1) % (32//NR) == 0: A("s_barrier")
        if NR == 0 and not PACED: A("s_barrier")
        mk_srd(sWS, pWS, WS_SIZE)
        A(f"v_lshlrev_b32 v14, 2, v{vLane}"); A("v_mov_b32 v15, -1")
        A("s_mov_b64 exec, 0xfff"); A(f"ds_write_b32 v14, v15 offset:{L_STAT}")
        A("s_mov_b64 exec, 1"); A(f"ds_write_b32 v14, v15 offset:{L_BOOST}")
        A("v_mov_b32 v15, 0"); A(f"ds_write_b32 v15, v15 offset:{L_CNT}"); A("s_mov_b64 exec, -1")
        A("s_waitcnt vmcnt(0)" if NOQ else "s_waitcnt vmcnt(32)")
        stamp(6)
        for r in range(4):
            A(f"v_lshlrev_b32 v{32+2*r}, 16, v{8+r}"); A(f"v_and_b32 v{33+2*r}, 0xffff0000, v{8+r}")
        A("v_add_f32 v40, v32, v33"); A("v_add_f32 v41, v34, v35"); A("v_add_f32 v42, v36, v37"); A("v_add_f32 v43, v38, v39")
        A("v_add_f32 v40, v40, v41"); A("v_add_f32 v42, v42, v43"); A("v_add_f32 v40, v40, v42")
        wave_allreduce("v_add_f32", 40, 41)
        A("v_mul_f32 v40, 0x3b000000, v40")
        for e in range(8): A(f"v_sub_f32 v{32+e}, v{32+e}, v40")
        A("v_mul_f32 v42, v32, v32")
        for e in range(1, 8): A(f"v_fmac_f32 v42, v{32+e}, v{32+e}")
        wave_allreduce("v_add_f32", 42, 41)
        A("v_mul_f32 v42, 0x3b000000, v42")
        round_bf16(40); round_bf16(42)
        A("v_add_f32 v42, 0x3727c5ac, v42"); round_bf16(42)
        A("v_sqrt_f32 v42, v42"); round_bf16(42)
        A("v_rcp_f32 v42, v42")
        for r in (12, 13):
            A(f"v_lshlrev_b32 v{r}, 16, v{r}"); A(f"v_sub_f32 v{r}, v{r}, v40"); round_bf16(r)
            A(f"v_mul_f32 v{r}, v{r}, v42")
        A("v_mov_b32 v15, 0")
        A(f"v_cvt_pk_bf16_f32 v{hPlo0}, v12, v15"); A(f"v_cvt_pk_bf16_f32 v{hPhi0}, v15, v12")
        A(f"v_cvt_pk_bf16_f32 v{hPlo1}, v13, v15"); A(f"v_cvt_pk_bf16_f32 v{hPhi1}, v15, v13")
        A(f"s_mov_b32 s{sTile}, 0")
        stamp(1)
        A.label("L_gemv")
        for e in range(8): A(f"v_mov_b32 v{hAcc+e}, 0")
        for n in range(32):
            A(f"s_waitcnt vmcnt({31-n})")
            lo, hi = (hPlo0, hPhi0) if n < 16 else (hPlo1, hPhi1)
            for k in range(4):
                A(f"v_dot2c_f32_bf16_dpp v{hAcc+2*k}, v{lo}, v{vW+4*n+k} row_newbcast:{n%16} row_mask:0xf bank_mask:0xf")
                A(f"v_dot2c_f32_bf16_dpp v{hAcc+2*k+1}, v{hi}, v{vW+4*n+k} row_newbcast:{n%16} row_mask:0xf bank_mask:0xf")
        acc_reduce(hAcc)
    A(f"v_lshlrev_b32 v14, 5, v{vCc}"); A(f"v_lshlrev_b32 v15, 3, v{vG}"); A("v_add_u32 v14, v14, v15")
    A(f"s_lshl_b32 s{st0}, s{sU}, 9"); A(f"v_add_u32 v14, s{st0}, v14")
    A(f"ds_write_b64 v14, v[{hAcc}:{hAcc+1}] offset:{L_QP}")
    A("s_waitcnt lgkmcnt(0)")
    stamp(2)
    A("s_barrier")
    A(f"s_cmp_lg_u32 s{sU}, 0"); A("s_cbranch_scc1 L_nopoison")
    for k in range(4): A(f"v_mov_b32 v{32+k}, -1")
    A(f"v_lshrrev_b32 v14, 3, v{vLane}"); A("v_lshlrev_b32 v14, 13, v14")
    A(f"v_and_b32 v15, 7, v{vLane}"); A("v_lshlrev_b32 v15, 4, v15"); A("v_add_u32 v14, v14, v15")
    A(f"s_lshl_b32 s{st0}, s{sB}, 17"); A(f"s_lshl_b32 s{st1}, s{sJ}, 7"); A(f"s_add_u32 s{st0}, s{st0}, s{st1}")
    A(f"buffer_store_dwordx4 v[32:35], v14, {srd(sWS)}, s{st0} offen sc1")
    A(f"s_add_u32 s{st0}, s{st0}, 65536")
    A(f"buffer_store_dwordx4 v[32:35], v14, {srd(sWS)}, s{st0} offen sc1")
    A(f"v_lshlrev_b32 v14, 2, v{vLane}")
    A(f"s_lshl_b32 s{st0}, s{sReg}, 7"); A(f"s_add_u32 s{st0}, s{st0}, {WS_ST}")
    A("s_mov_b64 exec, 0xf"); A(f"buffer_store_dword v32, v14, {srd(sWS)}, s{st0} offen sc1"); A("s_mov_b64 exec, -1")
    A("s_cmp_ge_u32 s2, 64"); A("s_cbranch_scc1 L_pnored")
    A(f"s_and_b32 s{st0}, s2, 15"); A(f"s_lshl_b32 s{st0}, s{st0}, 8")
    A(f"s_lshr_b32 s{st1}, s2, 4"); A(f"s_lshl_b32 s{st1}, s{st1}, 6"); A(f"s_add_u32 s{st0}, s{st0}, s{st1}")
    A(f"s_add_u32 s{st0}, s{st0}, {WS_H}")
    A(f"v_lshrrev_b32 v36, 4, v{vLane}"); A("v_lshlrev_b32 v36, 12, v36")
    A(f"v_and_b32 v37, 15, v{vLane}"); A("v_lshlrev_b32 v37, 2, v37"); A("v_add_u32 v36, v36, v37")
    A(f"buffer_store_dword v32, v36, {srd(sWS)}, s{st0} offen sc1")
    A(f"s_add_u32 s{st0}, s{st0}, 16384")
    A(f"buffer_store_dword v32, v36, {srd(sWS)}, s{st0} offen sc1")
    A(f"s_add_u32 s{st0}, s{st0}, 16384")
    A("s_mov_b64 exec, 0xffff"); A(f"buffer_store_dword v32, v37, {srd(sWS)}, s{st0} offen sc1"); A("s_mov_b64 exec, -1")
    A("s_branch L_pdone")
    A.label("L_pnored")
    A("s_cmp_ge_u32 s2, 152"); A("s_cbranch_scc1 L_pdone")
    ffn1_tile(sTl)
    A(f"s_cmp_ge_u32 s{sTl}, 86"); A("s_cbranch_scc1 L_pdone")
    A(f"s_lshl_b32 s{st0}, s{sTl}, 7"); A(f"s_add_u32 s{st0}, s{st0}, {WS_H1}")
    A(f"v_lshrrev_b32 v36, 4, v{vLane}"); A(f"v_mul_u32_u24 v36, {H1_STRIDE}, v36")
    A(f"v_and_b32 v37, 15, v{vLane}"); A("v_lshlrev_b32 v37, 3, v37"); A("v_add_u32 v36, v36, v37")
    A(f"buffer_store_dwordx2 v[32:33], v36, {srd(sWS)}, s{st0} offen sc1")
    A.label("L_pdone")
    A.label("L_nopoison")
    if TLBV:
        A(f"s_cmp_lg_u32 s{sU}, 1"); A("s_cbranch_scc1 L_notlb")
        A(f"s_lshr_b32 s{st0}, s{sReg}, 1"); A(f"s_lshl_b32 s{st0}, s{st0}, 21")
        mk_srd(sT, pV, 1 << 21, off_sgpr=st0)
        A(f"v_lshlrev_b32 v14, 15, v{vLane}")
        A(f"buffer_load_dword v15, v14, {srd(sT)}, 0 offen nt")
        A("s_waitcnt vmcnt(0)")
        A.label("L_notlb")
    if REPACK:
        A(f"s_lshl_b32 s{st0}, s2, 2"); A(f"s_add_u32 s{st0}, s{st0}, s{sU}")
        A(f"s_cmp_ge_u32 s{st0}, {696 if REPACK else 0}"); A("s_cbranch_scc1 L_rpdone")
        A(f"s_mul_i32 s{st1}, s{sU}, {32*RS}"); A(f"s_add_u32 s{st1}, s{st1}, {L_STG}")
        A(f"v_lshlrev_b32 v15, 4, v{vLane}"); A(f"v_add_u32 v7, s{st1}, v15")
        A(f"v_lshlrev_b32 v6, 3, v{vG}"); A(f"v_lshrrev_b32 v14, 2, v{vCc}"); A("v_add_u32 v6, v6, v14"); A("v_lshlrev_b32 v6, 7, v6")
        A(f"v_and_b32 v14, 3, v{vCc}"); A("v_lshlrev_b32 v14, 3, v14"); A("v_add_u32 v6, v6, v14"); A(f"v_add_u32 v6, s{st1}, v6")
        A(f"v_lshrrev_b32 v3, 3, v{vLane}"); A(f"v_and_b32 v14, 7, v{vLane}"); A("v_lshlrev_b32 v14, 4, v14")
        A(f"s_cmp_ge_u32 s{st0}, 344"); A("s_cbranch_scc1 L_rpw1")
        A(f"s_lshr_b32 s{st2}, s{st0}, 3"); A(f"s_and_b32 s{st3}, s{st0}, 7")
        A("v_lshlrev_b32 v3, 10, v3"); A("v_add_u32 v3, v3, v14")
        A(f"s_lshl_b32 s{sOff}, s{st2}, 15"); A(f"s_lshl_b32 s{st1}, s{st3}, 7"); A(f"s_add_u32 s{sOff}, s{sOff}, s{st1}")
        mk_srd(sT, pW2, 1376*1024)
        A(f"s_mov_b32 s{sTile}, {8*1024}")
        A(f"s_mul_i32 s{st3}, s{st3}, {4*W2T_STRIDE}"); A(f"s_lshl_b32 s{st2}, s{st2}, 10"); A(f"s_add_u32 s{st3}, s{st3}, s{st2}")
        A(f"s_add_u32 s{st3}, s{st3}, {WS_W2T}")
        A(f"s_mov_b32 s{sTl}, {W2T_STRIDE}")
        A("s_branch L_rpgo")
        A.label("L_rpw1")
        A(f"s_sub_u32 s{st0}, s{st0}, 344")
        A(f"s_mul_i32 s{st2}, s{st0}, 2979"); A(f"s_lshr_b32 s{st2}, s{st2}, 16")
        A(f"s_mul_i32 s{st3}, s{st2}, 22"); A(f"s_sub_u32 s{st3}, s{st0}, s{st3}")
        A("v_mul_u32_u24 v3, 2752, v3"); A("v_add_u32 v3, v3, v14")
        A(f"s_mul_i32 s{sOff}, s{st2}, {32*2752}"); A(f"s_lshl_b32 s{st1}, s{st3}, 7"); A(f"s_add_u32 s{sOff}, s{sOff}, s{st1}")
        mk_srd(sT, pW1, 512*2752)
        A(f"s_mov_b32 s{sTile}, {8*2752}")
        A(f"s_lshl_b32 s{st3}, s{st3}, 16"); A(f"s_lshl_b32 s{st2}, s{st2}, 10"); A(f"s_add_u32 s{st3}, s{st3}, s{st2}")
        A(f"s_add_u32 s{st3}, s{st3}, {WS_W1T}")
        A(f"s_mov_b32 s{sTl}, 16384")
        A.label("L_rpgo")
        for n in range(4):
            A(f"buffer_load_dwordx4 v[{32+4*n}:{35+4*n}], v3, {srd(sT)}, s{sOff} offen {WFF}")
            A(f"s_add_u32 s{sOff}, s{sOff}, s{sTile}")
        A("s_waitcnt vmcnt(0)")
        for n in range(4): A(f"ds_write_b128 v7, v[{32+4*n}:{35+4*n}] offset:{n*1024}")
        A("s_waitcnt lgkmcnt(0)")
        for t in range(4):
            A(f"ds_read_b64_tr_b16 v[{48+4*t}:{49+4*t}], v6 offset:{t*32}")
            A(f"ds_read_b64_tr_b16 v[{50+4*t}:{51+4*t}], v6 offset:{t*32+512}")
        A("s_waitcnt lgkmcnt(0)")
        for t in range(4):
            A(f"buffer_store_dwordx4 v[{48+4*t}:{51+4*t}], v15, {srd(sWS)}, s{st3} offen sc1")
            A(f"s_add_u32 s{st3}, s{st3}, s{sTl}")
    A.label("L_rpdone")
    A("s_waitcnt vmcnt(0)")
    A(f"v_mov_b32 v14, {L_CNT}"); A("v_mov_b32 v15, 1")
    A("s_mov_b64 exec, 1"); A("ds_add_rtn_u32 v32, v14, v15"); A("s_waitcnt lgkmcnt(0)"); A("s_mov_b64 exec, -1")
    A(f"v_readfirstlane_b32 s{st0}, v32")
    A(f"s_cmp_lg_u32 s{st0}, 3"); A("s_cbranch_scc1 L_nosig")
    A("v_mov_b32 v14, 0")
    A("s_mov_b64 exec, 1"); A(f"global_atomic_add v14, v15, s[{pDBG}:{pDBG+1}]"); A("s_mov_b64 exec, -1")
    A.label("L_nosig")
    A(f"v_lshlrev_b32 v3, 10, v{vG}"); A(f"v_lshlrev_b32 v14, 4, v{vCc}"); A("v_add_u32 v3, v3, v14")
    A(f"s_lshl_b32 s{st1}, s{sU}, 8"); A(f"v_add_u32 v3, s{st1}, v3")
    A(f"s_lshl_b32 s{st1}, s{sH}, 17")
    mk_srd(sC, pWO, 131072, off_sgpr=st1)
    A(f"s_mul_i32 s{st0}, s{sU}, {32*RS}"); A(f"s_add_u32 s{st0}, s{st0}, {L_STG}")
    A(f"v_mul_u32_u24 v6, {RS}, v{vG}"); A("v_add_u32 v6, v6, v14"); A(f"v_add_u32 v6, s{st0}, v6")
    A(f"v_lshlrev_b32 v7, 3, v{vG}"); A(f"v_lshrrev_b32 v15, 2, v{vCc}"); A("v_add_u32 v7, v7, v15")
    A(f"v_mul_u32_u24 v7, {RS}, v7"); A(f"v_and_b32 v15, 3, v{vCc}"); A("v_lshlrev_b32 v15, 3, v15")
    A("v_add_u32 v7, v7, v15"); A(f"v_add_u32 v7, s{st0}, v7")
    A(f"s_mov_b32 s{sOff}, 0")
    for q in range(0 if NOWO else 4):
        for n in range(8):
            A(f"buffer_load_dwordx4 v[{32+4*n}:{35+4*n}], v3, {srd(sC)}, s{sOff} offen {WOF}")
            A(f"s_add_u32 s{sOff}, s{sOff}, 4096")
            if n % PACE == PACE-1: A("s_waitcnt vmcnt(0)")
        A("s_waitcnt vmcnt(0)")
        for n in range(8): A(f"ds_write_b128 v6, v[{32+4*n}:{35+4*n}] offset:{4*n*RS}")
        A("s_waitcnt lgkmcnt(0)")
        for t in range(8):
            A(f"ds_read_b64_tr_b16 v[{vW+32*q+4*t}:{vW+32*q+4*t+1}], v7 offset:{t*32}")
            A(f"ds_read_b64_tr_b16 v[{vW+32*q+4*t+2}:{vW+32*q+4*t+3}], v7 offset:{t*32+4*RS}")
        A("s_waitcnt lgkmcnt(0)")
    A(f"s_cmp_lg_u32 s{sU}, 0"); A("s_cbranch_scc1 L_nostat")
    A(f"v_and_b32 v14, 3, v{vLane}"); A("v_lshlrev_b32 v14, 3, v14")
    A(f"s_mov_b32 s{sCnt}, {SPIN_LIMIT}")
    A.label("L_stspin")
    A("s_sleep 8")
    A(f"ds_read_b64 v[32:33], v14 offset:{L_STAT}"); A("s_waitcnt lgkmcnt(0)")
    spin_check([32, 33], 34, "L_stspin", "L_stok")
    if BOOST and BST:
        A("s_and_b32 s93, s2, 4"); A("s_cmp_eq_u32 s93, 0"); A(f"s_cselect_b32 s93, 0, {BST}")
        A(f"v_mov_b32 v48, {L_BOOST}"); A("v_mov_b32 v49, s93")
        A("s_mov_b64 exec, 1"); A("ds_write_b32 v48, v49"); A("s_mov_b64 exec, -1")
    elif BOOST and not (BX & 4):
        A("s_memrealtime s[90:91]")
    A("v_max_f32_dpp v34, v32, v32 quad_perm:[1,0,3,2] row_mask:0xf bank_mask:0xf")
    A("v_max_f32_dpp v34, v34, v34 quad_perm:[2,3,0,1] row_mask:0xf bank_mask:0xf")
    A("v_sub_f32 v35, v32, v34"); A("v_mul_f32 v35, 0x3fb8aa3b, v35"); A("v_exp_f32 v35, v35")
    A("v_mul_f32 v35, v35, v33")
    A("v_add_f32_dpp v35, v35, v35 quad_perm:[1,0,3,2] row_mask:0xf bank_mask:0xf")
    A("v_add_f32_dpp v35, v35, v35 quad_perm:[2,3,0,1] row_mask:0xf bank_mask:0xf")
    A("v_mov_b32 v36, 0x7fc00000")
    sanitize([34, 35], 36)
    A("v_mov_b32 v15, 0")
    A(f"s_lshl_b32 s{st0}, s{sReg}, 7"); A(f"s_add_u32 s{st0}, s{st0}, {WS_ST}")
    if BOOST and not BST and not (BX & 4):
        A("s_waitcnt lgkmcnt(0)")
        A("s_and_b32 s90, s90, 0x7fffffff")
        A("v_mov_b32 v52, v34"); A("v_mov_b32 v53, v35"); A("v_mov_b32 v54, s90"); A("v_mov_b32 v55, 0")
        A("s_mov_b64 exec, 1"); A(f"buffer_store_dwordx4 v[52:55], v15, {srd(sWS)}, s{st0} offen sc1"); A("s_mov_b64 exec, -1")
    else:
        A("s_mov_b64 exec, 1"); A(f"buffer_store_dwordx2 v[34:35], v15, {srd(sWS)}, s{st0} offen sc1"); A("s_mov_b64 exec, -1")
    A(f"s_mov_b32 s{sCnt}, {SPIN_LIMIT}")
    A.label("L_inspin")
    A(f"global_load_dword v37, v15, s[{pDBG}:{pDBG+1}] sc1"); A("s_waitcnt vmcnt(0)")
    A("v_cmp_gt_u32 vcc, 0x100, v37")
    A("s_cbranch_vccz L_inok")
    A("s_sleep 4")
    A(f"s_sub_u32 s{sCnt}, s{sCnt}, 1"); A("s_cbranch_scc0 L_inspin")
    A.label("L_inok")
    if BOOST and not BST and not (BX & 4):
        A(f"v_bfe_u32 v48, v{vLane}, 1, 2"); A("v_lshlrev_b32 v48, 5, v48")
        A(f"v_bfe_u32 v49, v{vLane}, 3, 2"); A("v_lshlrev_b32 v49, 3, v49"); A("v_add_u32 v48, v48, v49")
        A(f"s_and_b32 s{st1}, s2, 7"); A(f"v_add_u32 v48, s{st1}, v48"); A("v_lshlrev_b32 v48, 1, v48")
        A(f"v_and_b32 v49, 1, v{vLane}"); A("v_add_u32 v48, v48, v49"); A("v_lshlrev_b32 v48, 7, v48")
        A(f"s_mov_b32 s{st1}, {WS_ST + 8}")
        A(f"buffer_load_dword v50, v48, {srd(sWS)}, s{st1} offen sc1"); A("s_waitcnt vmcnt(0)")
        A("v_cmp_ne_u32 vcc, -1, v50")
        A("v_sub_u32 v51, s90, v50"); A("v_lshlrev_b32 v51, 1, v51"); A("v_ashrrev_i32 v51, 1, v51")
        A("v_cvt_f32_i32 v51, v51")
        A("v_mov_b32 v52, 0"); A("v_mov_b32 v53, 1.0")
        A("v_cndmask_b32 v51, v52, v51, vcc"); A("v_cndmask_b32 v53, v52, v53, vcc")
        wave_allreduce("v_add_f32", 51, 52); wave_allreduce("v_add_f32", 53, 52)
        A("v_rcp_f32 v53, v53"); A("v_mul_f32 v51, v51, v53")
        A(f"v_mul_f32 v51, {hex(__import__('struct').unpack('<I', __import__('struct').pack('<f', 1.0/BOOST))[0])}, v51")
        A("v_max_f32 v51, 0, v51"); A("v_min_f32 v51, 0x41800000, v51"); A("v_cvt_u32_f32 v51, v51")
        A(f"v_mov_b32 v48, {L_BOOST}")
        A("s_mov_b64 exec, 1"); A("ds_write_b32 v48, v51"); A("s_mov_b64 exec, -1")
    A(f"s_xor_b32 s{st1}, s{sReg}, 1"); A(f"s_lshl_b32 s{st1}, s{st1}, 7"); A(f"s_add_u32 s{st1}, s{st1}, {WS_ST}")
    A(f"s_mov_b32 s{sCnt}, {SPIN_LIMIT}")
    A.label("L_prspin")
    A("s_sleep 4")
    A(f"buffer_load_dwordx2 v[38:39], v15, {srd(sWS)}, s{st1} offen sc1"); A("s_waitcnt vmcnt(0)")
    spin_check([38, 39], 37, "L_prspin", "L_prok")
    A("v_max_f32 v40, v34, v38")
    A("v_sub_f32 v41, v34, v40"); A("v_sub_f32 v42, v38, v40"); A("v_sub_f32 v43, v32, v40")
    for r in (41, 42, 43): A(f"v_mul_f32 v{r}, 0x3fb8aa3b, v{r}")
    for r in (41, 42, 43): A(f"v_exp_f32 v{r}, v{r}")
    A("v_mul_f32 v41, v41, v35"); A("v_fmac_f32 v41, v42, v39")
    A("v_rcp_f32 v41, v41"); A("v_mul_f32 v43, v43, v41")
    sanitize([43], 36)
    A(f"v_lshlrev_b32 v14, 2, v{vLane}")
    A("s_mov_b64 exec, 0xf"); A(f"ds_write_b32 v14, v43 offset:{L_FW}"); A("s_mov_b64 exec, -1")
    A("s_waitcnt lgkmcnt(0)")
    A.label("L_nostat")
    A(f"v_and_b32 v14, 3, v{vLane}"); A("v_lshlrev_b32 v14, 8, v14")
    A(f"v_lshlrev_b32 v15, 4, v{vG}"); A("v_add_u32 v14, v14, v15")
    A(f"v_bfe_u32 v14, v{vLane}, 2, 2"); A("v_lshlrev_b32 v14, 8, v14"); A("v_add_u32 v14, v14, v15")
    A(f"v_lshlrev_b32 v6, 13, v{vG}"); A(f"v_lshlrev_b32 v7, 3, v{vCc}"); A("v_add_u32 v6, v6, v7")
    A(f"s_lshl_b32 s{st0}, s{sB}, 4"); A(f"s_lshl_b32 s{st1}, s{sU}, 2"); A(f"s_add_u32 s{st0}, s{st0}, s{st1}")
    A(f"s_lshl_b32 s{st0}, s{st0}, 13"); A(f"s_lshl_b32 s{st1}, s{sJ}, 7"); A(f"s_add_u32 s{sReg}, s{st0}, s{st1}")
    A("v_mov_b32 v7, 0x7fc00000")
    for k in range(32): A(f"v_mov_b32 v{64+k}, 0")
    stamp(3)
    A("s_barrier")
    stamp(4)
    for q in range(4): A(f"ds_read_b128 v[{32+4*q}:{35+4*q}], v14 offset:{L_OW+q*64}")
    for q in range(4):
        A(f"s_waitcnt lgkmcnt({3-q})")
        for t in range(8):
            A(f"v_mfma_f32_16x16x32_bf16 v[{64+4*t}:{67+4*t}], v[{32+4*q}:{35+4*q}], v[{vW+32*q+4*t}:{vW+32*q+4*t+3}], v[{64+4*t}:{67+4*t}]")
    Dt = [64+4*t for t in range(8)]
    for e in range(4): A(f"v_permlane32_swap_b32 v{Dt[e]}, v{Dt[e+4]}")
    for e in range(4): A(f"v_add_f32 v{Dt[e]}, v{Dt[e]}, v{Dt[e+4]}")
    A(f"v_permlane16_swap_b32 v{Dt[0]}, v{Dt[2]}"); A(f"v_permlane16_swap_b32 v{Dt[1]}, v{Dt[3]}")
    A(f"v_add_f32 v16, v{Dt[0]}, v{Dt[2]}"); A(f"v_add_f32 v17, v{Dt[1]}, v{Dt[3]}")
    sanitize([16, 17], 7)
    A(f"buffer_store_dwordx2 v[16:17], v6, {srd(sWS)}, s{sReg} offen sc1")
    A("s_barrier")
    stamp(5)
    if PROF and not COOPQ:
        A("s_waitcnt vmcnt(0)")
        stamp(1)
    prof_store(0)
    A.label("L_end")
    A("s_endpgm")
    A('.section .rodata,"a"'); A(".p2align 6"); A(f".amdhsa_kernel {NAME}")
    A("  .amdhsa_next_free_vgpr 256"); A("  .amdhsa_next_free_sgpr 96"); A("  .amdhsa_accum_offset 256")
    A("  .amdhsa_group_segment_fixed_size 0"); A("  .amdhsa_kernarg_size 88"); A("  .amdhsa_user_sgpr_count 2")
    A("  .amdhsa_user_sgpr_kernarg_segment_ptr 1"); A("  .amdhsa_system_sgpr_workgroup_id_x 1")
    A("  .amdhsa_float_denorm_mode_32 3"); A("  .amdhsa_float_denorm_mode_16_64 3")
    A(".end_amdhsa_kernel")
    return A.finalize()

if __name__ == "__main__":
    import build
    kw = json.loads(sys.argv[2]) if len(sys.argv) > 2 else {}
    s = gen(**kw)
    open(sys.argv[1], "w").write(s)
    build.build(sys.argv[1])
```

```python
import sys, json
from asmlib import Asm
NAME = "sequential_preLN__gqa_block_cached__dense_activation_relu__decode_kernel"

WS_Y  = 0x00000
WS_H  = 0x80000
WS_H1 = 0x8A000
H1_STRIDE = 11264
WS_ST = 0x98000
WS_W1T = 0x100000
WS_W2T = 0x280000
W2T_STRIDE = 43*1024
WS_PROF = 0x400000
WS_FLAG = 0xA2000
WS_FIN = 0xA1000
WS_EP = 0xA0000
WS_QX = 0x600000
WS_SIZE = 0x700000
L_QP = 0; L_OW = 2048; L_STAT = 4096; L_FW = 4128
L_CNT = 4160; L_CNT2 = 4164; L_ROLE = 4168; L_BOOST = 4172; L_PROG = 4176; L_DEEP = 4180; L_KT = 4184; L_RR = 4352; L_RED = 4608; L_RED2 = L_RED + 4096; L_RED3 = L_RED2 + 2048
L_SC = 16384; L_STG = 32768; STG_W = 12288; RS = 288
LDS_BYTES = L_STG + 4*STG_W
POISON = -1
SPIN_LIMIT = 1 << 18

def brev4(n): return int(f"{n:04b}"[::-1], 2)

def gen(D=6, PROF=False, PACE=4, DBG=0, WQF='', WOF='', WFF='', NOWO=0, NOSTG=0, D0=5, SLP1=4, SLP2=4, SLPR=0, REPACK=0, NR=0, D2=12, NT2=0, ROTK=0, ROTQ=0, HB=16, G=2, WQP=0, TLBV=0, PACED=0, I0=16, COOPQ=0, QXS='sc1', QXL='sc1', NOQ=0, PD=1, STG=4, SLB=0, DYN=0, DV=0, OUTF='', BOOST=0, BMED=127, BD=6, BX=0, BST=0, QXW=-1, DEEP=0, DPT=9, DPS=24, POISLATE=0, SPREAD=0, NOPOIS=0):
    A = Asm()
    R = 16
    A(f"; @launch grid=(256,1,1) block=(512,1,1) lds={LDS_BYTES}")
    A('.amdgcn_target "amdgcn-amd-amdhsa--gfx950"')
    A(".text"); A(f".globl {NAME}"); A(".p2align 8"); A(f".type {NAME},@function"); A.label(NAME)
    sK, sV, sC, sWS, sT = 4, 8, 12, 16, 20
    sM0, sM1 = 24, 26
    sH, sB, sHalf, sReg = 28, 29, 30, 31
    sOff, sTile, sU = 32, 33, 34
    st0, st1, st2, st3 = 58, 59, 60, 61
    sJ = 62
    sCnt = 63
    sP = 64
    pX, pK, pV, pWQ, pWO, pW1, pW2, pOUT, pDBG, pWS = 36, 38, 40, 42, 44, 48, 50, 52, 54, 56
    srd = lambda s: f"s[{s}:{s+3}]"
    nst = [0]
    def stamp(i):
        if PROF: A(f"s_memrealtime s[{sP+2*i}:{sP+2*i+1}]")
    def prof_store(slot_wave):
        if not PROF: return
        A("s_waitcnt vmcnt(0) lgkmcnt(0)")
        A(f"s_lshl_b32 s{st0}, s2, 3"); A(f"s_add_u32 s{st0}, s{st0}, s3"); A(f"s_lshl_b32 s{st0}, s{st0}, 6")
        A(f"s_add_u32 s{st0}, s{st0}, {WS_PROF}")
        for i in range(8):
            A(f"v_mov_b32 v{40+i}, s{sP+2*i}")
        A(f"s_getreg_b32 s{st1}, hwreg(HW_REG_XCC_ID)"); A(f"s_getreg_b32 s{st2}, hwreg(HW_REG_HW_ID)")
        A(f"v_mov_b32 v50, s{st1}"); A(f"v_mov_b32 v51, s88")
        A(f"v_mov_b32 v48, 0")
        A("s_mov_b64 s[60:61], exec"); A("s_mov_b64 exec, 1")
        A(f"buffer_store_dwordx4 v[40:43], v48, {srd(sWS)}, s{st0} offen")
        A(f"buffer_store_dwordx4 v[44:47], v48, {srd(sWS)}, s{st0} offen offset:16")
        A(f"buffer_store_dwordx2 v[50:51], v48, {srd(sWS)}, s{st0} offen offset:32")
        A("s_mov_b64 exec, s[60:61]")
    def mk_srd(s, p, size, off_sgpr=None, off_imm=None):
        if off_sgpr is not None:
            A(f"s_add_u32 s{s}, s{p}, s{off_sgpr}"); A(f"s_addc_u32 s{s+1}, s{p+1}, 0")
        elif off_imm is not None:
            A(f"s_add_u32 s{s}, s{p}, {off_imm}"); A(f"s_addc_u32 s{s+1}, s{p+1}, 0")
        else:
            A(f"s_mov_b32 s{s}, s{p}"); A(f"s_mov_b32 s{s+1}, s{p+1}")
        A(f"s_mov_b32 s{s+2}, {size}")
        A(f"s_mov_b32 s{s+3}, 0x20000")
    def wave_allreduce(op, x, t):
        for k in (8, 4, 2, 1):
            A(f"{op}_dpp v{x}, v{x}, v{x} row_ror:{k} row_mask:0xf bank_mask:0xf")
        A(f"v_mov_b32 v{t}, v{x}"); A(f"v_permlane16_swap_b32 v{x}, v{t}"); A(f"{op} v{x}, v{x}, v{t}")
        A(f"v_mov_b32 v{t}, v{x}"); A(f"v_permlane32_swap_b32 v{x}, v{t}"); A(f"{op} v{x}, v{x}, v{t}")
    def round_bf16(x, t=None):
        A(f"v_cvt_pk_bf16_f32 v{x}, v{x}, v{x}")
        A(f"v_and_b32 v{x}, 0xffff0000, v{x}")
    def acc_reduce(a):
        for e in range(4):
            A(f"v_permlane32_swap_b32 v{a+e}, v{a+e+4}")
        for e in range(4):
            A(f"v_add_f32 v{a+e}, v{a+e}, v{a+e+4}")
        A(f"v_permlane16_swap_b32 v{a}, v{a+2}")
        A(f"v_permlane16_swap_b32 v{a+1}, v{a+3}")
        A(f"v_add_f32 v{a}, v{a}, v{a+2}")
        A(f"v_add_f32 v{a+1}, v{a+1}, v{a+3}")
    def sanitize(regs, repl_sgpr, tmpmask="vcc"):
        for r in regs:
            A(f"v_cmp_eq_u32 vcc, -1, v{r}")
            A(f"v_cndmask_b32 v{r}, v{r}, v{repl_sgpr}, vcc")
    def spin_check(regs, tmp, loop, done, fail=None):
        rs = list(regs)
        if len(rs) == 1:
            m = rs[0]
        else:
            A(f"v_max_u32 v{tmp}, v{rs[0]}, v{rs[1]}"); rs = rs[2:]
            while len(rs) >= 2:
                A(f"v_max3_u32 v{tmp}, v{tmp}, v{rs[0]}, v{rs[1]}"); rs = rs[2:]
            if rs: A(f"v_max_u32 v{tmp}, v{tmp}, v{rs[0]}")
            m = tmp
        A(f"v_cmp_eq_u32 vcc, -1, v{m}")
        A(f"s_cbranch_vccz {done}")
        A(f"s_sub_u32 s{sCnt}, s{sCnt}, 1")
        A(f"s_cbranch_scc0 {loop}")
        A.label(done)

    stamp(0)
    A("s_cmp_ge_u32 s2, 256")
    A("s_cbranch_scc1 L_end")
    A("s_load_dwordx16 s[36:51], s[0:1], 0")
    A("s_load_dwordx4 s[52:55], s[0:1], 64")
    A("s_load_dwordx2 s[56:57], s[0:1], 80")
    A("v_lshrrev_b32 v1, 6, v0")
    A("v_and_b32 v2, 63, v0")
    A(f"s_and_b32 s{st0}, s2, 7")
    A("v_readfirstlane_b32 s3, v1")
    A(f"s_lshr_b32 s{st1}, s2, 3")
    A(f"s_lshr_b32 s{sH}, s{st1}, 3"); A(f"s_lshl_b32 s{sH}, s{sH}, 3"); A(f"s_add_u32 s{sH}, s{sH}, s{st0}")
    A(f"s_and_b32 s{st1}, s{st1}, 7")
    A(f"s_lshr_b32 s{sB}, s{st1}, 1")
    A(f"s_and_b32 s{sHalf}, s{st1}, 1")
    A(f"s_lshl_b32 s{sReg}, s{sB}, 5"); A(f"s_add_u32 s{sReg}, s{sReg}, s{sH}")
    A(f"s_lshl_b32 s{sReg}, s{sReg}, 1"); A(f"s_add_u32 s{sReg}, s{sReg}, s{sHalf}")
    A(f"s_lshl_b32 s{sJ}, s{sH}, 1"); A(f"s_add_u32 s{sJ}, s{sJ}, s{sHalf}")
    A("s_cmp_ge_u32 s3, 4")
    A("s_cbranch_scc1 L_helper")

    vLane, vOff = 2, 3
    vQ = 4; vAcc = 8; vP = 16; vtA, vtB = 32, 33; vM, vL, vSC, vPn, vPlo, vPhi = 34, 35, 36, 37, 38, 39
    vRing = 64
    ring = lambda i: vRing + 4*(i % R)
    A("s_getpc_b64 s[58:59]")
    A.label("L_pc")
    A(f"s_sub_u32 s58, s58, L_pc-{NAME}"); A("s_subb_u32 s59, s59, 0")
    A(f"v_lshlrev_b32 v40, 7, v{vLane}")
    A(f"s_lshl_b32 s{st2}, s3, 13")
    A(f"v_add_u32 v40, s{st2}, v40")
    A(f"v_min_u32 v40, L_end-{NAME}, v40")
    A("global_load_dword v41, v40, s[58:59]")
    A(f"v_lshlrev_b32 v{vOff}, 4, v{vLane}")
    A(f"s_mul_i32 s{st0}, s3, {1024*G}")
    A(f"v_add_u32 v{vOff}, s{st0}, v{vOff}")
    A(f"s_lshr_b32 s{st0}, s{sReg}, 1"); A(f"s_lshl_b32 s{st0}, s{st0}, 21")
    A(f"s_lshl_b32 s{st3}, s{sHalf}, {HB}"); A(f"s_add_u32 s{st0}, s{st0}, s{st3}")
    A(f"s_sub_u32 s{st3}, {1<<21 if HB < 20 else 1<<20}, s{st3}") if HB < 20 else A(f"s_mov_b32 s{st3}, {1<<20}")
    A("s_waitcnt lgkmcnt(0)")
    mk_srd(sK, pK, 1 << 20, off_sgpr=st0)
    A(f"s_mov_b32 s{sK+2}, s{st3}")
    sRot = 35
    if ROTK:
        A(f"s_mul_i32 s{sRot}, s2, {ROTK}"); A(f"s_and_b32 s{sRot}, s{sRot}, 255"); A(f"s_lshl_b32 s{sRot}, s{sRot}, 12")
    else:
        A(f"s_mov_b32 s{sRot}, 0")
    A(f"s_mov_b32 s{sOff}, s{sRot}")
    vX = 160
    def sload(i, s, extra=False):
        dst = vX + 4*(i-16) if extra else ring(i)
        A(f"buffer_load_dwordx4 v[{dst}:{dst+3}], v{vOff}, {srd(s)}, s{sOff} offen nt")
        p_ = i % 16
        def addr(p):
            o = (p//G)*4*G*1024 + (p%G)*1024
            return o if HB >= 20 else ((o >> HB) << (HB+1)) | (o & ((1 << HB)-1))
        assert HB >= 20 or (1 << HB) <= 65536
        inc = addr(p_+1) - addr(p_) if p_ < 15 else (addr(16) - addr(15))
        A(f"s_add_u32 s{sOff}, s{sOff}, {inc}")
        if ROTK: A(f"s_and_b32 s{sOff}, s{sOff}, 0xfffff")
    for i in range(D0): sload(i, sK)
    A("s_barrier")
    if COOPQ: assert PACED
    if PACED:
        for i in range(D0, I0):
            if i >= PACED: A(f"s_waitcnt vmcnt({PACED-1})")
            sload(i, sK, extra=(i >= 16))
    elif NR == 0:
        A("s_barrier")
        for i in range(D0, R): sload(i, sK)
    else:
        rest = list(range(D0, R))
        for r_ in range(NR):
            lo = len(rest)*r_//NR; hi = len(rest)*(r_+1)//NR
            for i in rest[lo:hi]: sload(i, sK)
            if r_ < NR-1: A("s_barrier")
    mk_srd(sV, pV, 1 << 20, off_sgpr=st0)
    A(f"s_mov_b32 s{sV+2}, s{st3}")
    for k in range(4): A(f"s_mov_b32 s{sC+k}, s{sK+k}")
    mk_srd(sWS, pWS, WS_SIZE)
    A(f"s_mov_b32 s{sM0}, 0xaaaaaaaa"); A(f"s_mov_b32 s{sM0+1}, 0xaaaaaaaa")
    A(f"s_mov_b32 s{sM1}, 0xcccccccc"); A(f"s_mov_b32 s{sM1+1}, 0xcccccccc")
    A(f"s_lshl_b32 s{st2}, s3, 12"); A(f"s_add_u32 s{st2}, s{st2}, {L_SC}")
    A(f"v_lshlrev_b32 v{vSC}, 2, v{vLane}"); A(f"v_add_u32 v{vSC}, s{st2}, v{vSC}")
    A(f"v_mov_b32 v{vM}, 0xff7fffff")
    A(f"v_and_b32 v42, 15, v{vLane}"); A("v_lshlrev_b32 v42, 5, v42")
    if DBG & 4:
        A(f"s_waitcnt vmcnt({16-D0})"); stamp(6); A("s_waitcnt vmcnt(0)"); stamp(7)
    stamp(1)
    A("s_barrier")
    vqt = 128
    for u in range(4):
        A(f"ds_read_b128 v[{vqt+8*u}:{vqt+8*u+3}], v42 offset:{L_QP+u*512}")
        A(f"ds_read_b128 v[{vqt+8*u+4}:{vqt+8*u+7}], v42 offset:{L_QP+u*512+16}")
    A("s_waitcnt lgkmcnt(0)")
    for e in range(8):
        A(f"v_add_f32 v{vqt+e}, v{vqt+e}, v{vqt+8+e}")
        A(f"v_add_f32 v{vqt+16+e}, v{vqt+16+e}, v{vqt+24+e}")
    for e in range(8): A(f"v_add_f32 v{vqt+e}, v{vqt+e}, v{vqt+16+e}")
    for r in range(4): A(f"v_cvt_pk_bf16_f32 v{vQ+r}, v{vqt+2*r}, v{vqt+2*r+1}")
    if DBG & 1:
        A("s_cmp_lg_u32 s3, 0"); A("s_cbranch_scc1 L_dbgq")
        A(f"s_lshl_b32 s{st2}, s{sReg}, 8"); A(f"s_add_u32 s{st2}, s{st2}, {WS_PROF+0x80000}")
        A(f"v_lshlrev_b32 v40, 4, v{vLane}")
        A("s_mov_b64 exec, 0xffff")
        A(f"buffer_store_dwordx4 v[{vQ}:{vQ+3}], v40, {srd(sWS)}, s{st2} offen")
        A("s_mov_b64 exec, -1")
        A("s_waitcnt vmcnt(0)")
        A.label("L_dbgq")
    stamp(2)
    vW0, vW1, vS = 44, 45, 46
    def k_tail_ops():
        P = lambda n: vP + n
        g = []
        g.append([f"v_add_f32_dpp v{P(14)}, v{P(14)}, v{P(14)} row_ror:8 row_mask:0xf bank_mask:0x3",
                  f"v_add_f32_dpp v{P(14)}, v{P(15)}, v{P(15)} row_ror:8 row_mask:0xf bank_mask:0xc"])
        g.append([f"v_add_f32_dpp v{P(12)}, v{P(12)}, v{P(12)} row_shl:4 row_mask:0xf bank_mask:0x5",
                  f"v_add_f32_dpp v{P(12)}, v{P(14)}, v{P(14)} row_shr:4 row_mask:0xf bank_mask:0xa"])
        g.append([f"v_add_f32_dpp v{vtA}, v{P(8)}, v{P(8)} quad_perm:[2,3,0,1] row_mask:0xf bank_mask:0xf",
                  f"v_add_f32_dpp v{vtB}, v{P(12)}, v{P(12)} quad_perm:[2,3,0,1] row_mask:0xf bank_mask:0xf",
                  f"v_cndmask_b32 v{vW1}, v{vtA}, v{vtB}, s[{sM1}:{sM1+1}]"])
        g.append([f"v_add_f32_dpp v{vtA}, v{vW0}, v{vW0} quad_perm:[1,0,3,2] row_mask:0xf bank_mask:0xf",
                  f"v_add_f32_dpp v{vtB}, v{vW1}, v{vW1} quad_perm:[1,0,3,2] row_mask:0xf bank_mask:0xf",
                  f"v_cndmask_b32 v{vS}, v{vtA}, v{vtB}, s[{sM0}:{sM0+1}]"])
        g.append([f"v_cvt_pk_bf16_f32 v{vS}, v{vS}, v{vS}", f"v_and_b32 v{vS}, 0xffff0000, v{vS}"])
        g.append([f"v_mul_f32 v{vS}, 0x3db504f3, v{vS}", f"v_cvt_pk_bf16_f32 v{vS}, v{vS}, v{vS}"])
        g.append([f"v_and_b32 v{vS}, 0xffff0000, v{vS}", f"v_max_f32 v{vM}, v{vM}, v{vS}",
                  f"ds_write_b32 v{vSC}, v{vS}", f"v_add_u32 v{vSC}, 256, v{vSC}"])
        return g
    def k_tile(first, pt=0):
        P = lambda n: vP + n
        def redA(k):
            A(f"v_add_f32_dpp v{P(2*k)}, v{P(2*k)}, v{P(2*k)} row_ror:8 row_mask:0xf bank_mask:0x3")
            A(f"v_add_f32_dpp v{P(2*k)}, v{P(2*k+1)}, v{P(2*k+1)} row_ror:8 row_mask:0xf bank_mask:0xc")
        def redB(m):
            A(f"v_add_f32_dpp v{P(4*m)}, v{P(4*m)}, v{P(4*m)} row_shl:4 row_mask:0xf bank_mask:0x5")
            A(f"v_add_f32_dpp v{P(4*m)}, v{P(4*m+2)}, v{P(4*m+2)} row_shr:4 row_mask:0xf bank_mask:0xa")
        def redC0():
            A(f"v_add_f32_dpp v{vtA}, v{P(0)}, v{P(0)} quad_perm:[2,3,0,1] row_mask:0xf bank_mask:0xf")
            A(f"v_add_f32_dpp v{vtB}, v{P(4)}, v{P(4)} quad_perm:[2,3,0,1] row_mask:0xf bank_mask:0xf")
            A(f"v_cndmask_b32 v{vW0}, v{vtA}, v{vtB}, s[{sM1}:{sM1+1}]")
        tail = [] if (first and pt == 0) else k_tail_ops()
        for n in range(16):
            pos = 16*pt + n
            if not first: A(f"s_waitcnt vmcnt({D-1})")
            else:
                younger = max(0, I0 - 1 - pos) + max(0, min(pos, 1 << 30) - (I0 - D)) if pos < I0 else D-1
                A(f"s_waitcnt vmcnt({younger})")
            if (not first) or pos + D >= I0:
                if n == 16 - D and not first:
                    A(f"s_cmp_eq_u32 s{sTile}, 15")
                    A(f"s_cselect_b32 s{sC}, s{sV}, s{sC}")
                    A(f"s_cselect_b32 s{sC+1}, s{sV+1}, s{sC+1}")
                    A(f"s_cselect_b32 s{sOff}, s{sRot}, s{sOff}")
                sload(n + D, sC)
            r = vX + 4*n if (first and pt == 1 and pos < I0) else ring(n)
            A(f"v_dot2_f32_bf16 v{P(n)}, v{r}, v{vQ}, 0")
            for k in range(1, 4): A(f"v_dot2_f32_bf16 v{P(n)}, v{r+k}, v{vQ+k}, v{P(n)}")
            if n < len(tail):
                for x in tail[n]: A(x)
            if n >= 2 and n % 2 == 0: redA((n-2)//2)
            if n in (5, 9, 13): redB((n-5)//4)
            if n == 11: redC0()
    A(f"s_mov_b32 s{sTile}, 0")
    k_tile(True, 0)
    if I0 > 16:
        k_tile(True, 1)
    A(f"s_mov_b32 s{sTile}, {2 if I0 > 16 else 1}")
    if SPREAD: A(f"v_mov_b32 v43, {L_KT}")
    A.label("L_kloop")
    k_tile(False)
    A(f"s_add_u32 s{sTile}, s{sTile}, 1")
    if SPREAD == 1:
        A(f"v_mov_b32 v47, s{sTile}"); A(f"ds_write_b32 v43, v47")
    if PROF and (DBG & 16):
        A(f"s_cmp_lg_u32 s{sTile}, 3"); A("s_cbranch_scc1 L_nk1"); stamp(1); A.label("L_nk1")
        A(f"s_cmp_lg_u32 s{sTile}, 6"); A("s_cbranch_scc1 L_nk2"); stamp(6); A.label("L_nk2")
        A(f"s_cmp_lg_u32 s{sTile}, 11"); A("s_cbranch_scc1 L_nk3"); stamp(7); A.label("L_nk3")
    A(f"s_cmp_lt_u32 s{sTile}, 16")
    A("s_cbranch_scc1 L_kloop")
    for grp in k_tail_ops():
        for x in grp: A(x)
    stamp(3)
    A(f"v_subrev_u32 v{vSC}, 4096, v{vSC}")
    A("s_waitcnt lgkmcnt(0)")
    for t in range(16): A(f"ds_read_b32 v{vP+t}, v{vSC} offset:{t*256}")
    wave_allreduce("v_max_f32", vM, vtA)
    A(f"v_mul_f32 v{vtB}, 0xbfb8aa3b, v{vM}")
    A(f"s_mov_b32 s{st0}, 0x3fb8aa3b")
    A("s_waitcnt lgkmcnt(0)")
    for t in range(16): A(f"v_fma_f32 v{vP+t}, v{vP+t}, s{st0}, v{vtB}")
    for t in range(16): A(f"v_exp_f32 v{vP+t}, v{vP+t}")
    A(f"v_add_f32 v{vL}, v{vP}, v{vP+1}")
    for t in range(2, 16): A(f"v_add_f32 v{vL}, v{vL}, v{vP+t}")
    for t in range(16): A(f"v_cvt_pk_bf16_f32 v{vP+t}, v{vP+t}, v{vP+t}")
    for t in range(16): A(f"ds_write_b32 v{vSC}, v{vP+t} offset:{t*256}")
    wave_allreduce("v_add_f32", vL, vtA)
    A(f"v_mov_b32 v40, v{vM}"); A(f"v_mov_b32 v41, v{vL}")
    A("v_mov_b32 v43, 0x7fc00000")
    sanitize([40, 41], 43)
    A(f"s_lshl_b32 s{st0}, s3, 3"); A(f"s_add_u32 s{st0}, s{st0}, {L_STAT}"); A(f"v_mov_b32 v42, s{st0}")
    A("s_mov_b64 exec, 1"); A("ds_write_b64 v42, v[40:41]"); A("s_mov_b64 exec, -1")
    A(f"v_mov_b32 v{vPn}, v{vP}")
    for e in range(8): A(f"v_mov_b32 v{vAcc+e}, 0")
    A(f"s_mov_b32 s{sTile}, 0")
    def pre_end():
        A(f"v_and_b32 v40, 15, v{vLane}"); A("v_lshlrev_b32 v40, 4, v40")
        A(f"v_lshrrev_b32 v41, 4, v{vLane}"); A("v_lshlrev_b32 v41, 2, v41")
        A("v_add_u32 v40, v40, v41")
        A(f"s_lshl_b32 s{st0}, s3, 8"); A(f"s_add_u32 s{st0}, s{st0}, {L_OW}"); A(f"v_add_u32 v40, s{st0}, v40")
        A(f"s_lshl_b32 s{st0}, s3, 2"); A(f"s_add_u32 s{st0}, s{st0}, {L_FW}"); A(f"v_mov_b32 v42, s{st0}")
        if DEEP:
            A(f"s_and_b32 s{st0}, s2, 7"); A(f"s_lshl_b32 s{st0}, s{st0}, 7"); A(f"s_add_u32 s{st0}, s{st0}, {WS_FIN}"); A(f"v_mov_b32 v44, s{st0}")
        else:
            A(f"s_and_b32 s{st0}, s2, 7"); A(f"s_lshl_b32 s{st0}, s{st0}, 2"); A(f"s_add_u32 s{st0}, s{st0}, 32"); A(f"v_mov_b32 v44, s{st0}")
        A("v_mov_b32 v46, 1")
        A(f"s_mov_b32 s{sCnt}, {SPIN_LIMIT}")
        A.label("L_fwspin")
        A("ds_read_b32 v43, v42"); A("s_waitcnt lgkmcnt(0)")
        spin_check([43], 47, "L_fwspin", "L_fwok")
    def v_loop(label, depth, tend):
        A.label(label)
        A(f"v_and_b32 v{vPlo}, 0xffff, v{vPn}")
        A(f"v_and_b32 v{vPhi}, 0xffff0000, v{vPn}")
        A(f"v_add_u32 v{vSC}, 256, v{vSC}")
        A(f"ds_read_b32 v{vPn}, v{vSC}")
        for n in range(16):
            A(f"s_waitcnt vmcnt({depth-1})")
            r = ring(n); bl = brev4(n)
            if ROTK and n == 16 - depth and tend == 16:
                A(f"s_cmp_eq_u32 s{sTile}, 15"); A(f"s_cselect_b32 s{sC+2}, 0, s{sC+2}")
            sload(n + depth, sC)
            for k in range(4):
                A(f"v_dot2c_f32_bf16_dpp v{vAcc+2*k}, v{vPlo}, v{r+k} row_newbcast:{bl} row_mask:0xf bank_mask:0xf")
                A(f"v_dot2c_f32_bf16_dpp v{vAcc+2*k+1}, v{vPhi}, v{r+k} row_newbcast:{bl} row_mask:0xf bank_mask:0xf")
        A("s_waitcnt lgkmcnt(0)")
        A(f"s_add_u32 s{sTile}, s{sTile}, 1")
        if PROF and (DBG & 8) and label == "L_vloop":
            A(f"s_cmp_lg_u32 s{sTile}, 1"); A("s_cbranch_scc1 L_nost"); stamp(1); A.label("L_nost")
        A(f"s_cmp_lt_u32 s{sTile}, {tend}")
        A(f"s_cbranch_scc1 {label}")
    DVV = DV if DV else D
    for i_ in range(D, DVV): sload(i_, sC)
    def v_body(depth, skippable=False, tag="", flagread=False, skipn=0):
        A(f"v_and_b32 v{vPlo}, 0xffff, v{vPn}")
        A(f"v_and_b32 v{vPhi}, 0xffff0000, v{vPn}")
        A(f"v_add_u32 v{vSC}, 256, v{vSC}")
        A(f"ds_read_b32 v{vPn}, v{vSC}")
        if (skippable and not (BX & 1)) or flagread: A(f"ds_read_b32 v45, v47")
        for n in range(16):
            A(f"s_waitcnt vmcnt({depth-1})")
            r = ring(n); bl = brev4(n)
            if skippable and n < BD - DVV and not (BX & 2):
                A(f"s_cmp_gt_u32 s89, {n}"); A(f"s_cbranch_scc1 L_vskip{n}")
                sload(n + depth, sC)
                A.label(f"L_vskip{n}")
            elif n >= skipn:
                sload(n + depth, sC)
            for k in range(4):
                A(f"v_dot2c_f32_bf16_dpp v{vAcc+2*k}, v{vPlo}, v{r+k} row_newbcast:{bl} row_mask:0xf bank_mask:0xf")
                A(f"v_dot2c_f32_bf16_dpp v{vAcc+2*k+1}, v{vPhi}, v{r+k} row_newbcast:{bl} row_mask:0xf bank_mask:0xf")
        A("s_waitcnt lgkmcnt(0)")
        A(f"s_add_u32 s{sTile}, s{sTile}, 1")
    if DVV < D:
        assert not (DEEP or BOOST)
        v_body(DVV, skipn=D-DVV)
    if DEEP:
        assert NT2 >= 1 and not ROTK and not BOOST and DYN
        TE = 16 - NT2
        A(f"v_mov_b32 v47, {L_DEEP}"); A(f"v_mov_b32 v46, {L_PROG}")
        A.label("L_vloop")
        v_body(DVV, skippable=False, flagread=True)
        A(f"s_cmp_ge_u32 s{sTile}, {TE}"); A("s_cbranch_scc1 L_vexit")
        A(f"s_cmp_lg_u32 s{sTile}, {DPT}"); A("s_cbranch_scc1 L_vnoprog")
        A("v_mov_b32 v44, 1"); A("s_mov_b64 exec, 1"); A("ds_write_b32 v46, v44"); A("s_mov_b64 exec, -1")
        A.label("L_vnoprog")
        A("v_readfirstlane_b32 s91, v45")
        A("s_cmp_eq_u32 s91, 0"); A("s_cbranch_scc1 L_vloop")
        A.label("L_vexit")
        if PROF: A(f"s_mov_b32 s{sP+2}, s{sTile}")
        A("v_mov_b32 v44, 2"); A("s_mov_b64 exec, 1"); A("ds_write_b32 v46, v44"); A("s_mov_b64 exec, -1")
        pre_end()
        for i_ in range(DVV, D2): sload(i_, sC)
        v_loop("L_vloop2", D2, 16)
    elif BOOST:
        assert NT2 >= 1 and not ROTK
        TE = 16 - NT2
        A("s_mov_b32 s89, 0"); A(f"s_mov_b32 s90, {1 if BX & 8 else 0}"); A(f"v_mov_b32 v47, {L_BOOST}"); A("v_mov_b32 v45, -1")
        A.label("L_vloop")
        v_body(DVV, skippable=True)
        A("s_mov_b32 s89, 0")
        A(f"s_cmp_ge_u32 s{sTile}, {TE}"); A("s_cbranch_scc1 L_vexit")
        A("s_cmp_lg_u32 s90, 0"); A("s_cbranch_scc1 L_vloop")
        A("v_readfirstlane_b32 s91, v45")
        A("s_cmp_eq_u32 s91, -1"); A("s_cbranch_scc1 L_vloop")
        A("s_mov_b32 s90, 1")
        A(f"s_sub_u32 s{st0}, {TE-1}, s{sTile}"); A(f"s_min_u32 s91, s91, s{st0}")
        if PROF: A(f"s_mov_b32 s{sP+2}, s91")
        A("s_cmp_eq_u32 s91, 0"); A("s_cbranch_scc1 L_vloop")
        for i_ in range(DVV, BD): sload(i_, sC)
        A.label("L_vboost")
        v_body(BD)
        A("s_sub_u32 s91, s91, 1"); A("s_cmp_lg_u32 s91, 0"); A("s_cbranch_scc1 L_vboost")
        A(f"s_mov_b32 s89, {BD-DVV}")
        A("s_branch L_vloop")
        A.label("L_vexit")
        pre_end()
        for i_ in range(DVV, D2): sload(i_, sC)
        v_loop("L_vloop2", D2, 16)
    elif NT2 == 0:
        v_loop("L_vloop", DVV, 16)
    else:
        v_loop("L_vloop", DVV, 16 - NT2)
        pre_end()
        for i_ in range(DVV, D2): sload(i_, sC)
        v_loop("L_vloop2", D2, 16)
    if NT2 == 0: pre_end()
    stamp(4)
    if DYN:
        A("s_cmp_lg_u32 s3, 0"); A("s_cbranch_scc1 L_notick")
        if DEEP:
            A("v_mov_b32 v45, v46")
            A("s_mov_b64 exec, 1"); A(f"buffer_atomic_add v45, v44, {srd(sWS)}, 0 offen sc0"); A("s_mov_b64 exec, -1")
        else:
            A("s_mov_b64 exec, 1"); A(f"global_atomic_add v45, v44, v46, s[{pDBG}:{pDBG+1}] sc0"); A("s_mov_b64 exec, -1")
        A.label("L_notick")
    acc_reduce(vAcc)
    A(f"v_mul_f32 v{vAcc}, v{vAcc}, v43"); A(f"v_mul_f32 v{vAcc+1}, v{vAcc+1}, v43")
    A(f"v_cvt_pk_bf16_f32 v{vAcc}, v{vAcc}, v{vAcc+1}")
    A(f"ds_write_b32 v40, v{vAcc}")
    A("s_waitcnt lgkmcnt(0)")
    A("s_barrier")
    stamp(5)
    A("s_waitcnt vmcnt(0)")
    sVid = 88
    A("s_cmp_lg_u32 s3, 0"); A("s_cbranch_scc1 L_norole")
    if DYN:
        A(f"v_readfirstlane_b32 s{st0}, v45")
        A(f"s_and_b32 s{st1}, s2, 7")
        A(f"s_lshl_b32 s{st2}, s{st0}, 3"); A(f"s_add_u32 s{st2}, s{st2}, s{st1}")
        A(f"s_mov_b32 s{sVid}, 255")
        A(f"s_sub_u32 s{st3}, s{st2}, {8*15}"); A(f"s_cmp_lt_u32 s{st0}, 23"); A(f"s_cselect_b32 s{sVid}, s{st3}, s{sVid}")
        A(f"s_add_u32 s{st3}, s{st2}, {64-8*4}"); A(f"s_cmp_lt_u32 s{st0}, 15"); A(f"s_cselect_b32 s{sVid}, s{st3}, s{sVid}")
        A(f"s_add_u32 s{st3}, s{st2}, 152"); A(f"s_cmp_lt_u32 s{st0}, 4"); A(f"s_cselect_b32 s{sVid}, s{st3}, s{sVid}")
    else:
        A(f"s_mov_b32 s{sVid}, s2")
    if SPREAD:
        A(f"s_cmp_ge_u32 s{sVid}, 184"); A("s_cbranch_scc1 L_inok2")
        if SPREAD == 1:
            A("v_mov_b32 v46, 0"); A(f"s_mov_b32 s{sCnt}, {SPIN_LIMIT}")
            A.label("L_inspin2")
            A(f"global_load_dword v47, v46, s[{pDBG}:{pDBG+1}] sc1"); A("s_waitcnt vmcnt(0)")
            A("v_cmp_gt_u32 vcc, 0x100, v47")
            A("s_cbranch_vccz L_inok2")
            A("s_sleep 2")
            A(f"s_sub_u32 s{sCnt}, s{sCnt}, 1"); A("s_cbranch_scc0 L_inspin2")
        else:
            A("v_mov_b32 v46, 0"); A(f"s_mov_b32 s{st1}, {WS_EP}")
            A(f"buffer_load_dword v47, v46, {srd(sWS)}, s{st1} offen sc1")
            A(f"s_bfe_u32 s{st1}, s2, 0x20003"); A(f"s_lshl_b32 s{st1}, s{st1}, 10"); A(f"s_add_u32 s{st1}, s{st1}, {WS_FLAG}")
            A(f"v_lshlrev_b32 v46, 4, v{vLane}"); A(f"s_mov_b32 s{sCnt}, {SPIN_LIMIT}")
            A.label("L_inspin2")
            A(f"buffer_load_dwordx4 v[48:51], v46, {srd(sWS)}, s{st1} offen sc1"); A("s_waitcnt vmcnt(0)")
            A("v_add_u32 v52, 1, v47")
            for k in range(4): A(f"v_xor_b32 v{48+k}, v52, v{48+k}")
            A("v_or3_b32 v48, v48, v49, v50"); A("v_or_b32 v48, v48, v51")
            A("v_cmp_ne_u32 vcc, 0, v48")
            A("s_cbranch_vccz L_inok2")
            A("s_sleep 2")
            A(f"s_sub_u32 s{sCnt}, s{sCnt}, 1"); A("s_cbranch_scc0 L_inspin2")
        A.label("L_inok2")
    A(f"v_mov_b32 v44, {L_ROLE}"); A(f"v_mov_b32 v45, s{sVid}")
    A("s_mov_b64 exec, 1"); A("ds_write_b32 v44, v45"); A("s_mov_b64 exec, -1")
    A("s_waitcnt lgkmcnt(0)")
    A.label("L_norole")
    A("s_barrier")
    A(f"v_mov_b32 v44, {L_ROLE}"); A("ds_read_b32 v45, v44"); A("s_waitcnt lgkmcnt(0)")
    A(f"v_readfirstlane_b32 s{sVid}, v45")
    A(f"s_cmp_lt_u32 s{sVid}, 64"); A("s_cbranch_scc1 L_red")
    A(f"s_cmp_lt_u32 s{sVid}, 152"); A("s_cbranch_scc1 L_ffn1")
    A(f"s_cmp_lt_u32 s{sVid}, 184"); A("s_cbranch_scc1 L_ffn2")
    A.label("L_sdone")
    prof_store(0)
    A("s_endpgm")

    A.label("L_red")
    A(f"s_lshl_b32 s{st0}, s88, 13"); A(f"s_lshl_b32 s{st1}, s3, 11"); A(f"s_add_u32 s{st0}, s{st0}, s{st1}")
    A(f"v_lshlrev_b32 v3, 4, v{vLane}")
    A(f"s_lshr_b32 s{st3}, s88, 4"); A(f"s_lshl_b32 s{st1}, s{st3}, 10")
    A(f"s_and_b32 s{st2}, s88, 15"); A(f"s_lshl_b32 s{sTile}, s{st2}, 6"); A(f"s_add_u32 s{st1}, s{st1}, s{sTile}")
    A(f"v_and_b32 v4, 7, v{vLane}"); A("v_lshlrev_b32 v4, 2, v4")
    A(f"v_lshrrev_b32 v5, 5, v{vLane}"); A("v_lshlrev_b32 v5, 5, v5"); A("v_add_u32 v4, v4, v5")
    mk_srd(sT, pX, 4096)
    A(f"buffer_load_dword v6, v4, {srd(sT)}, s{st1} offen")
    A(f"v_bfe_u32 v5, v{vLane}, 3, 2"); A("v_lshlrev_b32 v5, 12, v5"); A("v_add_u32 v7, v4, v5")
    A(f"s_lshl_b32 s{st2}, s{st2}, 8"); A(f"s_lshl_b32 s{st3}, s{st3}, 6"); A(f"s_add_u32 s{st1}, s{st2}, s{st3}")
    A(f"s_add_u32 s{st1}, s{st1}, {WS_H}")
    A(f"v_lshlrev_b32 v9, 1, v4")
    A(f"s_lshl_b32 s{st2}, s3, 7"); A(f"v_add_u32 v10, s{st2}, v9")
    A(f"s_mov_b32 s{sCnt}, {SPIN_LIMIT}")
    def red_issue():
        A(f"buffer_load_dwordx4 v[16:19], v3, {srd(sWS)}, s{st0} offen sc1")
    A(f"buffer_load_dwordx4 v[16:19], v3, {srd(sWS)}, s{st0} offen sc1")
    A(f"buffer_load_dwordx4 v[20:23], v3, {srd(sWS)}, s{st0} offen offset:1024 sc1")
    for d_ in range(PD-1):
        A(f"s_sleep {STG}")
        A(f"buffer_load_dwordx4 v[16:19], v3, {srd(sWS)}, s{st0} offen sc1")
        A(f"buffer_load_dwordx4 v[20:23], v3, {srd(sWS)}, s{st0} offen offset:1024 sc1")
    A.label("L_redspin")
    A(f"s_waitcnt vmcnt({2*(PD-1)})")
    A("v_max3_u32 v8, v16, v17, v18"); A("v_max3_u32 v11, v20, v21, v22")
    A("v_max_u32 v8, v8, v19"); A("v_max_u32 v11, v11, v23")
    A("v_cmp_eq_u32 s[80:81], -1, v8"); A("v_cmp_eq_u32 s[82:83], -1, v11")
    A("s_or_b64 s[84:85], s[80:81], s[82:83]")
    A("s_cbranch_scc0 L_redok")
    if SLPR: A(f"s_sleep {SLPR}")
    A("s_or_b32 s80, s80, 1"); A("s_or_b32 s82, s82, 1")
    A("s_mov_b64 exec, s[80:81]")
    A(f"buffer_load_dwordx4 v[16:19], v3, {srd(sWS)}, s{st0} offen sc1")
    A("s_mov_b64 exec, s[82:83]")
    A(f"buffer_load_dwordx4 v[20:23], v3, {srd(sWS)}, s{st0} offen offset:1024 sc1")
    A("s_mov_b64 exec, -1")
    A(f"s_sub_u32 s{sCnt}, s{sCnt}, 1"); A("s_cbranch_scc0 L_redspin")
    A.label("L_redok")
    stamp(7)
    if PROF: A(f"s_sub_u32 s{sP+2}, {SPIN_LIMIT}, s{sCnt}")
    for k in range(4): A(f"v_add_f32 v{24+k}, v{16+k}, v{20+k}")
    A("v_permlane32_swap_b32 v24, v25"); A("v_permlane32_swap_b32 v26, v27")
    A("v_add_f32 v24, v24, v25"); A("v_add_f32 v25, v26, v27")
    A("v_mov_b32 v26, v24"); A("v_mov_b32 v27, v25")
    A("v_permlane16_swap_b32 v24, v26"); A("v_permlane16_swap_b32 v25, v27")
    A("v_add_f32 v24, v24, v26"); A("v_add_f32 v25, v25, v27")
    A("v_add_f32_dpp v24, v24, v24 row_ror:8 row_mask:0xf bank_mask:0xf")
    A("v_add_f32_dpp v25, v25, v25 row_ror:8 row_mask:0xf bank_mask:0xf")
    A(f"ds_write_b64 v10, v[24:25] offset:{L_RR}")
    A("s_waitcnt lgkmcnt(0)")
    A("s_barrier")
    A("s_cmp_lg_u32 s3, 0"); A("s_cbranch_scc1 L_sdone")
    for u in range(4): A(f"ds_read_b64 v[{32+2*u}:{33+2*u}], v9 offset:{L_RR+u*128}")
    A("v_lshlrev_b32 v40, 16, v6"); A("v_and_b32 v41, 0xffff0000, v6")
    A("v_mov_b32 v42, 0x7fc07fc0")
    A("s_waitcnt lgkmcnt(0)")
    A("v_add_f32 v32, v32, v34"); A("v_add_f32 v33, v33, v35"); A("v_add_f32 v36, v36, v38"); A("v_add_f32 v37, v37, v39")
    A("v_add_f32 v32, v32, v36"); A("v_add_f32 v33, v33, v37")
    A("v_cvt_pk_bf16_f32 v32, v32, v33")
    A("v_lshlrev_b32 v34, 16, v32"); A("v_and_b32 v35, 0xffff0000, v32")
    A("v_add_f32 v34, v34, v40"); A("v_add_f32 v35, v35, v41")
    A("v_cvt_pk_bf16_f32 v32, v34, v35")
    sanitize([32], 42)
    A(f"buffer_store_dword v32, v7, {srd(sWS)}, s{st1} offen sc1")
    A(f"s_add_u32 s{st1}, s{st1}, 16384")
    A(f"buffer_store_dword v32, v7, {srd(sWS)}, s{st1} offen sc1")
    A(f"s_add_u32 s{st1}, s{st1}, 16384")
    A("s_mov_b32 exec_lo, 0xff"); A("s_mov_b32 exec_hi, 0xff")
    A(f"buffer_store_dword v32, v4, {srd(sWS)}, s{st1} offen sc1")
    A("s_mov_b64 exec, -1")
    stamp(6)
    A("s_branch L_sdone")

    def ffn1_tile(dst, src="s2"):
        A(f"s_sub_u32 s{st0}, {src}, 64")
        A(f"s_and_b32 s{st1}, s{st0}, 7")
        A(f"s_lshr_b32 s{st0}, s{st0}, 3")
        A(f"s_lshr_b32 s{st2}, s{st0}, 2"); A(f"s_lshl_b32 s{st2}, s{st2}, 3"); A(f"s_add_u32 s{st2}, s{st2}, s{st1}")
        A(f"s_lshl_b32 s{st2}, s{st2}, 2"); A(f"s_and_b32 s{st3}, s{st0}, 3"); A(f"s_add_u32 s{st2}, s{st2}, s{st3}")
        A(f"s_mul_i32 s{st1}, s{st1}, 3"); A(f"s_add_u32 s{st1}, s{st1}, s{st0}"); A(f"s_add_u32 s{st1}, s{st1}, 56")
        A(f"s_cmp_lt_u32 s{st0}, 8"); A(f"s_cselect_b32 s{dst}, s{st2}, s{st1}")
    def ffn2_tile(dst, src="s2"):
        A(f"s_sub_u32 s{st0}, {src}, 152"); A(f"s_and_b32 s{st1}, s{st0}, 7"); A(f"s_lshr_b32 s{st0}, s{st0}, 3")
        A(f"s_lshl_b32 s{st1}, s{st1}, 2"); A(f"s_add_u32 s{dst}, s{st1}, s{st0}")
    sTl = 35
    def tr_addr(v):
        A(f"v_lshrrev_b32 v{v}, 4, v{vLane}"); A(f"v_lshlrev_b32 v{v}, 8, v{v}")
        A(f"v_bfe_u32 v40, v{vLane}, 2, 2"); A("v_lshlrev_b32 v40, 5, v40"); A(f"v_add_u32 v{v}, v{v}, v40")
        A(f"v_and_b32 v40, 3, v{vLane}"); A("v_lshlrev_b32 v40, 3, v40"); A(f"v_add_u32 v{v}, v{v}, v40")
        A(f"s_mul_i32 s{st0}, s3, {STG_W}"); A(f"s_add_u32 s{st0}, s{st0}, {L_STG}"); A(f"v_add_u32 v{v}, s{st0}, v{v}")
    A.label("L_ffn1")
    ffn1_tile(sTl, "s88")
    A(f"s_cmp_ge_u32 s{sTl}, 86"); A("s_cbranch_scc1 L_sdone")
    vA = 64
    if REPACK:
        vA = 64
        A(f"s_lshl_b32 s{st0}, s{sTl}, 14"); A(f"s_lshl_b32 s{st1}, s3, 12"); A(f"s_add_u32 s{st0}, s{st0}, s{st1}")
        A(f"s_add_u32 s{st0}, s{st0}, {WS_W1T}")
        A(f"v_lshlrev_b32 v4, 4, v{vLane}")
        for s in range(4): A(f"buffer_load_dwordx4 v[{vA+4*s}:{vA+4*s+3}], v4, {srd(sWS)}, s{st0} offen offset:{s*1024} sc1")
    else:
        A(f"v_lshrrev_b32 v14, 1, v{vLane}"); A("v_mul_u32_u24 v14, 2752, v14")
        A(f"v_and_b32 v6, 1, v{vLane}"); A("v_lshlrev_b32 v6, 4, v6"); A("v_add_u32 v14, v14, v6")
        A(f"s_mul_i32 s{st0}, s3, {128*2752}"); A(f"v_add_u32 v14, s{st0}, v14")
        A(f"s_lshl_b32 s{st1}, s{sTl}, 5")
        A(f"s_add_u32 s{sT}, s{pW1}, s{st1}"); A(f"s_addc_u32 s{sT+1}, s{pW1+1}, 0")
        A(f"s_sub_u32 s{sT+2}, {512*2752}, s{st1}"); A(f"s_mov_b32 s{sT+3}, 0x20000")
        A(f"s_mov_b32 s{sOff}, 0")
        for n in range(4):
            A(f"buffer_load_dwordx4 v[{16+4*n}:{19+4*n}], v14, {srd(sT)}, s{sOff} offen {WFF}")
            A(f"s_add_u32 s{sOff}, s{sOff}, {32*2752}")
        A(f"v_lshlrev_b32 v15, 4, v{vLane}"); A(f"s_mul_i32 s{st0}, s3, {STG_W}"); A(f"s_add_u32 s{st0}, s{st0}, {L_STG}")
        A(f"v_add_u32 v15, s{st0}, v15")
        tr_addr(4)
        A("s_waitcnt vmcnt(0)")
        for n in range(4): A(f"ds_write_b128 v15, v[{16+4*n}:{19+4*n}] offset:{n*1024}")
        vA = 64
        for s in range(4):
            A(f"ds_read_b64_tr_b16 v[{vA+4*s}:{vA+4*s+1}], v4 offset:{s*1024}")
            A(f"ds_read_b64_tr_b16 v[{vA+4*s+2}:{vA+4*s+3}], v4 offset:{s*1024+128}")
    for k in range(4): A(f"v_mov_b32 v{80+k}, 0x3f803f80")
    for k in range(4): A(f"v_mov_b32 v{84+k}, 0")
    A("s_waitcnt vmcnt(0) lgkmcnt(0)")
    for s in range(4): A(f"v_mfma_f32_16x16x32_bf16 v[84:87], v[{vA+4*s}:{vA+4*s+3}], v[80:83], v[84:87]")
    A(f"v_lshlrev_b32 v5, 4, v{vLane}"); A(f"s_lshl_b32 s{st0}, s3, 10"); A(f"v_add_u32 v5, s{st0}, v5")
    A(f"v_lshlrev_b32 v6, 3, v{vLane}"); A(f"s_lshl_b32 s{st0}, s3, 9"); A(f"v_add_u32 v6, s{st0}, v6")
    A(f"ds_write_b128 v5, v[84:87] offset:{L_RED3}")
    A("s_waitcnt lgkmcnt(0)")
    A("s_barrier")
    A(f"v_lshlrev_b32 v7, 4, v{vLane}")
    for u in range(4): A(f"ds_read_b128 v[{16+4*u}:{19+4*u}], v7 offset:{L_RED3+u*1024}")
    A(f"v_and_b32 v8, 15, v{vLane}"); A("v_lshlrev_b32 v8, 6, v8")
    A(f"v_lshrrev_b32 v9, 4, v{vLane}"); A("v_lshlrev_b32 v9, 4, v9"); A("v_add_u32 v8, v8, v9")
    A(f"s_lshl_b32 s{st0}, s3, 10"); A(f"v_add_u32 v8, s{st0}, v8")
    A("s_waitcnt lgkmcnt(0)")
    for k in range(4):
        A(f"v_add_f32 v{16+k}, v{16+k}, v{20+k}"); A(f"v_add_f32 v{24+k}, v{24+k}, v{28+k}")
    for k in range(4): A(f"v_add_f32 v{84+k}, v{16+k}, v{24+k}")
    A(f"s_and_b32 s{st0}, s88, 7"); A(f"s_lshl_b32 s{st0}, s{st0}, 12"); A(f"s_add_u32 s{st0}, s{st0}, {WS_H}")
    for k_, pat in ((90, 0x00f000f0), (92, 0x0f000f00), (94, 0xf000f000)):
        A(f"s_mov_b32 s{k_}, {hex(pat)}"); A(f"s_mov_b32 s{k_+1}, {hex(pat)}")
    A(f"v_and_b32 v12, 3, v{vLane}"); A("v_lshlrev_b32 v12, 5, v12")
    A(f"v_lshrrev_b32 v9, 4, v{vLane}"); A("v_lshlrev_b32 v9, 3, v9"); A("v_add_u32 v12, v12, v9")
    A(f"v_bfe_u32 v9, v{vLane}, 2, 2"); A(f"v_mul_u32_u24 v9, {H1_STRIDE}, v9"); A("v_add_u32 v12, v12, v9")
    A(f"s_lshl_b32 s{st1}, s{sTl}, 7"); A(f"s_add_u32 s{st1}, s{st1}, {WS_H1}")
    A(f"v_lshlrev_b32 v6, 2, v{vLane}"); A(f"s_lshl_b32 s{st2}, s3, 8"); A(f"v_add_u32 v6, s{st2}, v6")
    A(f"v_and_b32 v13, 15, v{vLane}"); A("v_lshlrev_b32 v13, 2, v13")
    A(f"s_mov_b32 s{sCnt}, {SPIN_LIMIT}")
    A.label("L_f1spin")
    if SLP1: A(f"s_sleep {SLP1}")
    A(f"buffer_load_dwordx4 v[16:19], v8, {srd(sWS)}, s{st0} offen sc1")
    A("s_waitcnt vmcnt(0)")
    spin_check(range(16, 20), 10, "L_f1spin", "L_f1ok")
    stamp(7)
    for s in range(4):
        A(f"v_mfma_f32_16x16x32_bf16 v[{88+4*s}:{91+4*s}], v[{vA+4*s}:{vA+4*s+3}], v[16:19], 0")
    A("v_dot2_f32_bf16 v20, v16, v80, 0"); A("v_dot2_f32_bf16 v21, v16, v16, 0")
    for k in range(1, 4):
        A(f"v_dot2_f32_bf16 v20, v{16+k}, v80, v20"); A(f"v_dot2_f32_bf16 v21, v{16+k}, v{16+k}, v21")
    A("v_permlane32_swap_b32 v20, v21"); A("v_add_f32 v20, v20, v21")
    A("v_mov_b32 v21, v20"); A("v_permlane16_swap_b32 v20, v21"); A("v_add_f32 v20, v20, v21")
    A("v_add_f32_dpp v20, v20, v20 row_ror:4 row_mask:0xf bank_mask:0xf")
    A("v_add_f32_dpp v20, v20, v20 row_ror:8 row_mask:0xf bank_mask:0xf")
    A(f"ds_write_b32 v6, v20 offset:{L_RED2}")
    for k in range(4): A(f"v_cndmask_b32 v{88+k}, v{88+k}, v{92+k}, s[90:91]")
    for k in range(4): A(f"v_cndmask_b32 v{96+k}, v{96+k}, v{100+k}, s[94:95]")
    A("s_or_b64 s[92:93], s[92:93], s[94:95]")
    for k in range(4): A(f"v_cndmask_b32 v{88+k}, v{88+k}, v{96+k}, s[92:93]")
    for k in range(4): A(f"v_add_f32_dpp v{88+k}, v{88+k}, v{88+k} row_ror:4 row_mask:0xf bank_mask:0xf")
    for k in range(4): A(f"v_add_f32_dpp v{88+k}, v{88+k}, v{88+k} row_ror:8 row_mask:0xf bank_mask:0xf")
    A(f"ds_write_b128 v5, v[88:91] offset:{L_RED}")
    A("s_waitcnt lgkmcnt(0)")
    A("s_barrier")
    A("s_cmp_lg_u32 s3, 0"); A("s_cbranch_scc1 L_sdone")
    for u in range(4): A(f"ds_read2_b32 v[{32+2*u}:{33+2*u}], v13 offset0:{(L_RED2+u*256)//4 % 256} offset1:{((L_RED2+u*256)//4 + 32) % 256}" if False else "")
    A(f"v_add_u32 v13, {L_RED2}, v13")
    for u in range(4): A(f"ds_read2_b32 v[{32+2*u}:{33+2*u}], v13 offset0:{u*64} offset1:{u*64+32}")
    for u in range(4): A(f"ds_read_b128 v[{16+4*u}:{19+4*u}], v7 offset:{L_RED+u*1024}")
    A("s_waitcnt lgkmcnt(4)")
    A("v_add_f32 v32, v32, v34"); A("v_add_f32 v33, v33, v35"); A("v_add_f32 v36, v36, v38"); A("v_add_f32 v37, v37, v39")
    A("v_add_f32 v32, v32, v36"); A("v_add_f32 v33, v33, v37")
    A("v_mul_f32 v32, 0x3b000000, v32")
    A("v_mul_f32 v33, 0x3b000000, v33")
    A("v_fma_f32 v33, -v32, v32, v33")
    A("v_max_f32 v33, 0, v33")
    A("v_cvt_pk_bf16_f32 v32, v32, v33")
    A("v_and_b32 v33, 0xffff0000, v32"); A("v_lshlrev_b32 v32, 16, v32")
    A("v_add_f32 v33, 0x3727c5ac, v33"); round_bf16(33)
    A("v_sqrt_f32 v33, v33"); round_bf16(33)
    A("v_rcp_f32 v33, v33")
    A("s_waitcnt lgkmcnt(0)")
    for k in range(4):
        A(f"v_add_f32 v{16+k}, v{16+k}, v{20+k}"); A(f"v_add_f32 v{24+k}, v{24+k}, v{28+k}")
    for k in range(4): A(f"v_add_f32 v{16+k}, v{16+k}, v{24+k}")
    for k in range(4): A(f"v_fma_f32 v{16+k}, -v32, v{84+k}, v{16+k}")
    for k in range(4): A(f"v_mul_f32 v{16+k}, v{16+k}, v33")
    for k in range(4): A(f"v_maximum3_f32 v{16+k}, v{16+k}, 0, 0")
    A("v_cvt_pk_bf16_f32 v16, v16, v17"); A("v_cvt_pk_bf16_f32 v17, v18, v19")
    A("v_and_b32 v16, 0x7fff7fff, v16"); A("v_and_b32 v17, 0x7fff7fff, v17")
    A(f"buffer_store_dwordx2 v[16:17], v12, {srd(sWS)}, s{st1} offen sc1")
    stamp(6)
    A("s_branch L_sdone")

    A.label("L_ffn2")
    ffn2_tile(sTl, "s88")
    if COOPQ:
        A("v_mov_b32 v128, 0"); A(f"s_mov_b32 s{st0}, {WS_EP}")
        A(f"buffer_load_dwordx2 v[130:131], v128, {srd(sWS)}, s{st0} offen sc1")
    vBw = 64
    if REPACK:
        vBw = 64
        A(f"s_mul_i32 s{st0}, s{sTl}, {W2T_STRIDE}"); A(f"s_add_u32 s{st0}, s{st0}, {WS_W2T}")
        mk_srd(sT, pWS, W2T_STRIDE, off_sgpr=st0)
        A(f"v_lshlrev_b32 v4, 4, v{vLane}"); A(f"s_mul_i32 s{st0}, s3, {11*1024}")
        for s in range(11):
            if s == 4: A(f"s_add_u32 s{st0}, s{st0}, 4096")
            if s == 8: A(f"s_add_u32 s{st0}, s{st0}, 4096")
            A(f"buffer_load_dwordx4 v[{vBw+4*s}:{vBw+4*s+3}], v4, {srd(sT)}, s{st0} offen offset:{(s%4)*1024} sc1")
        A("s_waitcnt vmcnt(0)")
    else:
        tr_addr(4)
        A(f"v_lshrrev_b32 v14, 1, v{vLane}"); A("v_lshlrev_b32 v14, 10, v14")
        A(f"v_and_b32 v6, 1, v{vLane}"); A("v_lshlrev_b32 v6, 4, v6"); A("v_add_u32 v14, v14, v6")
        A(f"s_mul_i32 s{st0}, s3, {384*1024}"); A(f"v_add_u32 v14, s{st0}, v14")
        A(f"s_lshl_b32 s{st1}, s{sTl}, 5")
        A(f"s_add_u32 s{sT}, s{pW2}, s{st1}"); A(f"s_addc_u32 s{sT+1}, s{pW2+1}, 0")
        A(f"s_sub_u32 s{sT+2}, {1376*1024}, s{st1}"); A(f"s_mov_b32 s{sT+3}, 0x20000")
        A(f"s_mov_b32 s{sOff}, 0")
        for n in range(12):
            A(f"buffer_load_dwordx4 v[{16+4*n}:{19+4*n}], v14, {srd(sT)}, s{sOff} offen {WFF}")
            A(f"s_add_u32 s{sOff}, s{sOff}, {32*1024}")
        A(f"v_lshlrev_b32 v15, 4, v{vLane}"); A(f"s_mul_i32 s{st0}, s3, {STG_W}"); A(f"s_add_u32 s{st0}, s{st0}, {L_STG}")
        A(f"v_add_u32 v15, s{st0}, v15")
        for n in range(12):
            A(f"s_waitcnt vmcnt({11-n})")
            A(f"ds_write_b128 v15, v[{16+4*n}:{19+4*n}] offset:{n*1024}")
        vBw = 64
        A("s_waitcnt lgkmcnt(0)")
        for s in range(12):
            A(f"ds_read_b64_tr_b16 v[{vBw+4*s}:{vBw+4*s+1}], v4 offset:{s*1024}")
            A(f"ds_read_b64_tr_b16 v[{vBw+4*s+2}:{vBw+4*s+3}], v4 offset:{s*1024+128}")
            if s % 4 == 3: A("s_waitcnt lgkmcnt(0)")
    A(f"s_and_b32 s{st0}, s88, 3"); A(f"s_mul_i32 s{st0}, s{st0}, {H1_STRIDE}"); A(f"s_add_u32 s{st0}, s{st0}, {WS_H1}")
    mk_srd(sT, pWS, 86*128, off_sgpr=st0)
    A(f"v_bfe_u32 v8, v{vLane}, 2, 2"); A("v_lshlrev_b32 v8, 8, v8")
    A(f"v_lshrrev_b32 v9, 5, v{vLane}"); A("v_lshlrev_b32 v9, 7, v9"); A("v_add_u32 v8, v8, v9")
    A(f"v_and_b32 v9, 3, v{vLane}"); A("v_lshlrev_b32 v9, 5, v9"); A("v_add_u32 v8, v8, v9")
    A(f"v_bfe_u32 v9, v{vLane}, 4, 1"); A("v_lshlrev_b32 v9, 4, v9"); A("v_add_u32 v8, v8, v9")
    A(f"s_mul_i32 s{st0}, s3, {12*256}"); A(f"v_add_u32 v8, s{st0}, v8")
    A(f"v_lshrrev_b32 v10, 4, v{vLane}")
    A(f"v_and_b32 v11, 15, v{vLane}"); A(f"s_lshl_b32 s{st1}, s{sTl}, 4"); A(f"v_add_u32 v11, s{st1}, v11")
    A("v_lshlrev_b32 v12, 1, v11"); A("v_lshlrev_b32 v13, 10, v10"); A("v_add_u32 v12, v12, v13")
    A("v_lshrrev_b32 v13, 5, v11"); A("v_lshlrev_b32 v13, 8, v13"); A("v_lshlrev_b32 v10, 6, v10"); A("v_add_u32 v13, v13, v10")
    A("v_and_b32 v10, 30, v11"); A("v_lshlrev_b32 v10, 1, v10"); A("v_add_u32 v13, v13, v10")
    A(f"v_lshlrev_b32 v6, 2, v{vLane}"); A(f"s_lshl_b32 s{st0}, s3, 8"); A(f"v_add_u32 v5, s{st0}, v6")
    for k in range(16): A(f"v_mov_b32 v{112+k}, 0")
    A("s_mov_b32 s90, 0xffff0000"); A("s_mov_b32 s91, 0"); A("s_mov_b32 s92, 0"); A("s_mov_b32 s93, 0xffff0000"); A("s_mov_b32 s94, 0"); A("s_mov_b32 s95, -1")
    A("s_waitcnt lgkmcnt(0)")
    A(f"s_mov_b32 s{st0}, {WS_H + 8*4096}")
    mk_srd(sC, pOUT, 4096)
    A(f"s_mov_b32 s{sCnt}, {SPIN_LIMIT}")
    A.label("L_f2hspin")
    if SLP2: A(f"s_sleep {SLP2}")
    A(f"buffer_load_dword v14, v13, {srd(sWS)}, s{st0} offen sc1")
    A("s_waitcnt vmcnt(0)")
    spin_check([14], 15, "L_f2hspin", "L_f2hok")
    A("v_and_b32 v11, 1, v11"); A("v_lshlrev_b32 v60, 16, v14"); A("v_and_b32 v61, 0xffff0000, v14")
    A("v_cmp_eq_u32 vcc, 1, v11"); A("v_cndmask_b32 v60, v60, v61, vcc")
    A(f"s_mov_b32 s{sCnt}, {SPIN_LIMIT}")
    A.label("L_f2spin")
    if SLB: A(f"s_sleep {SLB}")
    for a in range(3): A(f"buffer_load_dwordx4 v[{16+4*a}:{19+4*a}], v8, {srd(sT)}, 0 offen offset:{a*1024} sc1")
    A("s_waitcnt vmcnt(0)")
    spin_check(range(16, 28), 15, "L_f2spin", "L_f2ok")
    stamp(7)
    for a in range(3):
        for q_ in range(4):
            A(f"v_mfma_f32_16x16x32_bf16 v[{112+4*q_}:{115+4*q_}], v[{16+4*a}:{19+4*a}], v[{vBw+16*a+4*q_}:{vBw+16*a+4*q_+3}], v[{112+4*q_}:{115+4*q_}]")
    for k in range(4): A(f"v_cndmask_b32 v{112+k}, v{112+k}, v{116+k}, s[90:91]")
    for k in range(4): A(f"v_cndmask_b32 v{120+k}, v{120+k}, v{124+k}, s[92:93]")
    for k in range(4): A(f"v_cndmask_b32 v{112+k}, v{112+k}, v{120+k}, s[94:95]")
    A("v_permlane32_swap_b32 v112, v114"); A("v_permlane32_swap_b32 v113, v115")
    A("v_add_f32 v112, v112, v114"); A("v_add_f32 v113, v113, v115")
    A("v_permlane16_swap_b32 v112, v113"); A("v_add_f32 v112, v112, v113")
    A(f"ds_write_b32 v5, v112 offset:{L_RED}")
    A("s_waitcnt lgkmcnt(0)")
    A("s_barrier")
    A("s_cmp_lg_u32 s3, 0"); A("s_cbranch_scc1 L_sdone")
    for u in range(4): A(f"ds_read_b32 v{120+u}, v6 offset:{L_RED+u*256}")
    A("s_waitcnt lgkmcnt(0)")
    A("v_add_f32 v120, v120, v121"); A("v_add_f32 v122, v122, v123"); A("v_add_f32 v120, v120, v122")
    round_bf16(120)
    A("v_add_f32 v120, v120, v60")
    A("v_cvt_pk_bf16_f32 v120, v120, v120")
    A(f"buffer_store_short v120, v12, {srd(sC)}, 0 offen {OUTF}")
    if COOPQ:
        A("s_cmp_lg_u32 s88, 152"); A("s_cbranch_scc1 L_noep")
        A("v_add_u32 v130, 1, v130")
        A(f"s_mov_b32 s{st0}, {WS_EP}")
        A("s_mov_b64 exec, 1"); A(f"buffer_store_dwordx2 v[130:131], v128, {srd(sWS)}, s{st0} offen sc1"); A("s_mov_b64 exec, -1")
        A.label("L_noep")
    stamp(6)
    A("s_branch L_sdone")

    A.label("L_helper")
    vW = 128; hAcc = 16; hPlo0, hPhi0, hPlo1, hPhi1 = 24, 25, 26, 27
    vG, vCc = 4, 5
    A(f"s_sub_u32 s{sU}, s3, 4")
    A(f"v_lshrrev_b32 v{vG}, 4, v{vLane}")
    A(f"v_and_b32 v{vCc}, 15, v{vLane}")
    sE0, sE1 = 86, 87
    def ln_stats_and_P(xc_regs):
        for r in range(4):
            A(f"v_lshlrev_b32 v{32+2*r}, 16, v{8+r}"); A(f"v_and_b32 v{33+2*r}, 0xffff0000, v{8+r}")
        A("v_add_f32 v40, v32, v33"); A("v_add_f32 v41, v34, v35"); A("v_add_f32 v42, v36, v37"); A("v_add_f32 v43, v38, v39")
        A("v_add_f32 v40, v40, v41"); A("v_add_f32 v42, v42, v43"); A("v_add_f32 v40, v40, v42")
        wave_allreduce("v_add_f32", 40, 41)
        A("v_mul_f32 v40, 0x3b000000, v40")
        for e in range(8): A(f"v_sub_f32 v{32+e}, v{32+e}, v40")
        A("v_mul_f32 v42, v32, v32")
        for e in range(1, 8): A(f"v_fmac_f32 v42, v{32+e}, v{32+e}")
        wave_allreduce("v_add_f32", 42, 41)
        A("v_mul_f32 v42, 0x3b000000, v42")
        round_bf16(40); round_bf16(42)
        A("v_add_f32 v42, 0x3727c5ac, v42"); round_bf16(42)
        A("v_sqrt_f32 v42, v42"); round_bf16(42)
        A("v_rcp_f32 v42, v42")
        for r in xc_regs:
            A(f"v_lshlrev_b32 v{r}, 16, v{r}"); A(f"v_sub_f32 v{r}, v{r}, v40"); round_bf16(r)
            A(f"v_mul_f32 v{r}, v{r}, v42")
    if COOPQ:
        sI = 35
        A(f"s_lshr_b32 s{sI}, s2, 3"); A(f"s_and_b32 s{sI}, s{sI}, 7")
        A(f"s_lshl_b32 s{st0}, s{sU}, 10")
        A(f"v_lshlrev_b32 v6, 2, v{vCc}"); A(f"v_add_u32 v6, v6, v{vG}"); A(f"s_lshl_b32 s{st1}, s{sI}, 6")
        A(f"v_add_u32 v6, s{st1}, v6"); A("v_lshlrev_b32 v6, 1, v6")
        A(f"v_lshlrev_b32 v7, 4, v{vLane}")
        A(f"v_lshlrev_b32 v3, 13, v{vG}"); A(f"v_lshlrev_b32 v14, 4, v{vCc}"); A("v_add_u32 v3, v3, v14")
        A(f"s_lshl_b32 s{st1}, s{sU}, 17"); A(f"v_add_u32 v3, s{st1}, v3")
        A(f"s_lshl_b32 s{sOff}, s{sI}, 19")
        A(f"s_lshl_b32 s{st1}, s{sH}, 8")
        A(f"s_sub_u32 s{st2}, {4<<20}, s{st1}")
        A("s_waitcnt lgkmcnt(0)")
        stamp(7)
        mk_srd(sWS, pWS, WS_SIZE)
        A("v_mov_b32 v46, 0"); A(f"s_mov_b32 s{st3}, {WS_EP}")
        A(f"buffer_load_dwordx2 v[44:45], v46, {srd(sWS)}, s{st3} offen sc1")
        mk_srd(sT, pX, 1024, off_sgpr=st0)
        A(f"buffer_load_dwordx4 v[8:11], v7, {srd(sT)}, 0 offen")
        A(f"buffer_load_ushort v12, v6, {srd(sT)}, 0 offen")
        A(f"s_add_u32 s{sC}, s{pWQ}, s{st1}"); A(f"s_addc_u32 s{sC+1}, s{pWQ+1}, 0")
        A(f"s_mov_b32 s{sC+2}, s{st2}"); A(f"s_mov_b32 s{sC+3}, 0x20000")
        for k in range(4):
            A(f"buffer_load_dwordx4 v[{vW+4*k}:{vW+4*k+3}], v3, {srd(sC)}, s{sOff} offen {WQF}")
            if k < 3: A(f"s_add_u32 s{sOff}, s{sOff}, 32768")
        A(f"v_lshlrev_b32 v14, 2, v{vLane}"); A("v_mov_b32 v15, -1")
        A("s_mov_b64 exec, 0xfff"); A(f"ds_write_b32 v14, v15 offset:{L_STAT}")
        A("s_mov_b64 exec, 1"); A(f"ds_write_b32 v14, v15 offset:{L_BOOST}")
        A("s_mov_b64 exec, 3"); A("v_mov_b32 v15, 0"); A(f"ds_write_b32 v14, v15 offset:{L_CNT}"); A(f"ds_write_b32 v14, v15 offset:{L_PROG}"); A(f"ds_write_b32 v14, v15 offset:{L_KT}"); A("s_mov_b64 exec, -1")
        A("s_waitcnt lgkmcnt(0)")
        A("s_barrier")
        A(f"v_add_u32 v13, {L_STG}, v7")
        A(f"s_lshl_b32 s{st0}, s{sU}, 12"); A(f"v_add_u32 v14, s{st0}, v13")
        A(f"s_lshl_b32 s{st1}, s{sH}, 2"); A(f"s_add_u32 s{st2}, s{st1}, s{sU}"); A(f"s_lshl_b32 s{st2}, s{st2}, 3"); A(f"s_add_u32 s{st2}, s{st2}, s{sI}")
        A(f"s_lshl_b32 s{st2}, s{st2}, 10"); A(f"s_add_u32 s{st2}, s{st2}, {WS_QX}")
        A(f"s_add_u32 s{st1}, s{st1}, s{sB}"); A(f"s_lshl_b32 s{st1}, s{st1}, 3"); A(f"s_lshl_b32 s{st3}, s{sU}, 1"); A(f"s_add_u32 s{st1}, s{st1}, s{st3}")
        A(f"s_lshl_b32 s{st1}, s{st1}, 10"); A(f"s_add_u32 s{st1}, s{st1}, {WS_QX}")
        A("s_waitcnt vmcnt(4)")
        stamp(6)
        A(f"v_readfirstlane_b32 s{sE0}, v44"); A(f"v_readfirstlane_b32 s{sE1}, v45")
        A(f"s_add_u32 s{sE0}, s{sE0}, 1")
        ln_stats_and_P([12])
        A("v_mov_b32 v15, 0")
        A(f"v_cvt_pk_bf16_f32 v{hPlo0}, v12, v15"); A(f"v_cvt_pk_bf16_f32 v{hPhi0}, v15, v12")
        A("s_waitcnt vmcnt(0)")
        for k in range(4): A(f"ds_write_b128 v14, v[{vW+4*k}:{vW+4*k+3}] offset:{k*1024}")
        A(f"v_mov_b32 v14, {L_CNT2}"); A("v_mov_b32 v15, 1")
        A("s_waitcnt lgkmcnt(0)")
        A("s_mov_b64 exec, 1"); A("ds_add_u32 v14, v15"); A("s_mov_b64 exec, -1")
        A(f"s_mov_b32 s{sCnt}, {SPIN_LIMIT}")
        A.label("L_wspin")
        A("ds_read_b32 v15, v14"); A("s_waitcnt lgkmcnt(0)")
        A("v_cmp_gt_u32 vcc, 4, v15")
        A("s_cbranch_vccz L_wok")
        A(f"s_sub_u32 s{sCnt}, s{sCnt}, 1"); A("s_cbranch_scc0 L_wspin")
        A.label("L_wok")
        for n in range(8): A(f"ds_read_b128 v[{vW+4*n}:{vW+4*n+3}], v13 offset:{n*1024}")
        for e in range(8): A(f"v_mov_b32 v{hAcc+e}, 0")
        for n in range(16):
            if n == 0: A("s_waitcnt lgkmcnt(4)")
            if n == 4:
                A("s_waitcnt lgkmcnt(0)")
                for m in range(8, 16): A(f"ds_read_b128 v[{vW+4*m}:{vW+4*m+3}], v13 offset:{m*1024}")
            if n == 8: A("s_waitcnt lgkmcnt(4)")
            if n == 12: A("s_waitcnt lgkmcnt(0)")
            for k in range(4):
                A(f"v_dot2c_f32_bf16_dpp v{hAcc+2*k}, v{hPlo0}, v{vW+4*n+k} row_newbcast:{n} row_mask:0xf bank_mask:0xf")
                A(f"v_dot2c_f32_bf16_dpp v{hAcc+2*k+1}, v{hPhi0}, v{vW+4*n+k} row_newbcast:{n} row_mask:0xf bank_mask:0xf")
        acc_reduce(hAcc)
        A(f"v_mov_b32 v{hAcc+2}, s{sE0}"); A(f"v_mov_b32 v{hAcc+3}, s{sE1}")
        A(f"buffer_store_dwordx4 v[{hAcc}:{hAcc+3}], v7, {srd(sWS)}, s{st2} offen {QXS}")
        stamp(1)
        if QXW < 0: A("s_waitcnt vmcnt(0)")
        elif QXW > 0: A(f"s_sleep {QXW}")
        if DBG & 32: stamp(6)
        A(f"s_mov_b32 s{sCnt}, {SPIN_LIMIT}")
        A.label("L_qxspin")
        A(f"buffer_load_dwordx4 v[32:35], v7, {srd(sWS)}, s{st1} offen {QXL}")
        A(f"buffer_load_dwordx4 v[36:39], v7, {srd(sWS)}, s{st1} offen offset:1024 {QXL}")
        A("s_waitcnt vmcnt(0)")
        A(f"v_xor_b32 v34, s{sE0}, v34"); A(f"v_xor_b32 v35, s{sE1}, v35"); A(f"v_xor_b32 v38, s{sE0}, v38"); A(f"v_xor_b32 v39, s{sE1}, v39")
        A("v_or_b32 v34, v34, v35"); A("v_or3_b32 v34, v34, v38, v39")
        A("v_cmp_ne_u32 vcc, 0, v34")
        A("s_cbranch_vccz L_qxok")
        A(f"s_sub_u32 s{sCnt}, s{sCnt}, 1"); A("s_cbranch_scc0 L_qxspin")
        A.label("L_qxok")
        if DBG & 32: A(f"s_sub_u32 s{sP+14}, {SPIN_LIMIT}, s{sCnt}")
        A(f"v_add_f32 v{hAcc}, v32, v36"); A(f"v_add_f32 v{hAcc+1}, v33, v37")
    else:
        A(f"s_lshl_b32 s{st0}, s{sB}, 10")
        sRq = 35
        if ROTQ:
            A(f"s_lshr_b32 s{sRq}, s2, 3"); A(f"s_and_b32 s{sRq}, s{sRq}, 7"); A(f"s_mul_i32 s{sRq}, s{sRq}, {ROTQ}"); A(f"s_and_b32 s{sRq}, s{sRq}, 31")
        else:
            A(f"s_mov_b32 s{sRq}, 0")
        A(f"s_lshl_b32 s{st1}, s{sU}, 7")
        for t_, reg in ((0, 6), (1, 9)):
            A(f"v_add_u32 v{reg}, s{sRq}, v{vCc}")
            if t_: A(f"v_add_u32 v{reg}, 16, v{reg}")
            A(f"v_and_b32 v{reg}, 31, v{reg}")
            if WQP == 0:
                A(f"v_lshlrev_b32 v{reg}, 2, v{reg}"); A(f"v_add_u32 v{reg}, v{reg}, v{vG}")
            else:
                A(f"v_lshlrev_b32 v14, 5, v{vG}"); A(f"v_add_u32 v{reg}, v{reg}, v14")
            A(f"v_add_u32 v{reg}, s{st1}, v{reg}"); A(f"v_lshlrev_b32 v{reg}, 1, v{reg}")
        A(f"v_mov_b32 v15, v9")
        A(f"v_lshlrev_b32 v7, 4, v{vLane}")
        A(f"v_lshlrev_b32 v3, {13 if WQP == 0 else 18}, v{vG}"); A(f"v_lshlrev_b32 v14, 4, v{vCc}"); A("v_add_u32 v3, v3, v14")
        A(f"s_lshl_b32 s{st1}, s{sU}, 20"); A(f"v_add_u32 v3, s{st1}, v3")
        A(f"s_lshl_b32 s{st1}, s{sH}, 8")
        A(f"s_sub_u32 s{st2}, {4<<20}, s{st1}")
        A("s_waitcnt lgkmcnt(0)")
        stamp(7)
        mk_srd(sT, pX, 1024, off_sgpr=st0)
        A(f"buffer_load_dwordx4 v[8:11], v7, {srd(sT)}, 0 offen")
        A(f"buffer_load_ushort v12, v6, {srd(sT)}, 0 offen")
        A(f"buffer_load_ushort v13, v15, {srd(sT)}, 0 offen")
        A("s_barrier")
        A(f"s_add_u32 s{sC}, s{pWQ}, s{st1}"); A(f"s_addc_u32 s{sC+1}, s{pWQ+1}, 0")
        A(f"s_mov_b32 s{sC+2}, s{st2}"); A(f"s_mov_b32 s{sC+3}, 0x20000")
        A(f"s_lshl_b32 s{sOff}, s{sRq}, {15 if WQP == 0 else 13}")
        for n in range(0 if NOQ else 32):
            A(f"buffer_load_dwordx4 v[{vW+4*n}:{vW+4*n+3}], v3, {srd(sC)}, s{sOff} offen {WQF}")
            if n < 31:
                A(f"s_add_u32 s{sOff}, s{sOff}, {32768 if WQP == 0 else 8192}")
                if ROTQ: A(f"s_and_b32 s{sOff}, s{sOff}, {0xfffff if WQP == 0 else 0x3ffff}")
            if NR and n < 31 and (n+1) % (32//NR) == 0: A("s_barrier")
        if NR == 0 and not PACED: A("s_barrier")
        mk_srd(sWS, pWS, WS_SIZE)
        A(f"v_lshlrev_b32 v14, 2, v{vLane}"); A("v_mov_b32 v15, -1")
        A("s_mov_b64 exec, 0xfff"); A(f"ds_write_b32 v14, v15 offset:{L_STAT}")
        A("s_mov_b64 exec, 1"); A(f"ds_write_b32 v14, v15 offset:{L_BOOST}")
        A("v_mov_b32 v15, 0"); A(f"ds_write_b32 v15, v15 offset:{L_CNT}"); A(f"ds_write_b32 v15, v15 offset:{L_PROG}"); A(f"ds_write_b32 v15, v15 offset:{L_DEEP}"); A("s_mov_b64 exec, -1")
        A("s_waitcnt vmcnt(0)" if NOQ else "s_waitcnt vmcnt(32)")
        stamp(6)
        for r in range(4):
            A(f"v_lshlrev_b32 v{32+2*r}, 16, v{8+r}"); A(f"v_and_b32 v{33+2*r}, 0xffff0000, v{8+r}")
        A("v_add_f32 v40, v32, v33"); A("v_add_f32 v41, v34, v35"); A("v_add_f32 v42, v36, v37"); A("v_add_f32 v43, v38, v39")
        A("v_add_f32 v40, v40, v41"); A("v_add_f32 v42, v42, v43"); A("v_add_f32 v40, v40, v42")
        wave_allreduce("v_add_f32", 40, 41)
        A("v_mul_f32 v40, 0x3b000000, v40")
        for e in range(8): A(f"v_sub_f32 v{32+e}, v{32+e}, v40")
        A("v_mul_f32 v42, v32, v32")
        for e in range(1, 8): A(f"v_fmac_f32 v42, v{32+e}, v{32+e}")
        wave_allreduce("v_add_f32", 42, 41)
        A("v_mul_f32 v42, 0x3b000000, v42")
        round_bf16(40); round_bf16(42)
        A("v_add_f32 v42, 0x3727c5ac, v42"); round_bf16(42)
        A("v_sqrt_f32 v42, v42"); round_bf16(42)
        A("v_rcp_f32 v42, v42")
        for r in (12, 13):
            A(f"v_lshlrev_b32 v{r}, 16, v{r}"); A(f"v_sub_f32 v{r}, v{r}, v40"); round_bf16(r)
            A(f"v_mul_f32 v{r}, v{r}, v42")
        A("v_mov_b32 v15, 0")
        A(f"v_cvt_pk_bf16_f32 v{hPlo0}, v12, v15"); A(f"v_cvt_pk_bf16_f32 v{hPhi0}, v15, v12")
        A(f"v_cvt_pk_bf16_f32 v{hPlo1}, v13, v15"); A(f"v_cvt_pk_bf16_f32 v{hPhi1}, v15, v13")
        A(f"s_mov_b32 s{sTile}, 0")
        stamp(1)
        A.label("L_gemv")
        for e in range(8): A(f"v_mov_b32 v{hAcc+e}, 0")
        for n in range(32):
            A(f"s_waitcnt vmcnt({31-n})")
            lo, hi = (hPlo0, hPhi0) if n < 16 else (hPlo1, hPhi1)
            for k in range(4):
                A(f"v_dot2c_f32_bf16_dpp v{hAcc+2*k}, v{lo}, v{vW+4*n+k} row_newbcast:{n%16} row_mask:0xf bank_mask:0xf")
                A(f"v_dot2c_f32_bf16_dpp v{hAcc+2*k+1}, v{hi}, v{vW+4*n+k} row_newbcast:{n%16} row_mask:0xf bank_mask:0xf")
        acc_reduce(hAcc)
    A(f"v_lshlrev_b32 v14, 5, v{vCc}"); A(f"v_lshlrev_b32 v15, 3, v{vG}"); A("v_add_u32 v14, v14, v15")
    A(f"s_lshl_b32 s{st0}, s{sU}, 9"); A(f"v_add_u32 v14, s{st0}, v14")
    A(f"ds_write_b64 v14, v[{hAcc}:{hAcc+1}] offset:{L_QP}")
    A("s_waitcnt lgkmcnt(0)")
    stamp(2)
    A("s_barrier")
    def emit_poison():
        A(f"s_cmp_lg_u32 s{sU}, 0"); A("s_cbranch_scc1 L_nopoison")
        if NOPOIS: A("s_branch L_nopoison")
        for k in range(4): A(f"v_mov_b32 v{32+k}, -1")
        A(f"v_lshrrev_b32 v14, 3, v{vLane}"); A("v_lshlrev_b32 v14, 13, v14")
        A(f"v_and_b32 v15, 7, v{vLane}"); A("v_lshlrev_b32 v15, 4, v15"); A("v_add_u32 v14, v14, v15")
        A(f"s_lshl_b32 s{st0}, s{sB}, 17"); A(f"s_lshl_b32 s{st1}, s{sJ}, 7"); A(f"s_add_u32 s{st0}, s{st0}, s{st1}")
        A(f"buffer_store_dwordx4 v[32:35], v14, {srd(sWS)}, s{st0} offen sc1")
        A(f"s_add_u32 s{st0}, s{st0}, 65536")
        A(f"buffer_store_dwordx4 v[32:35], v14, {srd(sWS)}, s{st0} offen sc1")
        A(f"v_lshlrev_b32 v14, 2, v{vLane}")
        A(f"s_lshl_b32 s{st0}, s{sReg}, 7"); A(f"s_add_u32 s{st0}, s{st0}, {WS_ST}")
        if not SPREAD:
            A("s_mov_b64 exec, 0xf"); A(f"buffer_store_dword v32, v14, {srd(sWS)}, s{st0} offen sc1"); A("s_mov_b64 exec, -1")
        if DEEP:
            A("s_cmp_ge_u32 s2, 8"); A("s_cbranch_scc1 L_pnofin")
            A(f"s_lshl_b32 s{st0}, s2, 7"); A(f"s_add_u32 s{st0}, s{st0}, {WS_FIN}"); A("v_mov_b32 v36, 0")
            A("s_mov_b64 exec, 1"); A(f"buffer_store_dword v36, v36, {srd(sWS)}, s{st0} offen sc1"); A("s_mov_b64 exec, -1")
            A.label("L_pnofin")
        A("s_cmp_ge_u32 s2, 64"); A("s_cbranch_scc1 L_pnored")
        A(f"s_and_b32 s{st0}, s2, 15"); A(f"s_lshl_b32 s{st0}, s{st0}, 8")
        A(f"s_lshr_b32 s{st1}, s2, 4"); A(f"s_lshl_b32 s{st1}, s{st1}, 6"); A(f"s_add_u32 s{st0}, s{st0}, s{st1}")
        A(f"s_add_u32 s{st0}, s{st0}, {WS_H}")
        A(f"v_lshrrev_b32 v36, 4, v{vLane}"); A("v_lshlrev_b32 v36, 12, v36")
        A(f"v_and_b32 v37, 15, v{vLane}"); A("v_lshlrev_b32 v37, 2, v37"); A("v_add_u32 v36, v36, v37")
        A(f"buffer_store_dword v32, v36, {srd(sWS)}, s{st0} offen sc1")
        A(f"s_add_u32 s{st0}, s{st0}, 16384")
        A(f"buffer_store_dword v32, v36, {srd(sWS)}, s{st0} offen sc1")
        A(f"s_add_u32 s{st0}, s{st0}, 16384")
        A("s_mov_b64 exec, 0xffff"); A(f"buffer_store_dword v32, v37, {srd(sWS)}, s{st0} offen sc1"); A("s_mov_b64 exec, -1")
        A("s_branch L_pdone")
        A.label("L_pnored")
        A("s_cmp_ge_u32 s2, 152"); A("s_cbranch_scc1 L_pdone")
        ffn1_tile(sTl)
        A(f"s_cmp_ge_u32 s{sTl}, 86"); A("s_cbranch_scc1 L_pdone")
        A(f"s_lshl_b32 s{st0}, s{sTl}, 7"); A(f"s_add_u32 s{st0}, s{st0}, {WS_H1}")
        A(f"v_lshrrev_b32 v36, 4, v{vLane}"); A(f"v_mul_u32_u24 v36, {H1_STRIDE}, v36")
        A(f"v_and_b32 v37, 15, v{vLane}"); A("v_lshlrev_b32 v37, 3, v37"); A("v_add_u32 v36, v36, v37")
        A(f"buffer_store_dwordx2 v[32:33], v36, {srd(sWS)}, s{st0} offen sc1")
        A.label("L_pdone")
        A.label("L_nopoison")
        if TLBV:
            A(f"s_cmp_lg_u32 s{sU}, 1"); A("s_cbranch_scc1 L_notlb")
            A(f"s_lshr_b32 s{st0}, s{sReg}, 1"); A(f"s_lshl_b32 s{st0}, s{st0}, 21")
            mk_srd(sT, pV, 1 << 21, off_sgpr=st0)
            A(f"v_lshlrev_b32 v14, 15, v{vLane}")
            A(f"buffer_load_dword v15, v14, {srd(sT)}, 0 offen nt")
            A("s_waitcnt vmcnt(0)")
            A.label("L_notlb")
        if REPACK:
            A(f"s_lshl_b32 s{st0}, s2, 2"); A(f"s_add_u32 s{st0}, s{st0}, s{sU}")
            A(f"s_cmp_ge_u32 s{st0}, {696 if REPACK else 0}"); A("s_cbranch_scc1 L_rpdone")
            A(f"s_mul_i32 s{st1}, s{sU}, {32*RS}"); A(f"s_add_u32 s{st1}, s{st1}, {L_STG}")
            A(f"v_lshlrev_b32 v15, 4, v{vLane}"); A(f"v_add_u32 v7, s{st1}, v15")
            A(f"v_lshlrev_b32 v6, 3, v{vG}"); A(f"v_lshrrev_b32 v14, 2, v{vCc}"); A("v_add_u32 v6, v6, v14"); A("v_lshlrev_b32 v6, 7, v6")
            A(f"v_and_b32 v14, 3, v{vCc}"); A("v_lshlrev_b32 v14, 3, v14"); A("v_add_u32 v6, v6, v14"); A(f"v_add_u32 v6, s{st1}, v6")
            A(f"v_lshrrev_b32 v3, 3, v{vLane}"); A(f"v_and_b32 v14, 7, v{vLane}"); A("v_lshlrev_b32 v14, 4, v14")
            A(f"s_cmp_ge_u32 s{st0}, 344"); A("s_cbranch_scc1 L_rpw1")
            A(f"s_lshr_b32 s{st2}, s{st0}, 3"); A(f"s_and_b32 s{st3}, s{st0}, 7")
            A("v_lshlrev_b32 v3, 10, v3"); A("v_add_u32 v3, v3, v14")
            A(f"s_lshl_b32 s{sOff}, s{st2}, 15"); A(f"s_lshl_b32 s{st1}, s{st3}, 7"); A(f"s_add_u32 s{sOff}, s{sOff}, s{st1}")
            mk_srd(sT, pW2, 1376*1024)
            A(f"s_mov_b32 s{sTile}, {8*1024}")
            A(f"s_mul_i32 s{st3}, s{st3}, {4*W2T_STRIDE}"); A(f"s_lshl_b32 s{st2}, s{st2}, 10"); A(f"s_add_u32 s{st3}, s{st3}, s{st2}")
            A(f"s_add_u32 s{st3}, s{st3}, {WS_W2T}")
            A(f"s_mov_b32 s{sTl}, {W2T_STRIDE}")
            A("s_branch L_rpgo")
            A.label("L_rpw1")
            A(f"s_sub_u32 s{st0}, s{st0}, 344")
            A(f"s_mul_i32 s{st2}, s{st0}, 2979"); A(f"s_lshr_b32 s{st2}, s{st2}, 16")
            A(f"s_mul_i32 s{st3}, s{st2}, 22"); A(f"s_sub_u32 s{st3}, s{st0}, s{st3}")
            A("v_mul_u32_u24 v3, 2752, v3"); A("v_add_u32 v3, v3, v14")
            A(f"s_mul_i32 s{sOff}, s{st2}, {32*2752}"); A(f"s_lshl_b32 s{st1}, s{st3}, 7"); A(f"s_add_u32 s{sOff}, s{sOff}, s{st1}")
            mk_srd(sT, pW1, 512*2752)
            A(f"s_mov_b32 s{sTile}, {8*2752}")
            A(f"s_lshl_b32 s{st3}, s{st3}, 16"); A(f"s_lshl_b32 s{st2}, s{st2}, 10"); A(f"s_add_u32 s{st3}, s{st3}, s{st2}")
            A(f"s_add_u32 s{st3}, s{st3}, {WS_W1T}")
            A(f"s_mov_b32 s{sTl}, 16384")
            A.label("L_rpgo")
            for n in range(4):
                A(f"buffer_load_dwordx4 v[{32+4*n}:{35+4*n}], v3, {srd(sT)}, s{sOff} offen {WFF}")
                A(f"s_add_u32 s{sOff}, s{sOff}, s{sTile}")
            A("s_waitcnt vmcnt(0)")
            for n in range(4): A(f"ds_write_b128 v7, v[{32+4*n}:{35+4*n}] offset:{n*1024}")
            A("s_waitcnt lgkmcnt(0)")
            for t in range(4):
                A(f"ds_read_b64_tr_b16 v[{48+4*t}:{49+4*t}], v6 offset:{t*32}")
                A(f"ds_read_b64_tr_b16 v[{50+4*t}:{51+4*t}], v6 offset:{t*32+512}")
            A("s_waitcnt lgkmcnt(0)")
            for t in range(4):
                A(f"buffer_store_dwordx4 v[{48+4*t}:{51+4*t}], v15, {srd(sWS)}, s{st3} offen sc1")
                A(f"s_add_u32 s{st3}, s{st3}, s{sTl}")
        A.label("L_rpdone")
        A("s_waitcnt vmcnt(0)")
        if SPREAD == 2:
            A(f"s_cmp_lg_u32 s{sU}, 0"); A("s_cbranch_scc1 L_nosig")
            A(f"s_lshl_b32 s{st0}, s2, 2"); A(f"s_add_u32 s{st0}, s{st0}, {WS_FLAG}")
            A(f"v_lshlrev_b32 v14, 10, v{vLane}"); A("v_mov_b32 v15, s86")
            A("s_mov_b64 exec, 0xf"); A(f"buffer_store_dword v15, v14, {srd(sWS)}, s{st0} offen sc1"); A("s_mov_b64 exec, -1")
            A.label("L_nosig")
        if not SPREAD:
            A(f"v_mov_b32 v14, {L_CNT}"); A("v_mov_b32 v15, 1")
            A("s_mov_b64 exec, 1"); A("ds_add_rtn_u32 v32, v14, v15"); A("s_waitcnt lgkmcnt(0)"); A("s_mov_b64 exec, -1")
            A(f"v_readfirstlane_b32 s{st0}, v32")
            A(f"s_cmp_lg_u32 s{st0}, 3"); A("s_cbranch_scc1 L_nosig")
            A("v_mov_b32 v14, 0")
            A("s_mov_b64 exec, 1"); A(f"global_atomic_add v14, v15, s[{pDBG}:{pDBG+1}]"); A("s_mov_b64 exec, -1")
            A.label("L_nosig")
    def emit_wo():
        A(f"v_lshlrev_b32 v3, 10, v{vG}"); A(f"v_lshlrev_b32 v14, 4, v{vCc}"); A("v_add_u32 v3, v3, v14")
        A(f"s_lshl_b32 s{st1}, s{sU}, 8"); A(f"v_add_u32 v3, s{st1}, v3")
        A(f"s_lshl_b32 s{st1}, s{sH}, 17")
        mk_srd(sC, pWO, 131072, off_sgpr=st1)
        A(f"s_mul_i32 s{st0}, s{sU}, {32*RS}"); A(f"s_add_u32 s{st0}, s{st0}, {L_STG}")
        A(f"v_mul_u32_u24 v6, {RS}, v{vG}"); A("v_add_u32 v6, v6, v14"); A(f"v_add_u32 v6, s{st0}, v6")
        A(f"v_lshlrev_b32 v7, 3, v{vG}"); A(f"v_lshrrev_b32 v15, 2, v{vCc}"); A("v_add_u32 v7, v7, v15")
        A(f"v_mul_u32_u24 v7, {RS}, v7"); A(f"v_and_b32 v15, 3, v{vCc}"); A("v_lshlrev_b32 v15, 3, v15")
        A("v_add_u32 v7, v7, v15"); A(f"v_add_u32 v7, s{st0}, v7")
        A(f"s_mov_b32 s{sOff}, 0")
        for q in range(0 if NOWO else 4):
            for n in range(8):
                A(f"buffer_load_dwordx4 v[{32+4*n}:{35+4*n}], v3, {srd(sC)}, s{sOff} offen {WOF}")
                A(f"s_add_u32 s{sOff}, s{sOff}, 4096")
                if n % PACE == PACE-1: A("s_waitcnt vmcnt(0)")
            A("s_waitcnt vmcnt(0)")
            for n in range(8): A(f"ds_write_b128 v6, v[{32+4*n}:{35+4*n}] offset:{4*n*RS}")
            A("s_waitcnt lgkmcnt(0)")
            for t in range(8):
                A(f"ds_read_b64_tr_b16 v[{vW+32*q+4*t}:{vW+32*q+4*t+1}], v7 offset:{t*32}")
                A(f"ds_read_b64_tr_b16 v[{vW+32*q+4*t+2}:{vW+32*q+4*t+3}], v7 offset:{t*32+4*RS}")
            A("s_waitcnt lgkmcnt(0)")
    if POISLATE:
        emit_wo(); emit_poison()
    else:
        emit_poison(); emit_wo()
    A(f"s_cmp_lg_u32 s{sU}, 0"); A("s_cbranch_scc1 L_nostat")
    if SPREAD == 1:
        assert COOPQ and not REPACK
        A(f"s_mul_i32 s{st0}, s2, 6554"); A(f"s_lshr_b32 s{st0}, s{st0}, 16"); A(f"s_mul_i32 s{st0}, s{st0}, 10"); A(f"s_sub_u32 s{st0}, s2, s{st0}")
        A(f"s_add_u32 s{st0}, s{st0}, 5")
        A(f"v_mov_b32 v14, {L_KT}")
        A(f"s_mov_b32 s{sCnt}, {SPIN_LIMIT}")
        A.label("L_sgspin")
        A("s_sleep 8")
        A("ds_read_b32 v15, v14"); A("s_waitcnt lgkmcnt(0)")
        A(f"v_cmp_gt_u32 vcc, s{st0}, v15")
        A("s_cbranch_vccz L_sgok")
        A(f"s_sub_u32 s{sCnt}, s{sCnt}, 1"); A("s_cbranch_scc0 L_sgspin")
        A.label("L_sgok")
        A("v_mov_b32 v14, 0"); A("v_mov_b32 v15, 1")
        A("s_mov_b64 exec, 1"); A(f"global_atomic_add v14, v15, s[{pDBG}:{pDBG+1}]"); A("s_mov_b64 exec, -1")
    A(f"v_and_b32 v14, 3, v{vLane}"); A("v_lshlrev_b32 v14, 3, v14")
    A(f"s_mov_b32 s{sCnt}, {SPIN_LIMIT}")
    A.label("L_stspin")
    A("s_sleep 8")
    A(f"ds_read_b64 v[32:33], v14 offset:{L_STAT}"); A("s_waitcnt lgkmcnt(0)")
    spin_check([32, 33], 34, "L_stspin", "L_stok")
    if BOOST and BST:
        A("s_and_b32 s93, s2, 4"); A("s_cmp_eq_u32 s93, 0"); A(f"s_cselect_b32 s93, 0, {BST}")
        A(f"v_mov_b32 v48, {L_BOOST}"); A("v_mov_b32 v49, s93")
        A("s_mov_b64 exec, 1"); A("ds_write_b32 v48, v49"); A("s_mov_b64 exec, -1")
    elif BOOST and not (BX & 4):
        A("s_memrealtime s[90:91]")
    A("v_max_f32_dpp v34, v32, v32 quad_perm:[1,0,3,2] row_mask:0xf bank_mask:0xf")
    A("v_max_f32_dpp v34, v34, v34 quad_perm:[2,3,0,1] row_mask:0xf bank_mask:0xf")
    A("v_sub_f32 v35, v32, v34"); A("v_mul_f32 v35, 0x3fb8aa3b, v35"); A("v_exp_f32 v35, v35")
    A("v_mul_f32 v35, v35, v33")
    A("v_add_f32_dpp v35, v35, v35 quad_perm:[1,0,3,2] row_mask:0xf bank_mask:0xf")
    A("v_add_f32_dpp v35, v35, v35 quad_perm:[2,3,0,1] row_mask:0xf bank_mask:0xf")
    A("v_mov_b32 v36, 0x7fc00000")
    sanitize([34, 35], 36)
    A("v_mov_b32 v15, 0")
    A(f"s_lshl_b32 s{st0}, s{sReg}, 7"); A(f"s_add_u32 s{st0}, s{st0}, {WS_ST}")
    if SPREAD:
        A("v_mov_b32 v52, v34"); A("v_mov_b32 v53, v35"); A("v_mov_b32 v54, s86"); A("v_mov_b32 v55, s87")
        A("s_mov_b64 exec, 1"); A(f"buffer_store_dwordx4 v[52:55], v15, {srd(sWS)}, s{st0} offen sc1"); A("s_mov_b64 exec, -1")
    else:
        if BOOST and not BST and not (BX & 4):
            A("s_waitcnt lgkmcnt(0)")
            A("s_and_b32 s90, s90, 0x7fffffff")
            A("v_mov_b32 v52, v34"); A("v_mov_b32 v53, v35"); A("v_mov_b32 v54, s90"); A("v_mov_b32 v55, 0")
            A("s_mov_b64 exec, 1"); A(f"buffer_store_dwordx4 v[52:55], v15, {srd(sWS)}, s{st0} offen sc1"); A("s_mov_b64 exec, -1")
        else:
            A("s_mov_b64 exec, 1"); A(f"buffer_store_dwordx2 v[34:35], v15, {srd(sWS)}, s{st0} offen sc1"); A("s_mov_b64 exec, -1")
        A(f"s_mov_b32 s{sCnt}, {SPIN_LIMIT}")
        A.label("L_inspin")
        A(f"global_load_dword v37, v15, s[{pDBG}:{pDBG+1}] sc1"); A("s_waitcnt vmcnt(0)")
        A("v_cmp_gt_u32 vcc, 0x100, v37")
        A("s_cbranch_vccz L_inok")
        A("s_sleep 4")
        A(f"s_sub_u32 s{sCnt}, s{sCnt}, 1"); A("s_cbranch_scc0 L_inspin")
        A.label("L_inok")
    if BOOST and not BST and not (BX & 4):
        A(f"v_bfe_u32 v48, v{vLane}, 1, 2"); A("v_lshlrev_b32 v48, 5, v48")
        A(f"v_bfe_u32 v49, v{vLane}, 3, 2"); A("v_lshlrev_b32 v49, 3, v49"); A("v_add_u32 v48, v48, v49")
        A(f"s_and_b32 s{st1}, s2, 7"); A(f"v_add_u32 v48, s{st1}, v48"); A("v_lshlrev_b32 v48, 1, v48")
        A(f"v_and_b32 v49, 1, v{vLane}"); A("v_add_u32 v48, v48, v49"); A("v_lshlrev_b32 v48, 7, v48")
        A(f"s_mov_b32 s{st1}, {WS_ST + 8}")
        A(f"buffer_load_dword v50, v48, {srd(sWS)}, s{st1} offen sc1"); A("s_waitcnt vmcnt(0)")
        A("v_cmp_ne_u32 vcc, -1, v50")
        A("v_sub_u32 v51, s90, v50"); A("v_lshlrev_b32 v51, 1, v51"); A("v_ashrrev_i32 v51, 1, v51")
        A("v_cvt_f32_i32 v51, v51")
        A("v_mov_b32 v52, 0"); A("v_mov_b32 v53, 1.0")
        A("v_cndmask_b32 v51, v52, v51, vcc"); A("v_cndmask_b32 v53, v52, v53, vcc")
        wave_allreduce("v_add_f32", 51, 52); wave_allreduce("v_add_f32", 53, 52)
        A("v_rcp_f32 v53, v53"); A("v_mul_f32 v51, v51, v53")
        A(f"v_mul_f32 v51, {hex(__import__('struct').unpack('<I', __import__('struct').pack('<f', 1.0/BOOST))[0])}, v51")
        A("v_max_f32 v51, 0, v51"); A("v_min_f32 v51, 0x41800000, v51"); A("v_cvt_u32_f32 v51, v51")
        A(f"v_mov_b32 v48, {L_BOOST}")
        A("s_mov_b64 exec, 1"); A("ds_write_b32 v48, v51"); A("s_mov_b64 exec, -1")
    A(f"s_xor_b32 s{st1}, s{sReg}, 1"); A(f"s_lshl_b32 s{st1}, s{st1}, 7"); A(f"s_add_u32 s{st1}, s{st1}, {WS_ST}")
    A(f"s_mov_b32 s{sCnt}, {SPIN_LIMIT}")
    A.label("L_prspin")
    A("s_sleep 4")
    if SPREAD:
        A(f"buffer_load_dwordx4 v[56:59], v15, {srd(sWS)}, s{st1} offen sc1"); A("s_waitcnt vmcnt(0)")
        A("v_xor_b32 v58, s86, v58"); A("v_xor_b32 v59, s87, v59"); A("v_or_b32 v58, v58, v59")
        A("v_cmp_ne_u32 vcc, 0, v58")
        A("s_cbranch_vccz L_prok")
        A(f"s_sub_u32 s{sCnt}, s{sCnt}, 1"); A("s_cbranch_scc0 L_prspin")
        A.label("L_prok")
        A("v_mov_b32 v38, v56"); A("v_mov_b32 v39, v57")
    else:
        A(f"buffer_load_dwordx2 v[38:39], v15, {srd(sWS)}, s{st1} offen sc1"); A("s_waitcnt vmcnt(0)")
        spin_check([38, 39], 37, "L_prspin", "L_prok")
    A("v_max_f32 v40, v34, v38")
    A("v_sub_f32 v41, v34, v40"); A("v_sub_f32 v42, v38, v40"); A("v_sub_f32 v43, v32, v40")
    for r in (41, 42, 43): A(f"v_mul_f32 v{r}, 0x3fb8aa3b, v{r}")
    for r in (41, 42, 43): A(f"v_exp_f32 v{r}, v{r}")
    A("v_mul_f32 v41, v41, v35"); A("v_fmac_f32 v41, v42, v39")
    A("v_rcp_f32 v41, v41"); A("v_mul_f32 v43, v43, v41")
    sanitize([43], 36)
    A(f"v_lshlrev_b32 v14, 2, v{vLane}")
    A("s_mov_b64 exec, 0xf"); A(f"ds_write_b32 v14, v43 offset:{L_FW}"); A("s_mov_b64 exec, -1")
    A("s_waitcnt lgkmcnt(0)")
    if DEEP:
        A(f"v_mov_b32 v48, {L_PROG}")
        A(f"s_and_b32 s{st0}, s2, 7"); A(f"s_lshl_b32 s{st0}, s{st0}, 7"); A(f"s_add_u32 s{st0}, s{st0}, {WS_FIN}"); A("v_mov_b32 v49, 0")
        A(f"s_mov_b32 s{sCnt}, {SPIN_LIMIT}")
        A.label("L_dpspin")
        A(f"s_sleep {DPS}")
        A("ds_read_b32 v50, v48"); A("s_waitcnt lgkmcnt(0)")
        A(f"v_readfirstlane_b32 s{st1}, v50")
        A(f"s_cmp_eq_u32 s{st1}, 2"); A("s_cbranch_scc1 L_dpdone")
        A(f"s_cmp_eq_u32 s{st1}, 0"); A("s_cbranch_scc1 L_dpnext")
        A(f"buffer_load_dword v50, v49, {srd(sWS)}, s{st0} offen sc1"); A("s_waitcnt vmcnt(0)")
        A(f"v_readfirstlane_b32 s{st1}, v50")
        A(f"s_cmp_lt_u32 s{st1}, {DEEP}"); A("s_cbranch_scc1 L_dpnext")
        A("v_mov_b32 v50, 1"); A("s_mov_b64 exec, 1"); A(f"ds_write_b32 v48, v50 offset:{L_DEEP-L_PROG}"); A("s_mov_b64 exec, -1")
        A("s_waitcnt lgkmcnt(0)"); A("s_branch L_dpdone")
        A.label("L_dpnext")
        A(f"s_sub_u32 s{sCnt}, s{sCnt}, 1"); A("s_cbranch_scc0 L_dpspin")
        A.label("L_dpdone")
    A.label("L_nostat")
    A(f"v_and_b32 v14, 3, v{vLane}"); A("v_lshlrev_b32 v14, 8, v14")
    A(f"v_lshlrev_b32 v15, 4, v{vG}"); A("v_add_u32 v14, v14, v15")
    A(f"v_bfe_u32 v14, v{vLane}, 2, 2"); A("v_lshlrev_b32 v14, 8, v14"); A("v_add_u32 v14, v14, v15")
    A(f"v_lshlrev_b32 v6, 13, v{vG}"); A(f"v_lshlrev_b32 v7, 3, v{vCc}"); A("v_add_u32 v6, v6, v7")
    A(f"s_lshl_b32 s{st0}, s{sB}, 4"); A(f"s_lshl_b32 s{st1}, s{sU}, 2"); A(f"s_add_u32 s{st0}, s{st0}, s{st1}")
    A(f"s_lshl_b32 s{st0}, s{st0}, 13"); A(f"s_lshl_b32 s{st1}, s{sJ}, 7"); A(f"s_add_u32 s{sReg}, s{st0}, s{st1}")
    A("v_mov_b32 v7, 0x7fc00000")
    for k in range(32): A(f"v_mov_b32 v{64+k}, 0")
    stamp(3)
    A("s_barrier")
    stamp(4)
    for q in range(4): A(f"ds_read_b128 v[{32+4*q}:{35+4*q}], v14 offset:{L_OW+q*64}")
    for q in range(4):
        A(f"s_waitcnt lgkmcnt({3-q})")
        for t in range(8):
            A(f"v_mfma_f32_16x16x32_bf16 v[{64+4*t}:{67+4*t}], v[{32+4*q}:{35+4*q}], v[{vW+32*q+4*t}:{vW+32*q+4*t+3}], v[{64+4*t}:{67+4*t}]")
    Dt = [64+4*t for t in range(8)]
    for e in range(4): A(f"v_permlane32_swap_b32 v{Dt[e]}, v{Dt[e+4]}")
    for e in range(4): A(f"v_add_f32 v{Dt[e]}, v{Dt[e]}, v{Dt[e+4]}")
    A(f"v_permlane16_swap_b32 v{Dt[0]}, v{Dt[2]}"); A(f"v_permlane16_swap_b32 v{Dt[1]}, v{Dt[3]}")
    A(f"v_add_f32 v16, v{Dt[0]}, v{Dt[2]}"); A(f"v_add_f32 v17, v{Dt[1]}, v{Dt[3]}")
    sanitize([16, 17], 7)
    A(f"buffer_store_dwordx2 v[16:17], v6, {srd(sWS)}, s{sReg} offen sc1")
    A("s_barrier")
    stamp(5)
    if PROF and not COOPQ:
        A("s_waitcnt vmcnt(0)")
        stamp(1)
    prof_store(0)
    A.label("L_end")
    A("s_endpgm")
    A('.section .rodata,"a"'); A(".p2align 6"); A(f".amdhsa_kernel {NAME}")
    A("  .amdhsa_next_free_vgpr 256"); A("  .amdhsa_next_free_sgpr 96"); A("  .amdhsa_accum_offset 256")
    A("  .amdhsa_group_segment_fixed_size 0"); A("  .amdhsa_kernarg_size 88"); A("  .amdhsa_user_sgpr_count 2")
    A("  .amdhsa_user_sgpr_kernarg_segment_ptr 1"); A("  .amdhsa_system_sgpr_workgroup_id_x 1")
    A("  .amdhsa_float_denorm_mode_32 3"); A("  .amdhsa_float_denorm_mode_16_64 3")
    A(".end_amdhsa_kernel")
    return A.finalize()

if __name__ == "__main__":
    import build
    kw = json.loads(sys.argv[2]) if len(sys.argv) > 2 else {}
    s = gen(**kw)
    open(sys.argv[1], "w").write(s)
    build.build(sys.argv[1])
```

```python
import sys, json
from asmlib import Asm
NAME = "sequential_preLN__gqa_block_cached__dense_activation_relu__decode_kernel"

WS_Y  = 0x00000
WS_H  = 0x80000
WS_H1 = 0x8A000
H1_STRIDE = 11264
WS_ST = 0x98000
WS_W1T = 0x100000
WS_W2T = 0x280000
W2T_STRIDE = 43*1024
WS_PROF = 0x400000
WS_FLAG = 0xA2000
WS_FIN = 0xA1000
WS_EP = 0x97000
WS_EPB = 0x700000
WS_QX = 0x600000
WS_SIZE = 0x701000
L_QP = 0; L_OW = 2048; L_STAT = 4096; L_FW = 4128
L_CNT = 4160; L_CNT2 = 4164; L_ROLE = 4168; L_BOOST = 4172; L_PROG = 4176; L_DEEP = 4180; L_KT = 4184; L_RR = 4352; L_RED = 4608; L_RED2 = L_RED + 4096; L_RED3 = L_RED2 + 2048
L_SC = 16384; L_STG = 32768; STG_W = 12288; RS = 288
LDS_BYTES = L_STG + 4*STG_W
POISON = -1
SPIN_LIMIT = 1 << 18


HEADER = """
;
"""

def brev4(n): return int(f"{n:04b}"[::-1], 2)

def gen(D=6, PROF=False, PACE=4, DBG=0, WQF='', WOF='', WFF='', NOWO=0, NOSTG=0, D0=5, SLP1=4, SLP2=4, SLPR=0, REPACK=0, NR=0, D2=12, NT2=0, ROTK=0, ROTQ=0, HB=16, G=2, WQP=0, TLBV=0, PACED=0, I0=16, COOPQ=0, QXS='sc1', QXL='sc1', NOQ=0, PD=1, STG=4, SLB=0, DYN=0, DV=0, OUTF='', BOOST=0, BMED=127, BD=6, BX=0, BST=0, QXW=-1, DEEP=0, DPT=9, DPS=24, POISLATE=0, SPREAD=0, NOPOIS=0, TKF='sc0', TKLATE=0):
    A = Asm()
    R = 16
    for line in HEADER.strip("\n").split("\n"): A(line)
    A(f"; @launch grid=(256,1,1) block=(512,1,1) lds={LDS_BYTES}")
    A('.amdgcn_target "amdgcn-amd-amdhsa--gfx950"')
    A(".text"); A(f".globl {NAME}"); A(".p2align 8"); A(f".type {NAME},@function"); A.label(NAME)
    sK, sV, sC, sWS, sT = 4, 8, 12, 16, 20
    sM0, sM1 = 24, 26
    sH, sB, sHalf, sReg = 28, 29, 30, 31
    sOff, sTile, sU = 32, 33, 34
    st0, st1, st2, st3 = 58, 59, 60, 61
    sJ = 62
    sCnt = 63
    sP = 64
    pX, pK, pV, pWQ, pWO, pW1, pW2, pOUT, pDBG, pWS = 36, 38, 40, 42, 44, 48, 50, 52, 54, 56
    srd = lambda s: f"s[{s}:{s+3}]"
    nst = [0]
    def stamp(i):
        if PROF: A(f"s_memrealtime s[{sP+2*i}:{sP+2*i+1}]")
    def prof_store(slot_wave):
        if not PROF: return
        A("s_waitcnt vmcnt(0) lgkmcnt(0)")
        A(f"s_lshl_b32 s{st0}, s2, 3"); A(f"s_add_u32 s{st0}, s{st0}, s3"); A(f"s_lshl_b32 s{st0}, s{st0}, 6")
        A(f"s_add_u32 s{st0}, s{st0}, {WS_PROF}")
        for i in range(8):
            A(f"v_mov_b32 v{40+i}, s{sP+2*i}")
        A(f"s_getreg_b32 s{st1}, hwreg(HW_REG_XCC_ID)"); A(f"s_getreg_b32 s{st2}, hwreg(HW_REG_HW_ID)")
        A(f"v_mov_b32 v50, s{st1}"); A(f"v_mov_b32 v51, s88")
        A(f"v_mov_b32 v48, 0")
        A("s_mov_b64 s[60:61], exec"); A("s_mov_b64 exec, 1")
        A(f"buffer_store_dwordx4 v[40:43], v48, {srd(sWS)}, s{st0} offen")
        A(f"buffer_store_dwordx4 v[44:47], v48, {srd(sWS)}, s{st0} offen offset:16")
        A(f"buffer_store_dwordx2 v[50:51], v48, {srd(sWS)}, s{st0} offen offset:32")
        A("s_mov_b64 exec, s[60:61]")
    def mk_srd(s, p, size, off_sgpr=None, off_imm=None):
        if off_sgpr is not None:
            A(f"s_add_u32 s{s}, s{p}, s{off_sgpr}"); A(f"s_addc_u32 s{s+1}, s{p+1}, 0")
        elif off_imm is not None:
            A(f"s_add_u32 s{s}, s{p}, {off_imm}"); A(f"s_addc_u32 s{s+1}, s{p+1}, 0")
        else:
            A(f"s_mov_b32 s{s}, s{p}"); A(f"s_mov_b32 s{s+1}, s{p+1}")
        A(f"s_mov_b32 s{s+2}, {size}")
        A(f"s_mov_b32 s{s+3}, 0x20000")
    def wave_allreduce(op, x, t):
        for k in (8, 4, 2, 1):
            A(f"{op}_dpp v{x}, v{x}, v{x} row_ror:{k} row_mask:0xf bank_mask:0xf")
        A(f"v_mov_b32 v{t}, v{x}"); A(f"v_permlane16_swap_b32 v{x}, v{t}"); A(f"{op} v{x}, v{x}, v{t}")
        A(f"v_mov_b32 v{t}, v{x}"); A(f"v_permlane32_swap_b32 v{x}, v{t}"); A(f"{op} v{x}, v{x}, v{t}")
    def round_bf16(x, t=None):
        A(f"v_cvt_pk_bf16_f32 v{x}, v{x}, v{x}")
        A(f"v_and_b32 v{x}, 0xffff0000, v{x}")
    def acc_reduce(a):
        for e in range(4):
            A(f"v_permlane32_swap_b32 v{a+e}, v{a+e+4}")
        for e in range(4):
            A(f"v_add_f32 v{a+e}, v{a+e}, v{a+e+4}")
        A(f"v_permlane16_swap_b32 v{a}, v{a+2}")
        A(f"v_permlane16_swap_b32 v{a+1}, v{a+3}")
        A(f"v_add_f32 v{a}, v{a}, v{a+2}")
        A(f"v_add_f32 v{a+1}, v{a+1}, v{a+3}")
    def sanitize(regs, repl_sgpr, tmpmask="vcc"):
        for r in regs:
            A(f"v_cmp_eq_u32 vcc, -1, v{r}")
            A(f"v_cndmask_b32 v{r}, v{r}, v{repl_sgpr}, vcc")
    def spin_check(regs, tmp, loop, done, fail=None):
        rs = list(regs)
        if len(rs) == 1:
            m = rs[0]
        else:
            A(f"v_max_u32 v{tmp}, v{rs[0]}, v{rs[1]}"); rs = rs[2:]
            while len(rs) >= 2:
                A(f"v_max3_u32 v{tmp}, v{tmp}, v{rs[0]}, v{rs[1]}"); rs = rs[2:]
            if rs: A(f"v_max_u32 v{tmp}, v{tmp}, v{rs[0]}")
            m = tmp
        A(f"v_cmp_eq_u32 vcc, -1, v{m}")
        A(f"s_cbranch_vccz {done}")
        A(f"s_sub_u32 s{sCnt}, s{sCnt}, 1")
        A(f"s_cbranch_scc0 {loop}")
        A.label(done)

    stamp(0)
    A("s_cmp_ge_u32 s2, 256")
    A("s_cbranch_scc1 L_end")
    A("s_load_dwordx16 s[36:51], s[0:1], 0")
    A("s_load_dwordx4 s[52:55], s[0:1], 64")
    A("s_load_dwordx2 s[56:57], s[0:1], 80")
    A("v_lshrrev_b32 v1, 6, v0")
    A("v_and_b32 v2, 63, v0")
    A(f"s_and_b32 s{st0}, s2, 7")
    A("v_readfirstlane_b32 s3, v1")
    A(f"s_lshr_b32 s{st1}, s2, 3")
    A(f"s_lshr_b32 s{sH}, s{st1}, 3"); A(f"s_lshl_b32 s{sH}, s{sH}, 3"); A(f"s_add_u32 s{sH}, s{sH}, s{st0}")
    A(f"s_and_b32 s{st1}, s{st1}, 7")
    A(f"s_lshr_b32 s{sB}, s{st1}, 1")
    A(f"s_and_b32 s{sHalf}, s{st1}, 1")
    A(f"s_lshl_b32 s{sReg}, s{sB}, 5"); A(f"s_add_u32 s{sReg}, s{sReg}, s{sH}")
    A(f"s_lshl_b32 s{sReg}, s{sReg}, 1"); A(f"s_add_u32 s{sReg}, s{sReg}, s{sHalf}")
    A(f"s_lshl_b32 s{sJ}, s{sH}, 1"); A(f"s_add_u32 s{sJ}, s{sJ}, s{sHalf}")
    A("s_cmp_ge_u32 s3, 4")
    A("s_cbranch_scc1 L_helper")

    vLane, vOff = 2, 3
    vQ = 4; vAcc = 8; vP = 16; vtA, vtB = 32, 33; vM, vL, vSC, vPn, vPlo, vPhi = 34, 35, 36, 37, 38, 39
    vRing = 64
    ring = lambda i: vRing + 4*(i % R)
    A("s_getpc_b64 s[58:59]")
    A.label("L_pc")
    A(f"s_sub_u32 s58, s58, L_pc-{NAME}"); A("s_subb_u32 s59, s59, 0")
    A(f"v_lshlrev_b32 v40, 7, v{vLane}")
    A(f"s_lshl_b32 s{st2}, s3, 13")
    A(f"v_add_u32 v40, s{st2}, v40")
    A(f"v_min_u32 v40, L_end-{NAME}, v40")
    A("global_load_dword v41, v40, s[58:59]")
    A(f"v_lshlrev_b32 v{vOff}, 4, v{vLane}")
    A(f"s_mul_i32 s{st0}, s3, {1024*G}")
    A(f"v_add_u32 v{vOff}, s{st0}, v{vOff}")
    A(f"s_lshr_b32 s{st0}, s{sReg}, 1"); A(f"s_lshl_b32 s{st0}, s{st0}, 21")
    A(f"s_lshl_b32 s{st3}, s{sHalf}, {HB}"); A(f"s_add_u32 s{st0}, s{st0}, s{st3}")
    A(f"s_sub_u32 s{st3}, {1<<21 if HB < 20 else 1<<20}, s{st3}") if HB < 20 else A(f"s_mov_b32 s{st3}, {1<<20}")
    A("s_waitcnt lgkmcnt(0)")
    mk_srd(sK, pK, 1 << 20, off_sgpr=st0)
    A(f"s_mov_b32 s{sK+2}, s{st3}")
    sRot = 35
    if ROTK:
        A(f"s_mul_i32 s{sRot}, s2, {ROTK}"); A(f"s_and_b32 s{sRot}, s{sRot}, 255"); A(f"s_lshl_b32 s{sRot}, s{sRot}, 12")
    else:
        A(f"s_mov_b32 s{sRot}, 0")
    A(f"s_mov_b32 s{sOff}, s{sRot}")
    vX = 160
    def sload(i, s, extra=False):
        dst = vX + 4*(i-16) if extra else ring(i)
        A(f"buffer_load_dwordx4 v[{dst}:{dst+3}], v{vOff}, {srd(s)}, s{sOff} offen nt")
        p_ = i % 16
        def addr(p):
            o = (p//G)*4*G*1024 + (p%G)*1024
            return o if HB >= 20 else ((o >> HB) << (HB+1)) | (o & ((1 << HB)-1))
        assert HB >= 20 or (1 << HB) <= 65536
        inc = addr(p_+1) - addr(p_) if p_ < 15 else (addr(16) - addr(15))
        A(f"s_add_u32 s{sOff}, s{sOff}, {inc}")
        if ROTK: A(f"s_and_b32 s{sOff}, s{sOff}, 0xfffff")
    for i in range(D0): sload(i, sK)
    A("s_barrier")
    if COOPQ: assert PACED
    if PACED:
        for i in range(D0, I0):
            if i >= PACED: A(f"s_waitcnt vmcnt({PACED-1})")
            sload(i, sK, extra=(i >= 16))
    elif NR == 0:
        A("s_barrier")
        for i in range(D0, R): sload(i, sK)
    else:
        rest = list(range(D0, R))
        for r_ in range(NR):
            lo = len(rest)*r_//NR; hi = len(rest)*(r_+1)//NR
            for i in rest[lo:hi]: sload(i, sK)
            if r_ < NR-1: A("s_barrier")
    mk_srd(sV, pV, 1 << 20, off_sgpr=st0)
    A(f"s_mov_b32 s{sV+2}, s{st3}")
    for k in range(4): A(f"s_mov_b32 s{sC+k}, s{sK+k}")
    mk_srd(sWS, pWS, WS_SIZE)
    A(f"s_mov_b32 s{sM0}, 0xaaaaaaaa"); A(f"s_mov_b32 s{sM0+1}, 0xaaaaaaaa")
    A(f"s_mov_b32 s{sM1}, 0xcccccccc"); A(f"s_mov_b32 s{sM1+1}, 0xcccccccc")
    A(f"s_lshl_b32 s{st2}, s3, 12"); A(f"s_add_u32 s{st2}, s{st2}, {L_SC}")
    A(f"v_lshlrev_b32 v{vSC}, 2, v{vLane}"); A(f"v_add_u32 v{vSC}, s{st2}, v{vSC}")
    A(f"v_mov_b32 v{vM}, 0xff7fffff")
    A(f"v_and_b32 v42, 15, v{vLane}"); A("v_lshlrev_b32 v42, 5, v42")
    if DBG & 4:
        A(f"s_waitcnt vmcnt({16-D0})"); stamp(6); A("s_waitcnt vmcnt(0)"); stamp(7)
    stamp(1)
    A("s_barrier")
    vqt = 128
    for u in range(4):
        A(f"ds_read_b128 v[{vqt+8*u}:{vqt+8*u+3}], v42 offset:{L_QP+u*512}")
        A(f"ds_read_b128 v[{vqt+8*u+4}:{vqt+8*u+7}], v42 offset:{L_QP+u*512+16}")
    A("s_waitcnt lgkmcnt(0)")
    for e in range(8):
        A(f"v_add_f32 v{vqt+e}, v{vqt+e}, v{vqt+8+e}")
        A(f"v_add_f32 v{vqt+16+e}, v{vqt+16+e}, v{vqt+24+e}")
    for e in range(8): A(f"v_add_f32 v{vqt+e}, v{vqt+e}, v{vqt+16+e}")
    for r in range(4): A(f"v_cvt_pk_bf16_f32 v{vQ+r}, v{vqt+2*r}, v{vqt+2*r+1}")
    if DBG & 1:
        A("s_cmp_lg_u32 s3, 0"); A("s_cbranch_scc1 L_dbgq")
        A(f"s_lshl_b32 s{st2}, s{sReg}, 8"); A(f"s_add_u32 s{st2}, s{st2}, {WS_PROF+0x80000}")
        A(f"v_lshlrev_b32 v40, 4, v{vLane}")
        A("s_mov_b64 exec, 0xffff")
        A(f"buffer_store_dwordx4 v[{vQ}:{vQ+3}], v40, {srd(sWS)}, s{st2} offen")
        A("s_mov_b64 exec, -1")
        A("s_waitcnt vmcnt(0)")
        A.label("L_dbgq")
    stamp(2)
    vW0, vW1, vS = 44, 45, 46
    def k_tail_ops():
        P = lambda n: vP + n
        g = []
        g.append([f"v_add_f32_dpp v{P(14)}, v{P(14)}, v{P(14)} row_ror:8 row_mask:0xf bank_mask:0x3",
                  f"v_add_f32_dpp v{P(14)}, v{P(15)}, v{P(15)} row_ror:8 row_mask:0xf bank_mask:0xc"])
        g.append([f"v_add_f32_dpp v{P(12)}, v{P(12)}, v{P(12)} row_shl:4 row_mask:0xf bank_mask:0x5",
                  f"v_add_f32_dpp v{P(12)}, v{P(14)}, v{P(14)} row_shr:4 row_mask:0xf bank_mask:0xa"])
        g.append([f"v_add_f32_dpp v{vtA}, v{P(8)}, v{P(8)} quad_perm:[2,3,0,1] row_mask:0xf bank_mask:0xf",
                  f"v_add_f32_dpp v{vtB}, v{P(12)}, v{P(12)} quad_perm:[2,3,0,1] row_mask:0xf bank_mask:0xf",
                  f"v_cndmask_b32 v{vW1}, v{vtA}, v{vtB}, s[{sM1}:{sM1+1}]"])
        g.append([f"v_add_f32_dpp v{vtA}, v{vW0}, v{vW0} quad_perm:[1,0,3,2] row_mask:0xf bank_mask:0xf",
                  f"v_add_f32_dpp v{vtB}, v{vW1}, v{vW1} quad_perm:[1,0,3,2] row_mask:0xf bank_mask:0xf",
                  f"v_cndmask_b32 v{vS}, v{vtA}, v{vtB}, s[{sM0}:{sM0+1}]"])
        g.append([f"v_cvt_pk_bf16_f32 v{vS}, v{vS}, v{vS}", f"v_and_b32 v{vS}, 0xffff0000, v{vS}"])
        g.append([f"v_mul_f32 v{vS}, 0x3db504f3, v{vS}", f"v_cvt_pk_bf16_f32 v{vS}, v{vS}, v{vS}"])
        g.append([f"v_and_b32 v{vS}, 0xffff0000, v{vS}", f"v_max_f32 v{vM}, v{vM}, v{vS}",
                  f"ds_write_b32 v{vSC}, v{vS}", f"v_add_u32 v{vSC}, 256, v{vSC}"])
        return g
    def k_tile(first, pt=0):
        P = lambda n: vP + n
        def redA(k):
            A(f"v_add_f32_dpp v{P(2*k)}, v{P(2*k)}, v{P(2*k)} row_ror:8 row_mask:0xf bank_mask:0x3")
            A(f"v_add_f32_dpp v{P(2*k)}, v{P(2*k+1)}, v{P(2*k+1)} row_ror:8 row_mask:0xf bank_mask:0xc")
        def redB(m):
            A(f"v_add_f32_dpp v{P(4*m)}, v{P(4*m)}, v{P(4*m)} row_shl:4 row_mask:0xf bank_mask:0x5")
            A(f"v_add_f32_dpp v{P(4*m)}, v{P(4*m+2)}, v{P(4*m+2)} row_shr:4 row_mask:0xf bank_mask:0xa")
        def redC0():
            A(f"v_add_f32_dpp v{vtA}, v{P(0)}, v{P(0)} quad_perm:[2,3,0,1] row_mask:0xf bank_mask:0xf")
            A(f"v_add_f32_dpp v{vtB}, v{P(4)}, v{P(4)} quad_perm:[2,3,0,1] row_mask:0xf bank_mask:0xf")
            A(f"v_cndmask_b32 v{vW0}, v{vtA}, v{vtB}, s[{sM1}:{sM1+1}]")
        tail = [] if (first and pt == 0) else k_tail_ops()
        for n in range(16):
            pos = 16*pt + n
            if not first: A(f"s_waitcnt vmcnt({D-1})")
            else:
                younger = max(0, I0 - 1 - pos) + max(0, min(pos, 1 << 30) - (I0 - D)) if pos < I0 else D-1
                A(f"s_waitcnt vmcnt({younger})")
            if (not first) or pos + D >= I0:
                if n == 16 - D and not first:
                    A(f"s_cmp_eq_u32 s{sTile}, 15")
                    A(f"s_cselect_b32 s{sC}, s{sV}, s{sC}")
                    A(f"s_cselect_b32 s{sC+1}, s{sV+1}, s{sC+1}")
                    A(f"s_cselect_b32 s{sOff}, s{sRot}, s{sOff}")
                sload(n + D, sC)
            r = vX + 4*n if (first and pt == 1 and pos < I0) else ring(n)
            A(f"v_dot2_f32_bf16 v{P(n)}, v{r}, v{vQ}, 0")
            for k in range(1, 4): A(f"v_dot2_f32_bf16 v{P(n)}, v{r+k}, v{vQ+k}, v{P(n)}")
            if n < len(tail):
                for x in tail[n]: A(x)
            if n >= 2 and n % 2 == 0: redA((n-2)//2)
            if n in (5, 9, 13): redB((n-5)//4)
            if n == 11: redC0()
    A(f"s_mov_b32 s{sTile}, 0")
    k_tile(True, 0)
    if I0 > 16:
        k_tile(True, 1)
    A(f"s_mov_b32 s{sTile}, {2 if I0 > 16 else 1}")
    if SPREAD: A(f"v_mov_b32 v43, {L_KT}")
    A.label("L_kloop")
    k_tile(False)
    A(f"s_add_u32 s{sTile}, s{sTile}, 1")
    if SPREAD == 1:
        A(f"v_mov_b32 v47, s{sTile}"); A(f"ds_write_b32 v43, v47")
    if PROF and (DBG & 16):
        A(f"s_cmp_lg_u32 s{sTile}, 3"); A("s_cbranch_scc1 L_nk1"); stamp(1); A.label("L_nk1")
        A(f"s_cmp_lg_u32 s{sTile}, 6"); A("s_cbranch_scc1 L_nk2"); stamp(6); A.label("L_nk2")
        A(f"s_cmp_lg_u32 s{sTile}, 11"); A("s_cbranch_scc1 L_nk3"); stamp(7); A.label("L_nk3")
    A(f"s_cmp_lt_u32 s{sTile}, 16")
    A("s_cbranch_scc1 L_kloop")
    for grp in k_tail_ops():
        for x in grp: A(x)
    stamp(3)
    A(f"v_subrev_u32 v{vSC}, 4096, v{vSC}")
    A("s_waitcnt lgkmcnt(0)")
    for t in range(16): A(f"ds_read_b32 v{vP+t}, v{vSC} offset:{t*256}")
    wave_allreduce("v_max_f32", vM, vtA)
    A(f"v_mul_f32 v{vtB}, 0xbfb8aa3b, v{vM}")
    A(f"s_mov_b32 s{st0}, 0x3fb8aa3b")
    A("s_waitcnt lgkmcnt(0)")
    for t in range(16): A(f"v_fma_f32 v{vP+t}, v{vP+t}, s{st0}, v{vtB}")
    for t in range(16): A(f"v_exp_f32 v{vP+t}, v{vP+t}")
    A(f"v_add_f32 v{vL}, v{vP}, v{vP+1}")
    for t in range(2, 16): A(f"v_add_f32 v{vL}, v{vL}, v{vP+t}")
    for t in range(16): A(f"v_cvt_pk_bf16_f32 v{vP+t}, v{vP+t}, v{vP+t}")
    for t in range(16): A(f"ds_write_b32 v{vSC}, v{vP+t} offset:{t*256}")
    wave_allreduce("v_add_f32", vL, vtA)
    A(f"v_mov_b32 v40, v{vM}"); A(f"v_mov_b32 v41, v{vL}")
    A("v_mov_b32 v43, 0x7fc00000")
    sanitize([40, 41], 43)
    A(f"s_lshl_b32 s{st0}, s3, 3"); A(f"s_add_u32 s{st0}, s{st0}, {L_STAT}"); A(f"v_mov_b32 v42, s{st0}")
    A("s_mov_b64 exec, 1"); A("ds_write_b64 v42, v[40:41]"); A("s_mov_b64 exec, -1")
    A(f"v_mov_b32 v{vPn}, v{vP}")
    for e in range(8): A(f"v_mov_b32 v{vAcc+e}, 0")
    A(f"s_mov_b32 s{sTile}, 0")
    def pre_end():
        A(f"v_and_b32 v40, 15, v{vLane}"); A("v_lshlrev_b32 v40, 4, v40")
        A(f"v_lshrrev_b32 v41, 4, v{vLane}"); A("v_lshlrev_b32 v41, 2, v41")
        A("v_add_u32 v40, v40, v41")
        A(f"s_lshl_b32 s{st0}, s3, 8"); A(f"s_add_u32 s{st0}, s{st0}, {L_OW}"); A(f"v_add_u32 v40, s{st0}, v40")
        A(f"s_lshl_b32 s{st0}, s3, 2"); A(f"s_add_u32 s{st0}, s{st0}, {L_FW}"); A(f"v_mov_b32 v42, s{st0}")
        if DEEP:
            A(f"s_and_b32 s{st0}, s2, 7"); A(f"s_lshl_b32 s{st0}, s{st0}, 7"); A(f"s_add_u32 s{st0}, s{st0}, {WS_FIN}"); A(f"v_mov_b32 v44, s{st0}")
        else:
            A(f"s_and_b32 s{st0}, s2, 7"); A(f"s_lshl_b32 s{st0}, s{st0}, 2"); A(f"s_add_u32 s{st0}, s{st0}, 32"); A(f"v_mov_b32 v44, s{st0}")
        A("v_mov_b32 v46, 1")
        A(f"s_mov_b32 s{sCnt}, {SPIN_LIMIT}")
        A.label("L_fwspin")
        A("ds_read_b32 v43, v42"); A("s_waitcnt lgkmcnt(0)")
        spin_check([43], 47, "L_fwspin", "L_fwok")
    def v_loop(label, depth, tend):
        A.label(label)
        A(f"v_and_b32 v{vPlo}, 0xffff, v{vPn}")
        A(f"v_and_b32 v{vPhi}, 0xffff0000, v{vPn}")
        A(f"v_add_u32 v{vSC}, 256, v{vSC}")
        A(f"ds_read_b32 v{vPn}, v{vSC}")
        for n in range(16):
            A(f"s_waitcnt vmcnt({depth-1})")
            r = ring(n); bl = brev4(n)
            if ROTK and n == 16 - depth and tend == 16:
                A(f"s_cmp_eq_u32 s{sTile}, 15"); A(f"s_cselect_b32 s{sC+2}, 0, s{sC+2}")
            sload(n + depth, sC)
            for k in range(4):
                A(f"v_dot2c_f32_bf16_dpp v{vAcc+2*k}, v{vPlo}, v{r+k} row_newbcast:{bl} row_mask:0xf bank_mask:0xf")
                A(f"v_dot2c_f32_bf16_dpp v{vAcc+2*k+1}, v{vPhi}, v{r+k} row_newbcast:{bl} row_mask:0xf bank_mask:0xf")
        A("s_waitcnt lgkmcnt(0)")
        A(f"s_add_u32 s{sTile}, s{sTile}, 1")
        if PROF and (DBG & 8) and label == "L_vloop":
            A(f"s_cmp_lg_u32 s{sTile}, 1"); A("s_cbranch_scc1 L_nost"); stamp(1); A.label("L_nost")
        A(f"s_cmp_lt_u32 s{sTile}, {tend}")
        A(f"s_cbranch_scc1 {label}")
    DVV = DV if DV else D
    for i_ in range(D, DVV): sload(i_, sC)
    def v_body(depth, skippable=False, tag="", flagread=False, skipn=0):
        A(f"v_and_b32 v{vPlo}, 0xffff, v{vPn}")
        A(f"v_and_b32 v{vPhi}, 0xffff0000, v{vPn}")
        A(f"v_add_u32 v{vSC}, 256, v{vSC}")
        A(f"ds_read_b32 v{vPn}, v{vSC}")
        if (skippable and not (BX & 1)) or flagread: A(f"ds_read_b32 v45, v47")
        for n in range(16):
            A(f"s_waitcnt vmcnt({depth-1})")
            r = ring(n); bl = brev4(n)
            if skippable and n < BD - DVV and not (BX & 2):
                A(f"s_cmp_gt_u32 s89, {n}"); A(f"s_cbranch_scc1 L_vskip{n}")
                sload(n + depth, sC)
                A.label(f"L_vskip{n}")
            elif n >= skipn:
                sload(n + depth, sC)
            for k in range(4):
                A(f"v_dot2c_f32_bf16_dpp v{vAcc+2*k}, v{vPlo}, v{r+k} row_newbcast:{bl} row_mask:0xf bank_mask:0xf")
                A(f"v_dot2c_f32_bf16_dpp v{vAcc+2*k+1}, v{vPhi}, v{r+k} row_newbcast:{bl} row_mask:0xf bank_mask:0xf")
        A("s_waitcnt lgkmcnt(0)")
        A(f"s_add_u32 s{sTile}, s{sTile}, 1")
    if DVV < D:
        assert not (DEEP or BOOST)
        v_body(DVV, skipn=D-DVV)
    if DEEP:
        assert NT2 >= 1 and not ROTK and not BOOST and DYN
        TE = 16 - NT2
        A(f"v_mov_b32 v47, {L_DEEP}"); A(f"v_mov_b32 v46, {L_PROG}")
        A.label("L_vloop")
        v_body(DVV, skippable=False, flagread=True)
        A(f"s_cmp_ge_u32 s{sTile}, {TE}"); A("s_cbranch_scc1 L_vexit")
        A(f"s_cmp_lg_u32 s{sTile}, {DPT}"); A("s_cbranch_scc1 L_vnoprog")
        A("v_mov_b32 v44, 1"); A("s_mov_b64 exec, 1"); A("ds_write_b32 v46, v44"); A("s_mov_b64 exec, -1")
        A.label("L_vnoprog")
        A("v_readfirstlane_b32 s91, v45")
        A("s_cmp_eq_u32 s91, 0"); A("s_cbranch_scc1 L_vloop")
        A.label("L_vexit")
        if PROF: A(f"s_mov_b32 s{sP+2}, s{sTile}")
        A("v_mov_b32 v44, 2"); A("s_mov_b64 exec, 1"); A("ds_write_b32 v46, v44"); A("s_mov_b64 exec, -1")
        pre_end()
        for i_ in range(DVV, D2): sload(i_, sC)
        v_loop("L_vloop2", D2, 16)
    elif BOOST:
        assert NT2 >= 1 and not ROTK
        TE = 16 - NT2
        A("s_mov_b32 s89, 0"); A(f"s_mov_b32 s90, {1 if BX & 8 else 0}"); A(f"v_mov_b32 v47, {L_BOOST}"); A("v_mov_b32 v45, -1")
        A.label("L_vloop")
        v_body(DVV, skippable=True)
        A("s_mov_b32 s89, 0")
        A(f"s_cmp_ge_u32 s{sTile}, {TE}"); A("s_cbranch_scc1 L_vexit")
        A("s_cmp_lg_u32 s90, 0"); A("s_cbranch_scc1 L_vloop")
        A("v_readfirstlane_b32 s91, v45")
        A("s_cmp_eq_u32 s91, -1"); A("s_cbranch_scc1 L_vloop")
        A("s_mov_b32 s90, 1")
        A(f"s_sub_u32 s{st0}, {TE-1}, s{sTile}"); A(f"s_min_u32 s91, s91, s{st0}")
        if PROF: A(f"s_mov_b32 s{sP+2}, s91")
        A("s_cmp_eq_u32 s91, 0"); A("s_cbranch_scc1 L_vloop")
        for i_ in range(DVV, BD): sload(i_, sC)
        A.label("L_vboost")
        v_body(BD)
        A("s_sub_u32 s91, s91, 1"); A("s_cmp_lg_u32 s91, 0"); A("s_cbranch_scc1 L_vboost")
        A(f"s_mov_b32 s89, {BD-DVV}")
        A("s_branch L_vloop")
        A.label("L_vexit")
        pre_end()
        for i_ in range(DVV, D2): sload(i_, sC)
        v_loop("L_vloop2", D2, 16)
    elif NT2 == 0:
        v_loop("L_vloop", DVV, 16)
    else:
        v_loop("L_vloop", DVV, 16 - NT2)
        pre_end()
        for i_ in range(DVV, D2): sload(i_, sC)
        v_loop("L_vloop2", D2, 16)
    if NT2 == 0: pre_end()
    stamp(4)
    if DYN:
        A("s_cmp_lg_u32 s3, 0"); A("s_cbranch_scc1 L_notick")
        if DEEP:
            A("v_mov_b32 v45, v46")
            A("s_mov_b64 exec, 1"); A(f"buffer_atomic_add v45, v44, {srd(sWS)}, 0 offen sc0"); A("s_mov_b64 exec, -1")
        else:
            A("s_mov_b64 exec, 1"); A(f"global_atomic_add v45, v44, v46, s[{pDBG}:{pDBG+1}] {TKF}"); A("s_mov_b64 exec, -1")
        A.label("L_notick")
    acc_reduce(vAcc)
    A(f"v_mul_f32 v{vAcc}, v{vAcc}, v43"); A(f"v_mul_f32 v{vAcc+1}, v{vAcc+1}, v43")
    A(f"v_cvt_pk_bf16_f32 v{vAcc}, v{vAcc}, v{vAcc+1}")
    A(f"ds_write_b32 v40, v{vAcc}")
    A("s_waitcnt lgkmcnt(0)")
    A("s_barrier")
    stamp(5)
    A("s_waitcnt vmcnt(0)")
    sVid = 88
    A("s_cmp_lg_u32 s3, 0"); A("s_cbranch_scc1 L_norole")
    if DYN:
        A(f"v_readfirstlane_b32 s{st0}, v45")
        A(f"s_and_b32 s{st1}, s2, 7")
        A(f"s_lshl_b32 s{st2}, s{st0}, 3"); A(f"s_add_u32 s{st2}, s{st2}, s{st1}")
        A(f"s_mov_b32 s{sVid}, 255")
        A(f"s_sub_u32 s{st3}, s{st2}, {8*15}"); A(f"s_cmp_lt_u32 s{st0}, 23"); A(f"s_cselect_b32 s{sVid}, s{st3}, s{sVid}")
        A(f"s_add_u32 s{st3}, s{st2}, {64-8*4}"); A(f"s_cmp_lt_u32 s{st0}, 15"); A(f"s_cselect_b32 s{sVid}, s{st3}, s{sVid}")
        A(f"s_add_u32 s{st3}, s{st2}, 152"); A(f"s_cmp_lt_u32 s{st0}, 4"); A(f"s_cselect_b32 s{sVid}, s{st3}, s{sVid}")
    else:
        A(f"s_mov_b32 s{sVid}, s2")
    if SPREAD:
        A(f"s_cmp_ge_u32 s{sVid}, 184"); A("s_cbranch_scc1 L_inok2")
        if SPREAD == 1:
            A("v_mov_b32 v46, 0"); A(f"s_mov_b32 s{sCnt}, {SPIN_LIMIT}")
            A.label("L_inspin2")
            A(f"global_load_dword v47, v46, s[{pDBG}:{pDBG+1}] sc1"); A("s_waitcnt vmcnt(0)")
            A("v_cmp_gt_u32 vcc, 0x100, v47")
            A("s_cbranch_vccz L_inok2")
            A("s_sleep 2")
            A(f"s_sub_u32 s{sCnt}, s{sCnt}, 1"); A("s_cbranch_scc0 L_inspin2")
        else:
            A(f"v_and_b32 v46, 1, v{vLane}"); A(f"v_mul_u32_u24 v46, {WS_EPB-WS_EP}, v46"); A(f"s_mov_b32 s{st1}, {WS_EP}")
            A(f"buffer_load_dword v47, v46, {srd(sWS)}, s{st1} offen sc1")
            A(f"s_bfe_u32 s{st1}, s2, 0x20003"); A(f"s_lshl_b32 s{st1}, s{st1}, 10"); A(f"s_add_u32 s{st1}, s{st1}, {WS_FLAG}")
            A(f"v_lshlrev_b32 v46, 4, v{vLane}"); A(f"s_mov_b32 s{sCnt}, {SPIN_LIMIT}")
            A.label("L_inspin2")
            A(f"buffer_load_dwordx4 v[48:51], v46, {srd(sWS)}, s{st1} offen sc1"); A("s_waitcnt vmcnt(0)")
            A(f"v_readlane_b32 s{st2}, v47, 0"); A(f"v_readlane_b32 s{st3}, v47, 1")
            A(f"s_mul_i32 s{st3}, s{st3}, 3"); A(f"s_add_u32 s{st2}, s{st2}, s{st3}"); A(f"s_add_u32 s{st2}, s{st2}, 4")
            A(f"v_mov_b32 v52, s{st2}")
            for k in range(4): A(f"v_xor_b32 v{48+k}, v52, v{48+k}")
            A("v_or3_b32 v48, v48, v49, v50"); A("v_or_b32 v48, v48, v51")
            A("v_cmp_ne_u32 vcc, 0, v48")
            A("s_cbranch_vccz L_inok2")
            A("s_sleep 2")
            A(f"s_sub_u32 s{sCnt}, s{sCnt}, 1"); A("s_cbranch_scc0 L_inspin2")
        A.label("L_inok2")
    A(f"v_mov_b32 v44, {L_ROLE}"); A(f"v_mov_b32 v45, s{sVid}")
    A("s_mov_b64 exec, 1"); A("ds_write_b32 v44, v45"); A("s_mov_b64 exec, -1")
    A("s_waitcnt lgkmcnt(0)")
    A.label("L_norole")
    A("s_barrier")
    A(f"v_mov_b32 v44, {L_ROLE}"); A("ds_read_b32 v45, v44"); A("s_waitcnt lgkmcnt(0)")
    A(f"v_readfirstlane_b32 s{sVid}, v45")
    A(f"s_cmp_lt_u32 s{sVid}, 64"); A("s_cbranch_scc1 L_red")
    A(f"s_cmp_lt_u32 s{sVid}, 152"); A("s_cbranch_scc1 L_ffn1")
    A(f"s_cmp_lt_u32 s{sVid}, 184"); A("s_cbranch_scc1 L_ffn2")
    A.label("L_sdone")
    prof_store(0)
    A("s_endpgm")

    A.label("L_red")
    A(f"s_lshl_b32 s{st0}, s88, 13"); A(f"s_lshl_b32 s{st1}, s3, 11"); A(f"s_add_u32 s{st0}, s{st0}, s{st1}")
    A(f"v_lshlrev_b32 v3, 4, v{vLane}")
    A(f"s_lshr_b32 s{st3}, s88, 4"); A(f"s_lshl_b32 s{st1}, s{st3}, 10")
    A(f"s_and_b32 s{st2}, s88, 15"); A(f"s_lshl_b32 s{sTile}, s{st2}, 6"); A(f"s_add_u32 s{st1}, s{st1}, s{sTile}")
    A(f"v_and_b32 v4, 7, v{vLane}"); A("v_lshlrev_b32 v4, 2, v4")
    A(f"v_lshrrev_b32 v5, 5, v{vLane}"); A("v_lshlrev_b32 v5, 5, v5"); A("v_add_u32 v4, v4, v5")
    mk_srd(sT, pX, 4096)
    A(f"buffer_load_dword v6, v4, {srd(sT)}, s{st1} offen")
    A(f"v_bfe_u32 v5, v{vLane}, 3, 2"); A("v_lshlrev_b32 v5, 12, v5"); A("v_add_u32 v7, v4, v5")
    A(f"s_lshl_b32 s{st2}, s{st2}, 8"); A(f"s_lshl_b32 s{st3}, s{st3}, 6"); A(f"s_add_u32 s{st1}, s{st2}, s{st3}")
    A(f"s_add_u32 s{st1}, s{st1}, {WS_H}")
    A(f"v_lshlrev_b32 v9, 1, v4")
    A(f"s_lshl_b32 s{st2}, s3, 7"); A(f"v_add_u32 v10, s{st2}, v9")
    A(f"s_mov_b32 s{sCnt}, {SPIN_LIMIT}")
    def red_issue():
        A(f"buffer_load_dwordx4 v[16:19], v3, {srd(sWS)}, s{st0} offen sc1")
    A(f"buffer_load_dwordx4 v[16:19], v3, {srd(sWS)}, s{st0} offen sc1")
    A(f"buffer_load_dwordx4 v[20:23], v3, {srd(sWS)}, s{st0} offen offset:1024 sc1")
    for d_ in range(PD-1):
        A(f"s_sleep {STG}")
        A(f"buffer_load_dwordx4 v[16:19], v3, {srd(sWS)}, s{st0} offen sc1")
        A(f"buffer_load_dwordx4 v[20:23], v3, {srd(sWS)}, s{st0} offen offset:1024 sc1")
    A.label("L_redspin")
    A(f"s_waitcnt vmcnt({2*(PD-1)})")
    A("v_max3_u32 v8, v16, v17, v18"); A("v_max3_u32 v11, v20, v21, v22")
    A("v_max_u32 v8, v8, v19"); A("v_max_u32 v11, v11, v23")
    A("v_cmp_eq_u32 s[80:81], -1, v8"); A("v_cmp_eq_u32 s[82:83], -1, v11")
    A("s_or_b64 s[84:85], s[80:81], s[82:83]")
    A("s_cbranch_scc0 L_redok")
    if SLPR: A(f"s_sleep {SLPR}")
    A("s_or_b32 s80, s80, 1"); A("s_or_b32 s82, s82, 1")
    A("s_mov_b64 exec, s[80:81]")
    A(f"buffer_load_dwordx4 v[16:19], v3, {srd(sWS)}, s{st0} offen sc1")
    A("s_mov_b64 exec, s[82:83]")
    A(f"buffer_load_dwordx4 v[20:23], v3, {srd(sWS)}, s{st0} offen offset:1024 sc1")
    A("s_mov_b64 exec, -1")
    A(f"s_sub_u32 s{sCnt}, s{sCnt}, 1"); A("s_cbranch_scc0 L_redspin")
    A.label("L_redok")
    stamp(7)
    if PROF: A(f"s_sub_u32 s{sP+2}, {SPIN_LIMIT}, s{sCnt}")
    for k in range(4): A(f"v_add_f32 v{24+k}, v{16+k}, v{20+k}")
    A("v_permlane32_swap_b32 v24, v25"); A("v_permlane32_swap_b32 v26, v27")
    A("v_add_f32 v24, v24, v25"); A("v_add_f32 v25, v26, v27")
    A("v_mov_b32 v26, v24"); A("v_mov_b32 v27, v25")
    A("v_permlane16_swap_b32 v24, v26"); A("v_permlane16_swap_b32 v25, v27")
    A("v_add_f32 v24, v24, v26"); A("v_add_f32 v25, v25, v27")
    A("v_add_f32_dpp v24, v24, v24 row_ror:8 row_mask:0xf bank_mask:0xf")
    A("v_add_f32_dpp v25, v25, v25 row_ror:8 row_mask:0xf bank_mask:0xf")
    A(f"ds_write_b64 v10, v[24:25] offset:{L_RR}")
    A("s_waitcnt lgkmcnt(0)")
    A("s_barrier")
    A("s_cmp_lg_u32 s3, 0"); A("s_cbranch_scc1 L_sdone")
    for u in range(4): A(f"ds_read_b64 v[{32+2*u}:{33+2*u}], v9 offset:{L_RR+u*128}")
    A("v_lshlrev_b32 v40, 16, v6"); A("v_and_b32 v41, 0xffff0000, v6")
    A("v_mov_b32 v42, 0x7fc07fc0")
    A("s_waitcnt lgkmcnt(0)")
    A("v_add_f32 v32, v32, v34"); A("v_add_f32 v33, v33, v35"); A("v_add_f32 v36, v36, v38"); A("v_add_f32 v37, v37, v39")
    A("v_add_f32 v32, v32, v36"); A("v_add_f32 v33, v33, v37")
    A("v_cvt_pk_bf16_f32 v32, v32, v33")
    A("v_lshlrev_b32 v34, 16, v32"); A("v_and_b32 v35, 0xffff0000, v32")
    A("v_add_f32 v34, v34, v40"); A("v_add_f32 v35, v35, v41")
    A("v_cvt_pk_bf16_f32 v32, v34, v35")
    sanitize([32], 42)
    A(f"buffer_store_dword v32, v7, {srd(sWS)}, s{st1} offen sc1")
    A(f"s_add_u32 s{st1}, s{st1}, 16384")
    A(f"buffer_store_dword v32, v7, {srd(sWS)}, s{st1} offen sc1")
    A(f"s_add_u32 s{st1}, s{st1}, 16384")
    A("s_mov_b32 exec_lo, 0xff"); A("s_mov_b32 exec_hi, 0xff")
    A(f"buffer_store_dword v32, v4, {srd(sWS)}, s{st1} offen sc1")
    A("s_mov_b64 exec, -1")
    stamp(6)
    A("s_branch L_sdone")

    def ffn1_tile(dst, src="s2"):
        A(f"s_sub_u32 s{st0}, {src}, 64")
        A(f"s_and_b32 s{st1}, s{st0}, 7")
        A(f"s_lshr_b32 s{st0}, s{st0}, 3")
        A(f"s_lshr_b32 s{st2}, s{st0}, 2"); A(f"s_lshl_b32 s{st2}, s{st2}, 3"); A(f"s_add_u32 s{st2}, s{st2}, s{st1}")
        A(f"s_lshl_b32 s{st2}, s{st2}, 2"); A(f"s_and_b32 s{st3}, s{st0}, 3"); A(f"s_add_u32 s{st2}, s{st2}, s{st3}")
        A(f"s_mul_i32 s{st1}, s{st1}, 3"); A(f"s_add_u32 s{st1}, s{st1}, s{st0}"); A(f"s_add_u32 s{st1}, s{st1}, 56")
        A(f"s_cmp_lt_u32 s{st0}, 8"); A(f"s_cselect_b32 s{dst}, s{st2}, s{st1}")
    def ffn2_tile(dst, src="s2"):
        A(f"s_sub_u32 s{st0}, {src}, 152"); A(f"s_and_b32 s{st1}, s{st0}, 7"); A(f"s_lshr_b32 s{st0}, s{st0}, 3")
        A(f"s_lshl_b32 s{st1}, s{st1}, 2"); A(f"s_add_u32 s{dst}, s{st1}, s{st0}")
    sTl = 35
    def tr_addr(v):
        A(f"v_lshrrev_b32 v{v}, 4, v{vLane}"); A(f"v_lshlrev_b32 v{v}, 8, v{v}")
        A(f"v_bfe_u32 v40, v{vLane}, 2, 2"); A("v_lshlrev_b32 v40, 5, v40"); A(f"v_add_u32 v{v}, v{v}, v40")
        A(f"v_and_b32 v40, 3, v{vLane}"); A("v_lshlrev_b32 v40, 3, v40"); A(f"v_add_u32 v{v}, v{v}, v40")
        A(f"s_mul_i32 s{st0}, s3, {STG_W}"); A(f"s_add_u32 s{st0}, s{st0}, {L_STG}"); A(f"v_add_u32 v{v}, s{st0}, v{v}")
    A.label("L_ffn1")
    ffn1_tile(sTl, "s88")
    A(f"s_cmp_ge_u32 s{sTl}, 86"); A("s_cbranch_scc1 L_sdone")
    vA = 64
    if REPACK:
        vA = 64
        A(f"s_lshl_b32 s{st0}, s{sTl}, 14"); A(f"s_lshl_b32 s{st1}, s3, 12"); A(f"s_add_u32 s{st0}, s{st0}, s{st1}")
        A(f"s_add_u32 s{st0}, s{st0}, {WS_W1T}")
        A(f"v_lshlrev_b32 v4, 4, v{vLane}")
        for s in range(4): A(f"buffer_load_dwordx4 v[{vA+4*s}:{vA+4*s+3}], v4, {srd(sWS)}, s{st0} offen offset:{s*1024} sc1")
    else:
        A(f"v_lshrrev_b32 v14, 1, v{vLane}"); A("v_mul_u32_u24 v14, 2752, v14")
        A(f"v_and_b32 v6, 1, v{vLane}"); A("v_lshlrev_b32 v6, 4, v6"); A("v_add_u32 v14, v14, v6")
        A(f"s_mul_i32 s{st0}, s3, {128*2752}"); A(f"v_add_u32 v14, s{st0}, v14")
        A(f"s_lshl_b32 s{st1}, s{sTl}, 5")
        A(f"s_add_u32 s{sT}, s{pW1}, s{st1}"); A(f"s_addc_u32 s{sT+1}, s{pW1+1}, 0")
        A(f"s_sub_u32 s{sT+2}, {512*2752}, s{st1}"); A(f"s_mov_b32 s{sT+3}, 0x20000")
        A(f"s_mov_b32 s{sOff}, 0")
        for n in range(4):
            A(f"buffer_load_dwordx4 v[{16+4*n}:{19+4*n}], v14, {srd(sT)}, s{sOff} offen {WFF}")
            A(f"s_add_u32 s{sOff}, s{sOff}, {32*2752}")
        A(f"v_lshlrev_b32 v15, 4, v{vLane}"); A(f"s_mul_i32 s{st0}, s3, {STG_W}"); A(f"s_add_u32 s{st0}, s{st0}, {L_STG}")
        A(f"v_add_u32 v15, s{st0}, v15")
        tr_addr(4)
        A("s_waitcnt vmcnt(0)")
        for n in range(4): A(f"ds_write_b128 v15, v[{16+4*n}:{19+4*n}] offset:{n*1024}")
        vA = 64
        for s in range(4):
            A(f"ds_read_b64_tr_b16 v[{vA+4*s}:{vA+4*s+1}], v4 offset:{s*1024}")
            A(f"ds_read_b64_tr_b16 v[{vA+4*s+2}:{vA+4*s+3}], v4 offset:{s*1024+128}")
    for k in range(4): A(f"v_mov_b32 v{80+k}, 0x3f803f80")
    for k in range(4): A(f"v_mov_b32 v{84+k}, 0")
    A("s_waitcnt vmcnt(0) lgkmcnt(0)")
    for s in range(4): A(f"v_mfma_f32_16x16x32_bf16 v[84:87], v[{vA+4*s}:{vA+4*s+3}], v[80:83], v[84:87]")
    A(f"v_lshlrev_b32 v5, 4, v{vLane}"); A(f"s_lshl_b32 s{st0}, s3, 10"); A(f"v_add_u32 v5, s{st0}, v5")
    A(f"v_lshlrev_b32 v6, 3, v{vLane}"); A(f"s_lshl_b32 s{st0}, s3, 9"); A(f"v_add_u32 v6, s{st0}, v6")
    A(f"ds_write_b128 v5, v[84:87] offset:{L_RED3}")
    A("s_waitcnt lgkmcnt(0)")
    A("s_barrier")
    A(f"v_lshlrev_b32 v7, 4, v{vLane}")
    for u in range(4): A(f"ds_read_b128 v[{16+4*u}:{19+4*u}], v7 offset:{L_RED3+u*1024}")
    A(f"v_and_b32 v8, 15, v{vLane}"); A("v_lshlrev_b32 v8, 6, v8")
    A(f"v_lshrrev_b32 v9, 4, v{vLane}"); A("v_lshlrev_b32 v9, 4, v9"); A("v_add_u32 v8, v8, v9")
    A(f"s_lshl_b32 s{st0}, s3, 10"); A(f"v_add_u32 v8, s{st0}, v8")
    A("s_waitcnt lgkmcnt(0)")
    for k in range(4):
        A(f"v_add_f32 v{16+k}, v{16+k}, v{20+k}"); A(f"v_add_f32 v{24+k}, v{24+k}, v{28+k}")
    for k in range(4): A(f"v_add_f32 v{84+k}, v{16+k}, v{24+k}")
    A(f"s_and_b32 s{st0}, s88, 7"); A(f"s_lshl_b32 s{st0}, s{st0}, 12"); A(f"s_add_u32 s{st0}, s{st0}, {WS_H}")
    for k_, pat in ((90, 0x00f000f0), (92, 0x0f000f00), (94, 0xf000f000)):
        A(f"s_mov_b32 s{k_}, {hex(pat)}"); A(f"s_mov_b32 s{k_+1}, {hex(pat)}")
    A(f"v_and_b32 v12, 3, v{vLane}"); A("v_lshlrev_b32 v12, 5, v12")
    A(f"v_lshrrev_b32 v9, 4, v{vLane}"); A("v_lshlrev_b32 v9, 3, v9"); A("v_add_u32 v12, v12, v9")
    A(f"v_bfe_u32 v9, v{vLane}, 2, 2"); A(f"v_mul_u32_u24 v9, {H1_STRIDE}, v9"); A("v_add_u32 v12, v12, v9")
    A(f"s_lshl_b32 s{st1}, s{sTl}, 7"); A(f"s_add_u32 s{st1}, s{st1}, {WS_H1}")
    A(f"v_lshlrev_b32 v6, 2, v{vLane}"); A(f"s_lshl_b32 s{st2}, s3, 8"); A(f"v_add_u32 v6, s{st2}, v6")
    A(f"v_and_b32 v13, 15, v{vLane}"); A("v_lshlrev_b32 v13, 2, v13")
    A(f"s_mov_b32 s{sCnt}, {SPIN_LIMIT}")
    A.label("L_f1spin")
    if SLP1: A(f"s_sleep {SLP1}")
    A(f"buffer_load_dwordx4 v[16:19], v8, {srd(sWS)}, s{st0} offen sc1")
    A("s_waitcnt vmcnt(0)")
    spin_check(range(16, 20), 10, "L_f1spin", "L_f1ok")
    stamp(7)
    for s in range(4):
        A(f"v_mfma_f32_16x16x32_bf16 v[{88+4*s}:{91+4*s}], v[{vA+4*s}:{vA+4*s+3}], v[16:19], 0")
    A("v_dot2_f32_bf16 v20, v16, v80, 0"); A("v_dot2_f32_bf16 v21, v16, v16, 0")
    for k in range(1, 4):
        A(f"v_dot2_f32_bf16 v20, v{16+k}, v80, v20"); A(f"v_dot2_f32_bf16 v21, v{16+k}, v{16+k}, v21")
    A("v_permlane32_swap_b32 v20, v21"); A("v_add_f32 v20, v20, v21")
    A("v_mov_b32 v21, v20"); A("v_permlane16_swap_b32 v20, v21"); A("v_add_f32 v20, v20, v21")
    A("v_add_f32_dpp v20, v20, v20 row_ror:4 row_mask:0xf bank_mask:0xf")
    A("v_add_f32_dpp v20, v20, v20 row_ror:8 row_mask:0xf bank_mask:0xf")
    A(f"ds_write_b32 v6, v20 offset:{L_RED2}")
    for k in range(4): A(f"v_cndmask_b32 v{88+k}, v{88+k}, v{92+k}, s[90:91]")
    for k in range(4): A(f"v_cndmask_b32 v{96+k}, v{96+k}, v{100+k}, s[94:95]")
    A("s_or_b64 s[92:93], s[92:93], s[94:95]")
    for k in range(4): A(f"v_cndmask_b32 v{88+k}, v{88+k}, v{96+k}, s[92:93]")
    for k in range(4): A(f"v_add_f32_dpp v{88+k}, v{88+k}, v{88+k} row_ror:4 row_mask:0xf bank_mask:0xf")
    for k in range(4): A(f"v_add_f32_dpp v{88+k}, v{88+k}, v{88+k} row_ror:8 row_mask:0xf bank_mask:0xf")
    A(f"ds_write_b128 v5, v[88:91] offset:{L_RED}")
    A("s_waitcnt lgkmcnt(0)")
    A("s_barrier")
    A("s_cmp_lg_u32 s3, 0"); A("s_cbranch_scc1 L_sdone")
    for u in range(4): A(f"ds_read2_b32 v[{32+2*u}:{33+2*u}], v13 offset0:{(L_RED2+u*256)//4 % 256} offset1:{((L_RED2+u*256)//4 + 32) % 256}" if False else "")
    A(f"v_add_u32 v13, {L_RED2}, v13")
    for u in range(4): A(f"ds_read2_b32 v[{32+2*u}:{33+2*u}], v13 offset0:{u*64} offset1:{u*64+32}")
    for u in range(4): A(f"ds_read_b128 v[{16+4*u}:{19+4*u}], v7 offset:{L_RED+u*1024}")
    A("s_waitcnt lgkmcnt(4)")
    A("v_add_f32 v32, v32, v34"); A("v_add_f32 v33, v33, v35"); A("v_add_f32 v36, v36, v38"); A("v_add_f32 v37, v37, v39")
    A("v_add_f32 v32, v32, v36"); A("v_add_f32 v33, v33, v37")
    A("v_mul_f32 v32, 0x3b000000, v32")
    A("v_mul_f32 v33, 0x3b000000, v33")
    A("v_fma_f32 v33, -v32, v32, v33")
    A("v_max_f32 v33, 0, v33")
    A("v_cvt_pk_bf16_f32 v32, v32, v33")
    A("v_and_b32 v33, 0xffff0000, v32"); A("v_lshlrev_b32 v32, 16, v32")
    A("v_add_f32 v33, 0x3727c5ac, v33"); round_bf16(33)
    A("v_sqrt_f32 v33, v33"); round_bf16(33)
    A("v_rcp_f32 v33, v33")
    A("s_waitcnt lgkmcnt(0)")
    for k in range(4):
        A(f"v_add_f32 v{16+k}, v{16+k}, v{20+k}"); A(f"v_add_f32 v{24+k}, v{24+k}, v{28+k}")
    for k in range(4): A(f"v_add_f32 v{16+k}, v{16+k}, v{24+k}")
    for k in range(4): A(f"v_fma_f32 v{16+k}, -v32, v{84+k}, v{16+k}")
    for k in range(4): A(f"v_mul_f32 v{16+k}, v{16+k}, v33")
    for k in range(4): A(f"v_maximum3_f32 v{16+k}, v{16+k}, 0, 0")
    A("v_cvt_pk_bf16_f32 v16, v16, v17"); A("v_cvt_pk_bf16_f32 v17, v18, v19")
    A("v_and_b32 v16, 0x7fff7fff, v16"); A("v_and_b32 v17, 0x7fff7fff, v17")
    A(f"buffer_store_dwordx2 v[16:17], v12, {srd(sWS)}, s{st1} offen sc1")
    stamp(6)
    A("s_branch L_sdone")

    A.label("L_ffn2")
    ffn2_tile(sTl, "s88")
    if COOPQ:
        A(f"v_and_b32 v128, 1, v{vLane}"); A(f"v_mul_u32_u24 v128, {WS_EPB-WS_EP}, v128"); A(f"s_mov_b32 s{st0}, {WS_EP}")
        A(f"buffer_load_dword v130, v128, {srd(sWS)}, s{st0} offen sc1")
    vBw = 64
    if REPACK:
        vBw = 64
        A(f"s_mul_i32 s{st0}, s{sTl}, {W2T_STRIDE}"); A(f"s_add_u32 s{st0}, s{st0}, {WS_W2T}")
        mk_srd(sT, pWS, W2T_STRIDE, off_sgpr=st0)
        A(f"v_lshlrev_b32 v4, 4, v{vLane}"); A(f"s_mul_i32 s{st0}, s3, {11*1024}")
        for s in range(11):
            if s == 4: A(f"s_add_u32 s{st0}, s{st0}, 4096")
            if s == 8: A(f"s_add_u32 s{st0}, s{st0}, 4096")
            A(f"buffer_load_dwordx4 v[{vBw+4*s}:{vBw+4*s+3}], v4, {srd(sT)}, s{st0} offen offset:{(s%4)*1024} sc1")
        A("s_waitcnt vmcnt(0)")
    else:
        tr_addr(4)
        A(f"v_lshrrev_b32 v14, 1, v{vLane}"); A("v_lshlrev_b32 v14, 10, v14")
        A(f"v_and_b32 v6, 1, v{vLane}"); A("v_lshlrev_b32 v6, 4, v6"); A("v_add_u32 v14, v14, v6")
        A(f"s_mul_i32 s{st0}, s3, {384*1024}"); A(f"v_add_u32 v14, s{st0}, v14")
        A(f"s_lshl_b32 s{st1}, s{sTl}, 5")
        A(f"s_add_u32 s{sT}, s{pW2}, s{st1}"); A(f"s_addc_u32 s{sT+1}, s{pW2+1}, 0")
        A(f"s_sub_u32 s{sT+2}, {1376*1024}, s{st1}"); A(f"s_mov_b32 s{sT+3}, 0x20000")
        A(f"s_mov_b32 s{sOff}, 0")
        for n in range(12):
            A(f"buffer_load_dwordx4 v[{16+4*n}:{19+4*n}], v14, {srd(sT)}, s{sOff} offen {WFF}")
            A(f"s_add_u32 s{sOff}, s{sOff}, {32*1024}")
        A(f"v_lshlrev_b32 v15, 4, v{vLane}"); A(f"s_mul_i32 s{st0}, s3, {STG_W}"); A(f"s_add_u32 s{st0}, s{st0}, {L_STG}")
        A(f"v_add_u32 v15, s{st0}, v15")
        for n in range(12):
            A(f"s_waitcnt vmcnt({11-n})")
            A(f"ds_write_b128 v15, v[{16+4*n}:{19+4*n}] offset:{n*1024}")
        vBw = 64
        A("s_waitcnt lgkmcnt(0)")
        for s in range(12):
            A(f"ds_read_b64_tr_b16 v[{vBw+4*s}:{vBw+4*s+1}], v4 offset:{s*1024}")
            A(f"ds_read_b64_tr_b16 v[{vBw+4*s+2}:{vBw+4*s+3}], v4 offset:{s*1024+128}")
            if s % 4 == 3: A("s_waitcnt lgkmcnt(0)")
    A(f"s_and_b32 s{st0}, s88, 3"); A(f"s_mul_i32 s{st0}, s{st0}, {H1_STRIDE}"); A(f"s_add_u32 s{st0}, s{st0}, {WS_H1}")
    mk_srd(sT, pWS, 86*128, off_sgpr=st0)
    A(f"v_bfe_u32 v8, v{vLane}, 2, 2"); A("v_lshlrev_b32 v8, 8, v8")
    A(f"v_lshrrev_b32 v9, 5, v{vLane}"); A("v_lshlrev_b32 v9, 7, v9"); A("v_add_u32 v8, v8, v9")
    A(f"v_and_b32 v9, 3, v{vLane}"); A("v_lshlrev_b32 v9, 5, v9"); A("v_add_u32 v8, v8, v9")
    A(f"v_bfe_u32 v9, v{vLane}, 4, 1"); A("v_lshlrev_b32 v9, 4, v9"); A("v_add_u32 v8, v8, v9")
    A(f"s_mul_i32 s{st0}, s3, {12*256}"); A(f"v_add_u32 v8, s{st0}, v8")
    A(f"v_lshrrev_b32 v10, 4, v{vLane}")
    A(f"v_and_b32 v11, 15, v{vLane}"); A(f"s_lshl_b32 s{st1}, s{sTl}, 4"); A(f"v_add_u32 v11, s{st1}, v11")
    A("v_lshlrev_b32 v12, 1, v11"); A("v_lshlrev_b32 v13, 10, v10"); A("v_add_u32 v12, v12, v13")
    A("v_lshrrev_b32 v13, 5, v11"); A("v_lshlrev_b32 v13, 8, v13"); A("v_lshlrev_b32 v10, 6, v10"); A("v_add_u32 v13, v13, v10")
    A("v_and_b32 v10, 30, v11"); A("v_lshlrev_b32 v10, 1, v10"); A("v_add_u32 v13, v13, v10")
    A(f"v_lshlrev_b32 v6, 2, v{vLane}"); A(f"s_lshl_b32 s{st0}, s3, 8"); A(f"v_add_u32 v5, s{st0}, v6")
    for k in range(16): A(f"v_mov_b32 v{112+k}, 0")
    A("s_mov_b32 s90, 0xffff0000"); A("s_mov_b32 s91, 0"); A("s_mov_b32 s92, 0"); A("s_mov_b32 s93, 0xffff0000"); A("s_mov_b32 s94, 0"); A("s_mov_b32 s95, -1")
    A("s_waitcnt lgkmcnt(0)")
    A(f"s_mov_b32 s{st0}, {WS_H + 8*4096}")
    mk_srd(sC, pOUT, 4096)
    A(f"s_mov_b32 s{sCnt}, {SPIN_LIMIT}")
    A.label("L_f2hspin")
    if SLP2: A(f"s_sleep {SLP2}")
    A(f"buffer_load_dword v14, v13, {srd(sWS)}, s{st0} offen sc1")
    A("s_waitcnt vmcnt(0)")
    spin_check([14], 15, "L_f2hspin", "L_f2hok")
    A("v_and_b32 v11, 1, v11"); A("v_lshlrev_b32 v60, 16, v14"); A("v_and_b32 v61, 0xffff0000, v14")
    A("v_cmp_eq_u32 vcc, 1, v11"); A("v_cndmask_b32 v60, v60, v61, vcc")
    A(f"s_mov_b32 s{sCnt}, {SPIN_LIMIT}")
    A.label("L_f2spin")
    if SLB: A(f"s_sleep {SLB}")
    for a in range(3): A(f"buffer_load_dwordx4 v[{16+4*a}:{19+4*a}], v8, {srd(sT)}, 0 offen offset:{a*1024} sc1")
    A("s_waitcnt vmcnt(0)")
    spin_check(range(16, 28), 15, "L_f2spin", "L_f2ok")
    stamp(7)
    for a in range(3):
        for q_ in range(4):
            A(f"v_mfma_f32_16x16x32_bf16 v[{112+4*q_}:{115+4*q_}], v[{16+4*a}:{19+4*a}], v[{vBw+16*a+4*q_}:{vBw+16*a+4*q_+3}], v[{112+4*q_}:{115+4*q_}]")
    for k in range(4): A(f"v_cndmask_b32 v{112+k}, v{112+k}, v{116+k}, s[90:91]")
    for k in range(4): A(f"v_cndmask_b32 v{120+k}, v{120+k}, v{124+k}, s[92:93]")
    for k in range(4): A(f"v_cndmask_b32 v{112+k}, v{112+k}, v{120+k}, s[94:95]")
    A("v_permlane32_swap_b32 v112, v114"); A("v_permlane32_swap_b32 v113, v115")
    A("v_add_f32 v112, v112, v114"); A("v_add_f32 v113, v113, v115")
    A("v_permlane16_swap_b32 v112, v113"); A("v_add_f32 v112, v112, v113")
    A(f"ds_write_b32 v5, v112 offset:{L_RED}")
    A("s_waitcnt lgkmcnt(0)")
    A("s_barrier")
    A("s_cmp_lg_u32 s3, 0"); A("s_cbranch_scc1 L_sdone")
    for u in range(4): A(f"ds_read_b32 v{120+u}, v6 offset:{L_RED+u*256}")
    A("s_waitcnt lgkmcnt(0)")
    A("v_add_f32 v120, v120, v121"); A("v_add_f32 v122, v122, v123"); A("v_add_f32 v120, v120, v122")
    round_bf16(120)
    A("v_add_f32 v120, v120, v60")
    A("v_cvt_pk_bf16_f32 v120, v120, v120")
    A(f"buffer_store_short v120, v12, {srd(sC)}, 0 offen {OUTF}")
    if COOPQ:
        A("s_cmp_lg_u32 s88, 152"); A("s_cbranch_scc1 L_noep")
        A("v_add_u32 v130, 1, v130")
        A(f"s_mov_b32 s{st0}, {WS_EP}")
        A("s_mov_b64 exec, 3"); A(f"buffer_store_dword v130, v128, {srd(sWS)}, s{st0} offen sc1"); A("s_mov_b64 exec, -1")
        A.label("L_noep")
    stamp(6)
    A("s_branch L_sdone")

    A.label("L_helper")
    vW = 128; hAcc = 16; hPlo0, hPhi0, hPlo1, hPhi1 = 24, 25, 26, 27
    vG, vCc = 4, 5
    A(f"s_sub_u32 s{sU}, s3, 4")
    A(f"v_lshrrev_b32 v{vG}, 4, v{vLane}")
    A(f"v_and_b32 v{vCc}, 15, v{vLane}")
    sE0, sE1 = 86, 87
    def ln_stats_and_P(xc_regs):
        for r in range(4):
            A(f"v_lshlrev_b32 v{32+2*r}, 16, v{8+r}"); A(f"v_and_b32 v{33+2*r}, 0xffff0000, v{8+r}")
        A("v_add_f32 v40, v32, v33"); A("v_add_f32 v41, v34, v35"); A("v_add_f32 v42, v36, v37"); A("v_add_f32 v43, v38, v39")
        A("v_add_f32 v40, v40, v41"); A("v_add_f32 v42, v42, v43"); A("v_add_f32 v40, v40, v42")
        wave_allreduce("v_add_f32", 40, 41)
        A("v_mul_f32 v40, 0x3b000000, v40")
        for e in range(8): A(f"v_sub_f32 v{32+e}, v{32+e}, v40")
        A("v_mul_f32 v42, v32, v32")
        for e in range(1, 8): A(f"v_fmac_f32 v42, v{32+e}, v{32+e}")
        wave_allreduce("v_add_f32", 42, 41)
        A("v_mul_f32 v42, 0x3b000000, v42")
        round_bf16(40); round_bf16(42)
        A("v_add_f32 v42, 0x3727c5ac, v42"); round_bf16(42)
        A("v_sqrt_f32 v42, v42"); round_bf16(42)
        A("v_rcp_f32 v42, v42")
        for r in xc_regs:
            A(f"v_lshlrev_b32 v{r}, 16, v{r}"); A(f"v_sub_f32 v{r}, v{r}, v40"); round_bf16(r)
            A(f"v_mul_f32 v{r}, v{r}, v42")
    if COOPQ:
        sI = 35
        A(f"s_lshr_b32 s{sI}, s2, 3"); A(f"s_and_b32 s{sI}, s{sI}, 7")
        A(f"s_lshl_b32 s{st0}, s{sU}, 10")
        A(f"v_lshlrev_b32 v6, 2, v{vCc}"); A(f"v_add_u32 v6, v6, v{vG}"); A(f"s_lshl_b32 s{st1}, s{sI}, 6")
        A(f"v_add_u32 v6, s{st1}, v6"); A("v_lshlrev_b32 v6, 1, v6")
        A(f"v_lshlrev_b32 v7, 4, v{vLane}")
        A(f"v_lshlrev_b32 v3, 13, v{vG}"); A(f"v_lshlrev_b32 v14, 4, v{vCc}"); A("v_add_u32 v3, v3, v14")
        A(f"s_lshl_b32 s{st1}, s{sU}, 17"); A(f"v_add_u32 v3, s{st1}, v3")
        A(f"s_lshl_b32 s{sOff}, s{sI}, 19")
        A(f"s_lshl_b32 s{st1}, s{sH}, 8")
        A(f"s_sub_u32 s{st2}, {4<<20}, s{st1}")
        A("s_waitcnt lgkmcnt(0)")
        stamp(7)
        mk_srd(sWS, pWS, WS_SIZE)
        A(f"v_and_b32 v46, 1, v{vLane}"); A(f"v_mul_u32_u24 v46, {WS_EPB-WS_EP}, v46"); A(f"s_mov_b32 s{st3}, {WS_EP}")
        A(f"buffer_load_dword v44, v46, {srd(sWS)}, s{st3} offen sc1")
        mk_srd(sT, pX, 1024, off_sgpr=st0)
        A(f"buffer_load_dwordx4 v[8:11], v7, {srd(sT)}, 0 offen")
        A(f"buffer_load_ushort v12, v6, {srd(sT)}, 0 offen")
        A(f"s_add_u32 s{sC}, s{pWQ}, s{st1}"); A(f"s_addc_u32 s{sC+1}, s{pWQ+1}, 0")
        A(f"s_mov_b32 s{sC+2}, s{st2}"); A(f"s_mov_b32 s{sC+3}, 0x20000")
        for k in range(4):
            A(f"buffer_load_dwordx4 v[{vW+4*k}:{vW+4*k+3}], v3, {srd(sC)}, s{sOff} offen {WQF}")
            if k < 3: A(f"s_add_u32 s{sOff}, s{sOff}, 32768")
        A(f"v_lshlrev_b32 v14, 2, v{vLane}"); A("v_mov_b32 v15, -1")
        A("s_mov_b64 exec, 0xfff"); A(f"ds_write_b32 v14, v15 offset:{L_STAT}")
        A("s_mov_b64 exec, 1"); A(f"ds_write_b32 v14, v15 offset:{L_BOOST}")
        A("s_mov_b64 exec, 3"); A("v_mov_b32 v15, 0"); A(f"ds_write_b32 v14, v15 offset:{L_CNT}"); A(f"ds_write_b32 v14, v15 offset:{L_PROG}"); A(f"ds_write_b32 v14, v15 offset:{L_KT}"); A("s_mov_b64 exec, -1")
        A("s_waitcnt lgkmcnt(0)")
        A("s_barrier")
        A(f"v_add_u32 v13, {L_STG}, v7")
        A(f"s_lshl_b32 s{st0}, s{sU}, 12"); A(f"v_add_u32 v14, s{st0}, v13")
        A(f"s_lshl_b32 s{st1}, s{sH}, 2"); A(f"s_add_u32 s{st2}, s{st1}, s{sU}"); A(f"s_lshl_b32 s{st2}, s{st2}, 3"); A(f"s_add_u32 s{st2}, s{st2}, s{sI}")
        A(f"s_lshl_b32 s{st2}, s{st2}, 10"); A(f"s_add_u32 s{st2}, s{st2}, {WS_QX}")
        A(f"s_add_u32 s{st1}, s{st1}, s{sB}"); A(f"s_lshl_b32 s{st1}, s{st1}, 3"); A(f"s_lshl_b32 s{st3}, s{sU}, 1"); A(f"s_add_u32 s{st1}, s{st1}, s{st3}")
        A(f"s_lshl_b32 s{st1}, s{st1}, 10"); A(f"s_add_u32 s{st1}, s{st1}, {WS_QX}")
        A("s_waitcnt vmcnt(4)")
        stamp(6)
        A(f"v_readlane_b32 s{sE0}, v44, 0"); A(f"v_readlane_b32 s{sE1}, v44, 1")
        A(f"s_add_u32 s{sE0}, s{sE0}, 1"); A(f"s_add_u32 s{sE1}, s{sE1}, 1")
        ln_stats_and_P([12])
        A("v_mov_b32 v15, 0")
        A(f"v_cvt_pk_bf16_f32 v{hPlo0}, v12, v15"); A(f"v_cvt_pk_bf16_f32 v{hPhi0}, v15, v12")
        A("s_waitcnt vmcnt(0)")
        for k in range(4): A(f"ds_write_b128 v14, v[{vW+4*k}:{vW+4*k+3}] offset:{k*1024}")
        A(f"v_mov_b32 v14, {L_CNT2}"); A("v_mov_b32 v15, 1")
        A("s_waitcnt lgkmcnt(0)")
        A("s_mov_b64 exec, 1"); A("ds_add_u32 v14, v15"); A("s_mov_b64 exec, -1")
        A(f"s_mov_b32 s{sCnt}, {SPIN_LIMIT}")
        A.label("L_wspin")
        A("ds_read_b32 v15, v14"); A("s_waitcnt lgkmcnt(0)")
        A("v_cmp_gt_u32 vcc, 4, v15")
        A("s_cbranch_vccz L_wok")
        A(f"s_sub_u32 s{sCnt}, s{sCnt}, 1"); A("s_cbranch_scc0 L_wspin")
        A.label("L_wok")
        for n in range(8): A(f"ds_read_b128 v[{vW+4*n}:{vW+4*n+3}], v13 offset:{n*1024}")
        for e in range(8): A(f"v_mov_b32 v{hAcc+e}, 0")
        for n in range(16):
            if n == 0: A("s_waitcnt lgkmcnt(4)")
            if n == 4:
                A("s_waitcnt lgkmcnt(0)")
                for m in range(8, 16): A(f"ds_read_b128 v[{vW+4*m}:{vW+4*m+3}], v13 offset:{m*1024}")
            if n == 8: A("s_waitcnt lgkmcnt(4)")
            if n == 12: A("s_waitcnt lgkmcnt(0)")
            for k in range(4):
                A(f"v_dot2c_f32_bf16_dpp v{hAcc+2*k}, v{hPlo0}, v{vW+4*n+k} row_newbcast:{n} row_mask:0xf bank_mask:0xf")
                A(f"v_dot2c_f32_bf16_dpp v{hAcc+2*k+1}, v{hPhi0}, v{vW+4*n+k} row_newbcast:{n} row_mask:0xf bank_mask:0xf")
        acc_reduce(hAcc)
        A(f"v_mov_b32 v{hAcc+2}, s{sE0}"); A(f"v_mov_b32 v{hAcc+3}, s{sE1}")
        A(f"buffer_store_dwordx4 v[{hAcc}:{hAcc+3}], v7, {srd(sWS)}, s{st2} offen {QXS}")
        stamp(1)
        if QXW < 0: A("s_waitcnt vmcnt(0)")
        elif QXW > 0: A(f"s_sleep {QXW}")
        if DBG & 32: stamp(6)
        A(f"s_mov_b32 s{sCnt}, {SPIN_LIMIT}")
        A.label("L_qxspin")
        A(f"buffer_load_dwordx4 v[32:35], v7, {srd(sWS)}, s{st1} offen {QXL}")
        A(f"buffer_load_dwordx4 v[36:39], v7, {srd(sWS)}, s{st1} offen offset:1024 {QXL}")
        A("s_waitcnt vmcnt(0)")
        A(f"v_xor_b32 v34, s{sE0}, v34"); A(f"v_xor_b32 v35, s{sE1}, v35"); A(f"v_xor_b32 v38, s{sE0}, v38"); A(f"v_xor_b32 v39, s{sE1}, v39")
        A("v_or_b32 v34, v34, v35"); A("v_or3_b32 v34, v34, v38, v39")
        A("v_cmp_ne_u32 vcc, 0, v34")
        A("s_cbranch_vccz L_qxok")
        A(f"s_sub_u32 s{sCnt}, s{sCnt}, 1"); A("s_cbranch_scc0 L_qxspin")
        A.label("L_qxok")
        if DBG & 32: A(f"s_sub_u32 s{sP+14}, {SPIN_LIMIT}, s{sCnt}")
        A(f"v_add_f32 v{hAcc}, v32, v36"); A(f"v_add_f32 v{hAcc+1}, v33, v37")
    else:
        A(f"s_lshl_b32 s{st0}, s{sB}, 10")
        sRq = 35
        if ROTQ:
            A(f"s_lshr_b32 s{sRq}, s2, 3"); A(f"s_and_b32 s{sRq}, s{sRq}, 7"); A(f"s_mul_i32 s{sRq}, s{sRq}, {ROTQ}"); A(f"s_and_b32 s{sRq}, s{sRq}, 31")
        else:
            A(f"s_mov_b32 s{sRq}, 0")
        A(f"s_lshl_b32 s{st1}, s{sU}, 7")
        for t_, reg in ((0, 6), (1, 9)):
            A(f"v_add_u32 v{reg}, s{sRq}, v{vCc}")
            if t_: A(f"v_add_u32 v{reg}, 16, v{reg}")
            A(f"v_and_b32 v{reg}, 31, v{reg}")
            if WQP == 0:
                A(f"v_lshlrev_b32 v{reg}, 2, v{reg}"); A(f"v_add_u32 v{reg}, v{reg}, v{vG}")
            else:
                A(f"v_lshlrev_b32 v14, 5, v{vG}"); A(f"v_add_u32 v{reg}, v{reg}, v14")
            A(f"v_add_u32 v{reg}, s{st1}, v{reg}"); A(f"v_lshlrev_b32 v{reg}, 1, v{reg}")
        A(f"v_mov_b32 v15, v9")
        A(f"v_lshlrev_b32 v7, 4, v{vLane}")
        A(f"v_lshlrev_b32 v3, {13 if WQP == 0 else 18}, v{vG}"); A(f"v_lshlrev_b32 v14, 4, v{vCc}"); A("v_add_u32 v3, v3, v14")
        A(f"s_lshl_b32 s{st1}, s{sU}, 20"); A(f"v_add_u32 v3, s{st1}, v3")
        A(f"s_lshl_b32 s{st1}, s{sH}, 8")
        A(f"s_sub_u32 s{st2}, {4<<20}, s{st1}")
        A("s_waitcnt lgkmcnt(0)")
        stamp(7)
        mk_srd(sT, pX, 1024, off_sgpr=st0)
        A(f"buffer_load_dwordx4 v[8:11], v7, {srd(sT)}, 0 offen")
        A(f"buffer_load_ushort v12, v6, {srd(sT)}, 0 offen")
        A(f"buffer_load_ushort v13, v15, {srd(sT)}, 0 offen")
        A("s_barrier")
        A(f"s_add_u32 s{sC}, s{pWQ}, s{st1}"); A(f"s_addc_u32 s{sC+1}, s{pWQ+1}, 0")
        A(f"s_mov_b32 s{sC+2}, s{st2}"); A(f"s_mov_b32 s{sC+3}, 0x20000")
        A(f"s_lshl_b32 s{sOff}, s{sRq}, {15 if WQP == 0 else 13}")
        for n in range(0 if NOQ else 32):
            A(f"buffer_load_dwordx4 v[{vW+4*n}:{vW+4*n+3}], v3, {srd(sC)}, s{sOff} offen {WQF}")
            if n < 31:
                A(f"s_add_u32 s{sOff}, s{sOff}, {32768 if WQP == 0 else 8192}")
                if ROTQ: A(f"s_and_b32 s{sOff}, s{sOff}, {0xfffff if WQP == 0 else 0x3ffff}")
            if NR and n < 31 and (n+1) % (32//NR) == 0: A("s_barrier")
        if NR == 0 and not PACED: A("s_barrier")
        mk_srd(sWS, pWS, WS_SIZE)
        A(f"v_lshlrev_b32 v14, 2, v{vLane}"); A("v_mov_b32 v15, -1")
        A("s_mov_b64 exec, 0xfff"); A(f"ds_write_b32 v14, v15 offset:{L_STAT}")
        A("s_mov_b64 exec, 1"); A(f"ds_write_b32 v14, v15 offset:{L_BOOST}")
        A("v_mov_b32 v15, 0"); A(f"ds_write_b32 v15, v15 offset:{L_CNT}"); A(f"ds_write_b32 v15, v15 offset:{L_PROG}"); A(f"ds_write_b32 v15, v15 offset:{L_DEEP}"); A("s_mov_b64 exec, -1")
        A("s_waitcnt vmcnt(0)" if NOQ else "s_waitcnt vmcnt(32)")
        stamp(6)
        for r in range(4):
            A(f"v_lshlrev_b32 v{32+2*r}, 16, v{8+r}"); A(f"v_and_b32 v{33+2*r}, 0xffff0000, v{8+r}")
        A("v_add_f32 v40, v32, v33"); A("v_add_f32 v41, v34, v35"); A("v_add_f32 v42, v36, v37"); A("v_add_f32 v43, v38, v39")
        A("v_add_f32 v40, v40, v41"); A("v_add_f32 v42, v42, v43"); A("v_add_f32 v40, v40, v42")
        wave_allreduce("v_add_f32", 40, 41)
        A("v_mul_f32 v40, 0x3b000000, v40")
        for e in range(8): A(f"v_sub_f32 v{32+e}, v{32+e}, v40")
        A("v_mul_f32 v42, v32, v32")
        for e in range(1, 8): A(f"v_fmac_f32 v42, v{32+e}, v{32+e}")
        wave_allreduce("v_add_f32", 42, 41)
        A("v_mul_f32 v42, 0x3b000000, v42")
        round_bf16(40); round_bf16(42)
        A("v_add_f32 v42, 0x3727c5ac, v42"); round_bf16(42)
        A("v_sqrt_f32 v42, v42"); round_bf16(42)
        A("v_rcp_f32 v42, v42")
        for r in (12, 13):
            A(f"v_lshlrev_b32 v{r}, 16, v{r}"); A(f"v_sub_f32 v{r}, v{r}, v40"); round_bf16(r)
            A(f"v_mul_f32 v{r}, v{r}, v42")
        A("v_mov_b32 v15, 0")
        A(f"v_cvt_pk_bf16_f32 v{hPlo0}, v12, v15"); A(f"v_cvt_pk_bf16_f32 v{hPhi0}, v15, v12")
        A(f"v_cvt_pk_bf16_f32 v{hPlo1}, v13, v15"); A(f"v_cvt_pk_bf16_f32 v{hPhi1}, v15, v13")
        A(f"s_mov_b32 s{sTile}, 0")
        stamp(1)
        A.label("L_gemv")
        for e in range(8): A(f"v_mov_b32 v{hAcc+e}, 0")
        for n in range(32):
            A(f"s_waitcnt vmcnt({31-n})")
            lo, hi = (hPlo0, hPhi0) if n < 16 else (hPlo1, hPhi1)
            for k in range(4):
                A(f"v_dot2c_f32_bf16_dpp v{hAcc+2*k}, v{lo}, v{vW+4*n+k} row_newbcast:{n%16} row_mask:0xf bank_mask:0xf")
                A(f"v_dot2c_f32_bf16_dpp v{hAcc+2*k+1}, v{hi}, v{vW+4*n+k} row_newbcast:{n%16} row_mask:0xf bank_mask:0xf")
        acc_reduce(hAcc)
    A(f"v_lshlrev_b32 v14, 5, v{vCc}"); A(f"v_lshlrev_b32 v15, 3, v{vG}"); A("v_add_u32 v14, v14, v15")
    A(f"s_lshl_b32 s{st0}, s{sU}, 9"); A(f"v_add_u32 v14, s{st0}, v14")
    A(f"ds_write_b64 v14, v[{hAcc}:{hAcc+1}] offset:{L_QP}")
    A("s_waitcnt lgkmcnt(0)")
    stamp(2)
    A("s_barrier")
    def emit_poison():
        A(f"s_cmp_lg_u32 s{sU}, 0"); A("s_cbranch_scc1 L_nopoison")
        if NOPOIS: A("s_branch L_nopoison")
        for k in range(4): A(f"v_mov_b32 v{32+k}, -1")
        A(f"v_lshrrev_b32 v14, 3, v{vLane}"); A("v_lshlrev_b32 v14, 13, v14")
        A(f"v_and_b32 v15, 7, v{vLane}"); A("v_lshlrev_b32 v15, 4, v15"); A("v_add_u32 v14, v14, v15")
        A(f"s_lshl_b32 s{st0}, s{sB}, 17"); A(f"s_lshl_b32 s{st1}, s{sJ}, 7"); A(f"s_add_u32 s{st0}, s{st0}, s{st1}")
        A(f"buffer_store_dwordx4 v[32:35], v14, {srd(sWS)}, s{st0} offen sc1")
        A(f"s_add_u32 s{st0}, s{st0}, 65536")
        A(f"buffer_store_dwordx4 v[32:35], v14, {srd(sWS)}, s{st0} offen sc1")
        A(f"v_lshlrev_b32 v14, 2, v{vLane}")
        A(f"s_lshl_b32 s{st0}, s{sReg}, 7"); A(f"s_add_u32 s{st0}, s{st0}, {WS_ST}")
        if not SPREAD:
            A("s_mov_b64 exec, 0xf"); A(f"buffer_store_dword v32, v14, {srd(sWS)}, s{st0} offen sc1"); A("s_mov_b64 exec, -1")
        if DEEP:
            A("s_cmp_ge_u32 s2, 8"); A("s_cbranch_scc1 L_pnofin")
            A(f"s_lshl_b32 s{st0}, s2, 7"); A(f"s_add_u32 s{st0}, s{st0}, {WS_FIN}"); A("v_mov_b32 v36, 0")
            A("s_mov_b64 exec, 1"); A(f"buffer_store_dword v36, v36, {srd(sWS)}, s{st0} offen sc1"); A("s_mov_b64 exec, -1")
            A.label("L_pnofin")
        A("s_cmp_ge_u32 s2, 64"); A("s_cbranch_scc1 L_pnored")
        A(f"s_and_b32 s{st0}, s2, 15"); A(f"s_lshl_b32 s{st0}, s{st0}, 8")
        A(f"s_lshr_b32 s{st1}, s2, 4"); A(f"s_lshl_b32 s{st1}, s{st1}, 6"); A(f"s_add_u32 s{st0}, s{st0}, s{st1}")
        A(f"s_add_u32 s{st0}, s{st0}, {WS_H}")
        A(f"v_lshrrev_b32 v36, 4, v{vLane}"); A("v_lshlrev_b32 v36, 12, v36")
        A(f"v_and_b32 v37, 15, v{vLane}"); A("v_lshlrev_b32 v37, 2, v37"); A("v_add_u32 v36, v36, v37")
        A(f"buffer_store_dword v32, v36, {srd(sWS)}, s{st0} offen sc1")
        A(f"s_add_u32 s{st0}, s{st0}, 16384")
        A(f"buffer_store_dword v32, v36, {srd(sWS)}, s{st0} offen sc1")
        A(f"s_add_u32 s{st0}, s{st0}, 16384")
        A("s_mov_b64 exec, 0xffff"); A(f"buffer_store_dword v32, v37, {srd(sWS)}, s{st0} offen sc1"); A("s_mov_b64 exec, -1")
        A("s_branch L_pdone")
        A.label("L_pnored")
        A("s_cmp_ge_u32 s2, 152"); A("s_cbranch_scc1 L_pdone")
        ffn1_tile(sTl)
        A(f"s_cmp_ge_u32 s{sTl}, 86"); A("s_cbranch_scc1 L_pdone")
        A(f"s_lshl_b32 s{st0}, s{sTl}, 7"); A(f"s_add_u32 s{st0}, s{st0}, {WS_H1}")
        A(f"v_lshrrev_b32 v36, 4, v{vLane}"); A(f"v_mul_u32_u24 v36, {H1_STRIDE}, v36")
        A(f"v_and_b32 v37, 15, v{vLane}"); A("v_lshlrev_b32 v37, 3, v37"); A("v_add_u32 v36, v36, v37")
        A(f"buffer_store_dwordx2 v[32:33], v36, {srd(sWS)}, s{st0} offen sc1")
        A.label("L_pdone")
        A.label("L_nopoison")
        if TLBV:
            A(f"s_cmp_lg_u32 s{sU}, 1"); A("s_cbranch_scc1 L_notlb")
            A(f"s_lshr_b32 s{st0}, s{sReg}, 1"); A(f"s_lshl_b32 s{st0}, s{st0}, 21")
            mk_srd(sT, pV, 1 << 21, off_sgpr=st0)
            A(f"v_lshlrev_b32 v14, 15, v{vLane}")
            A(f"buffer_load_dword v15, v14, {srd(sT)}, 0 offen nt")
            A("s_waitcnt vmcnt(0)")
            A.label("L_notlb")
        if REPACK:
            A(f"s_lshl_b32 s{st0}, s2, 2"); A(f"s_add_u32 s{st0}, s{st0}, s{sU}")
            A(f"s_cmp_ge_u32 s{st0}, {696 if REPACK else 0}"); A("s_cbranch_scc1 L_rpdone")
            A(f"s_mul_i32 s{st1}, s{sU}, {32*RS}"); A(f"s_add_u32 s{st1}, s{st1}, {L_STG}")
            A(f"v_lshlrev_b32 v15, 4, v{vLane}"); A(f"v_add_u32 v7, s{st1}, v15")
            A(f"v_lshlrev_b32 v6, 3, v{vG}"); A(f"v_lshrrev_b32 v14, 2, v{vCc}"); A("v_add_u32 v6, v6, v14"); A("v_lshlrev_b32 v6, 7, v6")
            A(f"v_and_b32 v14, 3, v{vCc}"); A("v_lshlrev_b32 v14, 3, v14"); A("v_add_u32 v6, v6, v14"); A(f"v_add_u32 v6, s{st1}, v6")
            A(f"v_lshrrev_b32 v3, 3, v{vLane}"); A(f"v_and_b32 v14, 7, v{vLane}"); A("v_lshlrev_b32 v14, 4, v14")
            A(f"s_cmp_ge_u32 s{st0}, 344"); A("s_cbranch_scc1 L_rpw1")
            A(f"s_lshr_b32 s{st2}, s{st0}, 3"); A(f"s_and_b32 s{st3}, s{st0}, 7")
            A("v_lshlrev_b32 v3, 10, v3"); A("v_add_u32 v3, v3, v14")
            A(f"s_lshl_b32 s{sOff}, s{st2}, 15"); A(f"s_lshl_b32 s{st1}, s{st3}, 7"); A(f"s_add_u32 s{sOff}, s{sOff}, s{st1}")
            mk_srd(sT, pW2, 1376*1024)
            A(f"s_mov_b32 s{sTile}, {8*1024}")
            A(f"s_mul_i32 s{st3}, s{st3}, {4*W2T_STRIDE}"); A(f"s_lshl_b32 s{st2}, s{st2}, 10"); A(f"s_add_u32 s{st3}, s{st3}, s{st2}")
            A(f"s_add_u32 s{st3}, s{st3}, {WS_W2T}")
            A(f"s_mov_b32 s{sTl}, {W2T_STRIDE}")
            A("s_branch L_rpgo")
            A.label("L_rpw1")
            A(f"s_sub_u32 s{st0}, s{st0}, 344")
            A(f"s_mul_i32 s{st2}, s{st0}, 2979"); A(f"s_lshr_b32 s{st2}, s{st2}, 16")
            A(f"s_mul_i32 s{st3}, s{st2}, 22"); A(f"s_sub_u32 s{st3}, s{st0}, s{st3}")
            A("v_mul_u32_u24 v3, 2752, v3"); A("v_add_u32 v3, v3, v14")
            A(f"s_mul_i32 s{sOff}, s{st2}, {32*2752}"); A(f"s_lshl_b32 s{st1}, s{st3}, 7"); A(f"s_add_u32 s{sOff}, s{sOff}, s{st1}")
            mk_srd(sT, pW1, 512*2752)
            A(f"s_mov_b32 s{sTile}, {8*2752}")
            A(f"s_lshl_b32 s{st3}, s{st3}, 16"); A(f"s_lshl_b32 s{st2}, s{st2}, 10"); A(f"s_add_u32 s{st3}, s{st3}, s{st2}")
            A(f"s_add_u32 s{st3}, s{st3}, {WS_W1T}")
            A(f"s_mov_b32 s{sTl}, 16384")
            A.label("L_rpgo")
            for n in range(4):
                A(f"buffer_load_dwordx4 v[{32+4*n}:{35+4*n}], v3, {srd(sT)}, s{sOff} offen {WFF}")
                A(f"s_add_u32 s{sOff}, s{sOff}, s{sTile}")
            A("s_waitcnt vmcnt(0)")
            for n in range(4): A(f"ds_write_b128 v7, v[{32+4*n}:{35+4*n}] offset:{n*1024}")
            A("s_waitcnt lgkmcnt(0)")
            for t in range(4):
                A(f"ds_read_b64_tr_b16 v[{48+4*t}:{49+4*t}], v6 offset:{t*32}")
                A(f"ds_read_b64_tr_b16 v[{50+4*t}:{51+4*t}], v6 offset:{t*32+512}")
            A("s_waitcnt lgkmcnt(0)")
            for t in range(4):
                A(f"buffer_store_dwordx4 v[{48+4*t}:{51+4*t}], v15, {srd(sWS)}, s{st3} offen sc1")
                A(f"s_add_u32 s{st3}, s{st3}, s{sTl}")
        A.label("L_rpdone")
        A("s_waitcnt vmcnt(0)")
        if SPREAD == 2:
            A(f"s_cmp_lg_u32 s{sU}, 0"); A("s_cbranch_scc1 L_nosig")
            A(f"s_lshl_b32 s{st0}, s2, 2"); A(f"s_add_u32 s{st0}, s{st0}, {WS_FLAG}")
            A(f"s_mul_i32 s{st1}, s87, 3"); A(f"s_add_u32 s{st1}, s{st1}, s86")
            A(f"v_lshlrev_b32 v14, 10, v{vLane}"); A(f"v_mov_b32 v15, s{st1}")
            A("s_mov_b64 exec, 0xf"); A(f"buffer_store_dword v15, v14, {srd(sWS)}, s{st0} offen sc1"); A("s_mov_b64 exec, -1")
            A.label("L_nosig")
        if not SPREAD:
            A(f"v_mov_b32 v14, {L_CNT}"); A("v_mov_b32 v15, 1")
            A("s_mov_b64 exec, 1"); A("ds_add_rtn_u32 v32, v14, v15"); A("s_waitcnt lgkmcnt(0)"); A("s_mov_b64 exec, -1")
            A(f"v_readfirstlane_b32 s{st0}, v32")
            A(f"s_cmp_lg_u32 s{st0}, 3"); A("s_cbranch_scc1 L_nosig")
            A("v_mov_b32 v14, 0")
            A("s_mov_b64 exec, 1"); A(f"global_atomic_add v14, v15, s[{pDBG}:{pDBG+1}]"); A("s_mov_b64 exec, -1")
            A.label("L_nosig")
    def emit_wo():
        A(f"v_lshlrev_b32 v3, 10, v{vG}"); A(f"v_lshlrev_b32 v14, 4, v{vCc}"); A("v_add_u32 v3, v3, v14")
        A(f"s_lshl_b32 s{st1}, s{sU}, 8"); A(f"v_add_u32 v3, s{st1}, v3")
        A(f"s_lshl_b32 s{st1}, s{sH}, 17")
        mk_srd(sC, pWO, 131072, off_sgpr=st1)
        A(f"s_mul_i32 s{st0}, s{sU}, {32*RS}"); A(f"s_add_u32 s{st0}, s{st0}, {L_STG}")
        A(f"v_mul_u32_u24 v6, {RS}, v{vG}"); A("v_add_u32 v6, v6, v14"); A(f"v_add_u32 v6, s{st0}, v6")
        A(f"v_lshlrev_b32 v7, 3, v{vG}"); A(f"v_lshrrev_b32 v15, 2, v{vCc}"); A("v_add_u32 v7, v7, v15")
        A(f"v_mul_u32_u24 v7, {RS}, v7"); A(f"v_and_b32 v15, 3, v{vCc}"); A("v_lshlrev_b32 v15, 3, v15")
        A("v_add_u32 v7, v7, v15"); A(f"v_add_u32 v7, s{st0}, v7")
        A(f"s_mov_b32 s{sOff}, 0")
        for q in range(0 if NOWO else 4):
            for n in range(8):
                A(f"buffer_load_dwordx4 v[{32+4*n}:{35+4*n}], v3, {srd(sC)}, s{sOff} offen {WOF}")
                A(f"s_add_u32 s{sOff}, s{sOff}, 4096")
                if n % PACE == PACE-1: A("s_waitcnt vmcnt(0)")
            A("s_waitcnt vmcnt(0)")
            for n in range(8): A(f"ds_write_b128 v6, v[{32+4*n}:{35+4*n}] offset:{4*n*RS}")
            A("s_waitcnt lgkmcnt(0)")
            for t in range(8):
                A(f"ds_read_b64_tr_b16 v[{vW+32*q+4*t}:{vW+32*q+4*t+1}], v7 offset:{t*32}")
                A(f"ds_read_b64_tr_b16 v[{vW+32*q+4*t+2}:{vW+32*q+4*t+3}], v7 offset:{t*32+4*RS}")
            A("s_waitcnt lgkmcnt(0)")
    if POISLATE:
        emit_wo(); emit_poison()
    else:
        emit_poison(); emit_wo()
    A(f"s_cmp_lg_u32 s{sU}, 0"); A("s_cbranch_scc1 L_nostat")
    if SPREAD == 1:
        assert COOPQ and not REPACK
        A(f"s_mul_i32 s{st0}, s2, 6554"); A(f"s_lshr_b32 s{st0}, s{st0}, 16"); A(f"s_mul_i32 s{st0}, s{st0}, 10"); A(f"s_sub_u32 s{st0}, s2, s{st0}")
        A(f"s_add_u32 s{st0}, s{st0}, 5")
        A(f"v_mov_b32 v14, {L_KT}")
        A(f"s_mov_b32 s{sCnt}, {SPIN_LIMIT}")
        A.label("L_sgspin")
        A("s_sleep 8")
        A("ds_read_b32 v15, v14"); A("s_waitcnt lgkmcnt(0)")
        A(f"v_cmp_gt_u32 vcc, s{st0}, v15")
        A("s_cbranch_vccz L_sgok")
        A(f"s_sub_u32 s{sCnt}, s{sCnt}, 1"); A("s_cbranch_scc0 L_sgspin")
        A.label("L_sgok")
        A("v_mov_b32 v14, 0"); A("v_mov_b32 v15, 1")
        A("s_mov_b64 exec, 1"); A(f"global_atomic_add v14, v15, s[{pDBG}:{pDBG+1}]"); A("s_mov_b64 exec, -1")
    A(f"v_and_b32 v14, 3, v{vLane}"); A("v_lshlrev_b32 v14, 3, v14")
    A(f"s_mov_b32 s{sCnt}, {SPIN_LIMIT}")
    A.label("L_stspin")
    A("s_sleep 8")
    A(f"ds_read_b64 v[32:33], v14 offset:{L_STAT}"); A("s_waitcnt lgkmcnt(0)")
    spin_check([32, 33], 34, "L_stspin", "L_stok")
    if BOOST and BST:
        A("s_and_b32 s93, s2, 4"); A("s_cmp_eq_u32 s93, 0"); A(f"s_cselect_b32 s93, 0, {BST}")
        A(f"v_mov_b32 v48, {L_BOOST}"); A("v_mov_b32 v49, s93")
        A("s_mov_b64 exec, 1"); A("ds_write_b32 v48, v49"); A("s_mov_b64 exec, -1")
    elif BOOST and not (BX & 4):
        A("s_memrealtime s[90:91]")
    A("v_max_f32_dpp v34, v32, v32 quad_perm:[1,0,3,2] row_mask:0xf bank_mask:0xf")
    A("v_max_f32_dpp v34, v34, v34 quad_perm:[2,3,0,1] row_mask:0xf bank_mask:0xf")
    A("v_sub_f32 v35, v32, v34"); A("v_mul_f32 v35, 0x3fb8aa3b, v35"); A("v_exp_f32 v35, v35")
    A("v_mul_f32 v35, v35, v33")
    A("v_add_f32_dpp v35, v35, v35 quad_perm:[1,0,3,2] row_mask:0xf bank_mask:0xf")
    A("v_add_f32_dpp v35, v35, v35 quad_perm:[2,3,0,1] row_mask:0xf bank_mask:0xf")
    A("v_mov_b32 v36, 0x7fc00000")
    sanitize([34, 35], 36)
    A("v_mov_b32 v15, 0")
    A(f"s_lshl_b32 s{st0}, s{sReg}, 7"); A(f"s_add_u32 s{st0}, s{st0}, {WS_ST}")
    if SPREAD:
        A("v_mov_b32 v52, v34"); A("v_mov_b32 v53, v35"); A("v_mov_b32 v54, s86"); A("v_mov_b32 v55, s87")
        A("s_mov_b64 exec, 1"); A(f"buffer_store_dwordx4 v[52:55], v15, {srd(sWS)}, s{st0} offen sc1"); A("s_mov_b64 exec, -1")
    else:
        if BOOST and not BST and not (BX & 4):
            A("s_waitcnt lgkmcnt(0)")
            A("s_and_b32 s90, s90, 0x7fffffff")
            A("v_mov_b32 v52, v34"); A("v_mov_b32 v53, v35"); A("v_mov_b32 v54, s90"); A("v_mov_b32 v55, 0")
            A("s_mov_b64 exec, 1"); A(f"buffer_store_dwordx4 v[52:55], v15, {srd(sWS)}, s{st0} offen sc1"); A("s_mov_b64 exec, -1")
        else:
            A("s_mov_b64 exec, 1"); A(f"buffer_store_dwordx2 v[34:35], v15, {srd(sWS)}, s{st0} offen sc1"); A("s_mov_b64 exec, -1")
        A(f"s_mov_b32 s{sCnt}, {SPIN_LIMIT}")
        A.label("L_inspin")
        A(f"global_load_dword v37, v15, s[{pDBG}:{pDBG+1}] sc1"); A("s_waitcnt vmcnt(0)")
        A("v_cmp_gt_u32 vcc, 0x100, v37")
        A("s_cbranch_vccz L_inok")
        A("s_sleep 4")
        A(f"s_sub_u32 s{sCnt}, s{sCnt}, 1"); A("s_cbranch_scc0 L_inspin")
        A.label("L_inok")
    if BOOST and not BST and not (BX & 4):
        A(f"v_bfe_u32 v48, v{vLane}, 1, 2"); A("v_lshlrev_b32 v48, 5, v48")
        A(f"v_bfe_u32 v49, v{vLane}, 3, 2"); A("v_lshlrev_b32 v49, 3, v49"); A("v_add_u32 v48, v48, v49")
        A(f"s_and_b32 s{st1}, s2, 7"); A(f"v_add_u32 v48, s{st1}, v48"); A("v_lshlrev_b32 v48, 1, v48")
        A(f"v_and_b32 v49, 1, v{vLane}"); A("v_add_u32 v48, v48, v49"); A("v_lshlrev_b32 v48, 7, v48")
        A(f"s_mov_b32 s{st1}, {WS_ST + 8}")
        A(f"buffer_load_dword v50, v48, {srd(sWS)}, s{st1} offen sc1"); A("s_waitcnt vmcnt(0)")
        A("v_cmp_ne_u32 vcc, -1, v50")
        A("v_sub_u32 v51, s90, v50"); A("v_lshlrev_b32 v51, 1, v51"); A("v_ashrrev_i32 v51, 1, v51")
        A("v_cvt_f32_i32 v51, v51")
        A("v_mov_b32 v52, 0"); A("v_mov_b32 v53, 1.0")
        A("v_cndmask_b32 v51, v52, v51, vcc"); A("v_cndmask_b32 v53, v52, v53, vcc")
        wave_allreduce("v_add_f32", 51, 52); wave_allreduce("v_add_f32", 53, 52)
        A("v_rcp_f32 v53, v53"); A("v_mul_f32 v51, v51, v53")
        A(f"v_mul_f32 v51, {hex(__import__('struct').unpack('<I', __import__('struct').pack('<f', 1.0/BOOST))[0])}, v51")
        A("v_max_f32 v51, 0, v51"); A("v_min_f32 v51, 0x41800000, v51"); A("v_cvt_u32_f32 v51, v51")
        A(f"v_mov_b32 v48, {L_BOOST}")
        A("s_mov_b64 exec, 1"); A("ds_write_b32 v48, v51"); A("s_mov_b64 exec, -1")
    A(f"s_xor_b32 s{st1}, s{sReg}, 1"); A(f"s_lshl_b32 s{st1}, s{st1}, 7"); A(f"s_add_u32 s{st1}, s{st1}, {WS_ST}")
    A(f"s_mov_b32 s{sCnt}, {SPIN_LIMIT}")
    A.label("L_prspin")
    A("s_sleep 4")
    if SPREAD:
        A(f"buffer_load_dwordx4 v[56:59], v15, {srd(sWS)}, s{st1} offen sc1"); A("s_waitcnt vmcnt(0)")
        A("v_xor_b32 v58, s86, v58"); A("v_xor_b32 v59, s87, v59"); A("v_or_b32 v58, v58, v59")
        A("v_cmp_ne_u32 vcc, 0, v58")
        A("s_cbranch_vccz L_prok")
        A(f"s_sub_u32 s{sCnt}, s{sCnt}, 1"); A("s_cbranch_scc0 L_prspin")
        A.label("L_prok")
        A("v_mov_b32 v38, v56"); A("v_mov_b32 v39, v57")
    else:
        A(f"buffer_load_dwordx2 v[38:39], v15, {srd(sWS)}, s{st1} offen sc1"); A("s_waitcnt vmcnt(0)")
        spin_check([38, 39], 37, "L_prspin", "L_prok")
    A("v_max_f32 v40, v34, v38")
    A("v_sub_f32 v41, v34, v40"); A("v_sub_f32 v42, v38, v40"); A("v_sub_f32 v43, v32, v40")
    for r in (41, 42, 43): A(f"v_mul_f32 v{r}, 0x3fb8aa3b, v{r}")
    for r in (41, 42, 43): A(f"v_exp_f32 v{r}, v{r}")
    A("v_mul_f32 v41, v41, v35"); A("v_fmac_f32 v41, v42, v39")
    A("v_rcp_f32 v41, v41"); A("v_mul_f32 v43, v43, v41")
    sanitize([43], 36)
    A(f"v_lshlrev_b32 v14, 2, v{vLane}")
    A("s_mov_b64 exec, 0xf"); A(f"ds_write_b32 v14, v43 offset:{L_FW}"); A("s_mov_b64 exec, -1")
    A("s_waitcnt lgkmcnt(0)")
    if DEEP:
        A(f"v_mov_b32 v48, {L_PROG}")
        A(f"s_and_b32 s{st0}, s2, 7"); A(f"s_lshl_b32 s{st0}, s{st0}, 7"); A(f"s_add_u32 s{st0}, s{st0}, {WS_FIN}"); A("v_mov_b32 v49, 0")
        A(f"s_mov_b32 s{sCnt}, {SPIN_LIMIT}")
        A.label("L_dpspin")
        A(f"s_sleep {DPS}")
        A("ds_read_b32 v50, v48"); A("s_waitcnt lgkmcnt(0)")
        A(f"v_readfirstlane_b32 s{st1}, v50")
        A(f"s_cmp_eq_u32 s{st1}, 2"); A("s_cbranch_scc1 L_dpdone")
        A(f"s_cmp_eq_u32 s{st1}, 0"); A("s_cbranch_scc1 L_dpnext")
        A(f"buffer_load_dword v50, v49, {srd(sWS)}, s{st0} offen sc1"); A("s_waitcnt vmcnt(0)")
        A(f"v_readfirstlane_b32 s{st1}, v50")
        A(f"s_cmp_lt_u32 s{st1}, {DEEP}"); A("s_cbranch_scc1 L_dpnext")
        A("v_mov_b32 v50, 1"); A("s_mov_b64 exec, 1"); A(f"ds_write_b32 v48, v50 offset:{L_DEEP-L_PROG}"); A("s_mov_b64 exec, -1")
        A("s_waitcnt lgkmcnt(0)"); A("s_branch L_dpdone")
        A.label("L_dpnext")
        A(f"s_sub_u32 s{sCnt}, s{sCnt}, 1"); A("s_cbranch_scc0 L_dpspin")
        A.label("L_dpdone")
    A.label("L_nostat")
    A(f"v_and_b32 v14, 3, v{vLane}"); A("v_lshlrev_b32 v14, 8, v14")
    A(f"v_lshlrev_b32 v15, 4, v{vG}"); A("v_add_u32 v14, v14, v15")
    A(f"v_bfe_u32 v14, v{vLane}, 2, 2"); A("v_lshlrev_b32 v14, 8, v14"); A("v_add_u32 v14, v14, v15")
    A(f"v_lshlrev_b32 v6, 13, v{vG}"); A(f"v_lshlrev_b32 v7, 3, v{vCc}"); A("v_add_u32 v6, v6, v7")
    A(f"s_lshl_b32 s{st0}, s{sB}, 4"); A(f"s_lshl_b32 s{st1}, s{sU}, 2"); A(f"s_add_u32 s{st0}, s{st0}, s{st1}")
    A(f"s_lshl_b32 s{st0}, s{st0}, 13"); A(f"s_lshl_b32 s{st1}, s{sJ}, 7"); A(f"s_add_u32 s{sReg}, s{st0}, s{st1}")
    A("v_mov_b32 v7, 0x7fc00000")
    for k in range(32): A(f"v_mov_b32 v{64+k}, 0")
    stamp(3)
    A("s_barrier")
    stamp(4)
    for q in range(4): A(f"ds_read_b128 v[{32+4*q}:{35+4*q}], v14 offset:{L_OW+q*64}")
    for q in range(4):
        A(f"s_waitcnt lgkmcnt({3-q})")
        for t in range(8):
            A(f"v_mfma_f32_16x16x32_bf16 v[{64+4*t}:{67+4*t}], v[{32+4*q}:{35+4*q}], v[{vW+32*q+4*t}:{vW+32*q+4*t+3}], v[{64+4*t}:{67+4*t}]")
    Dt = [64+4*t for t in range(8)]
    for e in range(4): A(f"v_permlane32_swap_b32 v{Dt[e]}, v{Dt[e+4]}")
    for e in range(4): A(f"v_add_f32 v{Dt[e]}, v{Dt[e]}, v{Dt[e+4]}")
    A(f"v_permlane16_swap_b32 v{Dt[0]}, v{Dt[2]}"); A(f"v_permlane16_swap_b32 v{Dt[1]}, v{Dt[3]}")
    A(f"v_add_f32 v16, v{Dt[0]}, v{Dt[2]}"); A(f"v_add_f32 v17, v{Dt[1]}, v{Dt[3]}")
    sanitize([16, 17], 7)
    A(f"buffer_store_dwordx2 v[16:17], v6, {srd(sWS)}, s{sReg} offen sc1")
    A("s_barrier")
    stamp(5)
    if PROF and not COOPQ:
        A("s_waitcnt vmcnt(0)")
        stamp(1)
    prof_store(0)
    A.label("L_end")
    A("s_endpgm")
    A('.section .rodata,"a"'); A(".p2align 6"); A(f".amdhsa_kernel {NAME}")
    A("  .amdhsa_next_free_vgpr 256"); A("  .amdhsa_next_free_sgpr 96"); A("  .amdhsa_accum_offset 256")
    A("  .amdhsa_group_segment_fixed_size 0"); A("  .amdhsa_kernarg_size 88"); A("  .amdhsa_user_sgpr_count 2")
    A("  .amdhsa_user_sgpr_kernarg_segment_ptr 1"); A("  .amdhsa_system_sgpr_workgroup_id_x 1")
    A("  .amdhsa_float_denorm_mode_32 3"); A("  .amdhsa_float_denorm_mode_16_64 3")
    A(".end_amdhsa_kernel")
    return A.finalize()

if __name__ == "__main__":
    import build
    kw = json.loads(sys.argv[2]) if len(sys.argv) > 2 else {}
    s = gen(**kw)
    open(sys.argv[1], "w").write(s)
    build.build(sys.argv[1])
```

```python
import sys, json
from asmlib import Asm
NAME = "sequential_preLN__gqa_block_cached__dense_activation_relu__decode_kernel"

WS_Y  = 0x00000
WS_H  = 0x80000
WS_H1 = 0x8A000
H1_STRIDE = 11264
WS_ST = 0x98000
WS_W1T = 0x100000
WS_W2T = 0x280000
W2T_STRIDE = 43*1024
WS_PROF = 0x400000
WS_FLAG = 0xA2000
WS_FIN = 0xA1000
WS_EP = 0x97000
WS_EPB = 0x700000
WS_QX = 0x600000
WS_SIZE = 0x701000
L_QP = 0; L_OW = 2048; L_STAT = 4096; L_FW = 4128
L_CNT = 4160; L_CNT2 = 4164; L_ROLE = 4168; L_BOOST = 4172; L_PROG = 4176; L_DEEP = 4180; L_KT = 4184; L_RR = 4352; L_RED = 4608; L_RED2 = L_RED + 4096; L_RED3 = L_RED2 + 2048
L_SC = 16384; L_STG = 32768; STG_W = 12288; RS = 288
LDS_BYTES = L_STG + 4*STG_W
POISON = -1
SPIN_LIMIT = 1 << 18


HEADER = """
;
"""

def brev4(n): return int(f"{n:04b}"[::-1], 2)

def gen(D=6, PROF=False, PACE=4, DBG=0, WQF='', WOF='', WFF='', NOWO=0, NOSTG=0, D0=5, SLP1=4, SLP2=4, SLPR=0, REPACK=0, NR=0, D2=12, NT2=0, ROTK=0, ROTQ=0, HB=16, G=2, WQP=0, TLBV=0, PACED=0, I0=16, COOPQ=0, QXS='sc1', QXL='sc1', NOQ=0, PD=1, STG=4, SLB=0, DYN=0, DV=0, OUTF='', BOOST=0, BMED=127, BD=6, BX=0, BST=0, QXW=-1, DEEP=0, DPT=9, DPS=24, POISLATE=0, SPREAD=0, NOPOIS=0, TKF='sc0', TKLATE=0, WOE=0, POISQ=0, P2=0, P1=0, PRIO=0, HPRIO=0, VLAST=0, YB=0, XT=0):
    A = Asm()
    R = 16
    for line in HEADER.strip("\n").split("\n"): A(line)
    A(f"; @launch grid=(256,1,1) block=(512,1,1) lds={LDS_BYTES}")
    A('.amdgcn_target "amdgcn-amd-amdhsa--gfx950"')
    A(".text"); A(f".globl {NAME}"); A(".p2align 8"); A(f".type {NAME},@function"); A.label(NAME)
    sK, sV, sC, sWS, sT = 4, 8, 12, 16, 20
    sM0, sM1 = 24, 26
    sH, sB, sHalf, sReg = 28, 29, 30, 31
    sOff, sTile, sU = 32, 33, 34
    st0, st1, st2, st3 = 58, 59, 60, 61
    sJ = 62
    sCnt = 63
    sP = 64
    pX, pK, pV, pWQ, pWO, pW1, pW2, pOUT, pDBG, pWS = 36, 38, 40, 42, 44, 48, 50, 52, 54, 56
    srd = lambda s: f"s[{s}:{s+3}]"
    nst = [0]
    def stamp(i):
        if PROF: A(f"s_memrealtime s[{sP+2*i}:{sP+2*i+1}]")
    def prof_store(slot_wave):
        if not PROF: return
        A("s_waitcnt vmcnt(0) lgkmcnt(0)")
        A(f"s_lshl_b32 s{st0}, s2, 3"); A(f"s_add_u32 s{st0}, s{st0}, s3"); A(f"s_lshl_b32 s{st0}, s{st0}, 6")
        A(f"s_add_u32 s{st0}, s{st0}, {WS_PROF}")
        for i in range(8):
            A(f"v_mov_b32 v{40+i}, s{sP+2*i}")
        A(f"s_getreg_b32 s{st1}, hwreg(HW_REG_XCC_ID)"); A(f"s_getreg_b32 s{st2}, hwreg(HW_REG_HW_ID)")
        A(f"v_mov_b32 v50, s{st1}"); A(f"v_mov_b32 v51, s88")
        A(f"v_mov_b32 v48, 0")
        A("s_mov_b64 s[60:61], exec"); A("s_mov_b64 exec, 1")
        A(f"buffer_store_dwordx4 v[40:43], v48, {srd(sWS)}, s{st0} offen")
        A(f"buffer_store_dwordx4 v[44:47], v48, {srd(sWS)}, s{st0} offen offset:16")
        A(f"buffer_store_dwordx2 v[50:51], v48, {srd(sWS)}, s{st0} offen offset:32")
        A("s_mov_b64 exec, s[60:61]")
    def mk_srd(s, p, size, off_sgpr=None, off_imm=None):
        if off_sgpr is not None:
            A(f"s_add_u32 s{s}, s{p}, s{off_sgpr}"); A(f"s_addc_u32 s{s+1}, s{p+1}, 0")
        elif off_imm is not None:
            A(f"s_add_u32 s{s}, s{p}, {off_imm}"); A(f"s_addc_u32 s{s+1}, s{p+1}, 0")
        else:
            A(f"s_mov_b32 s{s}, s{p}"); A(f"s_mov_b32 s{s+1}, s{p+1}")
        A(f"s_mov_b32 s{s+2}, {size}")
        A(f"s_mov_b32 s{s+3}, 0x20000")
    def wave_allreduce(op, x, t):
        for k in (8, 4, 2, 1):
            A(f"{op}_dpp v{x}, v{x}, v{x} row_ror:{k} row_mask:0xf bank_mask:0xf")
        A(f"v_mov_b32 v{t}, v{x}"); A(f"v_permlane16_swap_b32 v{x}, v{t}"); A(f"{op} v{x}, v{x}, v{t}")
        A(f"v_mov_b32 v{t}, v{x}"); A(f"v_permlane32_swap_b32 v{x}, v{t}"); A(f"{op} v{x}, v{x}, v{t}")
    def round_bf16(x, t=None):
        A(f"v_cvt_pk_bf16_f32 v{x}, v{x}, v{x}")
        A(f"v_and_b32 v{x}, 0xffff0000, v{x}")
    def acc_reduce(a):
        for e in range(4):
            A(f"v_permlane32_swap_b32 v{a+e}, v{a+e+4}")
        for e in range(4):
            A(f"v_add_f32 v{a+e}, v{a+e}, v{a+e+4}")
        A(f"v_permlane16_swap_b32 v{a}, v{a+2}")
        A(f"v_permlane16_swap_b32 v{a+1}, v{a+3}")
        A(f"v_add_f32 v{a}, v{a}, v{a+2}")
        A(f"v_add_f32 v{a+1}, v{a+1}, v{a+3}")
    def sanitize(regs, repl_sgpr, tmpmask="vcc"):
        for r in regs:
            A(f"v_cmp_eq_u32 vcc, -1, v{r}")
            A(f"v_cndmask_b32 v{r}, v{r}, v{repl_sgpr}, vcc")
    def spin_check(regs, tmp, loop, done, fail=None):
        rs = list(regs)
        if len(rs) == 1:
            m = rs[0]
        else:
            A(f"v_max_u32 v{tmp}, v{rs[0]}, v{rs[1]}"); rs = rs[2:]
            while len(rs) >= 2:
                A(f"v_max3_u32 v{tmp}, v{tmp}, v{rs[0]}, v{rs[1]}"); rs = rs[2:]
            if rs: A(f"v_max_u32 v{tmp}, v{tmp}, v{rs[0]}")
            m = tmp
        A(f"v_cmp_eq_u32 vcc, -1, v{m}")
        A(f"s_cbranch_vccz {done}")
        A(f"s_sub_u32 s{sCnt}, s{sCnt}, 1")
        A(f"s_cbranch_scc0 {loop}")
        A.label(done)

    stamp(0)
    A("s_cmp_ge_u32 s2, 256")
    A("s_cbranch_scc1 L_end")
    A("s_load_dwordx16 s[36:51], s[0:1], 0")
    A("s_load_dwordx4 s[52:55], s[0:1], 64")
    A("s_load_dwordx2 s[56:57], s[0:1], 80")
    A("v_lshrrev_b32 v1, 6, v0")
    A("v_and_b32 v2, 63, v0")
    A(f"s_and_b32 s{st0}, s2, 7")
    A("v_readfirstlane_b32 s3, v1")
    A(f"s_lshr_b32 s{st1}, s2, 3")
    A(f"s_lshr_b32 s{sH}, s{st1}, 3"); A(f"s_lshl_b32 s{sH}, s{sH}, 3"); A(f"s_add_u32 s{sH}, s{sH}, s{st0}")
    A(f"s_and_b32 s{st1}, s{st1}, 7")
    A(f"s_lshr_b32 s{sB}, s{st1}, 1")
    A(f"s_and_b32 s{sHalf}, s{st1}, 1")
    A(f"s_lshl_b32 s{sReg}, s{sB}, 5"); A(f"s_add_u32 s{sReg}, s{sReg}, s{sH}")
    A(f"s_lshl_b32 s{sReg}, s{sReg}, 1"); A(f"s_add_u32 s{sReg}, s{sReg}, s{sHalf}")
    A(f"s_lshl_b32 s{sJ}, s{sH}, 1"); A(f"s_add_u32 s{sJ}, s{sJ}, s{sHalf}")
    A("s_cmp_ge_u32 s3, 4")
    A("s_cbranch_scc1 L_helper")

    vLane, vOff = 2, 3
    vQ = 4; vAcc = 8; vP = 16; vtA, vtB = 32, 33; vM, vL, vSC, vPn, vPlo, vPhi = 34, 35, 36, 37, 38, 39
    vRing = 64
    ring = lambda i: vRing + 4*(i % R)
    if PRIO: A(f"s_setprio {PRIO}")
    A("s_getpc_b64 s[58:59]")
    A.label("L_pc")
    A(f"s_sub_u32 s58, s58, L_pc-{NAME}"); A("s_subb_u32 s59, s59, 0")
    A(f"v_lshlrev_b32 v40, 7, v{vLane}")
    A(f"s_lshl_b32 s{st2}, s3, 13")
    A(f"v_add_u32 v40, s{st2}, v40")
    A(f"v_min_u32 v40, L_end-{NAME}, v40")
    A("global_load_dword v41, v40, s[58:59]")
    A(f"v_lshlrev_b32 v{vOff}, 4, v{vLane}")
    A(f"s_mul_i32 s{st0}, s3, {1024*G}")
    A(f"v_add_u32 v{vOff}, s{st0}, v{vOff}")
    A(f"s_lshr_b32 s{st0}, s{sReg}, 1"); A(f"s_lshl_b32 s{st0}, s{st0}, 21")
    A(f"s_lshl_b32 s{st3}, s{sHalf}, {HB}"); A(f"s_add_u32 s{st0}, s{st0}, s{st3}")
    A(f"s_sub_u32 s{st3}, {1<<21 if HB < 20 else 1<<20}, s{st3}") if HB < 20 else A(f"s_mov_b32 s{st3}, {1<<20}")
    A("s_waitcnt lgkmcnt(0)")
    mk_srd(sK, pK, 1 << 20, off_sgpr=st0)
    A(f"s_mov_b32 s{sK+2}, s{st3}")
    sRot = 35
    if ROTK:
        A(f"s_mul_i32 s{sRot}, s2, {ROTK}"); A(f"s_and_b32 s{sRot}, s{sRot}, 255"); A(f"s_lshl_b32 s{sRot}, s{sRot}, 12")
    else:
        A(f"s_mov_b32 s{sRot}, 0")
    A(f"s_mov_b32 s{sOff}, s{sRot}")
    vX = 160
    vY = 208
    def sload(i, s, extra=False, dst=None):
        if dst is None: dst = vX + 4*(i-16) if extra else ring(i)
        A(f"buffer_load_dwordx4 v[{dst}:{dst+3}], v{vOff}, {srd(s)}, s{sOff} offen nt")
        p_ = i % 16
        def addr(p):
            o = (p//G)*4*G*1024 + (p%G)*1024
            return o if HB >= 20 else ((o >> HB) << (HB+1)) | (o & ((1 << HB)-1))
        assert HB >= 20 or (1 << HB) <= 65536
        inc = addr(p_+1) - addr(p_) if p_ < 15 else (addr(16) - addr(15))
        A(f"s_add_u32 s{sOff}, s{sOff}, {inc}")
        if ROTK: A(f"s_and_b32 s{sOff}, s{sOff}, 0xfffff")
    for i in range(D0): sload(i, sK)
    A("s_barrier")
    if COOPQ: assert PACED
    if PACED:
        for i in range(D0, I0):
            if i >= PACED: A(f"s_waitcnt vmcnt({PACED-1})")
            sload(i, sK, extra=(i >= 16))
    elif NR == 0:
        A("s_barrier")
        for i in range(D0, R): sload(i, sK)
    else:
        rest = list(range(D0, R))
        for r_ in range(NR):
            lo = len(rest)*r_//NR; hi = len(rest)*(r_+1)//NR
            for i in rest[lo:hi]: sload(i, sK)
            if r_ < NR-1: A("s_barrier")
    mk_srd(sV, pV, 1 << 20, off_sgpr=st0)
    A(f"s_mov_b32 s{sV+2}, s{st3}")
    for k in range(4): A(f"s_mov_b32 s{sC+k}, s{sK+k}")
    mk_srd(sWS, pWS, WS_SIZE)
    A(f"s_mov_b32 s{sM0}, 0xaaaaaaaa"); A(f"s_mov_b32 s{sM0+1}, 0xaaaaaaaa")
    A(f"s_mov_b32 s{sM1}, 0xcccccccc"); A(f"s_mov_b32 s{sM1+1}, 0xcccccccc")
    A(f"s_lshl_b32 s{st2}, s3, 12"); A(f"s_add_u32 s{st2}, s{st2}, {L_SC}")
    A(f"v_lshlrev_b32 v{vSC}, 2, v{vLane}"); A(f"v_add_u32 v{vSC}, s{st2}, v{vSC}")
    A(f"v_mov_b32 v{vM}, 0xff7fffff")
    A(f"v_and_b32 v42, 15, v{vLane}"); A("v_lshlrev_b32 v42, 5, v42")
    if DBG & 4:
        A(f"s_waitcnt vmcnt({16-D0})"); stamp(6); A("s_waitcnt vmcnt(0)"); stamp(7)
    stamp(1)
    A("s_barrier")
    if YB:
        assert I0 > 16 and I0 + D <= 32 and vX + 4*(I0-16) <= vY
        for i_ in range(I0, I0 + D): sload(i_, sK, dst=vY + 4*(i_-I0))
    vqt = 128
    for u in range(4):
        A(f"ds_read_b128 v[{vqt+8*u}:{vqt+8*u+3}], v42 offset:{L_QP+u*512}")
        A(f"ds_read_b128 v[{vqt+8*u+4}:{vqt+8*u+7}], v42 offset:{L_QP+u*512+16}")
    A("s_waitcnt lgkmcnt(0)")
    for e in range(8):
        A(f"v_add_f32 v{vqt+e}, v{vqt+e}, v{vqt+8+e}")
        A(f"v_add_f32 v{vqt+16+e}, v{vqt+16+e}, v{vqt+24+e}")
    for e in range(8): A(f"v_add_f32 v{vqt+e}, v{vqt+e}, v{vqt+16+e}")
    for r in range(4): A(f"v_cvt_pk_bf16_f32 v{vQ+r}, v{vqt+2*r}, v{vqt+2*r+1}")
    if DBG & 1:
        A("s_cmp_lg_u32 s3, 0"); A("s_cbranch_scc1 L_dbgq")
        A(f"s_lshl_b32 s{st2}, s{sReg}, 8"); A(f"s_add_u32 s{st2}, s{st2}, {WS_PROF+0x80000}")
        A(f"v_lshlrev_b32 v40, 4, v{vLane}")
        A("s_mov_b64 exec, 0xffff")
        A(f"buffer_store_dwordx4 v[{vQ}:{vQ+3}], v40, {srd(sWS)}, s{st2} offen")
        A("s_mov_b64 exec, -1")
        A("s_waitcnt vmcnt(0)")
        A.label("L_dbgq")
    stamp(2)
    vW0, vW1, vS = 44, 45, 46
    def k_tail_ops():
        P = lambda n: vP + n
        g = []
        g.append([f"v_add_f32_dpp v{P(14)}, v{P(14)}, v{P(14)} row_ror:8 row_mask:0xf bank_mask:0x3",
                  f"v_add_f32_dpp v{P(14)}, v{P(15)}, v{P(15)} row_ror:8 row_mask:0xf bank_mask:0xc"])
        g.append([f"v_add_f32_dpp v{P(12)}, v{P(12)}, v{P(12)} row_shl:4 row_mask:0xf bank_mask:0x5",
                  f"v_add_f32_dpp v{P(12)}, v{P(14)}, v{P(14)} row_shr:4 row_mask:0xf bank_mask:0xa"])
        g.append([f"v_add_f32_dpp v{vtA}, v{P(8)}, v{P(8)} quad_perm:[2,3,0,1] row_mask:0xf bank_mask:0xf",
                  f"v_add_f32_dpp v{vtB}, v{P(12)}, v{P(12)} quad_perm:[2,3,0,1] row_mask:0xf bank_mask:0xf",
                  f"v_cndmask_b32 v{vW1}, v{vtA}, v{vtB}, s[{sM1}:{sM1+1}]"])
        g.append([f"v_add_f32_dpp v{vtA}, v{vW0}, v{vW0} quad_perm:[1,0,3,2] row_mask:0xf bank_mask:0xf",
                  f"v_add_f32_dpp v{vtB}, v{vW1}, v{vW1} quad_perm:[1,0,3,2] row_mask:0xf bank_mask:0xf",
                  f"v_cndmask_b32 v{vS}, v{vtA}, v{vtB}, s[{sM0}:{sM0+1}]"])
        g.append([f"v_cvt_pk_bf16_f32 v{vS}, v{vS}, v{vS}", f"v_and_b32 v{vS}, 0xffff0000, v{vS}"])
        g.append([f"v_mul_f32 v{vS}, 0x3db504f3, v{vS}", f"v_cvt_pk_bf16_f32 v{vS}, v{vS}, v{vS}"])
        g.append([f"v_and_b32 v{vS}, 0xffff0000, v{vS}", f"v_max_f32 v{vM}, v{vM}, v{vS}",
                  f"ds_write_b32 v{vSC}, v{vS}", f"v_add_u32 v{vSC}, 256, v{vSC}"])
        return g
    def k_tile(first, pt=0):
        P = lambda n: vP + n
        def redA(k):
            A(f"v_add_f32_dpp v{P(2*k)}, v{P(2*k)}, v{P(2*k)} row_ror:8 row_mask:0xf bank_mask:0x3")
            A(f"v_add_f32_dpp v{P(2*k)}, v{P(2*k+1)}, v{P(2*k+1)} row_ror:8 row_mask:0xf bank_mask:0xc")
        def redB(m):
            A(f"v_add_f32_dpp v{P(4*m)}, v{P(4*m)}, v{P(4*m)} row_shl:4 row_mask:0xf bank_mask:0x5")
            A(f"v_add_f32_dpp v{P(4*m)}, v{P(4*m+2)}, v{P(4*m+2)} row_shr:4 row_mask:0xf bank_mask:0xa")
        def redC0():
            A(f"v_add_f32_dpp v{vtA}, v{P(0)}, v{P(0)} quad_perm:[2,3,0,1] row_mask:0xf bank_mask:0xf")
            A(f"v_add_f32_dpp v{vtB}, v{P(4)}, v{P(4)} quad_perm:[2,3,0,1] row_mask:0xf bank_mask:0xf")
            A(f"v_cndmask_b32 v{vW0}, v{vtA}, v{vtB}, s[{sM1}:{sM1+1}]")
        tail = [] if (first and pt == 0) else k_tail_ops()
        for n in range(16):
            pos = 16*pt + n
            if not first: A(f"s_waitcnt vmcnt({D-1})")
            else:
                if YB: younger = (I0 - 1 - pos) + D if pos < I0 else D-1
                else:  younger = max(0, I0 - 1 - pos) + max(0, min(pos, 1 << 30) - (I0 - D)) if pos < I0 else D-1
                A(f"s_waitcnt vmcnt({younger})")
            if (not first) or (pos >= I0 if YB else pos + D >= I0):
                if n == 16 - D and not first:
                    A(f"s_cmp_eq_u32 s{sTile}, 15")
                    A(f"s_cselect_b32 s{sC}, s{sV}, s{sC}")
                    A(f"s_cselect_b32 s{sC+1}, s{sV+1}, s{sC+1}")
                    A(f"s_cselect_b32 s{sOff}, s{sRot}, s{sOff}")
                sload(n + D, sC)
            r = vX + 4*n if (first and pt == 1 and pos < I0) else ring(n)
            if YB and first and I0 <= pos < I0 + D: r = vY + 4*(pos - I0)
            A(f"v_dot2_f32_bf16 v{P(n)}, v{r}, v{vQ}, 0")
            for k in range(1, 4): A(f"v_dot2_f32_bf16 v{P(n)}, v{r+k}, v{vQ+k}, v{P(n)}")
            if n < len(tail):
                for x in tail[n]: A(x)
            if n >= 2 and n % 2 == 0: redA((n-2)//2)
            if n in (5, 9, 13): redB((n-5)//4)
            if n == 11: redC0()
    A(f"s_mov_b32 s{sTile}, 0")
    k_tile(True, 0)
    if I0 > 16:
        k_tile(True, 1)
    A(f"s_mov_b32 s{sTile}, {2 if I0 > 16 else 1}")
    if SPREAD: A(f"v_mov_b32 v43, {L_KT}")
    A.label("L_kloop")
    k_tile(False)
    A(f"s_add_u32 s{sTile}, s{sTile}, 1")
    if SPREAD == 1:
        A(f"v_mov_b32 v47, s{sTile}"); A(f"ds_write_b32 v43, v47")
    if PROF and (DBG & 16):
        A(f"s_cmp_lg_u32 s{sTile}, 3"); A("s_cbranch_scc1 L_nk1"); stamp(1); A.label("L_nk1")
        A(f"s_cmp_lg_u32 s{sTile}, 6"); A("s_cbranch_scc1 L_nk2"); stamp(6); A.label("L_nk2")
        A(f"s_cmp_lg_u32 s{sTile}, 11"); A("s_cbranch_scc1 L_nk3"); stamp(7); A.label("L_nk3")
    A(f"s_cmp_lt_u32 s{sTile}, 16")
    A("s_cbranch_scc1 L_kloop")
    for i_ in range(D, D + XT): sload(i_, sC)
    for grp in k_tail_ops():
        for x in grp: A(x)
    stamp(3)
    A(f"v_subrev_u32 v{vSC}, 4096, v{vSC}")
    A("s_waitcnt lgkmcnt(0)")
    for t in range(16): A(f"ds_read_b32 v{vP+t}, v{vSC} offset:{t*256}")
    wave_allreduce("v_max_f32", vM, vtA)
    A(f"v_mul_f32 v{vtB}, 0xbfb8aa3b, v{vM}")
    A(f"s_mov_b32 s{st0}, 0x3fb8aa3b")
    A("s_waitcnt lgkmcnt(0)")
    for t in range(16): A(f"v_fma_f32 v{vP+t}, v{vP+t}, s{st0}, v{vtB}")
    for t in range(16): A(f"v_exp_f32 v{vP+t}, v{vP+t}")
    A(f"v_add_f32 v{vL}, v{vP}, v{vP+1}")
    for t in range(2, 16): A(f"v_add_f32 v{vL}, v{vL}, v{vP+t}")
    for t in range(16): A(f"v_cvt_pk_bf16_f32 v{vP+t}, v{vP+t}, v{vP+t}")
    for t in range(16): A(f"ds_write_b32 v{vSC}, v{vP+t} offset:{t*256}")
    wave_allreduce("v_add_f32", vL, vtA)
    A(f"v_mov_b32 v40, v{vM}"); A(f"v_mov_b32 v41, v{vL}")
    A("v_mov_b32 v43, 0x7fc00000")
    sanitize([40, 41], 43)
    A(f"s_lshl_b32 s{st0}, s3, 3"); A(f"s_add_u32 s{st0}, s{st0}, {L_STAT}"); A(f"v_mov_b32 v42, s{st0}")
    A("s_mov_b64 exec, 1"); A("ds_write_b64 v42, v[40:41]"); A("s_mov_b64 exec, -1")
    A(f"v_mov_b32 v{vPn}, v{vP}")
    for e in range(8): A(f"v_mov_b32 v{vAcc+e}, 0")
    A(f"s_mov_b32 s{sTile}, 0")
    def pre_end():
        A(f"v_and_b32 v40, 15, v{vLane}"); A("v_lshlrev_b32 v40, 4, v40")
        A(f"v_lshrrev_b32 v41, 4, v{vLane}"); A("v_lshlrev_b32 v41, 2, v41")
        A("v_add_u32 v40, v40, v41")
        A(f"s_lshl_b32 s{st0}, s3, 8"); A(f"s_add_u32 s{st0}, s{st0}, {L_OW}"); A(f"v_add_u32 v40, s{st0}, v40")
        A(f"s_lshl_b32 s{st0}, s3, 2"); A(f"s_add_u32 s{st0}, s{st0}, {L_FW}"); A(f"v_mov_b32 v42, s{st0}")
        if DEEP:
            A(f"s_and_b32 s{st0}, s2, 7"); A(f"s_lshl_b32 s{st0}, s{st0}, 7"); A(f"s_add_u32 s{st0}, s{st0}, {WS_FIN}"); A(f"v_mov_b32 v44, s{st0}")
        else:
            A(f"s_and_b32 s{st0}, s2, 7"); A(f"s_lshl_b32 s{st0}, s{st0}, 2"); A(f"s_add_u32 s{st0}, s{st0}, 32"); A(f"v_mov_b32 v44, s{st0}")
        A("v_mov_b32 v46, 1")
        A(f"s_mov_b32 s{sCnt}, {SPIN_LIMIT}")
        A.label("L_fwspin")
        A("ds_read_b32 v43, v42"); A("s_waitcnt lgkmcnt(0)")
        spin_check([43], 47, "L_fwspin", "L_fwok")
    def v_loop(label, depth, tend):
        A.label(label)
        A(f"v_and_b32 v{vPlo}, 0xffff, v{vPn}")
        A(f"v_and_b32 v{vPhi}, 0xffff0000, v{vPn}")
        A(f"v_add_u32 v{vSC}, 256, v{vSC}")
        A(f"ds_read_b32 v{vPn}, v{vSC}")
        for n in range(16):
            A(f"s_waitcnt vmcnt({depth-1})")
            r = ring(n); bl = brev4(n)
            if ROTK and n == 16 - depth and tend == 16:
                A(f"s_cmp_eq_u32 s{sTile}, 15"); A(f"s_cselect_b32 s{sC+2}, 0, s{sC+2}")
            sload(n + depth, sC)
            for k in range(4):
                A(f"v_dot2c_f32_bf16_dpp v{vAcc+2*k}, v{vPlo}, v{r+k} row_newbcast:{bl} row_mask:0xf bank_mask:0xf")
                A(f"v_dot2c_f32_bf16_dpp v{vAcc+2*k+1}, v{vPhi}, v{r+k} row_newbcast:{bl} row_mask:0xf bank_mask:0xf")
        A("s_waitcnt lgkmcnt(0)")
        A(f"s_add_u32 s{sTile}, s{sTile}, 1")
        if PROF and (DBG & 8) and label == "L_vloop":
            A(f"s_cmp_lg_u32 s{sTile}, 1"); A("s_cbranch_scc1 L_nost"); stamp(1); A.label("L_nost")
        A(f"s_cmp_lt_u32 s{sTile}, {tend}")
        A(f"s_cbranch_scc1 {label}")
    def v_last(depth):
        A(f"v_and_b32 v{vPlo}, 0xffff, v{vPn}")
        A(f"v_and_b32 v{vPhi}, 0xffff0000, v{vPn}")
        for n in range(16):
            A(f"s_waitcnt vmcnt({min(16, n + depth) - (n + 1)})")
            r = ring(n); bl = brev4(n)
            if n + depth < 16: sload(n + depth, sC)
            for k in range(4):
                A(f"v_dot2c_f32_bf16_dpp v{vAcc+2*k}, v{vPlo}, v{r+k} row_newbcast:{bl} row_mask:0xf bank_mask:0xf")
                A(f"v_dot2c_f32_bf16_dpp v{vAcc+2*k+1}, v{vPhi}, v{r+k} row_newbcast:{bl} row_mask:0xf bank_mask:0xf")
    DVV = DV if DV else D
    assert XT == 0 or DVV == D
    for i_ in range(D, DVV): sload(i_, sC)
    def v_body(depth, skippable=False, tag="", flagread=False, skipn=0):
        A(f"v_and_b32 v{vPlo}, 0xffff, v{vPn}")
        A(f"v_and_b32 v{vPhi}, 0xffff0000, v{vPn}")
        A(f"v_add_u32 v{vSC}, 256, v{vSC}")
        A(f"ds_read_b32 v{vPn}, v{vSC}")
        if (skippable and not (BX & 1)) or flagread: A(f"ds_read_b32 v45, v47")
        for n in range(16):
            A(f"s_waitcnt vmcnt({depth-1})")
            r = ring(n); bl = brev4(n)
            if skippable and n < BD - DVV and not (BX & 2):
                A(f"s_cmp_gt_u32 s89, {n}"); A(f"s_cbranch_scc1 L_vskip{n}")
                sload(n + depth, sC)
                A.label(f"L_vskip{n}")
            elif n >= skipn:
                sload(n + depth, sC)
            for k in range(4):
                A(f"v_dot2c_f32_bf16_dpp v{vAcc+2*k}, v{vPlo}, v{r+k} row_newbcast:{bl} row_mask:0xf bank_mask:0xf")
                A(f"v_dot2c_f32_bf16_dpp v{vAcc+2*k+1}, v{vPhi}, v{r+k} row_newbcast:{bl} row_mask:0xf bank_mask:0xf")
        A("s_waitcnt lgkmcnt(0)")
        A(f"s_add_u32 s{sTile}, s{sTile}, 1")
    if XT:
        assert not (DEEP or BOOST)
        v_body(DVV, skipn=XT)
    if DVV < D:
        assert not (DEEP or BOOST)
        v_body(DVV, skipn=D-DVV)
    if DEEP:
        assert NT2 >= 1 and not ROTK and not BOOST and DYN
        TE = 16 - NT2
        A(f"v_mov_b32 v47, {L_DEEP}"); A(f"v_mov_b32 v46, {L_PROG}")
        A.label("L_vloop")
        v_body(DVV, skippable=False, flagread=True)
        A(f"s_cmp_ge_u32 s{sTile}, {TE}"); A("s_cbranch_scc1 L_vexit")
        A(f"s_cmp_lg_u32 s{sTile}, {DPT}"); A("s_cbranch_scc1 L_vnoprog")
        A("v_mov_b32 v44, 1"); A("s_mov_b64 exec, 1"); A("ds_write_b32 v46, v44"); A("s_mov_b64 exec, -1")
        A.label("L_vnoprog")
        A("v_readfirstlane_b32 s91, v45")
        A("s_cmp_eq_u32 s91, 0"); A("s_cbranch_scc1 L_vloop")
        A.label("L_vexit")
        if PROF: A(f"s_mov_b32 s{sP+2}, s{sTile}")
        A("v_mov_b32 v44, 2"); A("s_mov_b64 exec, 1"); A("ds_write_b32 v46, v44"); A("s_mov_b64 exec, -1")
        pre_end()
        for i_ in range(DVV, D2): sload(i_, sC)
        v_loop("L_vloop2", D2, 16)
    elif BOOST:
        assert NT2 >= 1 and not ROTK
        TE = 16 - NT2
        A("s_mov_b32 s89, 0"); A(f"s_mov_b32 s90, {1 if BX & 8 else 0}"); A(f"v_mov_b32 v47, {L_BOOST}"); A("v_mov_b32 v45, -1")
        A.label("L_vloop")
        v_body(DVV, skippable=True)
        A("s_mov_b32 s89, 0")
        A(f"s_cmp_ge_u32 s{sTile}, {TE}"); A("s_cbranch_scc1 L_vexit")
        A("s_cmp_lg_u32 s90, 0"); A("s_cbranch_scc1 L_vloop")
        A("v_readfirstlane_b32 s91, v45")
        A("s_cmp_eq_u32 s91, -1"); A("s_cbranch_scc1 L_vloop")
        A("s_mov_b32 s90, 1")
        A(f"s_sub_u32 s{st0}, {TE-1}, s{sTile}"); A(f"s_min_u32 s91, s91, s{st0}")
        if PROF: A(f"s_mov_b32 s{sP+2}, s91")
        A("s_cmp_eq_u32 s91, 0"); A("s_cbranch_scc1 L_vloop")
        for i_ in range(DVV, BD): sload(i_, sC)
        A.label("L_vboost")
        v_body(BD)
        A("s_sub_u32 s91, s91, 1"); A("s_cmp_lg_u32 s91, 0"); A("s_cbranch_scc1 L_vboost")
        A(f"s_mov_b32 s89, {BD-DVV}")
        A("s_branch L_vloop")
        A.label("L_vexit")
        pre_end()
        for i_ in range(DVV, D2): sload(i_, sC)
        v_loop("L_vloop2", D2, 16)
    elif NT2 == 0:
        v_loop("L_vloop", DVV, 16)
    else:
        v_loop("L_vloop", DVV, 16 - NT2)
        pre_end()
        for i_ in range(DVV, D2): sload(i_, sC)
        if VLAST and NT2 == 1: v_last(D2)
        else: v_loop("L_vloop2", D2, 16)
    if NT2 == 0: pre_end()
    stamp(4)
    if DYN:
        A("s_cmp_lg_u32 s3, 0"); A("s_cbranch_scc1 L_notick")
        if DEEP:
            A("v_mov_b32 v45, v46")
            A("s_mov_b64 exec, 1"); A(f"buffer_atomic_add v45, v44, {srd(sWS)}, 0 offen sc0"); A("s_mov_b64 exec, -1")
        else:
            A("s_mov_b64 exec, 1"); A(f"global_atomic_add v45, v44, v46, s[{pDBG}:{pDBG+1}] {TKF}"); A("s_mov_b64 exec, -1")
        A.label("L_notick")
    acc_reduce(vAcc)
    A(f"v_mul_f32 v{vAcc}, v{vAcc}, v43"); A(f"v_mul_f32 v{vAcc+1}, v{vAcc+1}, v43")
    A(f"v_cvt_pk_bf16_f32 v{vAcc}, v{vAcc}, v{vAcc+1}")
    A(f"ds_write_b32 v40, v{vAcc}")
    A("s_waitcnt lgkmcnt(0)")
    A("s_barrier")
    stamp(5)
    A("s_waitcnt vmcnt(0)")
    sVid = 88
    A("s_cmp_lg_u32 s3, 0"); A("s_cbranch_scc1 L_norole")
    if DYN:
        A(f"v_readfirstlane_b32 s{st0}, v45")
        A(f"s_and_b32 s{st1}, s2, 7")
        A(f"s_lshl_b32 s{st2}, s{st0}, 3"); A(f"s_add_u32 s{st2}, s{st2}, s{st1}")
        A(f"s_mov_b32 s{sVid}, 255")
        A(f"s_sub_u32 s{st3}, s{st2}, {8*15}"); A(f"s_cmp_lt_u32 s{st0}, 23"); A(f"s_cselect_b32 s{sVid}, s{st3}, s{sVid}")
        A(f"s_add_u32 s{st3}, s{st2}, {64-8*4}"); A(f"s_cmp_lt_u32 s{st0}, 15"); A(f"s_cselect_b32 s{sVid}, s{st3}, s{sVid}")
        A(f"s_add_u32 s{st3}, s{st2}, 152"); A(f"s_cmp_lt_u32 s{st0}, 4"); A(f"s_cselect_b32 s{sVid}, s{st3}, s{sVid}")
    else:
        A(f"s_mov_b32 s{sVid}, s2")
    if SPREAD:
        A(f"s_cmp_ge_u32 s{sVid}, 184"); A("s_cbranch_scc1 L_inok2")
        if SPREAD == 1:
            A("v_mov_b32 v46, 0"); A(f"s_mov_b32 s{sCnt}, {SPIN_LIMIT}")
            A.label("L_inspin2")
            A(f"global_load_dword v47, v46, s[{pDBG}:{pDBG+1}] sc1"); A("s_waitcnt vmcnt(0)")
            A("v_cmp_gt_u32 vcc, 0x100, v47")
            A("s_cbranch_vccz L_inok2")
            A("s_sleep 2")
            A(f"s_sub_u32 s{sCnt}, s{sCnt}, 1"); A("s_cbranch_scc0 L_inspin2")
        else:
            A(f"v_and_b32 v46, 1, v{vLane}"); A(f"v_mul_u32_u24 v46, {WS_EPB-WS_EP}, v46"); A(f"s_mov_b32 s{st1}, {WS_EP}")
            A(f"buffer_load_dword v47, v46, {srd(sWS)}, s{st1} offen sc1")
            A(f"s_bfe_u32 s{st1}, s2, 0x20003"); A(f"s_lshl_b32 s{st1}, s{st1}, 10"); A(f"s_add_u32 s{st1}, s{st1}, {WS_FLAG}")
            A(f"v_lshlrev_b32 v46, 4, v{vLane}"); A(f"s_mov_b32 s{sCnt}, {SPIN_LIMIT}")
            A.label("L_inspin2")
            A(f"buffer_load_dwordx4 v[48:51], v46, {srd(sWS)}, s{st1} offen sc1"); A("s_waitcnt vmcnt(0)")
            A(f"v_readlane_b32 s{st2}, v47, 0"); A(f"v_readlane_b32 s{st3}, v47, 1")
            A(f"s_mul_i32 s{st3}, s{st3}, 3"); A(f"s_add_u32 s{st2}, s{st2}, s{st3}"); A(f"s_add_u32 s{st2}, s{st2}, 4")
            A(f"v_mov_b32 v52, s{st2}")
            for k in range(4): A(f"v_xor_b32 v{48+k}, v52, v{48+k}")
            A("v_or3_b32 v48, v48, v49, v50"); A("v_or_b32 v48, v48, v51")
            A("v_cmp_ne_u32 vcc, 0, v48")
            A("s_cbranch_vccz L_inok2")
            A("s_sleep 2")
            A(f"s_sub_u32 s{sCnt}, s{sCnt}, 1"); A("s_cbranch_scc0 L_inspin2")
        A.label("L_inok2")
    A(f"v_mov_b32 v44, {L_ROLE}"); A(f"v_mov_b32 v45, s{sVid}")
    A("s_mov_b64 exec, 1"); A("ds_write_b32 v44, v45"); A("s_mov_b64 exec, -1")
    A("s_waitcnt lgkmcnt(0)")
    A.label("L_norole")
    A("s_barrier")
    A(f"v_mov_b32 v44, {L_ROLE}"); A("ds_read_b32 v45, v44"); A("s_waitcnt lgkmcnt(0)")
    A(f"v_readfirstlane_b32 s{sVid}, v45")
    A(f"s_cmp_lt_u32 s{sVid}, 64"); A("s_cbranch_scc1 L_red")
    A(f"s_cmp_lt_u32 s{sVid}, 152"); A("s_cbranch_scc1 L_ffn1")
    A(f"s_cmp_lt_u32 s{sVid}, 184"); A("s_cbranch_scc1 L_ffn2")
    A.label("L_sdone")
    prof_store(0)
    A("s_endpgm")

    A.label("L_red")
    A(f"s_lshl_b32 s{st0}, s88, 13"); A(f"s_lshl_b32 s{st1}, s3, 11"); A(f"s_add_u32 s{st0}, s{st0}, s{st1}")
    A(f"v_lshlrev_b32 v3, 4, v{vLane}")
    A(f"s_lshr_b32 s{st3}, s88, 4"); A(f"s_lshl_b32 s{st1}, s{st3}, 10")
    A(f"s_and_b32 s{st2}, s88, 15"); A(f"s_lshl_b32 s{sTile}, s{st2}, 6"); A(f"s_add_u32 s{st1}, s{st1}, s{sTile}")
    A(f"v_and_b32 v4, 7, v{vLane}"); A("v_lshlrev_b32 v4, 2, v4")
    A(f"v_lshrrev_b32 v5, 5, v{vLane}"); A("v_lshlrev_b32 v5, 5, v5"); A("v_add_u32 v4, v4, v5")
    mk_srd(sT, pX, 4096)
    A(f"buffer_load_dword v6, v4, {srd(sT)}, s{st1} offen")
    A(f"v_bfe_u32 v5, v{vLane}, 3, 2"); A("v_lshlrev_b32 v5, 12, v5"); A("v_add_u32 v7, v4, v5")
    A(f"s_lshl_b32 s{st2}, s{st2}, 8"); A(f"s_lshl_b32 s{st3}, s{st3}, 6"); A(f"s_add_u32 s{st1}, s{st2}, s{st3}")
    A(f"s_add_u32 s{st1}, s{st1}, {WS_H}")
    A(f"v_lshlrev_b32 v9, 1, v4")
    A(f"s_lshl_b32 s{st2}, s3, 7"); A(f"v_add_u32 v10, s{st2}, v9")
    A(f"s_mov_b32 s{sCnt}, {SPIN_LIMIT}")
    def red_issue():
        A(f"buffer_load_dwordx4 v[16:19], v3, {srd(sWS)}, s{st0} offen sc1")
    A(f"buffer_load_dwordx4 v[16:19], v3, {srd(sWS)}, s{st0} offen sc1")
    A(f"buffer_load_dwordx4 v[20:23], v3, {srd(sWS)}, s{st0} offen offset:1024 sc1")
    for d_ in range(PD-1):
        A(f"s_sleep {STG}")
        A(f"buffer_load_dwordx4 v[16:19], v3, {srd(sWS)}, s{st0} offen sc1")
        A(f"buffer_load_dwordx4 v[20:23], v3, {srd(sWS)}, s{st0} offen offset:1024 sc1")
    A.label("L_redspin")
    A(f"s_waitcnt vmcnt({2*(PD-1)})")
    A("v_max3_u32 v8, v16, v17, v18"); A("v_max3_u32 v11, v20, v21, v22")
    A("v_max_u32 v8, v8, v19"); A("v_max_u32 v11, v11, v23")
    A("v_cmp_eq_u32 s[80:81], -1, v8"); A("v_cmp_eq_u32 s[82:83], -1, v11")
    A("s_or_b64 s[84:85], s[80:81], s[82:83]")
    A("s_cbranch_scc0 L_redok")
    if SLPR: A(f"s_sleep {SLPR}")
    A("s_or_b32 s80, s80, 1"); A("s_or_b32 s82, s82, 1")
    A("s_mov_b64 exec, s[80:81]")
    A(f"buffer_load_dwordx4 v[16:19], v3, {srd(sWS)}, s{st0} offen sc1")
    A("s_mov_b64 exec, s[82:83]")
    A(f"buffer_load_dwordx4 v[20:23], v3, {srd(sWS)}, s{st0} offen offset:1024 sc1")
    A("s_mov_b64 exec, -1")
    A(f"s_sub_u32 s{sCnt}, s{sCnt}, 1"); A("s_cbranch_scc0 L_redspin")
    A.label("L_redok")
    stamp(7)
    if PROF: A(f"s_sub_u32 s{sP+2}, {SPIN_LIMIT}, s{sCnt}")
    for k in range(4): A(f"v_add_f32 v{24+k}, v{16+k}, v{20+k}")
    A("v_permlane32_swap_b32 v24, v25"); A("v_permlane32_swap_b32 v26, v27")
    A("v_add_f32 v24, v24, v25"); A("v_add_f32 v25, v26, v27")
    A("v_mov_b32 v26, v24"); A("v_mov_b32 v27, v25")
    A("v_permlane16_swap_b32 v24, v26"); A("v_permlane16_swap_b32 v25, v27")
    A("v_add_f32 v24, v24, v26"); A("v_add_f32 v25, v25, v27")
    A("v_add_f32_dpp v24, v24, v24 row_ror:8 row_mask:0xf bank_mask:0xf")
    A("v_add_f32_dpp v25, v25, v25 row_ror:8 row_mask:0xf bank_mask:0xf")
    A(f"ds_write_b64 v10, v[24:25] offset:{L_RR}")
    A("s_waitcnt lgkmcnt(0)")
    A("s_barrier")
    A("s_cmp_lg_u32 s3, 0"); A("s_cbranch_scc1 L_sdone")
    for u in range(4): A(f"ds_read_b64 v[{32+2*u}:{33+2*u}], v9 offset:{L_RR+u*128}")
    A("v_lshlrev_b32 v40, 16, v6"); A("v_and_b32 v41, 0xffff0000, v6")
    A("v_mov_b32 v42, 0x7fc07fc0")
    A("s_waitcnt lgkmcnt(0)")
    A("v_add_f32 v32, v32, v34"); A("v_add_f32 v33, v33, v35"); A("v_add_f32 v36, v36, v38"); A("v_add_f32 v37, v37, v39")
    A("v_add_f32 v32, v32, v36"); A("v_add_f32 v33, v33, v37")
    A("v_cvt_pk_bf16_f32 v32, v32, v33")
    A("v_lshlrev_b32 v34, 16, v32"); A("v_and_b32 v35, 0xffff0000, v32")
    A("v_add_f32 v34, v34, v40"); A("v_add_f32 v35, v35, v41")
    A("v_cvt_pk_bf16_f32 v32, v34, v35")
    sanitize([32], 42)
    A(f"buffer_store_dword v32, v7, {srd(sWS)}, s{st1} offen sc1")
    A(f"s_add_u32 s{st1}, s{st1}, 16384")
    A(f"buffer_store_dword v32, v7, {srd(sWS)}, s{st1} offen sc1")
    A(f"s_add_u32 s{st1}, s{st1}, 16384")
    A("s_mov_b32 exec_lo, 0xff"); A("s_mov_b32 exec_hi, 0xff")
    A(f"buffer_store_dword v32, v4, {srd(sWS)}, s{st1} offen sc1")
    A("s_mov_b64 exec, -1")
    stamp(6)
    A("s_branch L_sdone")

    def ffn1_tile(dst, src="s2"):
        A(f"s_sub_u32 s{st0}, {src}, 64")
        A(f"s_and_b32 s{st1}, s{st0}, 7")
        A(f"s_lshr_b32 s{st0}, s{st0}, 3")
        A(f"s_lshr_b32 s{st2}, s{st0}, 2"); A(f"s_lshl_b32 s{st2}, s{st2}, 3"); A(f"s_add_u32 s{st2}, s{st2}, s{st1}")
        A(f"s_lshl_b32 s{st2}, s{st2}, 2"); A(f"s_and_b32 s{st3}, s{st0}, 3"); A(f"s_add_u32 s{st2}, s{st2}, s{st3}")
        A(f"s_mul_i32 s{st1}, s{st1}, 3"); A(f"s_add_u32 s{st1}, s{st1}, s{st0}"); A(f"s_add_u32 s{st1}, s{st1}, 56")
        A(f"s_cmp_lt_u32 s{st0}, 8"); A(f"s_cselect_b32 s{dst}, s{st2}, s{st1}")
    def ffn2_tile(dst, src="s2"):
        A(f"s_sub_u32 s{st0}, {src}, 152"); A(f"s_and_b32 s{st1}, s{st0}, 7"); A(f"s_lshr_b32 s{st0}, s{st0}, 3")
        A(f"s_lshl_b32 s{st1}, s{st1}, 2"); A(f"s_add_u32 s{dst}, s{st1}, s{st0}")
    sTl = 35
    def tr_addr(v):
        A(f"v_lshrrev_b32 v{v}, 4, v{vLane}"); A(f"v_lshlrev_b32 v{v}, 8, v{v}")
        A(f"v_bfe_u32 v40, v{vLane}, 2, 2"); A("v_lshlrev_b32 v40, 5, v40"); A(f"v_add_u32 v{v}, v{v}, v40")
        A(f"v_and_b32 v40, 3, v{vLane}"); A("v_lshlrev_b32 v40, 3, v40"); A(f"v_add_u32 v{v}, v{v}, v40")
        A(f"s_mul_i32 s{st0}, s3, {STG_W}"); A(f"s_add_u32 s{st0}, s{st0}, {L_STG}"); A(f"v_add_u32 v{v}, s{st0}, v{v}")
    A.label("L_ffn1")
    ffn1_tile(sTl, "s88")
    A(f"s_cmp_ge_u32 s{sTl}, 86"); A("s_cbranch_scc1 L_sdone")
    vA = 64
    if REPACK:
        vA = 64
        A(f"s_lshl_b32 s{st0}, s{sTl}, 14"); A(f"s_lshl_b32 s{st1}, s3, 12"); A(f"s_add_u32 s{st0}, s{st0}, s{st1}")
        A(f"s_add_u32 s{st0}, s{st0}, {WS_W1T}")
        A(f"v_lshlrev_b32 v4, 4, v{vLane}")
        for s in range(4): A(f"buffer_load_dwordx4 v[{vA+4*s}:{vA+4*s+3}], v4, {srd(sWS)}, s{st0} offen offset:{s*1024} sc1")
    else:
        A(f"v_lshrrev_b32 v14, 1, v{vLane}"); A("v_mul_u32_u24 v14, 2752, v14")
        A(f"v_and_b32 v6, 1, v{vLane}"); A("v_lshlrev_b32 v6, 4, v6"); A("v_add_u32 v14, v14, v6")
        A(f"s_mul_i32 s{st0}, s3, {128*2752}"); A(f"v_add_u32 v14, s{st0}, v14")
        A(f"s_lshl_b32 s{st1}, s{sTl}, 5")
        A(f"s_add_u32 s{sT}, s{pW1}, s{st1}"); A(f"s_addc_u32 s{sT+1}, s{pW1+1}, 0")
        A(f"s_sub_u32 s{sT+2}, {512*2752}, s{st1}"); A(f"s_mov_b32 s{sT+3}, 0x20000")
        A(f"s_mov_b32 s{sOff}, 0")
        for n in range(4):
            A(f"buffer_load_dwordx4 v[{16+4*n}:{19+4*n}], v14, {srd(sT)}, s{sOff} offen {WFF}")
            A(f"s_add_u32 s{sOff}, s{sOff}, {32*2752}")
        A(f"v_lshlrev_b32 v15, 4, v{vLane}"); A(f"s_mul_i32 s{st0}, s3, {STG_W}"); A(f"s_add_u32 s{st0}, s{st0}, {L_STG}")
        A(f"v_add_u32 v15, s{st0}, v15")
        tr_addr(4)
        A("s_waitcnt vmcnt(0)")
        for n in range(4): A(f"ds_write_b128 v15, v[{16+4*n}:{19+4*n}] offset:{n*1024}")
        vA = 64
        for s in range(4):
            A(f"ds_read_b64_tr_b16 v[{vA+4*s}:{vA+4*s+1}], v4 offset:{s*1024}")
            A(f"ds_read_b64_tr_b16 v[{vA+4*s+2}:{vA+4*s+3}], v4 offset:{s*1024+128}")
    for k in range(4): A(f"v_mov_b32 v{80+k}, 0x3f803f80")
    for k in range(4): A(f"v_mov_b32 v{84+k}, 0")
    A("s_waitcnt vmcnt(0) lgkmcnt(0)")
    for s in range(4): A(f"v_mfma_f32_16x16x32_bf16 v[84:87], v[{vA+4*s}:{vA+4*s+3}], v[80:83], v[84:87]")
    A(f"v_lshlrev_b32 v5, 4, v{vLane}"); A(f"s_lshl_b32 s{st0}, s3, 10"); A(f"v_add_u32 v5, s{st0}, v5")
    A(f"v_lshlrev_b32 v6, 3, v{vLane}"); A(f"s_lshl_b32 s{st0}, s3, 9"); A(f"v_add_u32 v6, s{st0}, v6")
    A(f"ds_write_b128 v5, v[84:87] offset:{L_RED3}")
    A("s_waitcnt lgkmcnt(0)")
    A("s_barrier")
    A(f"v_lshlrev_b32 v7, 4, v{vLane}")
    for u in range(4): A(f"ds_read_b128 v[{16+4*u}:{19+4*u}], v7 offset:{L_RED3+u*1024}")
    A(f"v_and_b32 v8, 15, v{vLane}"); A("v_lshlrev_b32 v8, 6, v8")
    A(f"v_lshrrev_b32 v9, 4, v{vLane}"); A("v_lshlrev_b32 v9, 4, v9"); A("v_add_u32 v8, v8, v9")
    A(f"s_lshl_b32 s{st0}, s3, 10"); A(f"v_add_u32 v8, s{st0}, v8")
    A("s_waitcnt lgkmcnt(0)")
    for k in range(4):
        A(f"v_add_f32 v{16+k}, v{16+k}, v{20+k}"); A(f"v_add_f32 v{24+k}, v{24+k}, v{28+k}")
    for k in range(4): A(f"v_add_f32 v{84+k}, v{16+k}, v{24+k}")
    A(f"s_and_b32 s{st0}, s88, 7"); A(f"s_lshl_b32 s{st0}, s{st0}, 12"); A(f"s_add_u32 s{st0}, s{st0}, {WS_H}")
    for k_, pat in ((90, 0x00f000f0), (92, 0x0f000f00), (94, 0xf000f000)):
        A(f"s_mov_b32 s{k_}, {hex(pat)}"); A(f"s_mov_b32 s{k_+1}, {hex(pat)}")
    A(f"v_and_b32 v12, 3, v{vLane}"); A("v_lshlrev_b32 v12, 5, v12")
    A(f"v_lshrrev_b32 v9, 4, v{vLane}"); A("v_lshlrev_b32 v9, 3, v9"); A("v_add_u32 v12, v12, v9")
    A(f"v_bfe_u32 v9, v{vLane}, 2, 2"); A(f"v_mul_u32_u24 v9, {H1_STRIDE}, v9"); A("v_add_u32 v12, v12, v9")
    A(f"s_lshl_b32 s{st1}, s{sTl}, 7"); A(f"s_add_u32 s{st1}, s{st1}, {WS_H1}")
    A(f"v_lshlrev_b32 v6, 2, v{vLane}"); A(f"s_lshl_b32 s{st2}, s3, 8"); A(f"v_add_u32 v6, s{st2}, v6")
    A(f"v_and_b32 v13, 15, v{vLane}"); A("v_lshlrev_b32 v13, 2, v13")
    A(f"s_mov_b32 s{sCnt}, {SPIN_LIMIT}")
    if P1:
        A(f"buffer_load_dwordx4 v[16:19], v8, {srd(sWS)}, s{st0} offen sc1")
        A(f"s_sleep {P1}")
    A.label("L_f1spin")
    if SLP1: A(f"s_sleep {SLP1}")
    A(f"buffer_load_dwordx4 v[16:19], v8, {srd(sWS)}, s{st0} offen sc1")
    A(f"s_waitcnt vmcnt({1 if P1 else 0})")
    spin_check(range(16, 20), 10, "L_f1spin", "L_f1ok")
    stamp(7)
    for s in range(4):
        A(f"v_mfma_f32_16x16x32_bf16 v[{88+4*s}:{91+4*s}], v[{vA+4*s}:{vA+4*s+3}], v[16:19], 0")
    A("v_dot2_f32_bf16 v20, v16, v80, 0"); A("v_dot2_f32_bf16 v21, v16, v16, 0")
    for k in range(1, 4):
        A(f"v_dot2_f32_bf16 v20, v{16+k}, v80, v20"); A(f"v_dot2_f32_bf16 v21, v{16+k}, v{16+k}, v21")
    A("v_permlane32_swap_b32 v20, v21"); A("v_add_f32 v20, v20, v21")
    A("v_mov_b32 v21, v20"); A("v_permlane16_swap_b32 v20, v21"); A("v_add_f32 v20, v20, v21")
    A("v_add_f32_dpp v20, v20, v20 row_ror:4 row_mask:0xf bank_mask:0xf")
    A("v_add_f32_dpp v20, v20, v20 row_ror:8 row_mask:0xf bank_mask:0xf")
    A(f"ds_write_b32 v6, v20 offset:{L_RED2}")
    for k in range(4): A(f"v_cndmask_b32 v{88+k}, v{88+k}, v{92+k}, s[90:91]")
    for k in range(4): A(f"v_cndmask_b32 v{96+k}, v{96+k}, v{100+k}, s[94:95]")
    A("s_or_b64 s[92:93], s[92:93], s[94:95]")
    for k in range(4): A(f"v_cndmask_b32 v{88+k}, v{88+k}, v{96+k}, s[92:93]")
    for k in range(4): A(f"v_add_f32_dpp v{88+k}, v{88+k}, v{88+k} row_ror:4 row_mask:0xf bank_mask:0xf")
    for k in range(4): A(f"v_add_f32_dpp v{88+k}, v{88+k}, v{88+k} row_ror:8 row_mask:0xf bank_mask:0xf")
    A(f"ds_write_b128 v5, v[88:91] offset:{L_RED}")
    A("s_waitcnt vmcnt(0) lgkmcnt(0)" if P1 else "s_waitcnt lgkmcnt(0)")
    A("s_barrier")
    A("s_cmp_lg_u32 s3, 0"); A("s_cbranch_scc1 L_sdone")
    for u in range(4): A(f"ds_read2_b32 v[{32+2*u}:{33+2*u}], v13 offset0:{(L_RED2+u*256)//4 % 256} offset1:{((L_RED2+u*256)//4 + 32) % 256}" if False else "")
    A(f"v_add_u32 v13, {L_RED2}, v13")
    for u in range(4): A(f"ds_read2_b32 v[{32+2*u}:{33+2*u}], v13 offset0:{u*64} offset1:{u*64+32}")
    for u in range(4): A(f"ds_read_b128 v[{16+4*u}:{19+4*u}], v7 offset:{L_RED+u*1024}")
    A("s_waitcnt lgkmcnt(4)")
    A("v_add_f32 v32, v32, v34"); A("v_add_f32 v33, v33, v35"); A("v_add_f32 v36, v36, v38"); A("v_add_f32 v37, v37, v39")
    A("v_add_f32 v32, v32, v36"); A("v_add_f32 v33, v33, v37")
    A("v_mul_f32 v32, 0x3b000000, v32")
    A("v_mul_f32 v33, 0x3b000000, v33")
    A("v_fma_f32 v33, -v32, v32, v33")
    A("v_max_f32 v33, 0, v33")
    A("v_cvt_pk_bf16_f32 v32, v32, v33")
    A("v_and_b32 v33, 0xffff0000, v32"); A("v_lshlrev_b32 v32, 16, v32")
    A("v_add_f32 v33, 0x3727c5ac, v33"); round_bf16(33)
    A("v_sqrt_f32 v33, v33"); round_bf16(33)
    A("v_rcp_f32 v33, v33")
    A("s_waitcnt lgkmcnt(0)")
    for k in range(4):
        A(f"v_add_f32 v{16+k}, v{16+k}, v{20+k}"); A(f"v_add_f32 v{24+k}, v{24+k}, v{28+k}")
    for k in range(4): A(f"v_add_f32 v{16+k}, v{16+k}, v{24+k}")
    for k in range(4): A(f"v_fma_f32 v{16+k}, -v32, v{84+k}, v{16+k}")
    for k in range(4): A(f"v_mul_f32 v{16+k}, v{16+k}, v33")
    for k in range(4): A(f"v_maximum3_f32 v{16+k}, v{16+k}, 0, 0")
    A("v_cvt_pk_bf16_f32 v16, v16, v17"); A("v_cvt_pk_bf16_f32 v17, v18, v19")
    A("v_and_b32 v16, 0x7fff7fff, v16"); A("v_and_b32 v17, 0x7fff7fff, v17")
    A(f"buffer_store_dwordx2 v[16:17], v12, {srd(sWS)}, s{st1} offen sc1")
    stamp(6)
    A("s_branch L_sdone")

    A.label("L_ffn2")
    ffn2_tile(sTl, "s88")
    if COOPQ:
        A(f"v_and_b32 v128, 1, v{vLane}"); A(f"v_mul_u32_u24 v128, {WS_EPB-WS_EP}, v128"); A(f"s_mov_b32 s{st0}, {WS_EP}")
        A(f"buffer_load_dword v130, v128, {srd(sWS)}, s{st0} offen sc1")
    vBw = 64
    if REPACK:
        vBw = 64
        A(f"s_mul_i32 s{st0}, s{sTl}, {W2T_STRIDE}"); A(f"s_add_u32 s{st0}, s{st0}, {WS_W2T}")
        mk_srd(sT, pWS, W2T_STRIDE, off_sgpr=st0)
        A(f"v_lshlrev_b32 v4, 4, v{vLane}"); A(f"s_mul_i32 s{st0}, s3, {11*1024}")
        for s in range(11):
            if s == 4: A(f"s_add_u32 s{st0}, s{st0}, 4096")
            if s == 8: A(f"s_add_u32 s{st0}, s{st0}, 4096")
            A(f"buffer_load_dwordx4 v[{vBw+4*s}:{vBw+4*s+3}], v4, {srd(sT)}, s{st0} offen offset:{(s%4)*1024} sc1")
        A("s_waitcnt vmcnt(0)")
    else:
        tr_addr(4)
        A(f"v_lshrrev_b32 v14, 1, v{vLane}"); A("v_lshlrev_b32 v14, 10, v14")
        A(f"v_and_b32 v6, 1, v{vLane}"); A("v_lshlrev_b32 v6, 4, v6"); A("v_add_u32 v14, v14, v6")
        A(f"s_mul_i32 s{st0}, s3, {384*1024}"); A(f"v_add_u32 v14, s{st0}, v14")
        A(f"s_lshl_b32 s{st1}, s{sTl}, 5")
        A(f"s_add_u32 s{sT}, s{pW2}, s{st1}"); A(f"s_addc_u32 s{sT+1}, s{pW2+1}, 0")
        A(f"s_sub_u32 s{sT+2}, {1376*1024}, s{st1}"); A(f"s_mov_b32 s{sT+3}, 0x20000")
        A(f"s_mov_b32 s{sOff}, 0")
        for n in range(12):
            A(f"buffer_load_dwordx4 v[{16+4*n}:{19+4*n}], v14, {srd(sT)}, s{sOff} offen {WFF}")
            A(f"s_add_u32 s{sOff}, s{sOff}, {32*1024}")
        A(f"v_lshlrev_b32 v15, 4, v{vLane}"); A(f"s_mul_i32 s{st0}, s3, {STG_W}"); A(f"s_add_u32 s{st0}, s{st0}, {L_STG}")
        A(f"v_add_u32 v15, s{st0}, v15")
        for n in range(12):
            A(f"s_waitcnt vmcnt({11-n})")
            A(f"ds_write_b128 v15, v[{16+4*n}:{19+4*n}] offset:{n*1024}")
        vBw = 64
        A("s_waitcnt lgkmcnt(0)")
        for s in range(12):
            A(f"ds_read_b64_tr_b16 v[{vBw+4*s}:{vBw+4*s+1}], v4 offset:{s*1024}")
            A(f"ds_read_b64_tr_b16 v[{vBw+4*s+2}:{vBw+4*s+3}], v4 offset:{s*1024+128}")
            if s % 4 == 3: A("s_waitcnt lgkmcnt(0)")
    A(f"s_and_b32 s{st0}, s88, 3"); A(f"s_mul_i32 s{st0}, s{st0}, {H1_STRIDE}"); A(f"s_add_u32 s{st0}, s{st0}, {WS_H1}")
    mk_srd(sT, pWS, 86*128, off_sgpr=st0)
    A(f"v_bfe_u32 v8, v{vLane}, 2, 2"); A("v_lshlrev_b32 v8, 8, v8")
    A(f"v_lshrrev_b32 v9, 5, v{vLane}"); A("v_lshlrev_b32 v9, 7, v9"); A("v_add_u32 v8, v8, v9")
    A(f"v_and_b32 v9, 3, v{vLane}"); A("v_lshlrev_b32 v9, 5, v9"); A("v_add_u32 v8, v8, v9")
    A(f"v_bfe_u32 v9, v{vLane}, 4, 1"); A("v_lshlrev_b32 v9, 4, v9"); A("v_add_u32 v8, v8, v9")
    A(f"s_mul_i32 s{st0}, s3, {12*256}"); A(f"v_add_u32 v8, s{st0}, v8")
    A(f"v_lshrrev_b32 v10, 4, v{vLane}")
    A(f"v_and_b32 v11, 15, v{vLane}"); A(f"s_lshl_b32 s{st1}, s{sTl}, 4"); A(f"v_add_u32 v11, s{st1}, v11")
    A("v_lshlrev_b32 v12, 1, v11"); A("v_lshlrev_b32 v13, 10, v10"); A("v_add_u32 v12, v12, v13")
    A("v_lshrrev_b32 v13, 5, v11"); A("v_lshlrev_b32 v13, 8, v13"); A("v_lshlrev_b32 v10, 6, v10"); A("v_add_u32 v13, v13, v10")
    A("v_and_b32 v10, 30, v11"); A("v_lshlrev_b32 v10, 1, v10"); A("v_add_u32 v13, v13, v10")
    A(f"v_lshlrev_b32 v6, 2, v{vLane}"); A(f"s_lshl_b32 s{st0}, s3, 8"); A(f"v_add_u32 v5, s{st0}, v6")
    for k in range(16): A(f"v_mov_b32 v{112+k}, 0")
    A("s_mov_b32 s90, 0xffff0000"); A("s_mov_b32 s91, 0"); A("s_mov_b32 s92, 0"); A("s_mov_b32 s93, 0xffff0000"); A("s_mov_b32 s94, 0"); A("s_mov_b32 s95, -1")
    A("s_waitcnt lgkmcnt(0)")
    A(f"s_mov_b32 s{st0}, {WS_H + 8*4096}")
    mk_srd(sC, pOUT, 4096)
    A(f"s_mov_b32 s{sCnt}, {SPIN_LIMIT}")
    A.label("L_f2hspin")
    if SLP2: A(f"s_sleep {SLP2}")
    A(f"buffer_load_dword v14, v13, {srd(sWS)}, s{st0} offen sc1")
    A("s_waitcnt vmcnt(0)")
    spin_check([14], 15, "L_f2hspin", "L_f2hok")
    A("v_and_b32 v11, 1, v11"); A("v_lshlrev_b32 v60, 16, v14"); A("v_and_b32 v61, 0xffff0000, v14")
    A("v_cmp_eq_u32 vcc, 1, v11"); A("v_cndmask_b32 v60, v60, v61, vcc")
    A(f"s_mov_b32 s{sCnt}, {SPIN_LIMIT}")
    if P2:
        for a in range(3): A(f"buffer_load_dwordx4 v[{16+4*a}:{19+4*a}], v8, {srd(sT)}, 0 offen offset:{a*1024} sc1")
        A(f"s_sleep {P2}")
    A.label("L_f2spin")
    if SLB: A(f"s_sleep {SLB}")
    for a in range(3): A(f"buffer_load_dwordx4 v[{16+4*a}:{19+4*a}], v8, {srd(sT)}, 0 offen offset:{a*1024} sc1")
    A(f"s_waitcnt vmcnt({3 if P2 else 0})")
    spin_check(range(16, 28), 15, "L_f2spin", "L_f2ok")
    stamp(7)
    for a in range(3):
        for q_ in range(4):
            A(f"v_mfma_f32_16x16x32_bf16 v[{112+4*q_}:{115+4*q_}], v[{16+4*a}:{19+4*a}], v[{vBw+16*a+4*q_}:{vBw+16*a+4*q_+3}], v[{112+4*q_}:{115+4*q_}]")
    for k in range(4): A(f"v_cndmask_b32 v{112+k}, v{112+k}, v{116+k}, s[90:91]")
    for k in range(4): A(f"v_cndmask_b32 v{120+k}, v{120+k}, v{124+k}, s[92:93]")
    for k in range(4): A(f"v_cndmask_b32 v{112+k}, v{112+k}, v{120+k}, s[94:95]")
    A("v_permlane32_swap_b32 v112, v114"); A("v_permlane32_swap_b32 v113, v115")
    A("v_add_f32 v112, v112, v114"); A("v_add_f32 v113, v113, v115")
    A("v_permlane16_swap_b32 v112, v113"); A("v_add_f32 v112, v112, v113")
    A(f"ds_write_b32 v5, v112 offset:{L_RED}")
    A("s_waitcnt lgkmcnt(0)")
    A("s_barrier")
    A("s_cmp_lg_u32 s3, 0"); A("s_cbranch_scc1 L_sdone")
    for u in range(4): A(f"ds_read_b32 v{120+u}, v6 offset:{L_RED+u*256}")
    A("s_waitcnt lgkmcnt(0)")
    A("v_add_f32 v120, v120, v121"); A("v_add_f32 v122, v122, v123"); A("v_add_f32 v120, v120, v122")
    round_bf16(120)
    A("v_add_f32 v120, v120, v60")
    A("v_cvt_pk_bf16_f32 v120, v120, v120")
    A(f"buffer_store_short v120, v12, {srd(sC)}, 0 offen {OUTF}")
    if COOPQ:
        A("s_cmp_lg_u32 s88, 152"); A("s_cbranch_scc1 L_noep")
        A("v_add_u32 v130, 1, v130")
        A(f"s_mov_b32 s{st0}, {WS_EP}")
        A("s_mov_b64 exec, 3"); A(f"buffer_store_dword v130, v128, {srd(sWS)}, s{st0} offen sc1"); A("s_mov_b64 exec, -1")
        A.label("L_noep")
    stamp(6)
    A("s_branch L_sdone")

    A.label("L_helper")
    if HPRIO: A(f"s_setprio {HPRIO}")
    vW = 128; hAcc = 16; hPlo0, hPhi0, hPlo1, hPhi1 = 24, 25, 26, 27
    vG, vCc = 4, 5
    A(f"s_sub_u32 s{sU}, s3, 4")
    A(f"v_lshrrev_b32 v{vG}, 4, v{vLane}")
    A(f"v_and_b32 v{vCc}, 15, v{vLane}")
    def emit_poison_stores():
        A(f"s_cmp_lg_u32 s{sU}, 0"); A("s_cbranch_scc1 L_nopoison")
        if NOPOIS: A("s_branch L_nopoison")
        for k in range(4): A(f"v_mov_b32 v{32+k}, -1")
        A(f"v_lshrrev_b32 v14, 3, v{vLane}"); A("v_lshlrev_b32 v14, 13, v14")
        A(f"v_and_b32 v15, 7, v{vLane}"); A("v_lshlrev_b32 v15, 4, v15"); A("v_add_u32 v14, v14, v15")
        A(f"s_lshl_b32 s{st0}, s{sB}, 17"); A(f"s_lshl_b32 s{st1}, s{sJ}, 7"); A(f"s_add_u32 s{st0}, s{st0}, s{st1}")
        A(f"buffer_store_dwordx4 v[32:35], v14, {srd(sWS)}, s{st0} offen sc1")
        A(f"s_add_u32 s{st0}, s{st0}, 65536")
        A(f"buffer_store_dwordx4 v[32:35], v14, {srd(sWS)}, s{st0} offen sc1")
        A(f"v_lshlrev_b32 v14, 2, v{vLane}")
        A(f"s_lshl_b32 s{st0}, s{sReg}, 7"); A(f"s_add_u32 s{st0}, s{st0}, {WS_ST}")
        if not SPREAD:
            A("s_mov_b64 exec, 0xf"); A(f"buffer_store_dword v32, v14, {srd(sWS)}, s{st0} offen sc1"); A("s_mov_b64 exec, -1")
        if DEEP:
            A("s_cmp_ge_u32 s2, 8"); A("s_cbranch_scc1 L_pnofin")
            A(f"s_lshl_b32 s{st0}, s2, 7"); A(f"s_add_u32 s{st0}, s{st0}, {WS_FIN}"); A("v_mov_b32 v36, 0")
            A("s_mov_b64 exec, 1"); A(f"buffer_store_dword v36, v36, {srd(sWS)}, s{st0} offen sc1"); A("s_mov_b64 exec, -1")
            A.label("L_pnofin")
        A("s_cmp_ge_u32 s2, 64"); A("s_cbranch_scc1 L_pnored")
        A(f"s_and_b32 s{st0}, s2, 15"); A(f"s_lshl_b32 s{st0}, s{st0}, 8")
        A(f"s_lshr_b32 s{st1}, s2, 4"); A(f"s_lshl_b32 s{st1}, s{st1}, 6"); A(f"s_add_u32 s{st0}, s{st0}, s{st1}")
        A(f"s_add_u32 s{st0}, s{st0}, {WS_H}")
        A(f"v_lshrrev_b32 v36, 4, v{vLane}"); A("v_lshlrev_b32 v36, 12, v36")
        A(f"v_and_b32 v37, 15, v{vLane}"); A("v_lshlrev_b32 v37, 2, v37"); A("v_add_u32 v36, v36, v37")
        A(f"buffer_store_dword v32, v36, {srd(sWS)}, s{st0} offen sc1")
        A(f"s_add_u32 s{st0}, s{st0}, 16384")
        A(f"buffer_store_dword v32, v36, {srd(sWS)}, s{st0} offen sc1")
        A(f"s_add_u32 s{st0}, s{st0}, 16384")
        A("s_mov_b64 exec, 0xffff"); A(f"buffer_store_dword v32, v37, {srd(sWS)}, s{st0} offen sc1"); A("s_mov_b64 exec, -1")
        A("s_branch L_pdone")
        A.label("L_pnored")
        A("s_cmp_ge_u32 s2, 152"); A("s_cbranch_scc1 L_pdone")
        ffn1_tile(sTl)
        A(f"s_cmp_ge_u32 s{sTl}, 86"); A("s_cbranch_scc1 L_pdone")
        A(f"s_lshl_b32 s{st0}, s{sTl}, 7"); A(f"s_add_u32 s{st0}, s{st0}, {WS_H1}")
        A(f"v_lshrrev_b32 v36, 4, v{vLane}"); A(f"v_mul_u32_u24 v36, {H1_STRIDE}, v36")
        A(f"v_and_b32 v37, 15, v{vLane}"); A("v_lshlrev_b32 v37, 3, v37"); A("v_add_u32 v36, v36, v37")
        A(f"buffer_store_dwordx2 v[32:33], v36, {srd(sWS)}, s{st0} offen sc1")
        A.label("L_pdone")
        A.label("L_nopoison")
    sE0, sE1 = 86, 87
    def ln_stats_and_P(xc_regs):
        for r in range(4):
            A(f"v_lshlrev_b32 v{32+2*r}, 16, v{8+r}"); A(f"v_and_b32 v{33+2*r}, 0xffff0000, v{8+r}")
        A("v_add_f32 v40, v32, v33"); A("v_add_f32 v41, v34, v35"); A("v_add_f32 v42, v36, v37"); A("v_add_f32 v43, v38, v39")
        A("v_add_f32 v40, v40, v41"); A("v_add_f32 v42, v42, v43"); A("v_add_f32 v40, v40, v42")
        wave_allreduce("v_add_f32", 40, 41)
        A("v_mul_f32 v40, 0x3b000000, v40")
        for e in range(8): A(f"v_sub_f32 v{32+e}, v{32+e}, v40")
        A("v_mul_f32 v42, v32, v32")
        for e in range(1, 8): A(f"v_fmac_f32 v42, v{32+e}, v{32+e}")
        wave_allreduce("v_add_f32", 42, 41)
        A("v_mul_f32 v42, 0x3b000000, v42")
        round_bf16(40); round_bf16(42)
        A("v_add_f32 v42, 0x3727c5ac, v42"); round_bf16(42)
        A("v_sqrt_f32 v42, v42"); round_bf16(42)
        A("v_rcp_f32 v42, v42")
        for r in xc_regs:
            A(f"v_lshlrev_b32 v{r}, 16, v{r}"); A(f"v_sub_f32 v{r}, v{r}, v40"); round_bf16(r)
            A(f"v_mul_f32 v{r}, v{r}, v42")
    if COOPQ:
        sI = 35
        A(f"s_lshr_b32 s{sI}, s2, 3"); A(f"s_and_b32 s{sI}, s{sI}, 7")
        A(f"s_lshl_b32 s{st0}, s{sU}, 10")
        A(f"v_lshlrev_b32 v6, 2, v{vCc}"); A(f"v_add_u32 v6, v6, v{vG}"); A(f"s_lshl_b32 s{st1}, s{sI}, 6")
        A(f"v_add_u32 v6, s{st1}, v6"); A("v_lshlrev_b32 v6, 1, v6")
        A(f"v_lshlrev_b32 v7, 4, v{vLane}")
        A(f"v_lshlrev_b32 v3, 13, v{vG}"); A(f"v_lshlrev_b32 v14, 4, v{vCc}"); A("v_add_u32 v3, v3, v14")
        A(f"s_lshl_b32 s{st1}, s{sU}, 17"); A(f"v_add_u32 v3, s{st1}, v3")
        A(f"s_lshl_b32 s{sOff}, s{sI}, 19")
        A(f"s_lshl_b32 s{st1}, s{sH}, 8")
        A(f"s_sub_u32 s{st2}, {4<<20}, s{st1}")
        A("s_waitcnt lgkmcnt(0)")
        stamp(7)
        mk_srd(sWS, pWS, WS_SIZE)
        A(f"v_and_b32 v46, 1, v{vLane}"); A(f"v_mul_u32_u24 v46, {WS_EPB-WS_EP}, v46"); A(f"s_mov_b32 s{st3}, {WS_EP}")
        A(f"buffer_load_dword v44, v46, {srd(sWS)}, s{st3} offen sc1")
        mk_srd(sT, pX, 1024, off_sgpr=st0)
        A(f"buffer_load_dwordx4 v[8:11], v7, {srd(sT)}, 0 offen")
        A(f"buffer_load_ushort v12, v6, {srd(sT)}, 0 offen")
        A(f"s_add_u32 s{sC}, s{pWQ}, s{st1}"); A(f"s_addc_u32 s{sC+1}, s{pWQ+1}, 0")
        A(f"s_mov_b32 s{sC+2}, s{st2}"); A(f"s_mov_b32 s{sC+3}, 0x20000")
        for k in range(4):
            A(f"buffer_load_dwordx4 v[{vW+4*k}:{vW+4*k+3}], v3, {srd(sC)}, s{sOff} offen {WQF}")
            if k < 3: A(f"s_add_u32 s{sOff}, s{sOff}, 32768")
        if WOE:
            A(f"v_lshlrev_b32 v47, 10, v{vG}"); A(f"v_lshlrev_b32 v14, 4, v{vCc}"); A("v_add_u32 v47, v47, v14")
            A(f"s_lshl_b32 s{st3}, s{sU}, 8"); A(f"v_add_u32 v47, s{st3}, v47")
            A(f"s_lshl_b32 s{st3}, s{sH}, 17")
            mk_srd(sK, pWO, 131072, off_sgpr=st3)
            A(f"s_mov_b32 s{sOff}, 0")
            for n in range(8*WOE):
                r_ = 64 + 4*n if n < 16 else 192 + 4*(n-16)
                A(f"buffer_load_dwordx4 v[{r_}:{r_+3}], v47, {srd(sK)}, s{sOff} offen {WOF}")
                A(f"s_add_u32 s{sOff}, s{sOff}, 4096")
        A(f"v_lshlrev_b32 v14, 2, v{vLane}"); A("v_mov_b32 v15, -1")
        A("s_mov_b64 exec, 0xfff"); A(f"ds_write_b32 v14, v15 offset:{L_STAT}")
        A("s_mov_b64 exec, 1"); A(f"ds_write_b32 v14, v15 offset:{L_BOOST}")
        A("s_mov_b64 exec, 3"); A("v_mov_b32 v15, 0"); A(f"ds_write_b32 v14, v15 offset:{L_CNT}"); A(f"ds_write_b32 v14, v15 offset:{L_PROG}"); A(f"ds_write_b32 v14, v15 offset:{L_KT}"); A("s_mov_b64 exec, -1")
        A("s_waitcnt lgkmcnt(0)")
        A("s_barrier")
        A(f"v_add_u32 v13, {L_STG}, v7")
        A(f"s_lshl_b32 s{st0}, s{sU}, 12"); A(f"v_add_u32 v14, s{st0}, v13")
        A(f"s_lshl_b32 s{st1}, s{sH}, 2"); A(f"s_add_u32 s{st2}, s{st1}, s{sU}"); A(f"s_lshl_b32 s{st2}, s{st2}, 3"); A(f"s_add_u32 s{st2}, s{st2}, s{sI}")
        A(f"s_lshl_b32 s{st2}, s{st2}, 10"); A(f"s_add_u32 s{st2}, s{st2}, {WS_QX}")
        A(f"s_add_u32 s{st1}, s{st1}, s{sB}"); A(f"s_lshl_b32 s{st1}, s{st1}, 3"); A(f"s_lshl_b32 s{st3}, s{sU}, 1"); A(f"s_add_u32 s{st1}, s{st1}, s{st3}")
        A(f"s_lshl_b32 s{st1}, s{st1}, 10"); A(f"s_add_u32 s{st1}, s{st1}, {WS_QX}")
        A(f"s_waitcnt vmcnt({4 + 8*WOE})")
        stamp(6)
        A(f"v_readlane_b32 s{sE0}, v44, 0"); A(f"v_readlane_b32 s{sE1}, v44, 1")
        A(f"s_add_u32 s{sE0}, s{sE0}, 1"); A(f"s_add_u32 s{sE1}, s{sE1}, 1")
        ln_stats_and_P([12])
        A("v_mov_b32 v15, 0")
        A(f"v_cvt_pk_bf16_f32 v{hPlo0}, v12, v15"); A(f"v_cvt_pk_bf16_f32 v{hPhi0}, v15, v12")
        A(f"s_waitcnt vmcnt({8*WOE})")
        for k in range(4): A(f"ds_write_b128 v14, v[{vW+4*k}:{vW+4*k+3}] offset:{k*1024}")
        A(f"v_mov_b32 v14, {L_CNT2}"); A("v_mov_b32 v15, 1")
        A("s_waitcnt lgkmcnt(0)")
        A("s_mov_b64 exec, 1"); A("ds_add_u32 v14, v15"); A("s_mov_b64 exec, -1")
        A(f"s_mov_b32 s{sCnt}, {SPIN_LIMIT}")
        A.label("L_wspin")
        A("ds_read_b32 v15, v14"); A("s_waitcnt lgkmcnt(0)")
        A("v_cmp_gt_u32 vcc, 4, v15")
        A("s_cbranch_vccz L_wok")
        A(f"s_sub_u32 s{sCnt}, s{sCnt}, 1"); A("s_cbranch_scc0 L_wspin")
        A.label("L_wok")
        for n in range(8): A(f"ds_read_b128 v[{vW+4*n}:{vW+4*n+3}], v13 offset:{n*1024}")
        for e in range(8): A(f"v_mov_b32 v{hAcc+e}, 0")
        for n in range(16):
            if n == 0: A("s_waitcnt lgkmcnt(4)")
            if n == 4:
                A("s_waitcnt lgkmcnt(0)")
                for m in range(8, 16): A(f"ds_read_b128 v[{vW+4*m}:{vW+4*m+3}], v13 offset:{m*1024}")
            if n == 8: A("s_waitcnt lgkmcnt(4)")
            if n == 12: A("s_waitcnt lgkmcnt(0)")
            for k in range(4):
                A(f"v_dot2c_f32_bf16_dpp v{hAcc+2*k}, v{hPlo0}, v{vW+4*n+k} row_newbcast:{n} row_mask:0xf bank_mask:0xf")
                A(f"v_dot2c_f32_bf16_dpp v{hAcc+2*k+1}, v{hPhi0}, v{vW+4*n+k} row_newbcast:{n} row_mask:0xf bank_mask:0xf")
        acc_reduce(hAcc)
        A(f"v_mov_b32 v{hAcc+2}, s{sE0}"); A(f"v_mov_b32 v{hAcc+3}, s{sE1}")
        A(f"buffer_store_dwordx4 v[{hAcc}:{hAcc+3}], v7, {srd(sWS)}, s{st2} offen {QXS}")
        stamp(1)
        if POISQ:
            A(f"s_mov_b32 s89, s{st1}")
            emit_poison_stores()
            A(f"s_mov_b32 s{st1}, s89")
        if QXW < 0: A("s_waitcnt vmcnt(0)")
        elif QXW > 0: A(f"s_sleep {QXW}")
        if DBG & 32: stamp(6)
        A(f"s_mov_b32 s{sCnt}, {SPIN_LIMIT}")
        A.label("L_qxspin")
        A(f"buffer_load_dwordx4 v[32:35], v7, {srd(sWS)}, s{st1} offen {QXL}")
        A(f"buffer_load_dwordx4 v[36:39], v7, {srd(sWS)}, s{st1} offen offset:1024 {QXL}")
        A("s_waitcnt vmcnt(0)")
        A(f"v_xor_b32 v34, s{sE0}, v34"); A(f"v_xor_b32 v35, s{sE1}, v35"); A(f"v_xor_b32 v38, s{sE0}, v38"); A(f"v_xor_b32 v39, s{sE1}, v39")
        A("v_or_b32 v34, v34, v35"); A("v_or3_b32 v34, v34, v38, v39")
        A("v_cmp_ne_u32 vcc, 0, v34")
        A("s_cbranch_vccz L_qxok")
        A(f"s_sub_u32 s{sCnt}, s{sCnt}, 1"); A("s_cbranch_scc0 L_qxspin")
        A.label("L_qxok")
        if DBG & 32: A(f"s_sub_u32 s{sP+14}, {SPIN_LIMIT}, s{sCnt}")
        A(f"v_add_f32 v{hAcc}, v32, v36"); A(f"v_add_f32 v{hAcc+1}, v33, v37")
    else:
        A(f"s_lshl_b32 s{st0}, s{sB}, 10")
        sRq = 35
        if ROTQ:
            A(f"s_lshr_b32 s{sRq}, s2, 3"); A(f"s_and_b32 s{sRq}, s{sRq}, 7"); A(f"s_mul_i32 s{sRq}, s{sRq}, {ROTQ}"); A(f"s_and_b32 s{sRq}, s{sRq}, 31")
        else:
            A(f"s_mov_b32 s{sRq}, 0")
        A(f"s_lshl_b32 s{st1}, s{sU}, 7")
        for t_, reg in ((0, 6), (1, 9)):
            A(f"v_add_u32 v{reg}, s{sRq}, v{vCc}")
            if t_: A(f"v_add_u32 v{reg}, 16, v{reg}")
            A(f"v_and_b32 v{reg}, 31, v{reg}")
            if WQP == 0:
                A(f"v_lshlrev_b32 v{reg}, 2, v{reg}"); A(f"v_add_u32 v{reg}, v{reg}, v{vG}")
            else:
                A(f"v_lshlrev_b32 v14, 5, v{vG}"); A(f"v_add_u32 v{reg}, v{reg}, v14")
            A(f"v_add_u32 v{reg}, s{st1}, v{reg}"); A(f"v_lshlrev_b32 v{reg}, 1, v{reg}")
        A(f"v_mov_b32 v15, v9")
        A(f"v_lshlrev_b32 v7, 4, v{vLane}")
        A(f"v_lshlrev_b32 v3, {13 if WQP == 0 else 18}, v{vG}"); A(f"v_lshlrev_b32 v14, 4, v{vCc}"); A("v_add_u32 v3, v3, v14")
        A(f"s_lshl_b32 s{st1}, s{sU}, 20"); A(f"v_add_u32 v3, s{st1}, v3")
        A(f"s_lshl_b32 s{st1}, s{sH}, 8")
        A(f"s_sub_u32 s{st2}, {4<<20}, s{st1}")
        A("s_waitcnt lgkmcnt(0)")
        stamp(7)
        mk_srd(sT, pX, 1024, off_sgpr=st0)
        A(f"buffer_load_dwordx4 v[8:11], v7, {srd(sT)}, 0 offen")
        A(f"buffer_load_ushort v12, v6, {srd(sT)}, 0 offen")
        A(f"buffer_load_ushort v13, v15, {srd(sT)}, 0 offen")
        A("s_barrier")
        A(f"s_add_u32 s{sC}, s{pWQ}, s{st1}"); A(f"s_addc_u32 s{sC+1}, s{pWQ+1}, 0")
        A(f"s_mov_b32 s{sC+2}, s{st2}"); A(f"s_mov_b32 s{sC+3}, 0x20000")
        A(f"s_lshl_b32 s{sOff}, s{sRq}, {15 if WQP == 0 else 13}")
        for n in range(0 if NOQ else 32):
            A(f"buffer_load_dwordx4 v[{vW+4*n}:{vW+4*n+3}], v3, {srd(sC)}, s{sOff} offen {WQF}")
            if n < 31:
                A(f"s_add_u32 s{sOff}, s{sOff}, {32768 if WQP == 0 else 8192}")
                if ROTQ: A(f"s_and_b32 s{sOff}, s{sOff}, {0xfffff if WQP == 0 else 0x3ffff}")
            if NR and n < 31 and (n+1) % (32//NR) == 0: A("s_barrier")
        if NR == 0 and not PACED: A("s_barrier")
        mk_srd(sWS, pWS, WS_SIZE)
        A(f"v_lshlrev_b32 v14, 2, v{vLane}"); A("v_mov_b32 v15, -1")
        A("s_mov_b64 exec, 0xfff"); A(f"ds_write_b32 v14, v15 offset:{L_STAT}")
        A("s_mov_b64 exec, 1"); A(f"ds_write_b32 v14, v15 offset:{L_BOOST}")
        A("v_mov_b32 v15, 0"); A(f"ds_write_b32 v15, v15 offset:{L_CNT}"); A(f"ds_write_b32 v15, v15 offset:{L_PROG}"); A(f"ds_write_b32 v15, v15 offset:{L_DEEP}"); A("s_mov_b64 exec, -1")
        A("s_waitcnt vmcnt(0)" if NOQ else "s_waitcnt vmcnt(32)")
        stamp(6)
        for r in range(4):
            A(f"v_lshlrev_b32 v{32+2*r}, 16, v{8+r}"); A(f"v_and_b32 v{33+2*r}, 0xffff0000, v{8+r}")
        A("v_add_f32 v40, v32, v33"); A("v_add_f32 v41, v34, v35"); A("v_add_f32 v42, v36, v37"); A("v_add_f32 v43, v38, v39")
        A("v_add_f32 v40, v40, v41"); A("v_add_f32 v42, v42, v43"); A("v_add_f32 v40, v40, v42")
        wave_allreduce("v_add_f32", 40, 41)
        A("v_mul_f32 v40, 0x3b000000, v40")
        for e in range(8): A(f"v_sub_f32 v{32+e}, v{32+e}, v40")
        A("v_mul_f32 v42, v32, v32")
        for e in range(1, 8): A(f"v_fmac_f32 v42, v{32+e}, v{32+e}")
        wave_allreduce("v_add_f32", 42, 41)
        A("v_mul_f32 v42, 0x3b000000, v42")
        round_bf16(40); round_bf16(42)
        A("v_add_f32 v42, 0x3727c5ac, v42"); round_bf16(42)
        A("v_sqrt_f32 v42, v42"); round_bf16(42)
        A("v_rcp_f32 v42, v42")
        for r in (12, 13):
            A(f"v_lshlrev_b32 v{r}, 16, v{r}"); A(f"v_sub_f32 v{r}, v{r}, v40"); round_bf16(r)
            A(f"v_mul_f32 v{r}, v{r}, v42")
        A("v_mov_b32 v15, 0")
        A(f"v_cvt_pk_bf16_f32 v{hPlo0}, v12, v15"); A(f"v_cvt_pk_bf16_f32 v{hPhi0}, v15, v12")
        A(f"v_cvt_pk_bf16_f32 v{hPlo1}, v13, v15"); A(f"v_cvt_pk_bf16_f32 v{hPhi1}, v15, v13")
        A(f"s_mov_b32 s{sTile}, 0")
        stamp(1)
        A.label("L_gemv")
        for e in range(8): A(f"v_mov_b32 v{hAcc+e}, 0")
        for n in range(32):
            A(f"s_waitcnt vmcnt({31-n})")
            lo, hi = (hPlo0, hPhi0) if n < 16 else (hPlo1, hPhi1)
            for k in range(4):
                A(f"v_dot2c_f32_bf16_dpp v{hAcc+2*k}, v{lo}, v{vW+4*n+k} row_newbcast:{n%16} row_mask:0xf bank_mask:0xf")
                A(f"v_dot2c_f32_bf16_dpp v{hAcc+2*k+1}, v{hi}, v{vW+4*n+k} row_newbcast:{n%16} row_mask:0xf bank_mask:0xf")
        acc_reduce(hAcc)
    A(f"v_lshlrev_b32 v14, 5, v{vCc}"); A(f"v_lshlrev_b32 v15, 3, v{vG}"); A("v_add_u32 v14, v14, v15")
    A(f"s_lshl_b32 s{st0}, s{sU}, 9"); A(f"v_add_u32 v14, s{st0}, v14")
    A(f"ds_write_b64 v14, v[{hAcc}:{hAcc+1}] offset:{L_QP}")
    A("s_waitcnt lgkmcnt(0)")
    stamp(2)
    A("s_barrier")
    def emit_poison():
        if not POISQ: emit_poison_stores()
        if TLBV:
            A(f"s_cmp_lg_u32 s{sU}, 1"); A("s_cbranch_scc1 L_notlb")
            A(f"s_lshr_b32 s{st0}, s{sReg}, 1"); A(f"s_lshl_b32 s{st0}, s{st0}, 21")
            mk_srd(sT, pV, 1 << 21, off_sgpr=st0)
            A(f"v_lshlrev_b32 v14, 15, v{vLane}")
            A(f"buffer_load_dword v15, v14, {srd(sT)}, 0 offen nt")
            A("s_waitcnt vmcnt(0)")
            A.label("L_notlb")
        if REPACK:
            A(f"s_lshl_b32 s{st0}, s2, 2"); A(f"s_add_u32 s{st0}, s{st0}, s{sU}")
            A(f"s_cmp_ge_u32 s{st0}, {696 if REPACK else 0}"); A("s_cbranch_scc1 L_rpdone")
            A(f"s_mul_i32 s{st1}, s{sU}, {32*RS}"); A(f"s_add_u32 s{st1}, s{st1}, {L_STG}")
            A(f"v_lshlrev_b32 v15, 4, v{vLane}"); A(f"v_add_u32 v7, s{st1}, v15")
            A(f"v_lshlrev_b32 v6, 3, v{vG}"); A(f"v_lshrrev_b32 v14, 2, v{vCc}"); A("v_add_u32 v6, v6, v14"); A("v_lshlrev_b32 v6, 7, v6")
            A(f"v_and_b32 v14, 3, v{vCc}"); A("v_lshlrev_b32 v14, 3, v14"); A("v_add_u32 v6, v6, v14"); A(f"v_add_u32 v6, s{st1}, v6")
            A(f"v_lshrrev_b32 v3, 3, v{vLane}"); A(f"v_and_b32 v14, 7, v{vLane}"); A("v_lshlrev_b32 v14, 4, v14")
            A(f"s_cmp_ge_u32 s{st0}, 344"); A("s_cbranch_scc1 L_rpw1")
            A(f"s_lshr_b32 s{st2}, s{st0}, 3"); A(f"s_and_b32 s{st3}, s{st0}, 7")
            A("v_lshlrev_b32 v3, 10, v3"); A("v_add_u32 v3, v3, v14")
            A(f"s_lshl_b32 s{sOff}, s{st2}, 15"); A(f"s_lshl_b32 s{st1}, s{st3}, 7"); A(f"s_add_u32 s{sOff}, s{sOff}, s{st1}")
            mk_srd(sT, pW2, 1376*1024)
            A(f"s_mov_b32 s{sTile}, {8*1024}")
            A(f"s_mul_i32 s{st3}, s{st3}, {4*W2T_STRIDE}"); A(f"s_lshl_b32 s{st2}, s{st2}, 10"); A(f"s_add_u32 s{st3}, s{st3}, s{st2}")
            A(f"s_add_u32 s{st3}, s{st3}, {WS_W2T}")
            A(f"s_mov_b32 s{sTl}, {W2T_STRIDE}")
            A("s_branch L_rpgo")
            A.label("L_rpw1")
            A(f"s_sub_u32 s{st0}, s{st0}, 344")
            A(f"s_mul_i32 s{st2}, s{st0}, 2979"); A(f"s_lshr_b32 s{st2}, s{st2}, 16")
            A(f"s_mul_i32 s{st3}, s{st2}, 22"); A(f"s_sub_u32 s{st3}, s{st0}, s{st3}")
            A("v_mul_u32_u24 v3, 2752, v3"); A("v_add_u32 v3, v3, v14")
            A(f"s_mul_i32 s{sOff}, s{st2}, {32*2752}"); A(f"s_lshl_b32 s{st1}, s{st3}, 7"); A(f"s_add_u32 s{sOff}, s{sOff}, s{st1}")
            mk_srd(sT, pW1, 512*2752)
            A(f"s_mov_b32 s{sTile}, {8*2752}")
            A(f"s_lshl_b32 s{st3}, s{st3}, 16"); A(f"s_lshl_b32 s{st2}, s{st2}, 10"); A(f"s_add_u32 s{st3}, s{st3}, s{st2}")
            A(f"s_add_u32 s{st3}, s{st3}, {WS_W1T}")
            A(f"s_mov_b32 s{sTl}, 16384")
            A.label("L_rpgo")
            for n in range(4):
                A(f"buffer_load_dwordx4 v[{32+4*n}:{35+4*n}], v3, {srd(sT)}, s{sOff} offen {WFF}")
                A(f"s_add_u32 s{sOff}, s{sOff}, s{sTile}")
            A("s_waitcnt vmcnt(0)")
            for n in range(4): A(f"ds_write_b128 v7, v[{32+4*n}:{35+4*n}] offset:{n*1024}")
            A("s_waitcnt lgkmcnt(0)")
            for t in range(4):
                A(f"ds_read_b64_tr_b16 v[{48+4*t}:{49+4*t}], v6 offset:{t*32}")
                A(f"ds_read_b64_tr_b16 v[{50+4*t}:{51+4*t}], v6 offset:{t*32+512}")
            A("s_waitcnt lgkmcnt(0)")
            for t in range(4):
                A(f"buffer_store_dwordx4 v[{48+4*t}:{51+4*t}], v15, {srd(sWS)}, s{st3} offen sc1")
                A(f"s_add_u32 s{st3}, s{st3}, s{sTl}")
        A.label("L_rpdone")
        A("s_waitcnt vmcnt(0)")
        if SPREAD == 2:
            A(f"s_cmp_lg_u32 s{sU}, 0"); A("s_cbranch_scc1 L_nosig")
            A(f"s_lshl_b32 s{st0}, s2, 2"); A(f"s_add_u32 s{st0}, s{st0}, {WS_FLAG}")
            A(f"s_mul_i32 s{st1}, s87, 3"); A(f"s_add_u32 s{st1}, s{st1}, s86")
            A(f"v_lshlrev_b32 v14, 10, v{vLane}"); A(f"v_mov_b32 v15, s{st1}")
            A("s_mov_b64 exec, 0xf"); A(f"buffer_store_dword v15, v14, {srd(sWS)}, s{st0} offen sc1"); A("s_mov_b64 exec, -1")
            A.label("L_nosig")
        if not SPREAD:
            A(f"v_mov_b32 v14, {L_CNT}"); A("v_mov_b32 v15, 1")
            A("s_mov_b64 exec, 1"); A("ds_add_rtn_u32 v32, v14, v15"); A("s_waitcnt lgkmcnt(0)"); A("s_mov_b64 exec, -1")
            A(f"v_readfirstlane_b32 s{st0}, v32")
            A(f"s_cmp_lg_u32 s{st0}, 3"); A("s_cbranch_scc1 L_nosig")
            A("v_mov_b32 v14, 0")
            A("s_mov_b64 exec, 1"); A(f"global_atomic_add v14, v15, s[{pDBG}:{pDBG+1}]"); A("s_mov_b64 exec, -1")
            A.label("L_nosig")
    def emit_wo():
        A(f"v_lshlrev_b32 v3, 10, v{vG}"); A(f"v_lshlrev_b32 v14, 4, v{vCc}"); A("v_add_u32 v3, v3, v14")
        A(f"s_lshl_b32 s{st1}, s{sU}, 8"); A(f"v_add_u32 v3, s{st1}, v3")
        A(f"s_lshl_b32 s{st1}, s{sH}, 17")
        mk_srd(sC, pWO, 131072, off_sgpr=st1)
        A(f"s_mul_i32 s{st0}, s{sU}, {32*RS}"); A(f"s_add_u32 s{st0}, s{st0}, {L_STG}")
        A(f"v_mul_u32_u24 v6, {RS}, v{vG}"); A("v_add_u32 v6, v6, v14"); A(f"v_add_u32 v6, s{st0}, v6")
        A(f"v_lshlrev_b32 v7, 3, v{vG}"); A(f"v_lshrrev_b32 v15, 2, v{vCc}"); A("v_add_u32 v7, v7, v15")
        A(f"v_mul_u32_u24 v7, {RS}, v7"); A(f"v_and_b32 v15, 3, v{vCc}"); A("v_lshlrev_b32 v15, 3, v15")
        A("v_add_u32 v7, v7, v15"); A(f"v_add_u32 v7, s{st0}, v7")
        A(f"s_mov_b32 s{sOff}, {WOE*8*4096}")
        for q in range(0 if NOWO else 4):
            src = (64 + 32*q if q < 2 else 192 + 32*(q-2)) if q < WOE else 32
            if q >= WOE:
                for n in range(8):
                    A(f"buffer_load_dwordx4 v[{32+4*n}:{35+4*n}], v3, {srd(sC)}, s{sOff} offen {WOF}")
                    A(f"s_add_u32 s{sOff}, s{sOff}, 4096")
                    if n % PACE == PACE-1: A("s_waitcnt vmcnt(0)")
            A("s_waitcnt vmcnt(0)")
            for n in range(8): A(f"ds_write_b128 v6, v[{src+4*n}:{src+4*n+3}] offset:{4*n*RS}")
            A("s_waitcnt lgkmcnt(0)")
            for t in range(8):
                A(f"ds_read_b64_tr_b16 v[{vW+32*q+4*t}:{vW+32*q+4*t+1}], v7 offset:{t*32}")
                A(f"ds_read_b64_tr_b16 v[{vW+32*q+4*t+2}:{vW+32*q+4*t+3}], v7 offset:{t*32+4*RS}")
            A("s_waitcnt lgkmcnt(0)")
    if POISLATE:
        emit_wo(); emit_poison()
    else:
        emit_poison(); emit_wo()
    A(f"s_cmp_lg_u32 s{sU}, 0"); A("s_cbranch_scc1 L_nostat")
    if SPREAD == 1:
        assert COOPQ and not REPACK
        A(f"s_mul_i32 s{st0}, s2, 6554"); A(f"s_lshr_b32 s{st0}, s{st0}, 16"); A(f"s_mul_i32 s{st0}, s{st0}, 10"); A(f"s_sub_u32 s{st0}, s2, s{st0}")
        A(f"s_add_u32 s{st0}, s{st0}, 5")
        A(f"v_mov_b32 v14, {L_KT}")
        A(f"s_mov_b32 s{sCnt}, {SPIN_LIMIT}")
        A.label("L_sgspin")
        A("s_sleep 8")
        A("ds_read_b32 v15, v14"); A("s_waitcnt lgkmcnt(0)")
        A(f"v_cmp_gt_u32 vcc, s{st0}, v15")
        A("s_cbranch_vccz L_sgok")
        A(f"s_sub_u32 s{sCnt}, s{sCnt}, 1"); A("s_cbranch_scc0 L_sgspin")
        A.label("L_sgok")
        A("v_mov_b32 v14, 0"); A("v_mov_b32 v15, 1")
        A("s_mov_b64 exec, 1"); A(f"global_atomic_add v14, v15, s[{pDBG}:{pDBG+1}]"); A("s_mov_b64 exec, -1")
    A(f"v_and_b32 v14, 3, v{vLane}"); A("v_lshlrev_b32 v14, 3, v14")
    A(f"s_mov_b32 s{sCnt}, {SPIN_LIMIT}")
    A.label("L_stspin")
    A("s_sleep 8")
    A(f"ds_read_b64 v[32:33], v14 offset:{L_STAT}"); A("s_waitcnt lgkmcnt(0)")
    spin_check([32, 33], 34, "L_stspin", "L_stok")
    if BOOST and BST:
        A("s_and_b32 s93, s2, 4"); A("s_cmp_eq_u32 s93, 0"); A(f"s_cselect_b32 s93, 0, {BST}")
        A(f"v_mov_b32 v48, {L_BOOST}"); A("v_mov_b32 v49, s93")
        A("s_mov_b64 exec, 1"); A("ds_write_b32 v48, v49"); A("s_mov_b64 exec, -1")
    elif BOOST and not (BX & 4):
        A("s_memrealtime s[90:91]")
    A("v_max_f32_dpp v34, v32, v32 quad_perm:[1,0,3,2] row_mask:0xf bank_mask:0xf")
    A("v_max_f32_dpp v34, v34, v34 quad_perm:[2,3,0,1] row_mask:0xf bank_mask:0xf")
    A("v_sub_f32 v35, v32, v34"); A("v_mul_f32 v35, 0x3fb8aa3b, v35"); A("v_exp_f32 v35, v35")
    A("v_mul_f32 v35, v35, v33")
    A("v_add_f32_dpp v35, v35, v35 quad_perm:[1,0,3,2] row_mask:0xf bank_mask:0xf")
    A("v_add_f32_dpp v35, v35, v35 quad_perm:[2,3,0,1] row_mask:0xf bank_mask:0xf")
    A("v_mov_b32 v36, 0x7fc00000")
    sanitize([34, 35], 36)
    A("v_mov_b32 v15, 0")
    A(f"s_lshl_b32 s{st0}, s{sReg}, 7"); A(f"s_add_u32 s{st0}, s{st0}, {WS_ST}")
    if SPREAD:
        A("v_mov_b32 v52, v34"); A("v_mov_b32 v53, v35"); A("v_mov_b32 v54, s86"); A("v_mov_b32 v55, s87")
        A("s_mov_b64 exec, 1"); A(f"buffer_store_dwordx4 v[52:55], v15, {srd(sWS)}, s{st0} offen sc1"); A("s_mov_b64 exec, -1")
    else:
        if BOOST and not BST and not (BX & 4):
            A("s_waitcnt lgkmcnt(0)")
            A("s_and_b32 s90, s90, 0x7fffffff")
            A("v_mov_b32 v52, v34"); A("v_mov_b32 v53, v35"); A("v_mov_b32 v54, s90"); A("v_mov_b32 v55, 0")
            A("s_mov_b64 exec, 1"); A(f"buffer_store_dwordx4 v[52:55], v15, {srd(sWS)}, s{st0} offen sc1"); A("s_mov_b64 exec, -1")
        else:
            A("s_mov_b64 exec, 1"); A(f"buffer_store_dwordx2 v[34:35], v15, {srd(sWS)}, s{st0} offen sc1"); A("s_mov_b64 exec, -1")
        A(f"s_mov_b32 s{sCnt}, {SPIN_LIMIT}")
        A.label("L_inspin")
        A(f"global_load_dword v37, v15, s[{pDBG}:{pDBG+1}] sc1"); A("s_waitcnt vmcnt(0)")
        A("v_cmp_gt_u32 vcc, 0x100, v37")
        A("s_cbranch_vccz L_inok")
        A("s_sleep 4")
        A(f"s_sub_u32 s{sCnt}, s{sCnt}, 1"); A("s_cbranch_scc0 L_inspin")
        A.label("L_inok")
    if BOOST and not BST and not (BX & 4):
        A(f"v_bfe_u32 v48, v{vLane}, 1, 2"); A("v_lshlrev_b32 v48, 5, v48")
        A(f"v_bfe_u32 v49, v{vLane}, 3, 2"); A("v_lshlrev_b32 v49, 3, v49"); A("v_add_u32 v48, v48, v49")
        A(f"s_and_b32 s{st1}, s2, 7"); A(f"v_add_u32 v48, s{st1}, v48"); A("v_lshlrev_b32 v48, 1, v48")
        A(f"v_and_b32 v49, 1, v{vLane}"); A("v_add_u32 v48, v48, v49"); A("v_lshlrev_b32 v48, 7, v48")
        A(f"s_mov_b32 s{st1}, {WS_ST + 8}")
        A(f"buffer_load_dword v50, v48, {srd(sWS)}, s{st1} offen sc1"); A("s_waitcnt vmcnt(0)")
        A("v_cmp_ne_u32 vcc, -1, v50")
        A("v_sub_u32 v51, s90, v50"); A("v_lshlrev_b32 v51, 1, v51"); A("v_ashrrev_i32 v51, 1, v51")
        A("v_cvt_f32_i32 v51, v51")
        A("v_mov_b32 v52, 0"); A("v_mov_b32 v53, 1.0")
        A("v_cndmask_b32 v51, v52, v51, vcc"); A("v_cndmask_b32 v53, v52, v53, vcc")
        wave_allreduce("v_add_f32", 51, 52); wave_allreduce("v_add_f32", 53, 52)
        A("v_rcp_f32 v53, v53"); A("v_mul_f32 v51, v51, v53")
        A(f"v_mul_f32 v51, {hex(__import__('struct').unpack('<I', __import__('struct').pack('<f', 1.0/BOOST))[0])}, v51")
        A("v_max_f32 v51, 0, v51"); A("v_min_f32 v51, 0x41800000, v51"); A("v_cvt_u32_f32 v51, v51")
        A(f"v_mov_b32 v48, {L_BOOST}")
        A("s_mov_b64 exec, 1"); A("ds_write_b32 v48, v51"); A("s_mov_b64 exec, -1")
    A(f"s_xor_b32 s{st1}, s{sReg}, 1"); A(f"s_lshl_b32 s{st1}, s{st1}, 7"); A(f"s_add_u32 s{st1}, s{st1}, {WS_ST}")
    A(f"s_mov_b32 s{sCnt}, {SPIN_LIMIT}")
    A.label("L_prspin")
    A("s_sleep 4")
    if SPREAD:
        A(f"buffer_load_dwordx4 v[56:59], v15, {srd(sWS)}, s{st1} offen sc1"); A("s_waitcnt vmcnt(0)")
        A("v_xor_b32 v58, s86, v58"); A("v_xor_b32 v59, s87, v59"); A("v_or_b32 v58, v58, v59")
        A("v_cmp_ne_u32 vcc, 0, v58")
        A("s_cbranch_vccz L_prok")
        A(f"s_sub_u32 s{sCnt}, s{sCnt}, 1"); A("s_cbranch_scc0 L_prspin")
        A.label("L_prok")
        A("v_mov_b32 v38, v56"); A("v_mov_b32 v39, v57")
    else:
        A(f"buffer_load_dwordx2 v[38:39], v15, {srd(sWS)}, s{st1} offen sc1"); A("s_waitcnt vmcnt(0)")
        spin_check([38, 39], 37, "L_prspin", "L_prok")
    A("v_max_f32 v40, v34, v38")
    A("v_sub_f32 v41, v34, v40"); A("v_sub_f32 v42, v38, v40"); A("v_sub_f32 v43, v32, v40")
    for r in (41, 42, 43): A(f"v_mul_f32 v{r}, 0x3fb8aa3b, v{r}")
    for r in (41, 42, 43): A(f"v_exp_f32 v{r}, v{r}")
    A("v_mul_f32 v41, v41, v35"); A("v_fmac_f32 v41, v42, v39")
    A("v_rcp_f32 v41, v41"); A("v_mul_f32 v43, v43, v41")
    sanitize([43], 36)
    A(f"v_lshlrev_b32 v14, 2, v{vLane}")
    A("s_mov_b64 exec, 0xf"); A(f"ds_write_b32 v14, v43 offset:{L_FW}"); A("s_mov_b64 exec, -1")
    A("s_waitcnt lgkmcnt(0)")
    if DEEP:
        A(f"v_mov_b32 v48, {L_PROG}")
        A(f"s_and_b32 s{st0}, s2, 7"); A(f"s_lshl_b32 s{st0}, s{st0}, 7"); A(f"s_add_u32 s{st0}, s{st0}, {WS_FIN}"); A("v_mov_b32 v49, 0")
        A(f"s_mov_b32 s{sCnt}, {SPIN_LIMIT}")
        A.label("L_dpspin")
        A(f"s_sleep {DPS}")
        A("ds_read_b32 v50, v48"); A("s_waitcnt lgkmcnt(0)")
        A(f"v_readfirstlane_b32 s{st1}, v50")
        A(f"s_cmp_eq_u32 s{st1}, 2"); A("s_cbranch_scc1 L_dpdone")
        A(f"s_cmp_eq_u32 s{st1}, 0"); A("s_cbranch_scc1 L_dpnext")
        A(f"buffer_load_dword v50, v49, {srd(sWS)}, s{st0} offen sc1"); A("s_waitcnt vmcnt(0)")
        A(f"v_readfirstlane_b32 s{st1}, v50")
        A(f"s_cmp_lt_u32 s{st1}, {DEEP}"); A("s_cbranch_scc1 L_dpnext")
        A("v_mov_b32 v50, 1"); A("s_mov_b64 exec, 1"); A(f"ds_write_b32 v48, v50 offset:{L_DEEP-L_PROG}"); A("s_mov_b64 exec, -1")
        A("s_waitcnt lgkmcnt(0)"); A("s_branch L_dpdone")
        A.label("L_dpnext")
        A(f"s_sub_u32 s{sCnt}, s{sCnt}, 1"); A("s_cbranch_scc0 L_dpspin")
        A.label("L_dpdone")
    A.label("L_nostat")
    A(f"v_and_b32 v14, 3, v{vLane}"); A("v_lshlrev_b32 v14, 8, v14")
    A(f"v_lshlrev_b32 v15, 4, v{vG}"); A("v_add_u32 v14, v14, v15")
    A(f"v_bfe_u32 v14, v{vLane}, 2, 2"); A("v_lshlrev_b32 v14, 8, v14"); A("v_add_u32 v14, v14, v15")
    A(f"v_lshlrev_b32 v6, 13, v{vG}"); A(f"v_lshlrev_b32 v7, 3, v{vCc}"); A("v_add_u32 v6, v6, v7")
    A(f"s_lshl_b32 s{st0}, s{sB}, 4"); A(f"s_lshl_b32 s{st1}, s{sU}, 2"); A(f"s_add_u32 s{st0}, s{st0}, s{st1}")
    A(f"s_lshl_b32 s{st0}, s{st0}, 13"); A(f"s_lshl_b32 s{st1}, s{sJ}, 7"); A(f"s_add_u32 s{sReg}, s{st0}, s{st1}")
    A("v_mov_b32 v7, 0x7fc00000")
    for k in range(32): A(f"v_mov_b32 v{64+k}, 0")
    stamp(3)
    A("s_barrier")
    stamp(4)
    for q in range(4): A(f"ds_read_b128 v[{32+4*q}:{35+4*q}], v14 offset:{L_OW+q*64}")
    for q in range(4):
        A(f"s_waitcnt lgkmcnt({3-q})")
        for t in range(8):
            A(f"v_mfma_f32_16x16x32_bf16 v[{64+4*t}:{67+4*t}], v[{32+4*q}:{35+4*q}], v[{vW+32*q+4*t}:{vW+32*q+4*t+3}], v[{64+4*t}:{67+4*t}]")
    Dt = [64+4*t for t in range(8)]
    for e in range(4): A(f"v_permlane32_swap_b32 v{Dt[e]}, v{Dt[e+4]}")
    for e in range(4): A(f"v_add_f32 v{Dt[e]}, v{Dt[e]}, v{Dt[e+4]}")
    A(f"v_permlane16_swap_b32 v{Dt[0]}, v{Dt[2]}"); A(f"v_permlane16_swap_b32 v{Dt[1]}, v{Dt[3]}")
    A(f"v_add_f32 v16, v{Dt[0]}, v{Dt[2]}"); A(f"v_add_f32 v17, v{Dt[1]}, v{Dt[3]}")
    sanitize([16, 17], 7)
    A(f"buffer_store_dwordx2 v[16:17], v6, {srd(sWS)}, s{sReg} offen sc1")
    A("s_barrier")
    stamp(5)
    if PROF and not COOPQ:
        A("s_waitcnt vmcnt(0)")
        stamp(1)
    prof_store(0)
    A.label("L_end")
    A("s_endpgm")
    A('.section .rodata,"a"'); A(".p2align 6"); A(f".amdhsa_kernel {NAME}")
    A("  .amdhsa_next_free_vgpr 256"); A("  .amdhsa_next_free_sgpr 96"); A("  .amdhsa_accum_offset 256")
    A("  .amdhsa_group_segment_fixed_size 0"); A("  .amdhsa_kernarg_size 88"); A("  .amdhsa_user_sgpr_count 2")
    A("  .amdhsa_user_sgpr_kernarg_segment_ptr 1"); A("  .amdhsa_system_sgpr_workgroup_id_x 1")
    A("  .amdhsa_float_denorm_mode_32 3"); A("  .amdhsa_float_denorm_mode_16_64 3")
    A(".end_amdhsa_kernel")
    return A.finalize()

if __name__ == "__main__":
    import build
    kw = json.loads(sys.argv[2]) if len(sys.argv) > 2 else {}
    s = gen(**kw)
    open(sys.argv[1], "w").write(s)
    build.build(sys.argv[1])
```

```python
import sys, json
from asmlib import Asm
NAME = "sequential_preLN__gqa_block_cached__dense_activation_relu__decode_kernel"

WS_Y  = 0x00000
WS_H  = 0x80000
WS_H1 = 0x8A000
H1_STRIDE = 11264
WS_ST = 0x98000
WS_W1T = 0x100000
WS_W2T = 0x280000
W2T_STRIDE = 43*1024
WS_PROF = 0x400000
WS_FLAG = 0xA2000
WS_FIN = 0xA1000
WS_EP = 0x97000
WS_EPB = 0x700000
WS_QX = 0x600000
WS_SIZE = 0x701000
L_QP = 0; L_OW = 2048; L_STAT = 4096; L_FW = 4128
L_CNT = 4160; L_CNT2 = 4164; L_ROLE = 4168; L_BOOST = 4172; L_PROG = 4176; L_DEEP = 4180; L_KT = 4184; L_RR = 4352; L_RED = 4608; L_RED2 = L_RED + 4096; L_RED3 = L_RED2 + 2048
L_SC = 16384; L_STG = 32768; STG_W = 12288; RS = 288
LDS_BYTES = L_STG + 4*STG_W
POISON = -1
SPIN_LIMIT = 1 << 18


HEADER = """
;
"""

def brev4(n): return int(f"{n:04b}"[::-1], 2)

def gen(D=6, PROF=False, PACE=4, DBG=0, WQF='', WOF='', WFF='', NOWO=0, NOSTG=0, D0=5, SLP1=4, SLP2=4, SLPR=0, REPACK=0, NR=0, D2=12, NT2=0, ROTK=0, ROTQ=0, HB=16, G=2, WQP=0, TLBV=0, PACED=0, I0=16, COOPQ=0, QXS='sc1', QXL='sc1', NOQ=0, PD=1, STG=4, SLB=0, DYN=0, DV=0, OUTF='', BOOST=0, BMED=127, BD=6, BX=0, BST=0, QXW=-1, DEEP=0, DPT=9, DPS=24, POISLATE=0, SPREAD=0, NOPOIS=0, TKF='sc0', TKLATE=0, WOE=0, POISQ=0, P2=0, P1=0, PRIO=0, HPRIO=0, VLAST=0, YB=0, XT=0, WOC=0, WOX=0, XTEST=0):
    A = Asm()
    R = 16
    for line in HEADER.strip("\n").split("\n"): A(line)
    A(f"; @launch grid=(256,1,1) block=(512,1,1) lds={LDS_BYTES}")
    A('.amdgcn_target "amdgcn-amd-amdhsa--gfx950"')
    A(".text"); A(f".globl {NAME}"); A(".p2align 8"); A(f".type {NAME},@function"); A.label(NAME)
    sK, sV, sC, sWS, sT = 4, 8, 12, 16, 20
    sM0, sM1 = 24, 26
    sH, sB, sHalf, sReg = 28, 29, 30, 31
    sOff, sTile, sU = 32, 33, 34
    st0, st1, st2, st3 = 58, 59, 60, 61
    sJ = 62
    sCnt = 63
    sP = 64
    pX, pK, pV, pWQ, pWO, pW1, pW2, pOUT, pDBG, pWS = 36, 38, 40, 42, 44, 48, 50, 52, 54, 56
    srd = lambda s: f"s[{s}:{s+3}]"
    nst = [0]
    def stamp(i):
        if PROF: A(f"s_memrealtime s[{sP+2*i}:{sP+2*i+1}]")
    def prof_store(slot_wave):
        if not PROF: return
        A("s_waitcnt vmcnt(0) lgkmcnt(0)")
        A(f"s_lshl_b32 s{st0}, s2, 3"); A(f"s_add_u32 s{st0}, s{st0}, s3"); A(f"s_lshl_b32 s{st0}, s{st0}, 6")
        A(f"s_add_u32 s{st0}, s{st0}, {WS_PROF}")
        for i in range(8):
            A(f"v_mov_b32 v{40+i}, s{sP+2*i}")
        A(f"s_getreg_b32 s{st1}, hwreg(HW_REG_XCC_ID)"); A(f"s_getreg_b32 s{st2}, hwreg(HW_REG_HW_ID)")
        A(f"v_mov_b32 v50, s{st1}"); A(f"v_mov_b32 v51, s88")
        A(f"v_mov_b32 v48, 0")
        A("s_mov_b64 s[60:61], exec"); A("s_mov_b64 exec, 1")
        A(f"buffer_store_dwordx4 v[40:43], v48, {srd(sWS)}, s{st0} offen")
        A(f"buffer_store_dwordx4 v[44:47], v48, {srd(sWS)}, s{st0} offen offset:16")
        A(f"buffer_store_dwordx2 v[50:51], v48, {srd(sWS)}, s{st0} offen offset:32")
        A("s_mov_b64 exec, s[60:61]")
    def mk_srd(s, p, size, off_sgpr=None, off_imm=None):
        if off_sgpr is not None:
            A(f"s_add_u32 s{s}, s{p}, s{off_sgpr}"); A(f"s_addc_u32 s{s+1}, s{p+1}, 0")
        elif off_imm is not None:
            A(f"s_add_u32 s{s}, s{p}, {off_imm}"); A(f"s_addc_u32 s{s+1}, s{p+1}, 0")
        else:
            A(f"s_mov_b32 s{s}, s{p}"); A(f"s_mov_b32 s{s+1}, s{p+1}")
        A(f"s_mov_b32 s{s+2}, {size}")
        A(f"s_mov_b32 s{s+3}, 0x20000")
    def wave_allreduce(op, x, t):
        for k in (8, 4, 2, 1):
            A(f"{op}_dpp v{x}, v{x}, v{x} row_ror:{k} row_mask:0xf bank_mask:0xf")
        A(f"v_mov_b32 v{t}, v{x}"); A(f"v_permlane16_swap_b32 v{x}, v{t}"); A(f"{op} v{x}, v{x}, v{t}")
        A(f"v_mov_b32 v{t}, v{x}"); A(f"v_permlane32_swap_b32 v{x}, v{t}"); A(f"{op} v{x}, v{x}, v{t}")
    def round_bf16(x, t=None):
        A(f"v_cvt_pk_bf16_f32 v{x}, v{x}, v{x}")
        A(f"v_and_b32 v{x}, 0xffff0000, v{x}")
    def acc_reduce(a):
        for e in range(4):
            A(f"v_permlane32_swap_b32 v{a+e}, v{a+e+4}")
        for e in range(4):
            A(f"v_add_f32 v{a+e}, v{a+e}, v{a+e+4}")
        A(f"v_permlane16_swap_b32 v{a}, v{a+2}")
        A(f"v_permlane16_swap_b32 v{a+1}, v{a+3}")
        A(f"v_add_f32 v{a}, v{a}, v{a+2}")
        A(f"v_add_f32 v{a+1}, v{a+1}, v{a+3}")
    def sanitize(regs, repl_sgpr, tmpmask="vcc"):
        for r in regs:
            A(f"v_cmp_eq_u32 vcc, -1, v{r}")
            A(f"v_cndmask_b32 v{r}, v{r}, v{repl_sgpr}, vcc")
    def spin_check(regs, tmp, loop, done, fail=None):
        rs = list(regs)
        if len(rs) == 1:
            m = rs[0]
        else:
            A(f"v_max_u32 v{tmp}, v{rs[0]}, v{rs[1]}"); rs = rs[2:]
            while len(rs) >= 2:
                A(f"v_max3_u32 v{tmp}, v{tmp}, v{rs[0]}, v{rs[1]}"); rs = rs[2:]
            if rs: A(f"v_max_u32 v{tmp}, v{tmp}, v{rs[0]}")
            m = tmp
        A(f"v_cmp_eq_u32 vcc, -1, v{m}")
        A(f"s_cbranch_vccz {done}")
        A(f"s_sub_u32 s{sCnt}, s{sCnt}, 1")
        A(f"s_cbranch_scc0 {loop}")
        A.label(done)

    stamp(0)
    A("s_cmp_ge_u32 s2, 256")
    A("s_cbranch_scc1 L_end")
    A("s_load_dwordx16 s[36:51], s[0:1], 0")
    A("s_load_dwordx4 s[52:55], s[0:1], 64")
    A("s_load_dwordx2 s[56:57], s[0:1], 80")
    A("v_lshrrev_b32 v1, 6, v0")
    A("v_and_b32 v2, 63, v0")
    A(f"s_and_b32 s{st0}, s2, 7")
    A("v_readfirstlane_b32 s3, v1")
    A(f"s_lshr_b32 s{st1}, s2, 3")
    A(f"s_lshr_b32 s{sH}, s{st1}, 3"); A(f"s_lshl_b32 s{sH}, s{sH}, 3"); A(f"s_add_u32 s{sH}, s{sH}, s{st0}")
    A(f"s_and_b32 s{st1}, s{st1}, 7")
    A(f"s_lshr_b32 s{sB}, s{st1}, 1")
    A(f"s_and_b32 s{sHalf}, s{st1}, 1")
    A(f"s_lshl_b32 s{sReg}, s{sB}, 5"); A(f"s_add_u32 s{sReg}, s{sReg}, s{sH}")
    A(f"s_lshl_b32 s{sReg}, s{sReg}, 1"); A(f"s_add_u32 s{sReg}, s{sReg}, s{sHalf}")
    A(f"s_lshl_b32 s{sJ}, s{sH}, 1"); A(f"s_add_u32 s{sJ}, s{sJ}, s{sHalf}")
    A("s_cmp_ge_u32 s3, 4")
    A("s_cbranch_scc1 L_helper")

    vLane, vOff = 2, 3
    vQ = 4; vAcc = 8; vP = 16; vtA, vtB = 32, 33; vM, vL, vSC, vPn, vPlo, vPhi = 34, 35, 36, 37, 38, 39
    vRing = 64
    ring = lambda i: vRing + 4*(i % R)
    if PRIO: A(f"s_setprio {PRIO}")
    A("s_getpc_b64 s[58:59]")
    A.label("L_pc")
    A(f"s_sub_u32 s58, s58, L_pc-{NAME}"); A("s_subb_u32 s59, s59, 0")
    A(f"v_lshlrev_b32 v40, 7, v{vLane}")
    A(f"s_lshl_b32 s{st2}, s3, 13")
    A(f"v_add_u32 v40, s{st2}, v40")
    A(f"v_min_u32 v40, L_end-{NAME}, v40")
    A("global_load_dword v41, v40, s[58:59]")
    A(f"v_lshlrev_b32 v{vOff}, 4, v{vLane}")
    A(f"s_mul_i32 s{st0}, s3, {1024*G}")
    A(f"v_add_u32 v{vOff}, s{st0}, v{vOff}")
    A(f"s_lshr_b32 s{st0}, s{sReg}, 1"); A(f"s_lshl_b32 s{st0}, s{st0}, 21")
    A(f"s_lshl_b32 s{st3}, s{sHalf}, {HB}"); A(f"s_add_u32 s{st0}, s{st0}, s{st3}")
    A(f"s_sub_u32 s{st3}, {1<<21 if HB < 20 else 1<<20}, s{st3}") if HB < 20 else A(f"s_mov_b32 s{st3}, {1<<20}")
    A("s_waitcnt lgkmcnt(0)")
    mk_srd(sK, pK, 1 << 20, off_sgpr=st0)
    A(f"s_mov_b32 s{sK+2}, s{st3}")
    sRot = 35
    if ROTK:
        A(f"s_mul_i32 s{sRot}, s2, {ROTK}"); A(f"s_and_b32 s{sRot}, s{sRot}, 255"); A(f"s_lshl_b32 s{sRot}, s{sRot}, 12")
    else:
        A(f"s_mov_b32 s{sRot}, 0")
    A(f"s_mov_b32 s{sOff}, s{sRot}")
    vX = 160
    vY = 208
    def sload(i, s, extra=False, dst=None):
        if dst is None: dst = vX + 4*(i-16) if extra else ring(i)
        A(f"buffer_load_dwordx4 v[{dst}:{dst+3}], v{vOff}, {srd(s)}, s{sOff} offen nt")
        p_ = i % 16
        def addr(p):
            o = (p//G)*4*G*1024 + (p%G)*1024
            return o if HB >= 20 else ((o >> HB) << (HB+1)) | (o & ((1 << HB)-1))
        assert HB >= 20 or (1 << HB) <= 65536
        inc = addr(p_+1) - addr(p_) if p_ < 15 else (addr(16) - addr(15))
        A(f"s_add_u32 s{sOff}, s{sOff}, {inc}")
        if ROTK: A(f"s_and_b32 s{sOff}, s{sOff}, 0xfffff")
    for i in range(D0): sload(i, sK)
    A("s_barrier")
    if COOPQ: assert PACED
    if PACED:
        for i in range(D0, I0):
            if i >= PACED: A(f"s_waitcnt vmcnt({PACED-1})")
            sload(i, sK, extra=(i >= 16))
    elif NR == 0:
        A("s_barrier")
        for i in range(D0, R): sload(i, sK)
    else:
        rest = list(range(D0, R))
        for r_ in range(NR):
            lo = len(rest)*r_//NR; hi = len(rest)*(r_+1)//NR
            for i in rest[lo:hi]: sload(i, sK)
            if r_ < NR-1: A("s_barrier")
    mk_srd(sV, pV, 1 << 20, off_sgpr=st0)
    A(f"s_mov_b32 s{sV+2}, s{st3}")
    for k in range(4): A(f"s_mov_b32 s{sC+k}, s{sK+k}")
    mk_srd(sWS, pWS, WS_SIZE)
    A(f"s_mov_b32 s{sM0}, 0xaaaaaaaa"); A(f"s_mov_b32 s{sM0+1}, 0xaaaaaaaa")
    A(f"s_mov_b32 s{sM1}, 0xcccccccc"); A(f"s_mov_b32 s{sM1+1}, 0xcccccccc")
    A(f"s_lshl_b32 s{st2}, s3, 12"); A(f"s_add_u32 s{st2}, s{st2}, {L_SC}")
    A(f"v_lshlrev_b32 v{vSC}, 2, v{vLane}"); A(f"v_add_u32 v{vSC}, s{st2}, v{vSC}")
    A(f"v_mov_b32 v{vM}, 0xff7fffff")
    A(f"v_and_b32 v42, 15, v{vLane}"); A("v_lshlrev_b32 v42, 5, v42")
    if DBG & 4:
        A(f"s_waitcnt vmcnt({16-D0})"); stamp(6); A("s_waitcnt vmcnt(0)"); stamp(7)
    stamp(1)
    A("s_barrier")
    if YB:
        assert I0 > 16 and I0 + D <= 32 and vX + 4*(I0-16) <= vY
        for i_ in range(I0, I0 + D): sload(i_, sK, dst=vY + 4*(i_-I0))
    vqt = 128
    for u in range(4):
        A(f"ds_read_b128 v[{vqt+8*u}:{vqt+8*u+3}], v42 offset:{L_QP+u*512}")
        A(f"ds_read_b128 v[{vqt+8*u+4}:{vqt+8*u+7}], v42 offset:{L_QP+u*512+16}")
    A("s_waitcnt lgkmcnt(0)")
    for e in range(8):
        A(f"v_add_f32 v{vqt+e}, v{vqt+e}, v{vqt+8+e}")
        A(f"v_add_f32 v{vqt+16+e}, v{vqt+16+e}, v{vqt+24+e}")
    for e in range(8): A(f"v_add_f32 v{vqt+e}, v{vqt+e}, v{vqt+16+e}")
    for r in range(4): A(f"v_cvt_pk_bf16_f32 v{vQ+r}, v{vqt+2*r}, v{vqt+2*r+1}")
    if DBG & 1:
        A("s_cmp_lg_u32 s3, 0"); A("s_cbranch_scc1 L_dbgq")
        A(f"s_lshl_b32 s{st2}, s{sReg}, 8"); A(f"s_add_u32 s{st2}, s{st2}, {WS_PROF+0x80000}")
        A(f"v_lshlrev_b32 v40, 4, v{vLane}")
        A("s_mov_b64 exec, 0xffff")
        A(f"buffer_store_dwordx4 v[{vQ}:{vQ+3}], v40, {srd(sWS)}, s{st2} offen")
        A("s_mov_b64 exec, -1")
        A("s_waitcnt vmcnt(0)")
        A.label("L_dbgq")
    stamp(2)
    vW0, vW1, vS = 44, 45, 46
    def k_tail_ops():
        P = lambda n: vP + n
        g = []
        g.append([f"v_add_f32_dpp v{P(14)}, v{P(14)}, v{P(14)} row_ror:8 row_mask:0xf bank_mask:0x3",
                  f"v_add_f32_dpp v{P(14)}, v{P(15)}, v{P(15)} row_ror:8 row_mask:0xf bank_mask:0xc"])
        g.append([f"v_add_f32_dpp v{P(12)}, v{P(12)}, v{P(12)} row_shl:4 row_mask:0xf bank_mask:0x5",
                  f"v_add_f32_dpp v{P(12)}, v{P(14)}, v{P(14)} row_shr:4 row_mask:0xf bank_mask:0xa"])
        g.append([f"v_add_f32_dpp v{vtA}, v{P(8)}, v{P(8)} quad_perm:[2,3,0,1] row_mask:0xf bank_mask:0xf",
                  f"v_add_f32_dpp v{vtB}, v{P(12)}, v{P(12)} quad_perm:[2,3,0,1] row_mask:0xf bank_mask:0xf",
                  f"v_cndmask_b32 v{vW1}, v{vtA}, v{vtB}, s[{sM1}:{sM1+1}]"])
        g.append([f"v_add_f32_dpp v{vtA}, v{vW0}, v{vW0} quad_perm:[1,0,3,2] row_mask:0xf bank_mask:0xf",
                  f"v_add_f32_dpp v{vtB}, v{vW1}, v{vW1} quad_perm:[1,0,3,2] row_mask:0xf bank_mask:0xf",
                  f"v_cndmask_b32 v{vS}, v{vtA}, v{vtB}, s[{sM0}:{sM0+1}]"])
        g.append([f"v_cvt_pk_bf16_f32 v{vS}, v{vS}, v{vS}", f"v_and_b32 v{vS}, 0xffff0000, v{vS}"])
        g.append([f"v_mul_f32 v{vS}, 0x3db504f3, v{vS}", f"v_cvt_pk_bf16_f32 v{vS}, v{vS}, v{vS}"])
        g.append([f"v_and_b32 v{vS}, 0xffff0000, v{vS}", f"v_max_f32 v{vM}, v{vM}, v{vS}",
                  f"ds_write_b32 v{vSC}, v{vS}", f"v_add_u32 v{vSC}, 256, v{vSC}"])
        return g
    def k_tile(first, pt=0):
        P = lambda n: vP + n
        def redA(k):
            A(f"v_add_f32_dpp v{P(2*k)}, v{P(2*k)}, v{P(2*k)} row_ror:8 row_mask:0xf bank_mask:0x3")
            A(f"v_add_f32_dpp v{P(2*k)}, v{P(2*k+1)}, v{P(2*k+1)} row_ror:8 row_mask:0xf bank_mask:0xc")
        def redB(m):
            A(f"v_add_f32_dpp v{P(4*m)}, v{P(4*m)}, v{P(4*m)} row_shl:4 row_mask:0xf bank_mask:0x5")
            A(f"v_add_f32_dpp v{P(4*m)}, v{P(4*m+2)}, v{P(4*m+2)} row_shr:4 row_mask:0xf bank_mask:0xa")
        def redC0():
            A(f"v_add_f32_dpp v{vtA}, v{P(0)}, v{P(0)} quad_perm:[2,3,0,1] row_mask:0xf bank_mask:0xf")
            A(f"v_add_f32_dpp v{vtB}, v{P(4)}, v{P(4)} quad_perm:[2,3,0,1] row_mask:0xf bank_mask:0xf")
            A(f"v_cndmask_b32 v{vW0}, v{vtA}, v{vtB}, s[{sM1}:{sM1+1}]")
        tail = [] if (first and pt == 0) else k_tail_ops()
        for n in range(16):
            pos = 16*pt + n
            if not first: A(f"s_waitcnt vmcnt({D-1})")
            else:
                if YB: younger = (I0 - 1 - pos) + D if pos < I0 else D-1
                else:  younger = max(0, I0 - 1 - pos) + max(0, min(pos, 1 << 30) - (I0 - D)) if pos < I0 else D-1
                A(f"s_waitcnt vmcnt({younger})")
            if (not first) or (pos >= I0 if YB else pos + D >= I0):
                if n == 16 - D and not first:
                    A(f"s_cmp_eq_u32 s{sTile}, 15")
                    A(f"s_cselect_b32 s{sC}, s{sV}, s{sC}")
                    A(f"s_cselect_b32 s{sC+1}, s{sV+1}, s{sC+1}")
                    A(f"s_cselect_b32 s{sOff}, s{sRot}, s{sOff}")
                sload(n + D, sC)
            r = vX + 4*n if (first and pt == 1 and pos < I0) else ring(n)
            if YB and first and I0 <= pos < I0 + D: r = vY + 4*(pos - I0)
            A(f"v_dot2_f32_bf16 v{P(n)}, v{r}, v{vQ}, 0")
            for k in range(1, 4): A(f"v_dot2_f32_bf16 v{P(n)}, v{r+k}, v{vQ+k}, v{P(n)}")
            if n < len(tail):
                for x in tail[n]: A(x)
            if n >= 2 and n % 2 == 0: redA((n-2)//2)
            if n in (5, 9, 13): redB((n-5)//4)
            if n == 11: redC0()
    A(f"s_mov_b32 s{sTile}, 0")
    k_tile(True, 0)
    if I0 > 16:
        k_tile(True, 1)
    A(f"s_mov_b32 s{sTile}, {2 if I0 > 16 else 1}")
    if SPREAD: A(f"v_mov_b32 v43, {L_KT}")
    A.label("L_kloop")
    k_tile(False)
    A(f"s_add_u32 s{sTile}, s{sTile}, 1")
    if SPREAD == 1:
        A(f"v_mov_b32 v47, s{sTile}"); A(f"ds_write_b32 v43, v47")
    if PROF and (DBG & 16):
        A(f"s_cmp_lg_u32 s{sTile}, 3"); A("s_cbranch_scc1 L_nk1"); stamp(1); A.label("L_nk1")
        A(f"s_cmp_lg_u32 s{sTile}, 6"); A("s_cbranch_scc1 L_nk2"); stamp(6); A.label("L_nk2")
        A(f"s_cmp_lg_u32 s{sTile}, 11"); A("s_cbranch_scc1 L_nk3"); stamp(7); A.label("L_nk3")
    A(f"s_cmp_lt_u32 s{sTile}, 16")
    A("s_cbranch_scc1 L_kloop")
    for i_ in range(D, D + XT): sload(i_, sC)
    for grp in k_tail_ops():
        for x in grp: A(x)
    stamp(3)
    A(f"v_subrev_u32 v{vSC}, 4096, v{vSC}")
    A("s_waitcnt lgkmcnt(0)")
    for t in range(16): A(f"ds_read_b32 v{vP+t}, v{vSC} offset:{t*256}")
    wave_allreduce("v_max_f32", vM, vtA)
    A(f"v_mul_f32 v{vtB}, 0xbfb8aa3b, v{vM}")
    A(f"s_mov_b32 s{st0}, 0x3fb8aa3b")
    A("s_waitcnt lgkmcnt(0)")
    for t in range(16): A(f"v_fma_f32 v{vP+t}, v{vP+t}, s{st0}, v{vtB}")
    for t in range(16): A(f"v_exp_f32 v{vP+t}, v{vP+t}")
    A(f"v_add_f32 v{vL}, v{vP}, v{vP+1}")
    for t in range(2, 16): A(f"v_add_f32 v{vL}, v{vL}, v{vP+t}")
    for t in range(16): A(f"v_cvt_pk_bf16_f32 v{vP+t}, v{vP+t}, v{vP+t}")
    for t in range(16): A(f"ds_write_b32 v{vSC}, v{vP+t} offset:{t*256}")
    wave_allreduce("v_add_f32", vL, vtA)
    A(f"v_mov_b32 v40, v{vM}"); A(f"v_mov_b32 v41, v{vL}")
    A("v_mov_b32 v43, 0x7fc00000")
    sanitize([40, 41], 43)
    A(f"s_lshl_b32 s{st0}, s3, 3"); A(f"s_add_u32 s{st0}, s{st0}, {L_STAT}"); A(f"v_mov_b32 v42, s{st0}")
    A("s_mov_b64 exec, 1"); A("ds_write_b64 v42, v[40:41]"); A("s_mov_b64 exec, -1")
    A(f"v_mov_b32 v{vPn}, v{vP}")
    for e in range(8): A(f"v_mov_b32 v{vAcc+e}, 0")
    A(f"s_mov_b32 s{sTile}, 0")
    def pre_end():
        A(f"v_and_b32 v40, 15, v{vLane}"); A("v_lshlrev_b32 v40, 4, v40")
        A(f"v_lshrrev_b32 v41, 4, v{vLane}"); A("v_lshlrev_b32 v41, 2, v41")
        A("v_add_u32 v40, v40, v41")
        A(f"s_lshl_b32 s{st0}, s3, 8"); A(f"s_add_u32 s{st0}, s{st0}, {L_OW}"); A(f"v_add_u32 v40, s{st0}, v40")
        A(f"s_lshl_b32 s{st0}, s3, 2"); A(f"s_add_u32 s{st0}, s{st0}, {L_FW}"); A(f"v_mov_b32 v42, s{st0}")
        if DEEP:
            A(f"s_and_b32 s{st0}, s2, 7"); A(f"s_lshl_b32 s{st0}, s{st0}, 7"); A(f"s_add_u32 s{st0}, s{st0}, {WS_FIN}"); A(f"v_mov_b32 v44, s{st0}")
        else:
            A(f"s_and_b32 s{st0}, s2, 7"); A(f"s_lshl_b32 s{st0}, s{st0}, 2"); A(f"s_add_u32 s{st0}, s{st0}, 32"); A(f"v_mov_b32 v44, s{st0}")
        A("v_mov_b32 v46, 1")
        A(f"s_mov_b32 s{sCnt}, {SPIN_LIMIT}")
        A.label("L_fwspin")
        A("ds_read_b32 v43, v42"); A("s_waitcnt lgkmcnt(0)")
        spin_check([43], 47, "L_fwspin", "L_fwok")
    def v_loop(label, depth, tend):
        A.label(label)
        A(f"v_and_b32 v{vPlo}, 0xffff, v{vPn}")
        A(f"v_and_b32 v{vPhi}, 0xffff0000, v{vPn}")
        A(f"v_add_u32 v{vSC}, 256, v{vSC}")
        A(f"ds_read_b32 v{vPn}, v{vSC}")
        for n in range(16):
            A(f"s_waitcnt vmcnt({depth-1})")
            r = ring(n); bl = brev4(n)
            if ROTK and n == 16 - depth and tend == 16:
                A(f"s_cmp_eq_u32 s{sTile}, 15"); A(f"s_cselect_b32 s{sC+2}, 0, s{sC+2}")
            sload(n + depth, sC)
            for k in range(4):
                A(f"v_dot2c_f32_bf16_dpp v{vAcc+2*k}, v{vPlo}, v{r+k} row_newbcast:{bl} row_mask:0xf bank_mask:0xf")
                A(f"v_dot2c_f32_bf16_dpp v{vAcc+2*k+1}, v{vPhi}, v{r+k} row_newbcast:{bl} row_mask:0xf bank_mask:0xf")
        A("s_waitcnt lgkmcnt(0)")
        A(f"s_add_u32 s{sTile}, s{sTile}, 1")
        if PROF and (DBG & 8) and label == "L_vloop":
            A(f"s_cmp_lg_u32 s{sTile}, 1"); A("s_cbranch_scc1 L_nost"); stamp(1); A.label("L_nost")
        A(f"s_cmp_lt_u32 s{sTile}, {tend}")
        A(f"s_cbranch_scc1 {label}")
    def v_last(depth):
        A(f"v_and_b32 v{vPlo}, 0xffff, v{vPn}")
        A(f"v_and_b32 v{vPhi}, 0xffff0000, v{vPn}")
        for n in range(16):
            A(f"s_waitcnt vmcnt({min(16, n + depth) - (n + 1)})")
            r = ring(n); bl = brev4(n)
            if n + depth < 16: sload(n + depth, sC)
            for k in range(4):
                A(f"v_dot2c_f32_bf16_dpp v{vAcc+2*k}, v{vPlo}, v{r+k} row_newbcast:{bl} row_mask:0xf bank_mask:0xf")
                A(f"v_dot2c_f32_bf16_dpp v{vAcc+2*k+1}, v{vPhi}, v{r+k} row_newbcast:{bl} row_mask:0xf bank_mask:0xf")
    DVV = DV if DV else D
    assert XT == 0 or DVV == D
    for i_ in range(D, DVV): sload(i_, sC)
    def v_body(depth, skippable=False, tag="", flagread=False, skipn=0):
        A(f"v_and_b32 v{vPlo}, 0xffff, v{vPn}")
        A(f"v_and_b32 v{vPhi}, 0xffff0000, v{vPn}")
        A(f"v_add_u32 v{vSC}, 256, v{vSC}")
        A(f"ds_read_b32 v{vPn}, v{vSC}")
        if (skippable and not (BX & 1)) or flagread: A(f"ds_read_b32 v45, v47")
        for n in range(16):
            A(f"s_waitcnt vmcnt({depth-1})")
            r = ring(n); bl = brev4(n)
            if skippable and n < BD - DVV and not (BX & 2):
                A(f"s_cmp_gt_u32 s89, {n}"); A(f"s_cbranch_scc1 L_vskip{n}")
                sload(n + depth, sC)
                A.label(f"L_vskip{n}")
            elif n >= skipn:
                sload(n + depth, sC)
            for k in range(4):
                A(f"v_dot2c_f32_bf16_dpp v{vAcc+2*k}, v{vPlo}, v{r+k} row_newbcast:{bl} row_mask:0xf bank_mask:0xf")
                A(f"v_dot2c_f32_bf16_dpp v{vAcc+2*k+1}, v{vPhi}, v{r+k} row_newbcast:{bl} row_mask:0xf bank_mask:0xf")
        A("s_waitcnt lgkmcnt(0)")
        A(f"s_add_u32 s{sTile}, s{sTile}, 1")
    if XT:
        assert not (DEEP or BOOST)
        v_body(DVV, skipn=XT)
    if DVV < D:
        assert not (DEEP or BOOST)
        v_body(DVV, skipn=D-DVV)
    if DEEP:
        assert NT2 >= 1 and not ROTK and not BOOST and DYN
        TE = 16 - NT2
        A(f"v_mov_b32 v47, {L_DEEP}"); A(f"v_mov_b32 v46, {L_PROG}")
        A.label("L_vloop")
        v_body(DVV, skippable=False, flagread=True)
        A(f"s_cmp_ge_u32 s{sTile}, {TE}"); A("s_cbranch_scc1 L_vexit")
        A(f"s_cmp_lg_u32 s{sTile}, {DPT}"); A("s_cbranch_scc1 L_vnoprog")
        A("v_mov_b32 v44, 1"); A("s_mov_b64 exec, 1"); A("ds_write_b32 v46, v44"); A("s_mov_b64 exec, -1")
        A.label("L_vnoprog")
        A("v_readfirstlane_b32 s91, v45")
        A("s_cmp_eq_u32 s91, 0"); A("s_cbranch_scc1 L_vloop")
        A.label("L_vexit")
        if PROF: A(f"s_mov_b32 s{sP+2}, s{sTile}")
        A("v_mov_b32 v44, 2"); A("s_mov_b64 exec, 1"); A("ds_write_b32 v46, v44"); A("s_mov_b64 exec, -1")
        pre_end()
        for i_ in range(DVV, D2): sload(i_, sC)
        v_loop("L_vloop2", D2, 16)
    elif BOOST:
        assert NT2 >= 1 and not ROTK
        TE = 16 - NT2
        A("s_mov_b32 s89, 0"); A(f"s_mov_b32 s90, {1 if BX & 8 else 0}"); A(f"v_mov_b32 v47, {L_BOOST}"); A("v_mov_b32 v45, -1")
        A.label("L_vloop")
        v_body(DVV, skippable=True)
        A("s_mov_b32 s89, 0")
        A(f"s_cmp_ge_u32 s{sTile}, {TE}"); A("s_cbranch_scc1 L_vexit")
        A("s_cmp_lg_u32 s90, 0"); A("s_cbranch_scc1 L_vloop")
        A("v_readfirstlane_b32 s91, v45")
        A("s_cmp_eq_u32 s91, -1"); A("s_cbranch_scc1 L_vloop")
        A("s_mov_b32 s90, 1")
        A(f"s_sub_u32 s{st0}, {TE-1}, s{sTile}"); A(f"s_min_u32 s91, s91, s{st0}")
        if PROF: A(f"s_mov_b32 s{sP+2}, s91")
        A("s_cmp_eq_u32 s91, 0"); A("s_cbranch_scc1 L_vloop")
        for i_ in range(DVV, BD): sload(i_, sC)
        A.label("L_vboost")
        v_body(BD)
        A("s_sub_u32 s91, s91, 1"); A("s_cmp_lg_u32 s91, 0"); A("s_cbranch_scc1 L_vboost")
        A(f"s_mov_b32 s89, {BD-DVV}")
        A("s_branch L_vloop")
        A.label("L_vexit")
        pre_end()
        for i_ in range(DVV, D2): sload(i_, sC)
        v_loop("L_vloop2", D2, 16)
    elif NT2 == 0:
        v_loop("L_vloop", DVV, 16)
    else:
        v_loop("L_vloop", DVV, 16 - NT2)
        pre_end()
        for i_ in range(DVV, D2): sload(i_, sC)
        if VLAST and NT2 == 1: v_last(D2)
        else: v_loop("L_vloop2", D2, 16)
    if NT2 == 0: pre_end()
    stamp(4)
    if DYN:
        A("s_cmp_lg_u32 s3, 0"); A("s_cbranch_scc1 L_notick")
        if DEEP:
            A("v_mov_b32 v45, v46")
            A("s_mov_b64 exec, 1"); A(f"buffer_atomic_add v45, v44, {srd(sWS)}, 0 offen sc0"); A("s_mov_b64 exec, -1")
        else:
            A("s_mov_b64 exec, 1"); A(f"global_atomic_add v45, v44, v46, s[{pDBG}:{pDBG+1}] {TKF}"); A("s_mov_b64 exec, -1")
        A.label("L_notick")
    acc_reduce(vAcc)
    A(f"v_mul_f32 v{vAcc}, v{vAcc}, v43"); A(f"v_mul_f32 v{vAcc+1}, v{vAcc+1}, v43")
    A(f"v_cvt_pk_bf16_f32 v{vAcc}, v{vAcc}, v{vAcc+1}")
    A(f"ds_write_b32 v40, v{vAcc}")
    A("s_waitcnt lgkmcnt(0)")
    A("s_barrier")
    stamp(5)
    A("s_waitcnt vmcnt(0)")
    sVid = 88
    A("s_cmp_lg_u32 s3, 0"); A("s_cbranch_scc1 L_norole")
    if DYN:
        A(f"v_readfirstlane_b32 s{st0}, v45")
        A(f"s_and_b32 s{st1}, s2, 7")
        A(f"s_lshl_b32 s{st2}, s{st0}, 3"); A(f"s_add_u32 s{st2}, s{st2}, s{st1}")
        A(f"s_mov_b32 s{sVid}, 255")
        A(f"s_sub_u32 s{st3}, s{st2}, {8*15}"); A(f"s_cmp_lt_u32 s{st0}, 23"); A(f"s_cselect_b32 s{sVid}, s{st3}, s{sVid}")
        A(f"s_add_u32 s{st3}, s{st2}, {64-8*4}"); A(f"s_cmp_lt_u32 s{st0}, 15"); A(f"s_cselect_b32 s{sVid}, s{st3}, s{sVid}")
        A(f"s_add_u32 s{st3}, s{st2}, 152"); A(f"s_cmp_lt_u32 s{st0}, 4"); A(f"s_cselect_b32 s{sVid}, s{st3}, s{sVid}")
    else:
        A(f"s_mov_b32 s{sVid}, s2")
    if SPREAD:
        A(f"s_cmp_ge_u32 s{sVid}, 184"); A("s_cbranch_scc1 L_inok2")
        if SPREAD == 1:
            A("v_mov_b32 v46, 0"); A(f"s_mov_b32 s{sCnt}, {SPIN_LIMIT}")
            A.label("L_inspin2")
            A(f"global_load_dword v47, v46, s[{pDBG}:{pDBG+1}] sc1"); A("s_waitcnt vmcnt(0)")
            A("v_cmp_gt_u32 vcc, 0x100, v47")
            A("s_cbranch_vccz L_inok2")
            A("s_sleep 2")
            A(f"s_sub_u32 s{sCnt}, s{sCnt}, 1"); A("s_cbranch_scc0 L_inspin2")
        else:
            A(f"v_and_b32 v46, 1, v{vLane}"); A(f"v_mul_u32_u24 v46, {WS_EPB-WS_EP}, v46"); A(f"s_mov_b32 s{st1}, {WS_EP}")
            A(f"buffer_load_dword v47, v46, {srd(sWS)}, s{st1} offen sc1")
            A(f"s_bfe_u32 s{st1}, s2, 0x20003"); A(f"s_lshl_b32 s{st1}, s{st1}, 10"); A(f"s_add_u32 s{st1}, s{st1}, {WS_FLAG}")
            A(f"v_lshlrev_b32 v46, 4, v{vLane}"); A(f"s_mov_b32 s{sCnt}, {SPIN_LIMIT}")
            A.label("L_inspin2")
            A(f"buffer_load_dwordx4 v[48:51], v46, {srd(sWS)}, s{st1} offen sc1"); A("s_waitcnt vmcnt(0)")
            A(f"v_readlane_b32 s{st2}, v47, 0"); A(f"v_readlane_b32 s{st3}, v47, 1")
            A(f"s_mul_i32 s{st3}, s{st3}, 3"); A(f"s_add_u32 s{st2}, s{st2}, s{st3}"); A(f"s_add_u32 s{st2}, s{st2}, 4")
            A(f"v_mov_b32 v52, s{st2}")
            for k in range(4): A(f"v_xor_b32 v{48+k}, v52, v{48+k}")
            A("v_or3_b32 v48, v48, v49, v50"); A("v_or_b32 v48, v48, v51")
            A("v_cmp_ne_u32 vcc, 0, v48")
            A("s_cbranch_vccz L_inok2")
            A("s_sleep 2")
            A(f"s_sub_u32 s{sCnt}, s{sCnt}, 1"); A("s_cbranch_scc0 L_inspin2")
        A.label("L_inok2")
    A(f"v_mov_b32 v44, {L_ROLE}"); A(f"v_mov_b32 v45, s{sVid}")
    A("s_mov_b64 exec, 1"); A("ds_write_b32 v44, v45"); A("s_mov_b64 exec, -1")
    A("s_waitcnt lgkmcnt(0)")
    A.label("L_norole")
    A("s_barrier")
    A(f"v_mov_b32 v44, {L_ROLE}"); A("ds_read_b32 v45, v44"); A("s_waitcnt lgkmcnt(0)")
    A(f"v_readfirstlane_b32 s{sVid}, v45")
    A(f"s_cmp_lt_u32 s{sVid}, 64"); A("s_cbranch_scc1 L_red")
    A(f"s_cmp_lt_u32 s{sVid}, 152"); A("s_cbranch_scc1 L_ffn1")
    A(f"s_cmp_lt_u32 s{sVid}, 184"); A("s_cbranch_scc1 L_ffn2")
    A.label("L_sdone")
    prof_store(0)
    A("s_endpgm")

    A.label("L_red")
    A(f"s_lshl_b32 s{st0}, s88, 13"); A(f"s_lshl_b32 s{st1}, s3, 11"); A(f"s_add_u32 s{st0}, s{st0}, s{st1}")
    A(f"v_lshlrev_b32 v3, 4, v{vLane}")
    A(f"s_lshr_b32 s{st3}, s88, 4"); A(f"s_lshl_b32 s{st1}, s{st3}, 10")
    A(f"s_and_b32 s{st2}, s88, 15"); A(f"s_lshl_b32 s{sTile}, s{st2}, 6"); A(f"s_add_u32 s{st1}, s{st1}, s{sTile}")
    A(f"v_and_b32 v4, 7, v{vLane}"); A("v_lshlrev_b32 v4, 2, v4")
    A(f"v_lshrrev_b32 v5, 5, v{vLane}"); A("v_lshlrev_b32 v5, 5, v5"); A("v_add_u32 v4, v4, v5")
    mk_srd(sT, pX, 4096)
    A(f"buffer_load_dword v6, v4, {srd(sT)}, s{st1} offen")
    A(f"v_bfe_u32 v5, v{vLane}, 3, 2"); A("v_lshlrev_b32 v5, 12, v5"); A("v_add_u32 v7, v4, v5")
    A(f"s_lshl_b32 s{st2}, s{st2}, 8"); A(f"s_lshl_b32 s{st3}, s{st3}, 6"); A(f"s_add_u32 s{st1}, s{st2}, s{st3}")
    A(f"s_add_u32 s{st1}, s{st1}, {WS_H}")
    A(f"v_lshlrev_b32 v9, 1, v4")
    A(f"s_lshl_b32 s{st2}, s3, 7"); A(f"v_add_u32 v10, s{st2}, v9")
    A(f"s_mov_b32 s{sCnt}, {SPIN_LIMIT}")
    def red_issue():
        A(f"buffer_load_dwordx4 v[16:19], v3, {srd(sWS)}, s{st0} offen sc1")
    A(f"buffer_load_dwordx4 v[16:19], v3, {srd(sWS)}, s{st0} offen sc1")
    A(f"buffer_load_dwordx4 v[20:23], v3, {srd(sWS)}, s{st0} offen offset:1024 sc1")
    for d_ in range(PD-1):
        A(f"s_sleep {STG}")
        A(f"buffer_load_dwordx4 v[16:19], v3, {srd(sWS)}, s{st0} offen sc1")
        A(f"buffer_load_dwordx4 v[20:23], v3, {srd(sWS)}, s{st0} offen offset:1024 sc1")
    A.label("L_redspin")
    A(f"s_waitcnt vmcnt({2*(PD-1)})")
    A("v_max3_u32 v8, v16, v17, v18"); A("v_max3_u32 v11, v20, v21, v22")
    A("v_max_u32 v8, v8, v19"); A("v_max_u32 v11, v11, v23")
    A("v_cmp_eq_u32 s[80:81], -1, v8"); A("v_cmp_eq_u32 s[82:83], -1, v11")
    A("s_or_b64 s[84:85], s[80:81], s[82:83]")
    A("s_cbranch_scc0 L_redok")
    if SLPR: A(f"s_sleep {SLPR}")
    A("s_or_b32 s80, s80, 1"); A("s_or_b32 s82, s82, 1")
    A("s_mov_b64 exec, s[80:81]")
    A(f"buffer_load_dwordx4 v[16:19], v3, {srd(sWS)}, s{st0} offen sc1")
    A("s_mov_b64 exec, s[82:83]")
    A(f"buffer_load_dwordx4 v[20:23], v3, {srd(sWS)}, s{st0} offen offset:1024 sc1")
    A("s_mov_b64 exec, -1")
    A(f"s_sub_u32 s{sCnt}, s{sCnt}, 1"); A("s_cbranch_scc0 L_redspin")
    A.label("L_redok")
    stamp(7)
    if PROF: A(f"s_sub_u32 s{sP+2}, {SPIN_LIMIT}, s{sCnt}")
    for k in range(4): A(f"v_add_f32 v{24+k}, v{16+k}, v{20+k}")
    A("v_permlane32_swap_b32 v24, v25"); A("v_permlane32_swap_b32 v26, v27")
    A("v_add_f32 v24, v24, v25"); A("v_add_f32 v25, v26, v27")
    A("v_mov_b32 v26, v24"); A("v_mov_b32 v27, v25")
    A("v_permlane16_swap_b32 v24, v26"); A("v_permlane16_swap_b32 v25, v27")
    A("v_add_f32 v24, v24, v26"); A("v_add_f32 v25, v25, v27")
    A("v_add_f32_dpp v24, v24, v24 row_ror:8 row_mask:0xf bank_mask:0xf")
    A("v_add_f32_dpp v25, v25, v25 row_ror:8 row_mask:0xf bank_mask:0xf")
    A(f"ds_write_b64 v10, v[24:25] offset:{L_RR}")
    A("s_waitcnt lgkmcnt(0)")
    A("s_barrier")
    A("s_cmp_lg_u32 s3, 0"); A("s_cbranch_scc1 L_sdone")
    for u in range(4): A(f"ds_read_b64 v[{32+2*u}:{33+2*u}], v9 offset:{L_RR+u*128}")
    A("v_lshlrev_b32 v40, 16, v6"); A("v_and_b32 v41, 0xffff0000, v6")
    A("v_mov_b32 v42, 0x7fc07fc0")
    A("s_waitcnt lgkmcnt(0)")
    A("v_add_f32 v32, v32, v34"); A("v_add_f32 v33, v33, v35"); A("v_add_f32 v36, v36, v38"); A("v_add_f32 v37, v37, v39")
    A("v_add_f32 v32, v32, v36"); A("v_add_f32 v33, v33, v37")
    A("v_cvt_pk_bf16_f32 v32, v32, v33")
    A("v_lshlrev_b32 v34, 16, v32"); A("v_and_b32 v35, 0xffff0000, v32")
    A("v_add_f32 v34, v34, v40"); A("v_add_f32 v35, v35, v41")
    A("v_cvt_pk_bf16_f32 v32, v34, v35")
    sanitize([32], 42)
    A(f"buffer_store_dword v32, v7, {srd(sWS)}, s{st1} offen sc1")
    A(f"s_add_u32 s{st1}, s{st1}, 16384")
    A(f"buffer_store_dword v32, v7, {srd(sWS)}, s{st1} offen sc1")
    A(f"s_add_u32 s{st1}, s{st1}, 16384")
    A("s_mov_b32 exec_lo, 0xff"); A("s_mov_b32 exec_hi, 0xff")
    A(f"buffer_store_dword v32, v4, {srd(sWS)}, s{st1} offen sc1")
    A("s_mov_b64 exec, -1")
    stamp(6)
    A("s_branch L_sdone")

    def ffn1_tile(dst, src="s2"):
        A(f"s_sub_u32 s{st0}, {src}, 64")
        A(f"s_and_b32 s{st1}, s{st0}, 7")
        A(f"s_lshr_b32 s{st0}, s{st0}, 3")
        A(f"s_lshr_b32 s{st2}, s{st0}, 2"); A(f"s_lshl_b32 s{st2}, s{st2}, 3"); A(f"s_add_u32 s{st2}, s{st2}, s{st1}")
        A(f"s_lshl_b32 s{st2}, s{st2}, 2"); A(f"s_and_b32 s{st3}, s{st0}, 3"); A(f"s_add_u32 s{st2}, s{st2}, s{st3}")
        A(f"s_mul_i32 s{st1}, s{st1}, 3"); A(f"s_add_u32 s{st1}, s{st1}, s{st0}"); A(f"s_add_u32 s{st1}, s{st1}, 56")
        A(f"s_cmp_lt_u32 s{st0}, 8"); A(f"s_cselect_b32 s{dst}, s{st2}, s{st1}")
    def ffn2_tile(dst, src="s2"):
        A(f"s_sub_u32 s{st0}, {src}, 152"); A(f"s_and_b32 s{st1}, s{st0}, 7"); A(f"s_lshr_b32 s{st0}, s{st0}, 3")
        A(f"s_lshl_b32 s{st1}, s{st1}, 2"); A(f"s_add_u32 s{dst}, s{st1}, s{st0}")
    sTl = 35
    def tr_addr(v):
        A(f"v_lshrrev_b32 v{v}, 4, v{vLane}"); A(f"v_lshlrev_b32 v{v}, 8, v{v}")
        A(f"v_bfe_u32 v40, v{vLane}, 2, 2"); A("v_lshlrev_b32 v40, 5, v40"); A(f"v_add_u32 v{v}, v{v}, v40")
        A(f"v_and_b32 v40, 3, v{vLane}"); A("v_lshlrev_b32 v40, 3, v40"); A(f"v_add_u32 v{v}, v{v}, v40")
        A(f"s_mul_i32 s{st0}, s3, {STG_W}"); A(f"s_add_u32 s{st0}, s{st0}, {L_STG}"); A(f"v_add_u32 v{v}, s{st0}, v{v}")
    A.label("L_ffn1")
    ffn1_tile(sTl, "s88")
    A(f"s_cmp_ge_u32 s{sTl}, 86"); A("s_cbranch_scc1 L_sdone")
    vA = 64
    if REPACK:
        vA = 64
        A(f"s_lshl_b32 s{st0}, s{sTl}, 14"); A(f"s_lshl_b32 s{st1}, s3, 12"); A(f"s_add_u32 s{st0}, s{st0}, s{st1}")
        A(f"s_add_u32 s{st0}, s{st0}, {WS_W1T}")
        A(f"v_lshlrev_b32 v4, 4, v{vLane}")
        for s in range(4): A(f"buffer_load_dwordx4 v[{vA+4*s}:{vA+4*s+3}], v4, {srd(sWS)}, s{st0} offen offset:{s*1024} sc1")
    else:
        A(f"v_lshrrev_b32 v14, 1, v{vLane}"); A("v_mul_u32_u24 v14, 2752, v14")
        A(f"v_and_b32 v6, 1, v{vLane}"); A("v_lshlrev_b32 v6, 4, v6"); A("v_add_u32 v14, v14, v6")
        A(f"s_mul_i32 s{st0}, s3, {128*2752}"); A(f"v_add_u32 v14, s{st0}, v14")
        A(f"s_lshl_b32 s{st1}, s{sTl}, 5")
        A(f"s_add_u32 s{sT}, s{pW1}, s{st1}"); A(f"s_addc_u32 s{sT+1}, s{pW1+1}, 0")
        A(f"s_sub_u32 s{sT+2}, {512*2752}, s{st1}"); A(f"s_mov_b32 s{sT+3}, 0x20000")
        A(f"s_mov_b32 s{sOff}, 0")
        for n in range(4):
            A(f"buffer_load_dwordx4 v[{16+4*n}:{19+4*n}], v14, {srd(sT)}, s{sOff} offen {WFF}")
            A(f"s_add_u32 s{sOff}, s{sOff}, {32*2752}")
        A(f"v_lshlrev_b32 v15, 4, v{vLane}"); A(f"s_mul_i32 s{st0}, s3, {STG_W}"); A(f"s_add_u32 s{st0}, s{st0}, {L_STG}")
        A(f"v_add_u32 v15, s{st0}, v15")
        tr_addr(4)
        A("s_waitcnt vmcnt(0)")
        for n in range(4): A(f"ds_write_b128 v15, v[{16+4*n}:{19+4*n}] offset:{n*1024}")
        vA = 64
        for s in range(4):
            A(f"ds_read_b64_tr_b16 v[{vA+4*s}:{vA+4*s+1}], v4 offset:{s*1024}")
            A(f"ds_read_b64_tr_b16 v[{vA+4*s+2}:{vA+4*s+3}], v4 offset:{s*1024+128}")
    for k in range(4): A(f"v_mov_b32 v{80+k}, 0x3f803f80")
    for k in range(4): A(f"v_mov_b32 v{84+k}, 0")
    A("s_waitcnt vmcnt(0) lgkmcnt(0)")
    for s in range(4): A(f"v_mfma_f32_16x16x32_bf16 v[84:87], v[{vA+4*s}:{vA+4*s+3}], v[80:83], v[84:87]")
    A(f"v_lshlrev_b32 v5, 4, v{vLane}"); A(f"s_lshl_b32 s{st0}, s3, 10"); A(f"v_add_u32 v5, s{st0}, v5")
    A(f"v_lshlrev_b32 v6, 3, v{vLane}"); A(f"s_lshl_b32 s{st0}, s3, 9"); A(f"v_add_u32 v6, s{st0}, v6")
    A(f"ds_write_b128 v5, v[84:87] offset:{L_RED3}")
    A("s_waitcnt lgkmcnt(0)")
    A("s_barrier")
    A(f"v_lshlrev_b32 v7, 4, v{vLane}")
    for u in range(4): A(f"ds_read_b128 v[{16+4*u}:{19+4*u}], v7 offset:{L_RED3+u*1024}")
    A(f"v_and_b32 v8, 15, v{vLane}"); A("v_lshlrev_b32 v8, 6, v8")
    A(f"v_lshrrev_b32 v9, 4, v{vLane}"); A("v_lshlrev_b32 v9, 4, v9"); A("v_add_u32 v8, v8, v9")
    A(f"s_lshl_b32 s{st0}, s3, 10"); A(f"v_add_u32 v8, s{st0}, v8")
    A("s_waitcnt lgkmcnt(0)")
    for k in range(4):
        A(f"v_add_f32 v{16+k}, v{16+k}, v{20+k}"); A(f"v_add_f32 v{24+k}, v{24+k}, v{28+k}")
    for k in range(4): A(f"v_add_f32 v{84+k}, v{16+k}, v{24+k}")
    A(f"s_and_b32 s{st0}, s88, 7"); A(f"s_lshl_b32 s{st0}, s{st0}, 12"); A(f"s_add_u32 s{st0}, s{st0}, {WS_H}")
    for k_, pat in ((90, 0x00f000f0), (92, 0x0f000f00), (94, 0xf000f000)):
        A(f"s_mov_b32 s{k_}, {hex(pat)}"); A(f"s_mov_b32 s{k_+1}, {hex(pat)}")
    A(f"v_and_b32 v12, 3, v{vLane}"); A("v_lshlrev_b32 v12, 5, v12")
    A(f"v_lshrrev_b32 v9, 4, v{vLane}"); A("v_lshlrev_b32 v9, 3, v9"); A("v_add_u32 v12, v12, v9")
    A(f"v_bfe_u32 v9, v{vLane}, 2, 2"); A(f"v_mul_u32_u24 v9, {H1_STRIDE}, v9"); A("v_add_u32 v12, v12, v9")
    A(f"s_lshl_b32 s{st1}, s{sTl}, 7"); A(f"s_add_u32 s{st1}, s{st1}, {WS_H1}")
    A(f"v_lshlrev_b32 v6, 2, v{vLane}"); A(f"s_lshl_b32 s{st2}, s3, 8"); A(f"v_add_u32 v6, s{st2}, v6")
    A(f"v_and_b32 v13, 15, v{vLane}"); A("v_lshlrev_b32 v13, 2, v13")
    A(f"s_mov_b32 s{sCnt}, {SPIN_LIMIT}")
    if P1:
        A(f"buffer_load_dwordx4 v[16:19], v8, {srd(sWS)}, s{st0} offen sc1")
        A(f"s_sleep {P1}")
    A.label("L_f1spin")
    if SLP1: A(f"s_sleep {SLP1}")
    A(f"buffer_load_dwordx4 v[16:19], v8, {srd(sWS)}, s{st0} offen sc1")
    A(f"s_waitcnt vmcnt({1 if P1 else 0})")
    spin_check(range(16, 20), 10, "L_f1spin", "L_f1ok")
    stamp(7)
    for s in range(4):
        A(f"v_mfma_f32_16x16x32_bf16 v[{88+4*s}:{91+4*s}], v[{vA+4*s}:{vA+4*s+3}], v[16:19], 0")
    A("v_dot2_f32_bf16 v20, v16, v80, 0"); A("v_dot2_f32_bf16 v21, v16, v16, 0")
    for k in range(1, 4):
        A(f"v_dot2_f32_bf16 v20, v{16+k}, v80, v20"); A(f"v_dot2_f32_bf16 v21, v{16+k}, v{16+k}, v21")
    A("v_permlane32_swap_b32 v20, v21"); A("v_add_f32 v20, v20, v21")
    A("v_mov_b32 v21, v20"); A("v_permlane16_swap_b32 v20, v21"); A("v_add_f32 v20, v20, v21")
    A("v_add_f32_dpp v20, v20, v20 row_ror:4 row_mask:0xf bank_mask:0xf")
    A("v_add_f32_dpp v20, v20, v20 row_ror:8 row_mask:0xf bank_mask:0xf")
    A(f"ds_write_b32 v6, v20 offset:{L_RED2}")
    for k in range(4): A(f"v_cndmask_b32 v{88+k}, v{88+k}, v{92+k}, s[90:91]")
    for k in range(4): A(f"v_cndmask_b32 v{96+k}, v{96+k}, v{100+k}, s[94:95]")
    A("s_or_b64 s[92:93], s[92:93], s[94:95]")
    for k in range(4): A(f"v_cndmask_b32 v{88+k}, v{88+k}, v{96+k}, s[92:93]")
    for k in range(4): A(f"v_add_f32_dpp v{88+k}, v{88+k}, v{88+k} row_ror:4 row_mask:0xf bank_mask:0xf")
    for k in range(4): A(f"v_add_f32_dpp v{88+k}, v{88+k}, v{88+k} row_ror:8 row_mask:0xf bank_mask:0xf")
    A(f"ds_write_b128 v5, v[88:91] offset:{L_RED}")
    A("s_waitcnt vmcnt(0) lgkmcnt(0)" if P1 else "s_waitcnt lgkmcnt(0)")
    A("s_barrier")
    A("s_cmp_lg_u32 s3, 0"); A("s_cbranch_scc1 L_sdone")
    for u in range(4): A(f"ds_read2_b32 v[{32+2*u}:{33+2*u}], v13 offset0:{(L_RED2+u*256)//4 % 256} offset1:{((L_RED2+u*256)//4 + 32) % 256}" if False else "")
    A(f"v_add_u32 v13, {L_RED2}, v13")
    for u in range(4): A(f"ds_read2_b32 v[{32+2*u}:{33+2*u}], v13 offset0:{u*64} offset1:{u*64+32}")
    for u in range(4): A(f"ds_read_b128 v[{16+4*u}:{19+4*u}], v7 offset:{L_RED+u*1024}")
    A("s_waitcnt lgkmcnt(4)")
    A("v_add_f32 v32, v32, v34"); A("v_add_f32 v33, v33, v35"); A("v_add_f32 v36, v36, v38"); A("v_add_f32 v37, v37, v39")
    A("v_add_f32 v32, v32, v36"); A("v_add_f32 v33, v33, v37")
    A("v_mul_f32 v32, 0x3b000000, v32")
    A("v_mul_f32 v33, 0x3b000000, v33")
    A("v_fma_f32 v33, -v32, v32, v33")
    A("v_max_f32 v33, 0, v33")
    A("v_cvt_pk_bf16_f32 v32, v32, v33")
    A("v_and_b32 v33, 0xffff0000, v32"); A("v_lshlrev_b32 v32, 16, v32")
    A("v_add_f32 v33, 0x3727c5ac, v33"); round_bf16(33)
    A("v_sqrt_f32 v33, v33"); round_bf16(33)
    A("v_rcp_f32 v33, v33")
    A("s_waitcnt lgkmcnt(0)")
    for k in range(4):
        A(f"v_add_f32 v{16+k}, v{16+k}, v{20+k}"); A(f"v_add_f32 v{24+k}, v{24+k}, v{28+k}")
    for k in range(4): A(f"v_add_f32 v{16+k}, v{16+k}, v{24+k}")
    for k in range(4): A(f"v_fma_f32 v{16+k}, -v32, v{84+k}, v{16+k}")
    for k in range(4): A(f"v_mul_f32 v{16+k}, v{16+k}, v33")
    for k in range(4): A(f"v_maximum3_f32 v{16+k}, v{16+k}, 0, 0")
    A("v_cvt_pk_bf16_f32 v16, v16, v17"); A("v_cvt_pk_bf16_f32 v17, v18, v19")
    A("v_and_b32 v16, 0x7fff7fff, v16"); A("v_and_b32 v17, 0x7fff7fff, v17")
    A(f"buffer_store_dwordx2 v[16:17], v12, {srd(sWS)}, s{st1} offen sc1")
    stamp(6)
    A("s_branch L_sdone")

    A.label("L_ffn2")
    ffn2_tile(sTl, "s88")
    if COOPQ:
        A(f"v_and_b32 v128, 1, v{vLane}"); A(f"v_mul_u32_u24 v128, {WS_EPB-WS_EP}, v128"); A(f"s_mov_b32 s{st0}, {WS_EP}")
        A(f"buffer_load_dword v130, v128, {srd(sWS)}, s{st0} offen sc1")
    vBw = 64
    if REPACK:
        vBw = 64
        A(f"s_mul_i32 s{st0}, s{sTl}, {W2T_STRIDE}"); A(f"s_add_u32 s{st0}, s{st0}, {WS_W2T}")
        mk_srd(sT, pWS, W2T_STRIDE, off_sgpr=st0)
        A(f"v_lshlrev_b32 v4, 4, v{vLane}"); A(f"s_mul_i32 s{st0}, s3, {11*1024}")
        for s in range(11):
            if s == 4: A(f"s_add_u32 s{st0}, s{st0}, 4096")
            if s == 8: A(f"s_add_u32 s{st0}, s{st0}, 4096")
            A(f"buffer_load_dwordx4 v[{vBw+4*s}:{vBw+4*s+3}], v4, {srd(sT)}, s{st0} offen offset:{(s%4)*1024} sc1")
        A("s_waitcnt vmcnt(0)")
    else:
        tr_addr(4)
        A(f"v_lshrrev_b32 v14, 1, v{vLane}"); A("v_lshlrev_b32 v14, 10, v14")
        A(f"v_and_b32 v6, 1, v{vLane}"); A("v_lshlrev_b32 v6, 4, v6"); A("v_add_u32 v14, v14, v6")
        A(f"s_mul_i32 s{st0}, s3, {384*1024}"); A(f"v_add_u32 v14, s{st0}, v14")
        A(f"s_lshl_b32 s{st1}, s{sTl}, 5")
        A(f"s_add_u32 s{sT}, s{pW2}, s{st1}"); A(f"s_addc_u32 s{sT+1}, s{pW2+1}, 0")
        A(f"s_sub_u32 s{sT+2}, {1376*1024}, s{st1}"); A(f"s_mov_b32 s{sT+3}, 0x20000")
        A(f"s_mov_b32 s{sOff}, 0")
        for n in range(12):
            A(f"buffer_load_dwordx4 v[{16+4*n}:{19+4*n}], v14, {srd(sT)}, s{sOff} offen {WFF}")
            A(f"s_add_u32 s{sOff}, s{sOff}, {32*1024}")
        A(f"v_lshlrev_b32 v15, 4, v{vLane}"); A(f"s_mul_i32 s{st0}, s3, {STG_W}"); A(f"s_add_u32 s{st0}, s{st0}, {L_STG}")
        A(f"v_add_u32 v15, s{st0}, v15")
        for n in range(12):
            A(f"s_waitcnt vmcnt({11-n})")
            A(f"ds_write_b128 v15, v[{16+4*n}:{19+4*n}] offset:{n*1024}")
        vBw = 64
        A("s_waitcnt lgkmcnt(0)")
        for s in range(12):
            A(f"ds_read_b64_tr_b16 v[{vBw+4*s}:{vBw+4*s+1}], v4 offset:{s*1024}")
            A(f"ds_read_b64_tr_b16 v[{vBw+4*s+2}:{vBw+4*s+3}], v4 offset:{s*1024+128}")
            if s % 4 == 3: A("s_waitcnt lgkmcnt(0)")
    A(f"s_and_b32 s{st0}, s88, 3"); A(f"s_mul_i32 s{st0}, s{st0}, {H1_STRIDE}"); A(f"s_add_u32 s{st0}, s{st0}, {WS_H1}")
    mk_srd(sT, pWS, 86*128, off_sgpr=st0)
    A(f"v_bfe_u32 v8, v{vLane}, 2, 2"); A("v_lshlrev_b32 v8, 8, v8")
    A(f"v_lshrrev_b32 v9, 5, v{vLane}"); A("v_lshlrev_b32 v9, 7, v9"); A("v_add_u32 v8, v8, v9")
    A(f"v_and_b32 v9, 3, v{vLane}"); A("v_lshlrev_b32 v9, 5, v9"); A("v_add_u32 v8, v8, v9")
    A(f"v_bfe_u32 v9, v{vLane}, 4, 1"); A("v_lshlrev_b32 v9, 4, v9"); A("v_add_u32 v8, v8, v9")
    A(f"s_mul_i32 s{st0}, s3, {12*256}"); A(f"v_add_u32 v8, s{st0}, v8")
    A(f"v_lshrrev_b32 v10, 4, v{vLane}")
    A(f"v_and_b32 v11, 15, v{vLane}"); A(f"s_lshl_b32 s{st1}, s{sTl}, 4"); A(f"v_add_u32 v11, s{st1}, v11")
    A("v_lshlrev_b32 v12, 1, v11"); A("v_lshlrev_b32 v13, 10, v10"); A("v_add_u32 v12, v12, v13")
    A("v_lshrrev_b32 v13, 5, v11"); A("v_lshlrev_b32 v13, 8, v13"); A("v_lshlrev_b32 v10, 6, v10"); A("v_add_u32 v13, v13, v10")
    A("v_and_b32 v10, 30, v11"); A("v_lshlrev_b32 v10, 1, v10"); A("v_add_u32 v13, v13, v10")
    A(f"v_lshlrev_b32 v6, 2, v{vLane}"); A(f"s_lshl_b32 s{st0}, s3, 8"); A(f"v_add_u32 v5, s{st0}, v6")
    for k in range(16): A(f"v_mov_b32 v{112+k}, 0")
    A("s_mov_b32 s90, 0xffff0000"); A("s_mov_b32 s91, 0"); A("s_mov_b32 s92, 0"); A("s_mov_b32 s93, 0xffff0000"); A("s_mov_b32 s94, 0"); A("s_mov_b32 s95, -1")
    A("s_waitcnt lgkmcnt(0)")
    A(f"s_mov_b32 s{st0}, {WS_H + 8*4096}")
    mk_srd(sC, pOUT, 4096)
    A(f"s_mov_b32 s{sCnt}, {SPIN_LIMIT}")
    A.label("L_f2hspin")
    if SLP2: A(f"s_sleep {SLP2}")
    A(f"buffer_load_dword v14, v13, {srd(sWS)}, s{st0} offen sc1")
    A("s_waitcnt vmcnt(0)")
    spin_check([14], 15, "L_f2hspin", "L_f2hok")
    A("v_and_b32 v11, 1, v11"); A("v_lshlrev_b32 v60, 16, v14"); A("v_and_b32 v61, 0xffff0000, v14")
    A("v_cmp_eq_u32 vcc, 1, v11"); A("v_cndmask_b32 v60, v60, v61, vcc")
    A(f"s_mov_b32 s{sCnt}, {SPIN_LIMIT}")
    if P2:
        for a in range(3): A(f"buffer_load_dwordx4 v[{16+4*a}:{19+4*a}], v8, {srd(sT)}, 0 offen offset:{a*1024} sc1")
        A(f"s_sleep {P2}")
    A.label("L_f2spin")
    if SLB: A(f"s_sleep {SLB}")
    for a in range(3): A(f"buffer_load_dwordx4 v[{16+4*a}:{19+4*a}], v8, {srd(sT)}, 0 offen offset:{a*1024} sc1")
    A(f"s_waitcnt vmcnt({3 if P2 else 0})")
    spin_check(range(16, 28), 15, "L_f2spin", "L_f2ok")
    stamp(7)
    for a in range(3):
        for q_ in range(4):
            A(f"v_mfma_f32_16x16x32_bf16 v[{112+4*q_}:{115+4*q_}], v[{16+4*a}:{19+4*a}], v[{vBw+16*a+4*q_}:{vBw+16*a+4*q_+3}], v[{112+4*q_}:{115+4*q_}]")
    for k in range(4): A(f"v_cndmask_b32 v{112+k}, v{112+k}, v{116+k}, s[90:91]")
    for k in range(4): A(f"v_cndmask_b32 v{120+k}, v{120+k}, v{124+k}, s[92:93]")
    for k in range(4): A(f"v_cndmask_b32 v{112+k}, v{112+k}, v{120+k}, s[94:95]")
    A("v_permlane32_swap_b32 v112, v114"); A("v_permlane32_swap_b32 v113, v115")
    A("v_add_f32 v112, v112, v114"); A("v_add_f32 v113, v113, v115")
    A("v_permlane16_swap_b32 v112, v113"); A("v_add_f32 v112, v112, v113")
    A(f"ds_write_b32 v5, v112 offset:{L_RED}")
    A("s_waitcnt lgkmcnt(0)")
    A("s_barrier")
    A("s_cmp_lg_u32 s3, 0"); A("s_cbranch_scc1 L_sdone")
    for u in range(4): A(f"ds_read_b32 v{120+u}, v6 offset:{L_RED+u*256}")
    A("s_waitcnt lgkmcnt(0)")
    A("v_add_f32 v120, v120, v121"); A("v_add_f32 v122, v122, v123"); A("v_add_f32 v120, v120, v122")
    round_bf16(120)
    A("v_add_f32 v120, v120, v60")
    A("v_cvt_pk_bf16_f32 v120, v120, v120")
    A(f"buffer_store_short v120, v12, {srd(sC)}, 0 offen {OUTF}")
    if COOPQ:
        A("s_cmp_lg_u32 s88, 152"); A("s_cbranch_scc1 L_noep")
        A("v_add_u32 v130, 1, v130")
        A(f"s_mov_b32 s{st0}, {WS_EP}")
        A("s_mov_b64 exec, 3"); A(f"buffer_store_dword v130, v128, {srd(sWS)}, s{st0} offen sc1"); A("s_mov_b64 exec, -1")
        A.label("L_noep")
    stamp(6)
    A("s_branch L_sdone")

    A.label("L_helper")
    if HPRIO: A(f"s_setprio {HPRIO}")
    vW = 128; hAcc = 16; hPlo0, hPhi0, hPlo1, hPhi1 = 24, 25, 26, 27
    vG, vCc = 4, 5
    A(f"s_sub_u32 s{sU}, s3, 4")
    A(f"v_lshrrev_b32 v{vG}, 4, v{vLane}")
    A(f"v_and_b32 v{vCc}, 15, v{vLane}")
    def emit_poison_stores():
        A(f"s_cmp_lg_u32 s{sU}, 0"); A("s_cbranch_scc1 L_nopoison")
        if NOPOIS: A("s_branch L_nopoison")
        for k in range(4): A(f"v_mov_b32 v{32+k}, -1")
        A(f"v_lshrrev_b32 v14, 3, v{vLane}"); A("v_lshlrev_b32 v14, 13, v14")
        A(f"v_and_b32 v15, 7, v{vLane}"); A("v_lshlrev_b32 v15, 4, v15"); A("v_add_u32 v14, v14, v15")
        A(f"s_lshl_b32 s{st0}, s{sB}, 17"); A(f"s_lshl_b32 s{st1}, s{sJ}, 7"); A(f"s_add_u32 s{st0}, s{st0}, s{st1}")
        A(f"buffer_store_dwordx4 v[32:35], v14, {srd(sWS)}, s{st0} offen sc1")
        A(f"s_add_u32 s{st0}, s{st0}, 65536")
        A(f"buffer_store_dwordx4 v[32:35], v14, {srd(sWS)}, s{st0} offen sc1")
        A(f"v_lshlrev_b32 v14, 2, v{vLane}")
        A(f"s_lshl_b32 s{st0}, s{sReg}, 7"); A(f"s_add_u32 s{st0}, s{st0}, {WS_ST}")
        if not SPREAD:
            A("s_mov_b64 exec, 0xf"); A(f"buffer_store_dword v32, v14, {srd(sWS)}, s{st0} offen sc1"); A("s_mov_b64 exec, -1")
        if DEEP:
            A("s_cmp_ge_u32 s2, 8"); A("s_cbranch_scc1 L_pnofin")
            A(f"s_lshl_b32 s{st0}, s2, 7"); A(f"s_add_u32 s{st0}, s{st0}, {WS_FIN}"); A("v_mov_b32 v36, 0")
            A("s_mov_b64 exec, 1"); A(f"buffer_store_dword v36, v36, {srd(sWS)}, s{st0} offen sc1"); A("s_mov_b64 exec, -1")
            A.label("L_pnofin")
        A("s_cmp_ge_u32 s2, 64"); A("s_cbranch_scc1 L_pnored")
        A(f"s_and_b32 s{st0}, s2, 15"); A(f"s_lshl_b32 s{st0}, s{st0}, 8")
        A(f"s_lshr_b32 s{st1}, s2, 4"); A(f"s_lshl_b32 s{st1}, s{st1}, 6"); A(f"s_add_u32 s{st0}, s{st0}, s{st1}")
        A(f"s_add_u32 s{st0}, s{st0}, {WS_H}")
        A(f"v_lshrrev_b32 v36, 4, v{vLane}"); A("v_lshlrev_b32 v36, 12, v36")
        A(f"v_and_b32 v37, 15, v{vLane}"); A("v_lshlrev_b32 v37, 2, v37"); A("v_add_u32 v36, v36, v37")
        A(f"buffer_store_dword v32, v36, {srd(sWS)}, s{st0} offen sc1")
        A(f"s_add_u32 s{st0}, s{st0}, 16384")
        A(f"buffer_store_dword v32, v36, {srd(sWS)}, s{st0} offen sc1")
        A(f"s_add_u32 s{st0}, s{st0}, 16384")
        A("s_mov_b64 exec, 0xffff"); A(f"buffer_store_dword v32, v37, {srd(sWS)}, s{st0} offen sc1"); A("s_mov_b64 exec, -1")
        A("s_branch L_pdone")
        A.label("L_pnored")
        A("s_cmp_ge_u32 s2, 152"); A("s_cbranch_scc1 L_pdone")
        ffn1_tile(sTl)
        A(f"s_cmp_ge_u32 s{sTl}, 86"); A("s_cbranch_scc1 L_pdone")
        A(f"s_lshl_b32 s{st0}, s{sTl}, 7"); A(f"s_add_u32 s{st0}, s{st0}, {WS_H1}")
        A(f"v_lshrrev_b32 v36, 4, v{vLane}"); A(f"v_mul_u32_u24 v36, {H1_STRIDE}, v36")
        A(f"v_and_b32 v37, 15, v{vLane}"); A("v_lshlrev_b32 v37, 3, v37"); A("v_add_u32 v36, v36, v37")
        A(f"buffer_store_dwordx2 v[32:33], v36, {srd(sWS)}, s{st0} offen sc1")
        A.label("L_pdone")
        A.label("L_nopoison")
    sE0, sE1 = 86, 87
    def ln_stats_and_P(xc_regs):
        for r in range(4):
            A(f"v_lshlrev_b32 v{32+2*r}, 16, v{8+r}"); A(f"v_and_b32 v{33+2*r}, 0xffff0000, v{8+r}")
        A("v_add_f32 v40, v32, v33"); A("v_add_f32 v41, v34, v35"); A("v_add_f32 v42, v36, v37"); A("v_add_f32 v43, v38, v39")
        A("v_add_f32 v40, v40, v41"); A("v_add_f32 v42, v42, v43"); A("v_add_f32 v40, v40, v42")
        wave_allreduce("v_add_f32", 40, 41)
        A("v_mul_f32 v40, 0x3b000000, v40")
        for e in range(8): A(f"v_sub_f32 v{32+e}, v{32+e}, v40")
        A("v_mul_f32 v42, v32, v32")
        for e in range(1, 8): A(f"v_fmac_f32 v42, v{32+e}, v{32+e}")
        wave_allreduce("v_add_f32", 42, 41)
        A("v_mul_f32 v42, 0x3b000000, v42")
        round_bf16(40); round_bf16(42)
        A("v_add_f32 v42, 0x3727c5ac, v42"); round_bf16(42)
        A("v_sqrt_f32 v42, v42"); round_bf16(42)
        A("v_rcp_f32 v42, v42")
        for r in xc_regs:
            A(f"v_lshlrev_b32 v{r}, 16, v{r}"); A(f"v_sub_f32 v{r}, v{r}, v40"); round_bf16(r)
            A(f"v_mul_f32 v{r}, v{r}, v42")
    if COOPQ:
        sI = 35
        A(f"s_lshr_b32 s{sI}, s2, 3"); A(f"s_and_b32 s{sI}, s{sI}, 7")
        A(f"s_lshl_b32 s{st0}, s{sU}, 10")
        A(f"v_lshlrev_b32 v6, 2, v{vCc}"); A(f"v_add_u32 v6, v6, v{vG}"); A(f"s_lshl_b32 s{st1}, s{sI}, 6")
        A(f"v_add_u32 v6, s{st1}, v6"); A("v_lshlrev_b32 v6, 1, v6")
        A(f"v_lshlrev_b32 v7, 4, v{vLane}")
        A(f"v_lshlrev_b32 v3, 13, v{vG}"); A(f"v_lshlrev_b32 v14, 4, v{vCc}"); A("v_add_u32 v3, v3, v14")
        A(f"s_lshl_b32 s{st1}, s{sU}, 17"); A(f"v_add_u32 v3, s{st1}, v3")
        A(f"s_lshl_b32 s{sOff}, s{sI}, 19")
        A(f"s_lshl_b32 s{st1}, s{sH}, 8")
        A(f"s_sub_u32 s{st2}, {4<<20}, s{st1}")
        A("s_waitcnt lgkmcnt(0)")
        stamp(7)
        mk_srd(sWS, pWS, WS_SIZE)
        A(f"v_and_b32 v46, 1, v{vLane}"); A(f"v_mul_u32_u24 v46, {WS_EPB-WS_EP}, v46"); A(f"s_mov_b32 s{st3}, {WS_EP}")
        A(f"buffer_load_dword v44, v46, {srd(sWS)}, s{st3} offen sc1")
        mk_srd(sT, pX, 1024, off_sgpr=st0)
        A(f"buffer_load_dwordx4 v[8:11], v7, {srd(sT)}, 0 offen")
        A(f"buffer_load_ushort v12, v6, {srd(sT)}, 0 offen")
        A(f"s_add_u32 s{sC}, s{pWQ}, s{st1}"); A(f"s_addc_u32 s{sC+1}, s{pWQ+1}, 0")
        A(f"s_mov_b32 s{sC+2}, s{st2}"); A(f"s_mov_b32 s{sC+3}, 0x20000")
        for k in range(4):
            A(f"buffer_load_dwordx4 v[{vW+4*k}:{vW+4*k+3}], v3, {srd(sC)}, s{sOff} offen {WQF}")
            if k < 3: A(f"s_add_u32 s{sOff}, s{sOff}, 32768")
        if WOE:
            A(f"v_lshlrev_b32 v47, 10, v{vG}"); A(f"v_lshlrev_b32 v14, 4, v{vCc}"); A("v_add_u32 v47, v47, v14")
            A(f"s_lshl_b32 s{st3}, s{sU}, 8"); A(f"v_add_u32 v47, s{st3}, v47")
            A(f"s_lshl_b32 s{st3}, s{sH}, 17")
            mk_srd(sK, pWO, 131072, off_sgpr=st3)
            A(f"s_mov_b32 s{sOff}, 0")
            for n in range(8*WOE):
                r_ = 64 + 4*n if n < 16 else 192 + 4*(n-16)
                A(f"buffer_load_dwordx4 v[{r_}:{r_+3}], v47, {srd(sK)}, s{sOff} offen {WOF}")
                A(f"s_add_u32 s{sOff}, s{sOff}, 4096")
        A(f"v_lshlrev_b32 v14, 2, v{vLane}"); A("v_mov_b32 v15, -1")
        A("s_mov_b64 exec, 0xfff"); A(f"ds_write_b32 v14, v15 offset:{L_STAT}")
        A("s_mov_b64 exec, 1"); A(f"ds_write_b32 v14, v15 offset:{L_BOOST}")
        A("s_mov_b64 exec, 3"); A("v_mov_b32 v15, 0"); A(f"ds_write_b32 v14, v15 offset:{L_CNT}"); A(f"ds_write_b32 v14, v15 offset:{L_PROG}"); A(f"ds_write_b32 v14, v15 offset:{L_KT}"); A("s_mov_b64 exec, -1")
        A("s_waitcnt lgkmcnt(0)")
        A("s_barrier")
        A(f"v_add_u32 v13, {L_STG}, v7")
        A(f"s_lshl_b32 s{st0}, s{sU}, 12"); A(f"v_add_u32 v14, s{st0}, v13")
        A(f"s_lshl_b32 s{st1}, s{sH}, 2"); A(f"s_add_u32 s{st2}, s{st1}, s{sU}"); A(f"s_lshl_b32 s{st2}, s{st2}, 3"); A(f"s_add_u32 s{st2}, s{st2}, s{sI}")
        A(f"s_lshl_b32 s{st2}, s{st2}, 10"); A(f"s_add_u32 s{st2}, s{st2}, {WS_QX}")
        A(f"s_add_u32 s{st1}, s{st1}, s{sB}"); A(f"s_lshl_b32 s{st1}, s{st1}, 3"); A(f"s_lshl_b32 s{st3}, s{sU}, 1"); A(f"s_add_u32 s{st1}, s{st1}, s{st3}")
        A(f"s_lshl_b32 s{st1}, s{st1}, 10"); A(f"s_add_u32 s{st1}, s{st1}, {WS_QX}")
        A(f"s_waitcnt vmcnt({4 + 8*WOE})")
        stamp(6)
        A(f"v_readlane_b32 s{sE0}, v44, 0"); A(f"v_readlane_b32 s{sE1}, v44, 1")
        A(f"s_add_u32 s{sE0}, s{sE0}, 1"); A(f"s_add_u32 s{sE1}, s{sE1}, 1")
        ln_stats_and_P([12])
        A("v_mov_b32 v15, 0")
        A(f"v_cvt_pk_bf16_f32 v{hPlo0}, v12, v15"); A(f"v_cvt_pk_bf16_f32 v{hPhi0}, v15, v12")
        A(f"s_waitcnt vmcnt({8*WOE})")
        for k in range(4): A(f"ds_write_b128 v14, v[{vW+4*k}:{vW+4*k+3}] offset:{k*1024}")
        A(f"v_mov_b32 v14, {L_CNT2}"); A("v_mov_b32 v15, 1")
        A("s_waitcnt lgkmcnt(0)")
        A("s_mov_b64 exec, 1"); A("ds_add_u32 v14, v15"); A("s_mov_b64 exec, -1")
        A(f"s_mov_b32 s{sCnt}, {SPIN_LIMIT}")
        A.label("L_wspin")
        A("ds_read_b32 v15, v14"); A("s_waitcnt lgkmcnt(0)")
        A("v_cmp_gt_u32 vcc, 4, v15")
        A("s_cbranch_vccz L_wok")
        A(f"s_sub_u32 s{sCnt}, s{sCnt}, 1"); A("s_cbranch_scc0 L_wspin")
        A.label("L_wok")
        for n in range(8): A(f"ds_read_b128 v[{vW+4*n}:{vW+4*n+3}], v13 offset:{n*1024}")
        for e in range(8): A(f"v_mov_b32 v{hAcc+e}, 0")
        for n in range(16):
            if n == 0: A("s_waitcnt lgkmcnt(4)")
            if n == 4:
                A("s_waitcnt lgkmcnt(0)")
                for m in range(8, 16): A(f"ds_read_b128 v[{vW+4*m}:{vW+4*m+3}], v13 offset:{m*1024}")
            if n == 8: A("s_waitcnt lgkmcnt(4)")
            if n == 12: A("s_waitcnt lgkmcnt(0)")
            for k in range(4):
                A(f"v_dot2c_f32_bf16_dpp v{hAcc+2*k}, v{hPlo0}, v{vW+4*n+k} row_newbcast:{n} row_mask:0xf bank_mask:0xf")
                A(f"v_dot2c_f32_bf16_dpp v{hAcc+2*k+1}, v{hPhi0}, v{vW+4*n+k} row_newbcast:{n} row_mask:0xf bank_mask:0xf")
        acc_reduce(hAcc)
        A(f"v_mov_b32 v{hAcc+2}, s{sE0}"); A(f"v_mov_b32 v{hAcc+3}, s{sE1}")
        A(f"buffer_store_dwordx4 v[{hAcc}:{hAcc+3}], v7, {srd(sWS)}, s{st2} offen {QXS}")
        stamp(1)
        if POISQ:
            A(f"s_mov_b32 s89, s{st1}")
            emit_poison_stores()
            A(f"s_mov_b32 s{st1}, s89")
        if QXW < 0: A("s_waitcnt vmcnt(0)")
        elif QXW > 0: A(f"s_sleep {QXW}")
        if DBG & 32: stamp(6)
        A(f"s_mov_b32 s{sCnt}, {SPIN_LIMIT}")
        A.label("L_qxspin")
        A(f"buffer_load_dwordx4 v[32:35], v7, {srd(sWS)}, s{st1} offen {QXL}")
        A(f"buffer_load_dwordx4 v[36:39], v7, {srd(sWS)}, s{st1} offen offset:1024 {QXL}")
        A("s_waitcnt vmcnt(0)")
        A(f"v_xor_b32 v34, s{sE0}, v34"); A(f"v_xor_b32 v35, s{sE1}, v35"); A(f"v_xor_b32 v38, s{sE0}, v38"); A(f"v_xor_b32 v39, s{sE1}, v39")
        A("v_or_b32 v34, v34, v35"); A("v_or3_b32 v34, v34, v38, v39")
        A("v_cmp_ne_u32 vcc, 0, v34")
        A("s_cbranch_vccz L_qxok")
        A(f"s_sub_u32 s{sCnt}, s{sCnt}, 1"); A("s_cbranch_scc0 L_qxspin")
        A.label("L_qxok")
        if DBG & 32: A(f"s_sub_u32 s{sP+14}, {SPIN_LIMIT}, s{sCnt}")
        A(f"v_add_f32 v{hAcc}, v32, v36"); A(f"v_add_f32 v{hAcc+1}, v33, v37")
    else:
        A(f"s_lshl_b32 s{st0}, s{sB}, 10")
        sRq = 35
        if ROTQ:
            A(f"s_lshr_b32 s{sRq}, s2, 3"); A(f"s_and_b32 s{sRq}, s{sRq}, 7"); A(f"s_mul_i32 s{sRq}, s{sRq}, {ROTQ}"); A(f"s_and_b32 s{sRq}, s{sRq}, 31")
        else:
            A(f"s_mov_b32 s{sRq}, 0")
        A(f"s_lshl_b32 s{st1}, s{sU}, 7")
        for t_, reg in ((0, 6), (1, 9)):
            A(f"v_add_u32 v{reg}, s{sRq}, v{vCc}")
            if t_: A(f"v_add_u32 v{reg}, 16, v{reg}")
            A(f"v_and_b32 v{reg}, 31, v{reg}")
            if WQP == 0:
                A(f"v_lshlrev_b32 v{reg}, 2, v{reg}"); A(f"v_add_u32 v{reg}, v{reg}, v{vG}")
            else:
                A(f"v_lshlrev_b32 v14, 5, v{vG}"); A(f"v_add_u32 v{reg}, v{reg}, v14")
            A(f"v_add_u32 v{reg}, s{st1}, v{reg}"); A(f"v_lshlrev_b32 v{reg}, 1, v{reg}")
        A(f"v_mov_b32 v15, v9")
        A(f"v_lshlrev_b32 v7, 4, v{vLane}")
        A(f"v_lshlrev_b32 v3, {13 if WQP == 0 else 18}, v{vG}"); A(f"v_lshlrev_b32 v14, 4, v{vCc}"); A("v_add_u32 v3, v3, v14")
        A(f"s_lshl_b32 s{st1}, s{sU}, 20"); A(f"v_add_u32 v3, s{st1}, v3")
        A(f"s_lshl_b32 s{st1}, s{sH}, 8")
        A(f"s_sub_u32 s{st2}, {4<<20}, s{st1}")
        A("s_waitcnt lgkmcnt(0)")
        stamp(7)
        mk_srd(sT, pX, 1024, off_sgpr=st0)
        A(f"buffer_load_dwordx4 v[8:11], v7, {srd(sT)}, 0 offen")
        A(f"buffer_load_ushort v12, v6, {srd(sT)}, 0 offen")
        A(f"buffer_load_ushort v13, v15, {srd(sT)}, 0 offen")
        A("s_barrier")
        A(f"s_add_u32 s{sC}, s{pWQ}, s{st1}"); A(f"s_addc_u32 s{sC+1}, s{pWQ+1}, 0")
        A(f"s_mov_b32 s{sC+2}, s{st2}"); A(f"s_mov_b32 s{sC+3}, 0x20000")
        A(f"s_lshl_b32 s{sOff}, s{sRq}, {15 if WQP == 0 else 13}")
        for n in range(0 if NOQ else 32):
            A(f"buffer_load_dwordx4 v[{vW+4*n}:{vW+4*n+3}], v3, {srd(sC)}, s{sOff} offen {WQF}")
            if n < 31:
                A(f"s_add_u32 s{sOff}, s{sOff}, {32768 if WQP == 0 else 8192}")
                if ROTQ: A(f"s_and_b32 s{sOff}, s{sOff}, {0xfffff if WQP == 0 else 0x3ffff}")
            if NR and n < 31 and (n+1) % (32//NR) == 0: A("s_barrier")
        if NR == 0 and not PACED: A("s_barrier")
        mk_srd(sWS, pWS, WS_SIZE)
        A(f"v_lshlrev_b32 v14, 2, v{vLane}"); A("v_mov_b32 v15, -1")
        A("s_mov_b64 exec, 0xfff"); A(f"ds_write_b32 v14, v15 offset:{L_STAT}")
        A("s_mov_b64 exec, 1"); A(f"ds_write_b32 v14, v15 offset:{L_BOOST}")
        A("v_mov_b32 v15, 0"); A(f"ds_write_b32 v15, v15 offset:{L_CNT}"); A(f"ds_write_b32 v15, v15 offset:{L_PROG}"); A(f"ds_write_b32 v15, v15 offset:{L_DEEP}"); A("s_mov_b64 exec, -1")
        A("s_waitcnt vmcnt(0)" if NOQ else "s_waitcnt vmcnt(32)")
        stamp(6)
        for r in range(4):
            A(f"v_lshlrev_b32 v{32+2*r}, 16, v{8+r}"); A(f"v_and_b32 v{33+2*r}, 0xffff0000, v{8+r}")
        A("v_add_f32 v40, v32, v33"); A("v_add_f32 v41, v34, v35"); A("v_add_f32 v42, v36, v37"); A("v_add_f32 v43, v38, v39")
        A("v_add_f32 v40, v40, v41"); A("v_add_f32 v42, v42, v43"); A("v_add_f32 v40, v40, v42")
        wave_allreduce("v_add_f32", 40, 41)
        A("v_mul_f32 v40, 0x3b000000, v40")
        for e in range(8): A(f"v_sub_f32 v{32+e}, v{32+e}, v40")
        A("v_mul_f32 v42, v32, v32")
        for e in range(1, 8): A(f"v_fmac_f32 v42, v{32+e}, v{32+e}")
        wave_allreduce("v_add_f32", 42, 41)
        A("v_mul_f32 v42, 0x3b000000, v42")
        round_bf16(40); round_bf16(42)
        A("v_add_f32 v42, 0x3727c5ac, v42"); round_bf16(42)
        A("v_sqrt_f32 v42, v42"); round_bf16(42)
        A("v_rcp_f32 v42, v42")
        for r in (12, 13):
            A(f"v_lshlrev_b32 v{r}, 16, v{r}"); A(f"v_sub_f32 v{r}, v{r}, v40"); round_bf16(r)
            A(f"v_mul_f32 v{r}, v{r}, v42")
        A("v_mov_b32 v15, 0")
        A(f"v_cvt_pk_bf16_f32 v{hPlo0}, v12, v15"); A(f"v_cvt_pk_bf16_f32 v{hPhi0}, v15, v12")
        A(f"v_cvt_pk_bf16_f32 v{hPlo1}, v13, v15"); A(f"v_cvt_pk_bf16_f32 v{hPhi1}, v15, v13")
        A(f"s_mov_b32 s{sTile}, 0")
        stamp(1)
        A.label("L_gemv")
        for e in range(8): A(f"v_mov_b32 v{hAcc+e}, 0")
        for n in range(32):
            A(f"s_waitcnt vmcnt({31-n})")
            lo, hi = (hPlo0, hPhi0) if n < 16 else (hPlo1, hPhi1)
            for k in range(4):
                A(f"v_dot2c_f32_bf16_dpp v{hAcc+2*k}, v{lo}, v{vW+4*n+k} row_newbcast:{n%16} row_mask:0xf bank_mask:0xf")
                A(f"v_dot2c_f32_bf16_dpp v{hAcc+2*k+1}, v{hi}, v{vW+4*n+k} row_newbcast:{n%16} row_mask:0xf bank_mask:0xf")
        acc_reduce(hAcc)
    A(f"v_lshlrev_b32 v14, 5, v{vCc}"); A(f"v_lshlrev_b32 v15, 3, v{vG}"); A("v_add_u32 v14, v14, v15")
    A(f"s_lshl_b32 s{st0}, s{sU}, 9"); A(f"v_add_u32 v14, s{st0}, v14")
    A(f"ds_write_b64 v14, v[{hAcc}:{hAcc+1}] offset:{L_QP}")
    A("s_waitcnt lgkmcnt(0)")
    stamp(2)
    A("s_barrier")
    def emit_poison():
        if not POISQ: emit_poison_stores()
        if TLBV:
            A(f"s_cmp_lg_u32 s{sU}, 1"); A("s_cbranch_scc1 L_notlb")
            A(f"s_lshr_b32 s{st0}, s{sReg}, 1"); A(f"s_lshl_b32 s{st0}, s{st0}, 21")
            mk_srd(sT, pV, 1 << 21, off_sgpr=st0)
            A(f"v_lshlrev_b32 v14, 15, v{vLane}")
            A(f"buffer_load_dword v15, v14, {srd(sT)}, 0 offen nt")
            A("s_waitcnt vmcnt(0)")
            A.label("L_notlb")
        if REPACK:
            A(f"s_lshl_b32 s{st0}, s2, 2"); A(f"s_add_u32 s{st0}, s{st0}, s{sU}")
            A(f"s_cmp_ge_u32 s{st0}, {696 if REPACK else 0}"); A("s_cbranch_scc1 L_rpdone")
            A(f"s_mul_i32 s{st1}, s{sU}, {32*RS}"); A(f"s_add_u32 s{st1}, s{st1}, {L_STG}")
            A(f"v_lshlrev_b32 v15, 4, v{vLane}"); A(f"v_add_u32 v7, s{st1}, v15")
            A(f"v_lshlrev_b32 v6, 3, v{vG}"); A(f"v_lshrrev_b32 v14, 2, v{vCc}"); A("v_add_u32 v6, v6, v14"); A("v_lshlrev_b32 v6, 7, v6")
            A(f"v_and_b32 v14, 3, v{vCc}"); A("v_lshlrev_b32 v14, 3, v14"); A("v_add_u32 v6, v6, v14"); A(f"v_add_u32 v6, s{st1}, v6")
            A(f"v_lshrrev_b32 v3, 3, v{vLane}"); A(f"v_and_b32 v14, 7, v{vLane}"); A("v_lshlrev_b32 v14, 4, v14")
            A(f"s_cmp_ge_u32 s{st0}, 344"); A("s_cbranch_scc1 L_rpw1")
            A(f"s_lshr_b32 s{st2}, s{st0}, 3"); A(f"s_and_b32 s{st3}, s{st0}, 7")
            A("v_lshlrev_b32 v3, 10, v3"); A("v_add_u32 v3, v3, v14")
            A(f"s_lshl_b32 s{sOff}, s{st2}, 15"); A(f"s_lshl_b32 s{st1}, s{st3}, 7"); A(f"s_add_u32 s{sOff}, s{sOff}, s{st1}")
            mk_srd(sT, pW2, 1376*1024)
            A(f"s_mov_b32 s{sTile}, {8*1024}")
            A(f"s_mul_i32 s{st3}, s{st3}, {4*W2T_STRIDE}"); A(f"s_lshl_b32 s{st2}, s{st2}, 10"); A(f"s_add_u32 s{st3}, s{st3}, s{st2}")
            A(f"s_add_u32 s{st3}, s{st3}, {WS_W2T}")
            A(f"s_mov_b32 s{sTl}, {W2T_STRIDE}")
            A("s_branch L_rpgo")
            A.label("L_rpw1")
            A(f"s_sub_u32 s{st0}, s{st0}, 344")
            A(f"s_mul_i32 s{st2}, s{st0}, 2979"); A(f"s_lshr_b32 s{st2}, s{st2}, 16")
            A(f"s_mul_i32 s{st3}, s{st2}, 22"); A(f"s_sub_u32 s{st3}, s{st0}, s{st3}")
            A("v_mul_u32_u24 v3, 2752, v3"); A("v_add_u32 v3, v3, v14")
            A(f"s_mul_i32 s{sOff}, s{st2}, {32*2752}"); A(f"s_lshl_b32 s{st1}, s{st3}, 7"); A(f"s_add_u32 s{sOff}, s{sOff}, s{st1}")
            mk_srd(sT, pW1, 512*2752)
            A(f"s_mov_b32 s{sTile}, {8*2752}")
            A(f"s_lshl_b32 s{st3}, s{st3}, 16"); A(f"s_lshl_b32 s{st2}, s{st2}, 10"); A(f"s_add_u32 s{st3}, s{st3}, s{st2}")
            A(f"s_add_u32 s{st3}, s{st3}, {WS_W1T}")
            A(f"s_mov_b32 s{sTl}, 16384")
            A.label("L_rpgo")
            for n in range(4):
                A(f"buffer_load_dwordx4 v[{32+4*n}:{35+4*n}], v3, {srd(sT)}, s{sOff} offen {WFF}")
                A(f"s_add_u32 s{sOff}, s{sOff}, s{sTile}")
            A("s_waitcnt vmcnt(0)")
            for n in range(4): A(f"ds_write_b128 v7, v[{32+4*n}:{35+4*n}] offset:{n*1024}")
            A("s_waitcnt lgkmcnt(0)")
            for t in range(4):
                A(f"ds_read_b64_tr_b16 v[{48+4*t}:{49+4*t}], v6 offset:{t*32}")
                A(f"ds_read_b64_tr_b16 v[{50+4*t}:{51+4*t}], v6 offset:{t*32+512}")
            A("s_waitcnt lgkmcnt(0)")
            for t in range(4):
                A(f"buffer_store_dwordx4 v[{48+4*t}:{51+4*t}], v15, {srd(sWS)}, s{st3} offen sc1")
                A(f"s_add_u32 s{st3}, s{st3}, s{sTl}")
        A.label("L_rpdone")
        A("s_waitcnt vmcnt(0)")
        if SPREAD == 2:
            A(f"s_cmp_lg_u32 s{sU}, 0"); A("s_cbranch_scc1 L_nosig")
            A(f"s_lshl_b32 s{st0}, s2, 2"); A(f"s_add_u32 s{st0}, s{st0}, {WS_FLAG}")
            A(f"s_mul_i32 s{st1}, s87, 3"); A(f"s_add_u32 s{st1}, s{st1}, s86")
            A(f"v_lshlrev_b32 v14, 10, v{vLane}"); A(f"v_mov_b32 v15, s{st1}")
            A("s_mov_b64 exec, 0xf"); A(f"buffer_store_dword v15, v14, {srd(sWS)}, s{st0} offen sc1"); A("s_mov_b64 exec, -1")
            A.label("L_nosig")
        if not SPREAD:
            A(f"v_mov_b32 v14, {L_CNT}"); A("v_mov_b32 v15, 1")
            A("s_mov_b64 exec, 1"); A("ds_add_rtn_u32 v32, v14, v15"); A("s_waitcnt lgkmcnt(0)"); A("s_mov_b64 exec, -1")
            A(f"v_readfirstlane_b32 s{st0}, v32")
            A(f"s_cmp_lg_u32 s{st0}, 3"); A("s_cbranch_scc1 L_nosig")
            A("v_mov_b32 v14, 0")
            A("s_mov_b64 exec, 1"); A(f"global_atomic_add v14, v15, s[{pDBG}:{pDBG+1}]"); A("s_mov_b64 exec, -1")
            A.label("L_nosig")
    def emit_wo():
        A(f"v_lshlrev_b32 v3, 10, v{vG}"); A(f"v_lshlrev_b32 v14, 4, v{vCc}"); A("v_add_u32 v3, v3, v14")
        A(f"s_lshl_b32 s{st1}, s{sU}, 8"); A(f"v_add_u32 v3, s{st1}, v3")
        A(f"s_lshl_b32 s{st1}, s{sH}, 17")
        mk_srd(sC, pWO, 131072, off_sgpr=st1)
        A(f"s_mul_i32 s{st0}, s{sU}, {32*RS}"); A(f"s_add_u32 s{st0}, s{st0}, {L_STG}")
        A(f"v_mul_u32_u24 v6, {RS}, v{vG}"); A("v_add_u32 v6, v6, v14"); A(f"v_add_u32 v6, s{st0}, v6")
        A(f"v_lshlrev_b32 v7, 3, v{vG}"); A(f"v_lshrrev_b32 v15, 2, v{vCc}"); A("v_add_u32 v7, v7, v15")
        A(f"v_mul_u32_u24 v7, {RS}, v7"); A(f"v_and_b32 v15, 3, v{vCc}"); A("v_lshlrev_b32 v15, 3, v15")
        A("v_add_u32 v7, v7, v15"); A(f"v_add_u32 v7, s{st0}, v7")
        A(f"s_mov_b32 s{sOff}, {WOE*8*4096}")
        if WOC:
            A(f"v_lshlrev_b32 v3, 4, v{vLane}"); A(f"s_lshl_b32 s{st1}, s{sU}, 15"); A(f"v_add_u32 v3, s{st1}, v3")
        for q in range(0 if NOWO else 4):
            src = (64 + 32*q if q < 2 else 192 + 32*(q-2)) if q < WOE else 32
            if q >= WOE and not (WOX & 1):
                for n in range(8):
                    A(f"buffer_load_dwordx4 v[{32+4*n}:{35+4*n}], v3, {srd(sC)}, s{sOff} offen {WOF}")
                    A(f"s_add_u32 s{sOff}, s{sOff}, {1024 if WOC else 4096}")
                    if n % PACE == PACE-1: A("s_waitcnt vmcnt(0)")
            A("s_waitcnt vmcnt(0)")
            if WOX & 2: continue
            for n in range(8): A(f"ds_write_b128 v6, v[{src+4*n}:{src+4*n+3}] offset:{4*n*RS}")
            A("s_waitcnt lgkmcnt(0)")
            for t in range(8):
                A(f"ds_read_b64_tr_b16 v[{vW+32*q+4*t}:{vW+32*q+4*t+1}], v7 offset:{t*32}")
                A(f"ds_read_b64_tr_b16 v[{vW+32*q+4*t+2}:{vW+32*q+4*t+3}], v7 offset:{t*32+4*RS}")
            A("s_waitcnt lgkmcnt(0)")
    if POISLATE:
        emit_wo(); emit_poison()
    else:
        emit_poison(); emit_wo()
    A(f"s_cmp_lg_u32 s{sU}, 0"); A("s_cbranch_scc1 L_nostat")
    if SPREAD == 1:
        assert COOPQ and not REPACK
        A(f"s_mul_i32 s{st0}, s2, 6554"); A(f"s_lshr_b32 s{st0}, s{st0}, 16"); A(f"s_mul_i32 s{st0}, s{st0}, 10"); A(f"s_sub_u32 s{st0}, s2, s{st0}")
        A(f"s_add_u32 s{st0}, s{st0}, 5")
        A(f"v_mov_b32 v14, {L_KT}")
        A(f"s_mov_b32 s{sCnt}, {SPIN_LIMIT}")
        A.label("L_sgspin")
        A("s_sleep 8")
        A("ds_read_b32 v15, v14"); A("s_waitcnt lgkmcnt(0)")
        A(f"v_cmp_gt_u32 vcc, s{st0}, v15")
        A("s_cbranch_vccz L_sgok")
        A(f"s_sub_u32 s{sCnt}, s{sCnt}, 1"); A("s_cbranch_scc0 L_sgspin")
        A.label("L_sgok")
        A("v_mov_b32 v14, 0"); A("v_mov_b32 v15, 1")
        A("s_mov_b64 exec, 1"); A(f"global_atomic_add v14, v15, s[{pDBG}:{pDBG+1}]"); A("s_mov_b64 exec, -1")
    A(f"v_and_b32 v14, 3, v{vLane}"); A("v_lshlrev_b32 v14, 3, v14")
    A(f"s_mov_b32 s{sCnt}, {SPIN_LIMIT}")
    A.label("L_stspin")
    A("s_sleep 8")
    A(f"ds_read_b64 v[32:33], v14 offset:{L_STAT}"); A("s_waitcnt lgkmcnt(0)")
    spin_check([32, 33], 34, "L_stspin", "L_stok")
    if BOOST and BST:
        A("s_and_b32 s93, s2, 4"); A("s_cmp_eq_u32 s93, 0"); A(f"s_cselect_b32 s93, 0, {BST}")
        A(f"v_mov_b32 v48, {L_BOOST}"); A("v_mov_b32 v49, s93")
        A("s_mov_b64 exec, 1"); A("ds_write_b32 v48, v49"); A("s_mov_b64 exec, -1")
    elif BOOST and not (BX & 4):
        A("s_memrealtime s[90:91]")
    A("v_max_f32_dpp v34, v32, v32 quad_perm:[1,0,3,2] row_mask:0xf bank_mask:0xf")
    A("v_max_f32_dpp v34, v34, v34 quad_perm:[2,3,0,1] row_mask:0xf bank_mask:0xf")
    A("v_sub_f32 v35, v32, v34"); A("v_mul_f32 v35, 0x3fb8aa3b, v35"); A("v_exp_f32 v35, v35")
    A("v_mul_f32 v35, v35, v33")
    A("v_add_f32_dpp v35, v35, v35 quad_perm:[1,0,3,2] row_mask:0xf bank_mask:0xf")
    A("v_add_f32_dpp v35, v35, v35 quad_perm:[2,3,0,1] row_mask:0xf bank_mask:0xf")
    A("v_mov_b32 v36, 0x7fc00000")
    sanitize([34, 35], 36)
    A("v_mov_b32 v15, 0")
    A(f"s_lshl_b32 s{st0}, s{sReg}, 7"); A(f"s_add_u32 s{st0}, s{st0}, {WS_ST}")
    if SPREAD:
        if XTEST:
            A("s_getreg_b32 s90, hwreg(HW_REG_XCC_ID)"); A("s_and_b32 s90, s90, 7")
            A("v_and_b32 v35, -8, v35"); A("v_or_b32 v35, s90, v35")
        A("v_mov_b32 v52, v34"); A("v_mov_b32 v53, v35"); A("v_mov_b32 v54, s86"); A("v_mov_b32 v55, s87")
        A("s_mov_b64 exec, 1"); A(f"buffer_store_dwordx4 v[52:55], v15, {srd(sWS)}, s{st0} offen sc1"); A("s_mov_b64 exec, -1")
    else:
        if BOOST and not BST and not (BX & 4):
            A("s_waitcnt lgkmcnt(0)")
            A("s_and_b32 s90, s90, 0x7fffffff")
            A("v_mov_b32 v52, v34"); A("v_mov_b32 v53, v35"); A("v_mov_b32 v54, s90"); A("v_mov_b32 v55, 0")
            A("s_mov_b64 exec, 1"); A(f"buffer_store_dwordx4 v[52:55], v15, {srd(sWS)}, s{st0} offen sc1"); A("s_mov_b64 exec, -1")
        else:
            A("s_mov_b64 exec, 1"); A(f"buffer_store_dwordx2 v[34:35], v15, {srd(sWS)}, s{st0} offen sc1"); A("s_mov_b64 exec, -1")
        A(f"s_mov_b32 s{sCnt}, {SPIN_LIMIT}")
        A.label("L_inspin")
        A(f"global_load_dword v37, v15, s[{pDBG}:{pDBG+1}] sc1"); A("s_waitcnt vmcnt(0)")
        A("v_cmp_gt_u32 vcc, 0x100, v37")
        A("s_cbranch_vccz L_inok")
        A("s_sleep 4")
        A(f"s_sub_u32 s{sCnt}, s{sCnt}, 1"); A("s_cbranch_scc0 L_inspin")
        A.label("L_inok")
    if BOOST and not BST and not (BX & 4):
        A(f"v_bfe_u32 v48, v{vLane}, 1, 2"); A("v_lshlrev_b32 v48, 5, v48")
        A(f"v_bfe_u32 v49, v{vLane}, 3, 2"); A("v_lshlrev_b32 v49, 3, v49"); A("v_add_u32 v48, v48, v49")
        A(f"s_and_b32 s{st1}, s2, 7"); A(f"v_add_u32 v48, s{st1}, v48"); A("v_lshlrev_b32 v48, 1, v48")
        A(f"v_and_b32 v49, 1, v{vLane}"); A("v_add_u32 v48, v48, v49"); A("v_lshlrev_b32 v48, 7, v48")
        A(f"s_mov_b32 s{st1}, {WS_ST + 8}")
        A(f"buffer_load_dword v50, v48, {srd(sWS)}, s{st1} offen sc1"); A("s_waitcnt vmcnt(0)")
        A("v_cmp_ne_u32 vcc, -1, v50")
        A("v_sub_u32 v51, s90, v50"); A("v_lshlrev_b32 v51, 1, v51"); A("v_ashrrev_i32 v51, 1, v51")
        A("v_cvt_f32_i32 v51, v51")
        A("v_mov_b32 v52, 0"); A("v_mov_b32 v53, 1.0")
        A("v_cndmask_b32 v51, v52, v51, vcc"); A("v_cndmask_b32 v53, v52, v53, vcc")
        wave_allreduce("v_add_f32", 51, 52); wave_allreduce("v_add_f32", 53, 52)
        A("v_rcp_f32 v53, v53"); A("v_mul_f32 v51, v51, v53")
        A(f"v_mul_f32 v51, {hex(__import__('struct').unpack('<I', __import__('struct').pack('<f', 1.0/BOOST))[0])}, v51")
        A("v_max_f32 v51, 0, v51"); A("v_min_f32 v51, 0x41800000, v51"); A("v_cvt_u32_f32 v51, v51")
        A(f"v_mov_b32 v48, {L_BOOST}")
        A("s_mov_b64 exec, 1"); A("ds_write_b32 v48, v51"); A("s_mov_b64 exec, -1")
    A(f"s_xor_b32 s{st1}, s{sReg}, 1"); A(f"s_lshl_b32 s{st1}, s{st1}, 7"); A(f"s_add_u32 s{st1}, s{st1}, {WS_ST}")
    A(f"s_mov_b32 s{sCnt}, {SPIN_LIMIT}")
    A.label("L_prspin")
    A("s_sleep 4")
    if SPREAD:
        A(f"buffer_load_dwordx4 v[56:59], v15, {srd(sWS)}, s{st1} offen sc1"); A("s_waitcnt vmcnt(0)")
        A("v_xor_b32 v58, s86, v58"); A("v_xor_b32 v59, s87, v59"); A("v_or_b32 v58, v58, v59")
        A("v_cmp_ne_u32 vcc, 0, v58")
        A("s_cbranch_vccz L_prok")
        A(f"s_sub_u32 s{sCnt}, s{sCnt}, 1"); A("s_cbranch_scc0 L_prspin")
        A.label("L_prok")
        A("v_mov_b32 v38, v56"); A("v_mov_b32 v39, v57")
        if XTEST:
            A("v_readfirstlane_b32 s91, v57"); A("s_and_b32 s91, s91, 7"); A("s_cmp_eq_u32 s91, s90"); A("s_cbranch_scc1 L_xsame")
            A(f"s_mov_b32 s91, {XTEST}")
            A.label("L_xdel"); A("s_sleep 32"); A("s_sub_u32 s91, s91, 1"); A("s_cbranch_scc0 L_xdel")
            A.label("L_xsame")
    else:
        A(f"buffer_load_dwordx2 v[38:39], v15, {srd(sWS)}, s{st1} offen sc1"); A("s_waitcnt vmcnt(0)")
        spin_check([38, 39], 37, "L_prspin", "L_prok")
    A("v_max_f32 v40, v34, v38")
    A("v_sub_f32 v41, v34, v40"); A("v_sub_f32 v42, v38, v40"); A("v_sub_f32 v43, v32, v40")
    for r in (41, 42, 43): A(f"v_mul_f32 v{r}, 0x3fb8aa3b, v{r}")
    for r in (41, 42, 43): A(f"v_exp_f32 v{r}, v{r}")
    A("v_mul_f32 v41, v41, v35"); A("v_fmac_f32 v41, v42, v39")
    A("v_rcp_f32 v41, v41"); A("v_mul_f32 v43, v43, v41")
    sanitize([43], 36)
    A(f"v_lshlrev_b32 v14, 2, v{vLane}")
    A("s_mov_b64 exec, 0xf"); A(f"ds_write_b32 v14, v43 offset:{L_FW}"); A("s_mov_b64 exec, -1")
    A("s_waitcnt lgkmcnt(0)")
    if DEEP:
        A(f"v_mov_b32 v48, {L_PROG}")
        A(f"s_and_b32 s{st0}, s2, 7"); A(f"s_lshl_b32 s{st0}, s{st0}, 7"); A(f"s_add_u32 s{st0}, s{st0}, {WS_FIN}"); A("v_mov_b32 v49, 0")
        A(f"s_mov_b32 s{sCnt}, {SPIN_LIMIT}")
        A.label("L_dpspin")
        A(f"s_sleep {DPS}")
        A("ds_read_b32 v50, v48"); A("s_waitcnt lgkmcnt(0)")
        A(f"v_readfirstlane_b32 s{st1}, v50")
        A(f"s_cmp_eq_u32 s{st1}, 2"); A("s_cbranch_scc1 L_dpdone")
        A(f"s_cmp_eq_u32 s{st1}, 0"); A("s_cbranch_scc1 L_dpnext")
        A(f"buffer_load_dword v50, v49, {srd(sWS)}, s{st0} offen sc1"); A("s_waitcnt vmcnt(0)")
        A(f"v_readfirstlane_b32 s{st1}, v50")
        A(f"s_cmp_lt_u32 s{st1}, {DEEP}"); A("s_cbranch_scc1 L_dpnext")
        A("v_mov_b32 v50, 1"); A("s_mov_b64 exec, 1"); A(f"ds_write_b32 v48, v50 offset:{L_DEEP-L_PROG}"); A("s_mov_b64 exec, -1")
        A("s_waitcnt lgkmcnt(0)"); A("s_branch L_dpdone")
        A.label("L_dpnext")
        A(f"s_sub_u32 s{sCnt}, s{sCnt}, 1"); A("s_cbranch_scc0 L_dpspin")
        A.label("L_dpdone")
    A.label("L_nostat")
    A(f"v_and_b32 v14, 3, v{vLane}"); A("v_lshlrev_b32 v14, 8, v14")
    A(f"v_lshlrev_b32 v15, 4, v{vG}"); A("v_add_u32 v14, v14, v15")
    A(f"v_bfe_u32 v14, v{vLane}, 2, 2"); A("v_lshlrev_b32 v14, 8, v14"); A("v_add_u32 v14, v14, v15")
    A(f"v_lshlrev_b32 v6, 13, v{vG}"); A(f"v_lshlrev_b32 v7, 3, v{vCc}"); A("v_add_u32 v6, v6, v7")
    A(f"s_lshl_b32 s{st0}, s{sB}, 4"); A(f"s_lshl_b32 s{st1}, s{sU}, 2"); A(f"s_add_u32 s{st0}, s{st0}, s{st1}")
    A(f"s_lshl_b32 s{st0}, s{st0}, 13"); A(f"s_lshl_b32 s{st1}, s{sJ}, 7"); A(f"s_add_u32 s{sReg}, s{st0}, s{st1}")
    A("v_mov_b32 v7, 0x7fc00000")
    for k in range(32): A(f"v_mov_b32 v{64+k}, 0")
    stamp(3)
    A("s_barrier")
    stamp(4)
    for q in range(4): A(f"ds_read_b128 v[{32+4*q}:{35+4*q}], v14 offset:{L_OW+q*64}")
    for q in range(4):
        A(f"s_waitcnt lgkmcnt({3-q})")
        for t in range(8):
            A(f"v_mfma_f32_16x16x32_bf16 v[{64+4*t}:{67+4*t}], v[{32+4*q}:{35+4*q}], v[{vW+32*q+4*t}:{vW+32*q+4*t+3}], v[{64+4*t}:{67+4*t}]")
    Dt = [64+4*t for t in range(8)]
    for e in range(4): A(f"v_permlane32_swap_b32 v{Dt[e]}, v{Dt[e+4]}")
    for e in range(4): A(f"v_add_f32 v{Dt[e]}, v{Dt[e]}, v{Dt[e+4]}")
    A(f"v_permlane16_swap_b32 v{Dt[0]}, v{Dt[2]}"); A(f"v_permlane16_swap_b32 v{Dt[1]}, v{Dt[3]}")
    A(f"v_add_f32 v16, v{Dt[0]}, v{Dt[2]}"); A(f"v_add_f32 v17, v{Dt[1]}, v{Dt[3]}")
    sanitize([16, 17], 7)
    A(f"buffer_store_dwordx2 v[16:17], v6, {srd(sWS)}, s{sReg} offen sc1")
    A("s_barrier")
    stamp(5)
    if PROF and not COOPQ:
        A("s_waitcnt vmcnt(0)")
        stamp(1)
    prof_store(0)
    A.label("L_end")
    A("s_endpgm")
    A('.section .rodata,"a"'); A(".p2align 6"); A(f".amdhsa_kernel {NAME}")
    A("  .amdhsa_next_free_vgpr 256"); A("  .amdhsa_next_free_sgpr 96"); A("  .amdhsa_accum_offset 256")
    A("  .amdhsa_group_segment_fixed_size 0"); A("  .amdhsa_kernarg_size 88"); A("  .amdhsa_user_sgpr_count 2")
    A("  .amdhsa_user_sgpr_kernarg_segment_ptr 1"); A("  .amdhsa_system_sgpr_workgroup_id_x 1")
    A("  .amdhsa_float_denorm_mode_32 3"); A("  .amdhsa_float_denorm_mode_16_64 3")
    A(".end_amdhsa_kernel")
    return A.finalize()

if __name__ == "__main__":
    import build
    kw = json.loads(sys.argv[2]) if len(sys.argv) > 2 else {}
    s = gen(**kw)
    open(sys.argv[1], "w").write(s)
    build.build(sys.argv[1])
```
